```python
import torch

def _softmax(x, axis=-1):
    return torch.softmax(x, dim=axis)
def _gelu(x):
    return torch.nn.functional.gelu(x, approximate="tanh")
def _silu(x):
    return torch.nn.functional.silu(x)
def _sigmoid(x):
    return torch.sigmoid(x)
def _layernorm(x, axis=-1, eps=1e-5):
    m = x.mean(dim=axis, keepdim=True)
    v = x.var(dim=axis, keepdim=True, unbiased=False)
    return (x - m) / torch.sqrt(v + eps)
def _scatter_add(tgt, idx, src, axis=0):
    return tgt.clone().index_add_(axis, idx, src)
def _segment_sum(src, seg, n):
    out = torch.zeros((n,) + src.shape[1:], dtype=src.dtype)
    return out.index_add_(0, seg, src)
def _pad(x, pw):
    flat = tuple(v for pair in reversed(pw) for v in pair)
    return torch.nn.functional.pad(x, flat)

kernel_name = 'sequential_preLN__mha_block_cached__dense_activation_squared_relu__decode'

def setup_inputs():

    _w = (lambda a: (lambda t: t.to(torch.bfloat16) if t.is_floating_point() else t)(torch.as_tensor(a)))
    def _A_setup():
        B, Sq, D = 2, 1, 512
        H, Sk, Dh = 32, 4096, 128
        return {
            "x": _w((lambda *s: torch.randn(*s, dtype=torch.bfloat16) * 0.05)(B, Sq, D)),
            "k_cache": _w((lambda *s: torch.randn(*s, dtype=torch.bfloat16) * 3.2)(B, H, Sk, Dh)),
            "v_cache": _w((lambda *s: torch.randn(*s, dtype=torch.bfloat16) * 0.4)(B, H, Sk, Dh)),
            "wq": _w((lambda *s: torch.randn(*s, dtype=torch.bfloat16) * 3.2)(D, H * Dh) * (D ** -0.5)),
            "wo": _w((lambda *s: torch.randn(*s, dtype=torch.bfloat16) * 0.4)(H * Dh, D) * ((H * Dh) ** -0.5)),
        }
    _A_in = _A_setup()

    def _B_setup():
        B, S, D, F = 2, 1, 512, 1376
        return {
            "x": _w((lambda *s: torch.randn(*s, dtype=torch.bfloat16) * 0.05)(B, S, D)),
            "w1": _w((lambda *s: torch.randn(*s, dtype=torch.bfloat16) * 0.05)(D, F)),
            "b1": _w((lambda *s: torch.randn(*s, dtype=torch.bfloat16) * 0.8)(F)),
            "w2": _w((lambda *s: torch.randn(*s, dtype=torch.bfloat16) * 0.05)(F, D)),
            "b2": _w((lambda *s: torch.randn(*s, dtype=torch.bfloat16) * 3.2)(D)),
        }
    _B_in = _B_setup()

    return {
        "A_x": _A_in["x"],
        "A_k_cache": _A_in["k_cache"],
        "A_v_cache": _A_in["v_cache"],
        "A_wq": _A_in["wq"],
        "A_wo": _A_in["wo"],
        "B_x": _B_in["x"],
        "B_w1": _B_in["w1"],
        "B_b1": _B_in["b1"],
        "B_w2": _B_in["w2"],
        "B_b2": _B_in["b2"],
    }

def reference(A_x, A_k_cache, A_v_cache, A_wq, A_wo, B_x, B_w1, B_b1, B_w2, B_b2):
    def _A_ref(x, k_cache, v_cache, wq, wo):
        B, Sq, D = x.shape
        H, Dh = 32, 128
        q = (lambda x, *d: x.permute(*d))((x @ wq).reshape(B, Sq, H, Dh), 0, 2, 1, 3)
        scores = torch.einsum("bhqd,bhkd->bhqk", q, k_cache) * (Dh ** -0.5)
        p = _softmax(scores, axis=-1)
        o = torch.einsum("bhqk,bhkd->bhqd", p, v_cache)
        return (lambda x, *d: x.permute(*d))(o, 0, 2, 1, 3).reshape(B, Sq, H * Dh) @ wo

    def _B_ref(x, w1, b1, w2, b2):
        h = torch.einsum("bsd,df->bsf", x, w1) + b1
        zero = torch.zeros_like(h)
        r = torch.where(h > zero, h, zero)
        h = r * r
        out = torch.einsum("bsf,fd->bsd", h, w2) + b2
        return out

    x = A_x
    h = x + _A_ref(_layernorm(x, axis=-1), A_k_cache, A_v_cache, A_wq, A_wo)
    h2 = h + _B_ref(_layernorm(h, axis=-1), B_w1, B_b1, B_w2, B_b2)
    return h2
```

```python
import sys
NAME = "sequential_preLN__mha_block_cached__dense_activation_squared_relu__decode"

HEADER = open("cdna_kernels/" + NAME + ".s.ref").read().split("; Override launch")[0] \
    if __name__ == "__main__" else ""

WS_E = 0
WS_XC = 0x1000
WS_QP = 0x10000
WS_OP = 0x50000
OSTR = 640
WS_YP = 0x80000
WS_ZP = 0x90000
WS_DIAG = 0x100000
WS_SIZE = 0x200000
L_OW = 0
L_MX = 4096
L_LW = 4096 + 64
L_Y = 4096 + 256
L_ST = L_Y + 1024
L_HS = L_ST + 128
L_F1 = L_HS + 2048
L_WO = 12288
L_W1 = L_WO + 16384
L_W2 = L_W1 + 49152
LDS_BYTES = L_W2 + 49152 + 2048
assert L_F1 + 4096 <= L_WO

LOG2E = 0x3fb8aa3b
SCALE = 0x3db504f3
EPS = 0x3727c5ac


def gen(diag=False, inter=1, wopos="end", wflags=" nt", woflags=" nt", sleep=1, local=True, npre=20, only=None, prio=0, wqflags=" nt", qbar=0, depth=0, k0=8, dchunk=1):
    L = []

    def A(s):
        L.append("    " + s if not s.endswith(":") else s)

    def nop(n):
        if n > 0:
            A(f"s_nop {n-1}")

    def vr(a, n=4):
        return f"v[{a}:{a+n-1}]"

    sX, sK, sV, sWQ, sWO, sW1, sB1, sW2, sB2, sOUT, sWS = 8, 10, 12, 14, 16, 20, 22, 24, 26, 28, 32
    rK, rV, rWS, rT = 36, 40, 44, 48
    sGX, sR, sH, sS, sB, sWV = 52, 53, 54, 55, 56, 57
    sT, sT0, sT1, sT2, sT3 = 58, 59, 60, 61, 62
    sLOC, sCNT, sTMP, sTMP2, sXW = 63, 64, 65, 66, 67
    sTILE = 68
    sID = 76
    sM0, sM1, sM2, sM3 = 78, 80, 82, 84
    sEX = 86
    sST = 88
    Tk = [sT0, sT1, sT2, sT3]

    vL, vG, vC = 1, 2, 3
    vKV = 4
    vA0, vA1, vA2 = 5, 6, 7
    vQ = 8
    vMK = 12
    vACC = 16
    vS = 20
    vFF = 28
    vM = 29
    vT0, vT1 = 30, 31
    vTMP = 32
    vK = 48
    vV = 176

    stamps = []

    def stamp(name):
        if not diag:
            return
        if only is not None and name not in only and name not in ("strm", "end"):
            return
        if only is None and name.startswith("_"):
            return
        i = len(stamps)
        stamps.append(name)
        A(f"s_memrealtime s[{sEX+0}:{sEX+1}]")
        A("s_waitcnt lgkmcnt(0)")
        A(f"s_mov_b32 s{sST+i}, s{sEX}")

    def srd(r, p, size):
        A(f"s_mov_b32 s{r}, s{p}")
        A(f"s_mov_b32 s{r+1}, s{p+1}")
        A(f"s_mov_b32 s{r+2}, {size}")
        A(f"s_mov_b32 s{r+3}, 0x20000")

    def tag(base):
        for k in range(4):
            A(f"v_bfi_b32 v{base+k}, v{vFF}, s{Tk[k]}, v{base+k}")

    def untag_check(regs, acc):
        for b in regs:
            for k in range(4):
                A(f"v_xor_b32 v{b+k}, s{Tk[k]}, v{b+k}")
        flat = [b + k for b in regs for k in range(4)]
        A(f"v_or3_b32 v{acc}, v{flat[0]}, v{flat[1]}, v{flat[2]}")
        rest = flat[3:]
        while len(rest) >= 2:
            A(f"v_or3_b32 v{acc}, v{acc}, v{rest[0]}, v{rest[1]}")
            rest = rest[2:]
        if rest:
            A(f"v_or_b32 v{acc}, v{acc}, v{rest[0]}")
        A(f"v_and_b32 v{acc}, v{vFF}, v{acc}")
        A(f"v_cmp_ne_u32 vcc, 0, v{acc}")

    def poll(name, issue, regs, acc, first_wait=None):
        A(f"s_mov_b32 s{sCNT}, 0x4000")
        if first_wait is not None:
            A(f"s_waitcnt vmcnt({first_wait})")
            A(f"s_branch L_{name}_chk")
        A(f"L_{name}_again:")
        issue()
        A("s_waitcnt vmcnt(0)")
        A(f"L_{name}_chk:")
        untag_check(regs, acc)
        A(f"s_cbranch_vccz L_{name}_ok")
        if sleep:
            A(f"s_sleep {sleep}")
        A(f"s_sub_u32 s{sCNT}, s{sCNT}, 1")
        A(f"s_cbranch_scc0 L_{name}_again")
        A(f"L_{name}_ok:")

    def dpp(op, d, s0, s1, ctl, bank=0xf):
        A(f"{op}_dpp v{d}, v{s0}, v{s1} {ctl} row_mask:0xf bank_mask:{hex(bank)}")

    def quad_allreduce(regs):
        pad = max(0, 3 - len(regs))
        for r in regs:
            dpp("v_add_f32", r, r, r, "quad_perm:[1,0,3,2]")
        nop(pad)
        for r in regs:
            dpp("v_add_f32", r, r, r, "quad_perm:[2,3,0,1]")

    def round_bf16(regs, tmp):
        for i in range(0, len(regs), 2):
            A(f"v_cvt_pk_bf16_f32 v{tmp+i//2}, v{regs[i]}, v{regs[i+1]}")
        for i in range(0, len(regs), 2):
            A(f"v_lshlrev_b32 v{regs[i]}, 16, v{tmp+i//2}")
            A(f"v_and_b32 v{regs[i+1]}, 0xffff0000, v{tmp+i//2}")

    def round1(r):
        A(f"v_cvt_pk_bf16_f32 v{r}, v{r}, v{r}")
        A(f"v_lshlrev_b32 v{r}, 16, v{r}")

    def unpack(dst, src, n):
        for i in range(n):
            A(f"v_lshlrev_b32 v{dst+2*i}, 16, v{src+i}")
            A(f"v_and_b32 v{dst+2*i+1}, 0xffff0000, v{src+i}")

    def ln_stats(vsum, vsq):
        A(f"v_mul_f32 v{vsum}, 0x3b000000, v{vsum}")
        A(f"v_mul_f32 v{vsq}, 0x3b000000, v{vsq}")
        A(f"v_fma_f32 v{vsq}, -v{vsum}, v{vsum}, v{vsq}")
        A(f"v_max_f32 v{vsq}, 0, v{vsq}")
        A(f"v_cvt_pk_bf16_f32 v{vsq}, v{vsum}, v{vsq}")
        A(f"v_lshlrev_b32 v{vsum}, 16, v{vsq}")
        A(f"v_and_b32 v{vsq}, 0xffff0000, v{vsq}")
        A(f"v_add_f32 v{vsq}, {hex(EPS)}, v{vsq}")
        round1(vsq)
        A(f"v_sqrt_f32 v{vsq}, v{vsq}")
        nop(1)
        round1(vsq)
        A(f"v_rcp_f32 v{vsq}, v{vsq}")
        nop(1)

    L.append(f"; @launch grid=(256,1,1) block=(512,1,1) lds={LDS_BYTES}")
    L.append('.amdgcn_target "amdgcn-amd-amdhsa--gfx950"')
    L.append(".text")
    L.append(f".globl {NAME}_kernel")
    L.append(".p2align 8")
    L.append(f".type {NAME}_kernel,@function")
    L.append(f"{NAME}_kernel:")
    A("s_cmp_ge_u32 s2, 256")
    A("s_cbranch_scc1 L_end")
    A("s_load_dwordx16 s[8:23], s[0:1], 0")
    A("s_load_dwordx8 s[24:31], s[0:1], 64")
    A("s_load_dwordx2 s[32:33], s[0:1], 96")
    if diag:
        A(f"s_memrealtime s[{sEX}:{sEX+1}]")
        for i in range(14):
            A(f"s_mov_b32 s{sST+i}, 0")
    A(f"v_lshrrev_b32 v{vA0}, 6, v0")
    A(f"v_and_b32 v{vL}, 63, v0")
    A(f"v_readfirstlane_b32 s{sWV}, v{vA0}")
    A(f"v_lshrrev_b32 v{vG}, 4, v{vL}")
    A(f"v_and_b32 v{vC}, 15, v{vL}")
    A(f"s_and_b32 s{sGX}, s2, 7")
    A(f"s_lshr_b32 s{sR}, s2, 3")
    A(f"s_lshl_b32 s{sID}, s{sGX}, 5")
    A(f"s_add_u32 s{sID}, s{sID}, s{sR}")
    A(f"s_lshr_b32 s{sH}, s{sID}, 3")
    A(f"s_and_b32 s{sS}, s{sR}, 7")
    A(f"s_lshr_b32 s{sB}, s{sS}, 2")
    A(f"s_lshl_b32 s{sTMP}, s{sB}, 5")
    A(f"s_add_u32 s{sTMP}, s{sTMP}, s{sH}")
    A(f"s_lshl_b32 s{sTMP}, s{sTMP}, 20")
    A(f"s_and_b32 s{sTMP2}, s{sS}, 3")
    A(f"s_lshl_b32 s{sTMP2}, s{sTMP2}, 18")
    A(f"s_add_u32 s{sTMP}, s{sTMP}, s{sTMP2}")
    A(f"s_lshl_b32 s{sTMP2}, s{sWV}, {12 if inter else 15}")
    A(f"s_add_u32 s{sTMP}, s{sTMP}, s{sTMP2}")
    A(f"v_lshl_add_u32 v{vKV}, v{vL}, 4, s{sTMP}")
    for t in range(8):
        A(f"s_mov_b32 s{sTILE+t}, {t * (32768 if inter else 4096)}")
    A(f"v_mov_b32 v{vFF}, 0xff")
    A("s_waitcnt lgkmcnt(0)")
    if diag:
        A(f"s_mov_b32 s{sST}, s{sEX}")
        stamps.append("start")
    A(f"s_load_dword s{sT}, s[{sWS}:{sWS+1}], {WS_E}")
    srd(rK, sK, 0x4000000)
    srd(rV, sV, 0x4000000)
    srd(rWS, sWS, WS_SIZE)

    def kload(i):
        t, j = divmod(i, 4)
        if depth and i >= depth and i % dchunk == 0:
            A(f"s_waitcnt vmcnt({depth-dchunk})")
        A(f"buffer_load_dwordx4 {vr(vK+4*i)}, v{vKV}, s[{rK}:{rK+3}], s{sTILE+t} offen offset:{j*1024} nt")

    def vreg(i):
        return vV + 4 * i if i < npre else vK + 4 * (i - npre)

    def vload(i):
        t, j = divmod(i, 4)
        if depth and i % dchunk == 0:
            A(f"s_waitcnt vmcnt({depth-dchunk})")
        A(f"buffer_load_dwordx4 {vr(vreg(i))}, v{vKV}, s[{rV}:{rV+3}], s{sTILE+t} offen offset:{j*1024} nt")

    def make_masks():
        A(f"v_and_b32 v{vA0}, 1, v{vL}")
        A(f"v_lshlrev_b32 v{vA0}, 4, v{vA0}")
        A(f"v_mov_b32 v{vA1}, 0xffff")
        A(f"v_lshlrev_b32 v{vA1}, v{vA0}, v{vA1}")
        A(f"v_bfe_u32 v{vA0}, v{vL}, 1, 2")
        for j in range(4):
            A(f"v_cmp_eq_u32 vcc, {j}, v{vA0}")
            nop(2)
            A(f"v_cndmask_b32 v{vMK+j}, 0, v{vA1}, vcc")

    def epoch():
        A("s_waitcnt lgkmcnt(0)")
        A(f"s_add_u32 s{sT}, s{sT}, 0x01010101")
        A(f"s_and_b32 s{sT0}, s{sT}, 0xff")
        A(f"s_bfe_u32 s{sT1}, s{sT}, 0x80008")
        A(f"s_bfe_u32 s{sT2}, s{sT}, 0x80010")
        A(f"s_lshr_b32 s{sT3}, s{sT}, 24")
        A(f"s_getreg_b32 s{sXW}, hwreg(HW_REG_XCC_ID, 0, 4)")
        A(f"s_lshl_b32 s{sXW}, s{sXW}, 28")
        A(f"s_add_u32 s{sXW}, s{sXW}, s{sT}")

    A(f"s_cmp_lg_u32 s{sWV}, 0")
    A("s_cbranch_scc1 L_noq0")
    if prio:
        A(f"s_setprio {prio}")
    vXS, vXA, vW = vK, vK + 8, vV
    A(f"v_lshrrev_b32 v{vA0}, 3, v{vC}")
    A(f"v_lshlrev_b32 v{vA0}, 10, v{vA0}")
    A(f"v_and_b32 v{vA1}, 7, v{vC}")
    A(f"v_lshl_add_u32 v{vA1}, v{vG}, 3, v{vA1}")
    A(f"v_lshl_add_u32 v{vA1}, v{vA1}, 5, v{vA0}")
    A(f"v_lshl_add_u32 v{vA0}, v{vG}, 5, v{vA0}")
    A(f"s_lshl_b32 s{sTMP}, s{sS}, 7")
    A(f"v_add_u32 v{vA0}, s{sTMP}, v{vA0}")
    A(f"global_load_dwordx4 {vr(vXS)}, v{vA1}, s[{sX}:{sX+1}]")
    A(f"global_load_dwordx4 {vr(vXS+4)}, v{vA1}, s[{sX}:{sX+1}] offset:16")
    A(f"global_load_dwordx4 {vr(vXA)}, v{vA0}, s[{sX}:{sX+1}]")
    A(f"global_load_dwordx4 {vr(vXA+4)}, v{vA0}, s[{sX}:{sX+1}] offset:16")
    srd(rT, sWQ, 0x400000)
    A(f"s_lshl_b32 s{sTMP}, s{sS}, 19")
    A(f"s_lshl_b32 s{sTMP2}, s{sH}, 8")
    A(f"s_add_u32 s{sTMP}, s{sTMP}, s{sTMP2}")
    A(f"v_lshlrev_b32 v{vA2}, 17, v{vG}")
    A(f"v_lshl_add_u32 v{vA2}, v{vC}, 4, v{vA2}")
    for j in range(16):
        A(f"buffer_load_dwordx4 {vr(vW+4*j)}, v{vA2}, s[{rT}:{rT+3}], s{sTMP} offen{wqflags}")
        if j < 15:
            A(f"s_add_u32 s{sTMP}, s{sTMP}, 8192")
    make_masks()
    epoch()
    stamp("_ep")
    A(f"v_mov_b32 v{vA0}, 0x3f803f80")
    A("s_waitcnt vmcnt(18)")
    stamp("_x")
    s0, s1 = vT0, vT1
    for i in range(8):
        A(f"v_dot2_f32_bf16 v{s0}, v{vXS+i}, v{vA0}, " + ("0" if i == 0 else f"v{s0}"))
        A(f"v_dot2_f32_bf16 v{s1}, v{vXS+i}, v{vXS+i}, " + ("0" if i == 0 else f"v{s1}"))
    nop(3)
    for ctl in ("quad_perm:[1,0,3,2]", "quad_perm:[2,3,0,1]", "row_half_mirror"):
        dpp("v_add_f32", s0, s0, s0, ctl)
        dpp("v_add_f32", s1, s1, s1, ctl)
        nop(1)
    for sw in ("v_permlane16_swap_b32", "v_permlane32_swap_b32"):
        A(f"v_mov_b32 v{vA0}, v{s0}")
        A(f"v_mov_b32 v{vA1}, v{s1}")
        nop(2)
        A(f"{sw} v{s0}, v{vA0}")
        A(f"{sw} v{s1}, v{vA1}")
        nop(1)
        A(f"v_add_f32 v{s0}, v{s0}, v{vA0}")
        A(f"v_add_f32 v{s1}, v{s1}, v{vA1}")
    ln_stats(s0, s1)
    A("s_waitcnt vmcnt(16)")
    vY = vK + 16
    unpack(vY, vXA, 8)
    for i in range(16):
        A(f"v_sub_f32 v{vY+i}, v{vY+i}, v{s0}")
    round_bf16([vY + i for i in range(16)], vXS)
    for i in range(16):
        A(f"v_mul_f32 v{vY+i}, v{vY+i}, v{s1}")
    for i in range(16):
        A(f"v_cvt_pk_bf16_f32 v{vY+i}, v{vY+i}, v{vY+i}")
    vAB = vK + 32
    for j in range(16):
        for k in range(4):
            A(f"v_and_b32 v{vAB+4*j+k}, v{vMK+k}, v{vY+j}")
    stamp("_ln")
    for j in range(16):
        A(f"s_waitcnt vmcnt({15-j})")
        if j in (0, 7, 15):
            stamp(f"_w{j}")
        A(f"v_mfma_f32_16x16x32_bf16 {vr(vACC)}, {vr(vAB+4*j)}, {vr(vW+4*j)}, " + ("0" if j == 0 else vr(vACC)))
    A(f"v_lshrrev_b32 v{vA0}, 1, v{vG}")
    A(f"v_lshlrev_b32 v{vA0}, 9, v{vA0}")
    A(f"v_lshl_add_u32 v{vA0}, v{vC}, 5, v{vA0}")
    A(f"v_and_b32 v{vA1}, 1, v{vG}")
    A(f"v_lshl_add_u32 v{vA0}, v{vA1}, 4, v{vA0}")
    A(f"s_lshl_b32 s{sTMP}, s{sID}, 10")
    A(f"s_add_u32 s{sTMP}, s{sTMP}, {WS_QP}")
    A(f"s_lshl_b32 s{sTMP2}, s{sID}, 2")
    A(f"s_add_u32 s{sTMP2}, s{sTMP2}, {WS_XC}")
    A(f"v_mov_b32 v{vA1}, s{sXW}")
    A(f"v_mov_b32 v{vA2}, 0")
    tag(vACC)
    A(f"buffer_store_dwordx4 {vr(vACC)}, v{vA0}, s[{rWS}:{rWS+3}], s{sTMP} offen sc1")
    A("s_mov_b64 exec, 1")
    A(f"buffer_store_dword v{vA1}, v{vA2}, s[{rWS}:{rWS+3}], s{sTMP2} offen sc1")
    A("s_mov_b64 exec, -1")
    stamp("qpub")
    if prio:
        A("s_setprio 0")
    if qbar:
        A("s_barrier")
        for i in range(k0):
            kload(i)
        A("s_branch L_noq")
    A("L_noq0:")
    if qbar:
        for i in range(k0):
            kload(i)
        A("s_barrier")
    A("L_noq:")

    def dma(voff, soff, ldsreg_expr, flags):
        A(ldsreg_expr)
        nop(1)
        A(f"buffer_load_dwordx4 v{voff}, s[{rT}:{rT+3}], {soff} offen{flags} lds")

    def wo_dma():
        srd(rT, sWO, 0x400000)
        A(f"v_lshrrev_b32 v{vA0}, 1, v{vL}")
        A(f"v_lshlrev_b32 v{vA0}, 10, v{vA0}")
        A(f"v_and_b32 v{vA1}, 1, v{vL}")
        A(f"v_lshl_add_u32 v{vA0}, v{vA1}, 4, v{vA0}")
        A(f"s_lshl_b32 s{sTMP}, s{sGX}, 19")
        A(f"s_lshl_b32 s{sTMP2}, s{sWV}, 16")
        A(f"s_add_u32 s{sTMP}, s{sTMP}, s{sTMP2}")
        A(f"s_lshl_b32 s{sTMP2}, s{sR}, 5")
        A(f"s_add_u32 s{sTMP}, s{sTMP}, s{sTMP2}")
        A(f"s_lshl_b32 s{sTMP2}, s{sWV}, 11")
        for u in range(2):
            dma(vA0, f"s{sTMP}", f"s_add_u32 m0, s{sTMP2}, {L_WO + u*1024}", woflags)
            if u == 0:
                A(f"s_add_u32 s{sTMP}, s{sTMP}, 32768")

    A(f"s_cmp_ge_u32 s{sID}, 29")
    A("s_cbranch_scc1 L_noffnw")
    srd(rT, sW1, 512 * 2752)
    A(f"v_lshrrev_b32 v{vA0}, 1, v{vL}")
    A(f"v_mul_u32_u24 v{vA0}, 2752, v{vA0}")
    A(f"v_and_b32 v{vA1}, 1, v{vL}")
    A(f"v_lshl_add_u32 v{vA0}, v{vA1}, 4, v{vA0}")
    A(f"s_mul_i32 s{sTMP}, s{sWV}, {64*2752}")
    A(f"s_mul_i32 s{sTMP2}, s{sR}, 96")
    A(f"s_add_u32 s{sTMP}, s{sTMP}, s{sTMP2}")
    A(f"s_mul_i32 s{sTMP2}, s{sWV}, 6144")
    for u in range(2):
        for tau in range(3):
            A(f"s_add_u32 s{sCNT}, s{sTMP}, {u*32*2752 + tau*32}")
            dma(vA0, f"s{sCNT}", f"s_add_u32 m0, s{sTMP2}, {L_W1 + (tau*2+u)*1024}", wflags)
    srd(rT, sW2, 1376 * 1024)
    A(f"v_lshrrev_b32 v{vA0}, 3, v{vL}")
    A(f"v_lshlrev_b32 v{vA0}, 10, v{vA0}")
    A(f"v_and_b32 v{vA1}, 7, v{vL}")
    A(f"v_lshl_add_u32 v{vA0}, v{vA1}, 4, v{vA0}")
    A(f"s_mul_i32 s{sTMP}, s{sR}, {48*1024}")
    A(f"s_lshl_b32 s{sCNT}, s{sWV}, 7")
    A(f"s_add_u32 s{sTMP}, s{sTMP}, s{sCNT}")
    for i in range(6):
        dma(vA0, f"s{sTMP}", f"s_add_u32 m0, s{sTMP2}, {L_W2 + i*1024}", wflags)
        if i < 5:
            A(f"s_add_u32 s{sTMP}, s{sTMP}, 8192")
    A("L_noffnw:")
    if wopos == "start":
        wo_dma()

    for i in range(k0 if qbar else 0, 32):
        kload(i)
    vQA, vXCA = vA2, vA1
    A(f"v_lshlrev_b32 v{vQA}, 11, v{vG}")
    A(f"v_lshl_add_u32 v{vQA}, v{vC}, 5, v{vQA}")
    A(f"s_lshl_b32 s{sTMP}, s{sH}, 13")
    A(f"s_lshl_b32 s{sTMP2}, s{sB}, 9")
    A(f"s_add_u32 s{sTMP}, s{sTMP}, s{sTMP2}")
    A(f"s_add_u32 s{sTMP}, s{sTMP}, {WS_QP}")
    A(f"v_and_b32 v{vXCA}, 31, v{vL}")
    A(f"v_lshlrev_b32 v{vXCA}, 2, v{vXCA}")
    A(f"s_lshl_b32 s{sTMP2}, s{sGX}, 7")
    A(f"s_add_u32 s{sTMP2}, s{sTMP2}, {WS_XC}")

    def q_issue():
        for i, off in enumerate((0, 16, 1024, 1040)):
            A(f"buffer_load_dwordx4 {vr(vTMP+4*i)}, v{vQA}, s[{rWS}:{rWS+3}], s{sTMP} offen offset:{off} sc1")
        A(f"buffer_load_dword v{vM}, v{vXCA}, s[{rWS}:{rWS+3}], s{sTMP2} offen sc1")
    q_issue()
    for i in range(npre):
        vload(i)
    A(f"s_cmp_eq_u32 s{sWV}, 0")
    A("s_cbranch_scc1 L_haveep")
    make_masks_tmp = (vA0,)
    A(f"v_mov_b32 v{vT0}, v{vXCA}")
    make_masks()
    A(f"v_mov_b32 v{vXCA}, v{vT0}")
    epoch()
    A("L_haveep:")
    A(f"v_cmp_gt_u32 vcc, 8, v{vC}")
    nop(2)
    for j in range(4):
        A(f"v_cndmask_b32 v{vMK+j}, 0, v{vMK+j}, vcc")
    poll("q", q_issue, [vTMP, vTMP + 4, vTMP + 8, vTMP + 12], vT0, first_wait=npre)
    A(f"v_cmp_ne_u32 vcc, s{sXW}, v{vM}")
    a = vTMP
    for i in range(8):
        A(f"v_add_f32 v{a+i}, v{a+i}, v{a+8+i}")
    A(f"s_cmp_eq_u64 vcc, 0")
    A(f"s_cselect_b32 s{sLOC}, {1 if local else 0}, 0")
    for i in range(4):
        A(f"v_permlane32_swap_b32 v{a+i}, v{a+4+i}")
    for i in range(4):
        A(f"v_add_f32 v{a+i}, v{a+i}, v{a+4+i}")
    nop(2)
    for i in range(2):
        A(f"v_permlane16_swap_b32 v{a+i}, v{a+2+i}")
    nop(1)
    for i in range(2):
        A(f"v_add_f32 v{a+i}, v{a+i}, v{a+2+i}")
    A(f"v_cvt_pk_bf16_f32 v{vQ}, v{a}, v{a+1}")
    A(f"v_mov_b32 v{vQ+1}, v{vQ}")
    nop(2)
    A(f"v_permlane16_swap_b32 v{vQ}, v{vQ+1}")
    nop(1)
    A(f"v_mov_b32 v{vQ+2}, v{vQ}")
    A(f"v_mov_b32 v{vQ+3}, v{vQ+1}")
    nop(2)
    A(f"v_permlane32_swap_b32 v{vQ}, v{vQ+2}")
    A(f"v_permlane32_swap_b32 v{vQ+1}, v{vQ+3}")
    nop(1)
    stamp("qgot")

    nextv = npre
    for tp in range(4):
        tt = [vTMP, vTMP + 4]
        uu = [vTMP + 8, vTMP + 10]
        for e in range(2):
            t = 2 * tp + e
            for k in range(4):
                for r in range(4):
                    A(f"v_dot2_f32_bf16 v{tt[e]+r}, v{vK+16*t+4*r+k}, v{vQ+k}, " + ("0" if k == 0 else f"v{tt[e]+r}"))
        while nextv < 32 and (nextv - npre) < 8 * (tp + 1):
            vload(nextv)
            nextv += 1
        if tp == 1 and wopos == "end":
            assert nextv == 32
            wo_dma()
        nop(3)
        for e in range(2):
            dpp("v_add_f32", uu[e], tt[e], tt[e], "row_ror:8", 0x3)
            dpp("v_add_f32", uu[e], tt[e] + 1, tt[e] + 1, "row_ror:8", 0xc)
            dpp("v_add_f32", uu[e] + 1, tt[e] + 2, tt[e] + 2, "row_ror:8", 0x3)
            dpp("v_add_f32", uu[e] + 1, tt[e] + 3, tt[e] + 3, "row_ror:8", 0xc)
        nop(1)
        for e in range(2):
            dpp("v_add_f32", vS + 2 * tp + e, uu[e], uu[e], "row_shl:4", 0x5)
        for e in range(2):
            dpp("v_add_f32", vS + 2 * tp + e, uu[e] + 1, uu[e] + 1, "row_shr:4", 0xa)
    assert nextv == 32
    vU, vBB, vXX = vK + 100, vK + 101, vK + 102
    vCH = vK + 103
    A(f"v_bfe_u32 v{vU}, v{vL}, 3, 1")
    A(f"v_bfe_u32 v{vBB}, v{vL}, 2, 1")
    A(f"v_and_b32 v{vXX}, 3, v{vL}")
    A(f"v_lshl_add_u32 v{vCH}, v{vU}, 2, v{vG}")
    vXR, vB1R, vB2R = vK + 68, vK + 72, vK + 76
    A(f"v_lshlrev_b32 v{vA0}, 10, v{vBB}")
    A(f"v_lshl_add_u32 v{vA0}, v{vCH}, 4, v{vA0}")
    A(f"s_lshl_b32 s{sTMP}, s{sWV}, 7")
    A(f"v_add_u32 v{vA0}, s{sTMP}, v{vA0}")
    vHA = vK + 106
    A(f"v_mov_b32 v{vHA}, v{vA0}")
    A(f"global_load_dwordx4 {vr(vXR)}, v{vA0}, s[{sX}:{sX+1}]")
    srd(rT, sB1, 2752)
    A(f"v_lshlrev_b32 v{vA0}, 4, v{vCH}")
    A(f"s_mul_i32 s{sTMP}, s{sR}, 96")
    A(f"buffer_load_dwordx4 {vr(vB1R)}, v{vA0}, s[{rT}:{rT+3}], s{sTMP} offen")
    vFC = vK + 107
    A(f"v_lshl_add_u32 v{vFC}, v{vXX}, 2, v{vG}")
    A(f"s_lshl_b32 s{sTMP}, s{sR}, 4")
    A(f"v_add_u32 v{vFC}, s{sTMP}, v{vFC}")
    A(f"v_lshlrev_b32 v{vFC}, 1, v{vFC}")
    A(f"global_load_ushort v{vB2R}, v{vFC}, s[{sB2}:{sB2+1}]")
    A(f"v_lshl_add_u32 v{vFC}, v{vBB}, 10, v{vFC}")
    A(f"global_load_ushort v{vB2R+1}, v{vFC}, s[{sOUT}:{sOUT+1}]")
    S = [vS + i for i in range(8)]
    quad_allreduce(S)
    round_bf16(S, vTMP)
    for r in S:
        A(f"v_mul_f32 v{r}, {hex(SCALE)}, v{r}")
    round_bf16(S, vTMP)
    A(f"v_max3_f32 v{vM}, v{S[0]}, v{S[1]}, v{S[2]}")
    A(f"v_max3_f32 v{vM}, v{vM}, v{S[3]}, v{S[4]}")
    A(f"v_max3_f32 v{vM}, v{vM}, v{S[5]}, v{S[6]}")
    A(f"v_max_f32 v{vM}, v{vM}, v{S[7]}")

    def wave_allreduce_banks(op, r, t):
        nop(2)
        dpp(op, r, r, r, "row_ror:8")
        nop(2)
        dpp(op, r, r, r, "row_ror:4")
        for sw in ("v_permlane16_swap_b32", "v_permlane32_swap_b32"):
            A(f"v_mov_b32 v{t}, v{r}")
            nop(2)
            A(f"{sw} v{r}, v{t}")
            nop(1)
            A(f"{op} v{r}, v{r}, v{t}")
    wave_allreduce_banks("v_max_f32", vM, vT0)
    A(f"s_lshl_b32 s{sTMP}, s{sWV}, 2")
    A(f"v_mov_b32 v{vA0}, s{sTMP}")
    A(f"v_mov_b32 v{vA1}, 0")
    A(f"ds_write_b32 v{vA0}, v{vM} offset:{L_MX}")
    A("s_waitcnt lgkmcnt(0)")
    A("s_barrier")
    A(f"ds_read_b128 {vr(vTMP)}, v{vA1} offset:{L_MX}")
    A(f"ds_read_b128 {vr(vTMP+4)}, v{vA1} offset:{L_MX+16}")
    A("s_waitcnt lgkmcnt(0)")
    A(f"v_max3_f32 v{vM}, v{vTMP}, v{vTMP+1}, v{vTMP+2}")
    A(f"v_max3_f32 v{vM}, v{vM}, v{vTMP+3}, v{vTMP+4}")
    A(f"v_max3_f32 v{vM}, v{vM}, v{vTMP+5}, v{vTMP+6}")
    A(f"v_max_f32 v{vM}, v{vM}, v{vTMP+7}")
    for r in S:
        A(f"v_sub_f32 v{r}, v{r}, v{vM}")
    for r in S:
        A(f"v_mul_f32 v{r}, {hex(LOG2E)}, v{r}")
    for r in S:
        A(f"v_exp_f32 v{r}, v{r}")
    nop(1)
    A(f"v_add_f32 v{vT1}, v{S[0]}, v{S[1]}")
    for r in S[2:]:
        A(f"v_add_f32 v{vT1}, v{vT1}, v{r}")
    for r in S:
        A(f"v_cvt_pk_bf16_f32 v{r}, v{r}, v{r}")
    wave_allreduce_banks("v_add_f32", vT1, vT0)
    A(f"ds_write_b32 v{vA0}, v{vT1} offset:{L_LW}")
    stamp("soft")

    nx = (2 if wopos == "end" else 0) + 4
    bank = [0, 2, 1, 3]
    for t in range(8):
        for r in range(4):
            for k in range(4):
                dpp("v_and_b32", vTMP + 4 * r + k, vS + t, vMK + k, f"row_newbcast:{4*bank[r]}")
        for r in range(4):
            i = 4 * t + r
            if t == 7 or r == 0:
                last = i if t == 7 else 4 * t + 3
                A(f"s_waitcnt vmcnt({31 - last + nx})")
            if r == 0:
                nop(1)
            A(f"v_mfma_f32_16x16x32_bf16 {vr(vACC)}, {vr(vTMP+4*r)}, {vr(vreg(i))}, " + ("0" if i == 0 else vr(vACC)))
    A(f"v_lshlrev_b32 v{vA0}, 5, v{vC}")
    A(f"v_lshl_add_u32 v{vA0}, v{vG}, 4, v{vA0}")
    A(f"s_lshl_b32 s{sTMP}, s{sWV}, 9")
    A(f"v_add_u32 v{vA0}, s{sTMP}, v{vA0}")
    A("s_mov_b32 exec_hi, 0")
    nop(4)
    A(f"ds_write_b128 v{vA0}, {vr(vACC)} offset:{L_OW}")
    A("s_mov_b64 exec, -1")
    A(f"v_lshrrev_b32 v{vA1}, 5, v{vL}")
    A(f"v_lshlrev_b32 v{vA1}, 11, v{vA1}")
    A(f"v_and_b32 v{vA2}, 31, v{vL}")
    A(f"v_lshl_add_u32 v{vA1}, v{vA2}, 4, v{vA1}")
    A(f"v_mov_b32 v{vA2}, 0")
    A("s_waitcnt lgkmcnt(0)")
    A("s_barrier")
    stamp("strm")
    A(f"s_cmp_lg_u32 s{sWV}, 0")
    A("s_cbranch_scc1 L_nos0")
    o = vK
    A(f"ds_read_b128 {vr(o+16)}, v{vA2} offset:{L_LW}")
    A(f"ds_read_b128 {vr(o+20)}, v{vA2} offset:{L_LW+16}")
    for i in range(4):
        A(f"ds_read_b128 {vr(o+4*i)}, v{vA1} offset:{L_OW + i*512}")
    A(f"v_cmp_gt_u32 vcc, 32, v{vL}")
    A(f"v_lshlrev_b32 v{vA0}, 4, v{vL}")
    A(f"s_mul_i32 s{sTMP}, s{sID}, {OSTR}")
    A(f"s_add_u32 s{sTMP}, s{sTMP}, {WS_OP}")
    A(f"v_cndmask_b32 v{o+24}, 0, v{vM}, vcc")
    A(f"v_mov_b32 v{o+26}, 0")
    A(f"v_mov_b32 v{o+27}, 0")
    A("s_waitcnt lgkmcnt(4)")
    A(f"v_pk_add_f32 {vr(o+16,2)}, {vr(o+16,2)}, {vr(o+18,2)}")
    A(f"v_pk_add_f32 {vr(o+20,2)}, {vr(o+20,2)}, {vr(o+22,2)}")
    A(f"v_pk_add_f32 {vr(o+16,2)}, {vr(o+16,2)}, {vr(o+20,2)}")
    A(f"v_add_f32 v{o+16}, v{o+16}, v{o+17}")
    A(f"v_cndmask_b32 v{o+25}, 0, v{o+16}, vcc")
    A("s_waitcnt lgkmcnt(2)")
    A(f"v_pk_add_f32 {vr(o,2)}, {vr(o,2)}, {vr(o+4,2)}")
    A(f"v_pk_add_f32 {vr(o+2,2)}, {vr(o+2,2)}, {vr(o+6,2)}")
    A("s_waitcnt lgkmcnt(0)")
    A(f"v_pk_add_f32 {vr(o+8,2)}, {vr(o+8,2)}, {vr(o+12,2)}")
    A(f"v_pk_add_f32 {vr(o+10,2)}, {vr(o+10,2)}, {vr(o+14,2)}")
    A(f"v_pk_add_f32 {vr(o,2)}, {vr(o,2)}, {vr(o+8,2)}")
    A(f"v_pk_add_f32 {vr(o+2,2)}, {vr(o+2,2)}, {vr(o+10,2)}")
    nop(2)
    for k in range(4):
        A(f"v_permlane32_swap_b32 v{o+k}, v{o+24+k}")
    nop(1)
    A(f"v_pk_add_f32 {vr(o,2)}, {vr(o,2)}, {vr(o+24,2)}")
    A(f"v_pk_add_f32 {vr(o+2,2)}, {vr(o+2,2)}, {vr(o+26,2)}")
    tag(o)
    A("s_mov_b32 exec_hi, 0xff")

    def publish(name, data, voff, soff):
        A(f"s_cmp_eq_u32 s{sLOC}, 0")
        A(f"s_cbranch_scc1 L_{name}_far")
        A(f"buffer_store_dwordx4 {vr(data)}, v{voff}, s[{rWS}:{rWS+3}], {soff} offen")
        A(f"s_branch L_{name}_pub")
        A(f"L_{name}_far:")
        A(f"buffer_store_dwordx4 {vr(data)}, v{voff}, s[{rWS}:{rWS+3}], {soff} offen sc1")
        A(f"L_{name}_pub:")
    publish("o", o, vA0, f"s{sTMP}")
    A("s_mov_b64 exec, -1")
    A("L_nos0:")

    A(f"v_and_b32 v{vA0}, 7, v{vL}")
    A(f"v_mul_u32_u24 v{vA0}, {OSTR}, v{vA0}")
    A(f"v_lshl_add_u32 v{vA1}, v{vCH}, 5, v{vA0}")
    A(f"s_and_b32 s{sTMP2}, s{sWV}, 1")
    A(f"s_lshl_b32 s{sTMP2}, s{sTMP2}, 8")
    A(f"v_add_u32 v{vA1}, s{sTMP2}, v{vA1}")
    A(f"s_lshr_b32 s{sTMP}, s{sWV}, 1")
    A(f"s_lshl_b32 s{sTMP}, s{sTMP}, 3")
    A(f"s_lshl_b32 s{sTMP2}, s{sGX}, 5")
    A(f"s_add_u32 s{sTMP}, s{sTMP}, s{sTMP2}")
    A(f"s_mul_i32 s{sTMP}, s{sTMP}, {OSTR}")
    A(f"s_add_u32 s{sTMP}, s{sTMP}, {WS_OP}")
    g0 = vK + 32

    def a_issue():
        A(f"buffer_load_dwordx4 {vr(g0+8)}, v{vA0}, s[{rWS}:{rWS+3}], s{sTMP} offen offset:512 sc1")
        A(f"buffer_load_dwordx4 {vr(g0)}, v{vA1}, s[{rWS}:{rWS+3}], s{sTMP} offen sc1")
        A(f"buffer_load_dwordx4 {vr(g0+4)}, v{vA1}, s[{rWS}:{rWS+3}], s{sTMP} offen offset:16 sc1")
    a_issue()
    vTR = vK + 104
    A(f"v_lshlrev_b32 v{vTR}, 8, v{vG}")
    A(f"v_lshl_add_u32 v{vTR}, v{vC}, 3, v{vTR}")
    A(f"s_lshl_b32 s{sTMP2}, s{sWV}, 11")
    A(f"v_add_u32 v{vA2}, s{sTMP2}, v{vTR}")
    vWO = vK + 48
    A("s_waitcnt vmcnt(3)")
    for u in range(2):
        for e in range(2):
            A(f"ds_read_b64_tr_b16 {vr(vWO+4*u+2*e,2)}, v{vA2} offset:{L_WO + u*1024 + e*128}")
    A(f"v_lshlrev_b32 v{vA2}, 6, v{vBB}")
    A(f"v_lshl_add_u32 v{vA2}, v{vG}, 4, v{vA2}")
    vBG = vK + 105
    A(f"v_mov_b32 v{vBG}, v{vA2}")
    A(f"s_lshl_b32 s{sTMP2}, s{sWV}, 7")
    A(f"v_add_u32 v{vA2}, s{sTMP2}, v{vA2}")
    poll("a", a_issue, [g0, g0 + 4, g0 + 8], vT0, first_wait=0)
    stamp("hopA")
    mq, lq = g0 + 8, g0 + 9
    dpp("v_max_f32", vT0, mq, mq, "quad_perm:[1,0,3,2]")
    nop(2)
    dpp("v_max_f32", vT0, vT0, vT0, "quad_perm:[2,3,0,1]")
    A(f"v_sub_f32 v{mq}, v{mq}, v{vT0}")
    A(f"v_mul_f32 v{mq}, {hex(LOG2E)}, v{mq}")
    A(f"v_exp_f32 v{mq}, v{mq}")
    nop(1)
    A(f"v_mul_f32 v{lq}, v{lq}, v{mq}")
    for i in range(8):
        A(f"v_mul_f32 v{g0+i}, v{g0+i}, v{mq}")
    quad_allreduce([lq] + [g0 + i for i in range(8)])
    A(f"v_rcp_f32 v{lq}, v{lq}")
    nop(1)
    for i in range(8):
        A(f"v_mul_f32 v{g0+i}, v{g0+i}, v{lq}")
    vB = vK + 56
    for i in range(4):
        A(f"v_cvt_pk_bf16_f32 v{vB+i}, v{g0+2*i}, v{g0+2*i+1}")
    vD0, vD1 = vK + 60, vK + 64
    A("s_waitcnt lgkmcnt(0)")
    nop(1)
    A(f"v_mfma_f32_16x16x32_bf16 {vr(vD0)}, {vr(vWO)}, {vr(vB)}, 0")
    A(f"v_mfma_f32_16x16x32_bf16 {vr(vD1)}, {vr(vWO+4)}, {vr(vB)}, 0")
    A(f"v_and_b32 v{vA0}, 7, v{vL}")
    A(f"v_lshlrev_b32 v{vA0}, 4, v{vA0}")
    A(f"v_lshl_add_u32 v{vA1}, v{vU}, 9, v{vA0}")
    A(f"s_mov_b32 s{sM0}, 0x00ff00ff")
    A(f"s_mov_b32 s{sM0+1}, 0x00ff00ff")
    nop(4)
    for k in range(4):
        dpp("v_add_f32", vD0 + k, vD1 + k, vD0 + k, "row_ror:8")
    A(f"s_mov_b64 exec, s[{sM0}:{sM0+1}]")
    A(f"ds_write_b128 v{vA2}, {vr(vD0)} offset:{L_Y}")
    A("s_mov_b64 exec, -1")
    A("s_waitcnt lgkmcnt(0)")
    A("s_barrier")
    A(f"s_cmp_lg_u32 s{sWV}, 0")
    A("s_cbranch_scc1 L_noy")
    for i in range(4):
        A(f"ds_read_b128 {vr(o+4*i)}, v{vA1} offset:{L_Y + i*128}")
    A(f"s_lshl_b32 s{sTMP}, s{sID}, 7")
    A(f"s_add_u32 s{sTMP}, s{sTMP}, {WS_YP}")
    A("s_waitcnt lgkmcnt(2)")
    A(f"v_pk_add_f32 {vr(o,2)}, {vr(o,2)}, {vr(o+4,2)}")
    A(f"v_pk_add_f32 {vr(o+2,2)}, {vr(o+2,2)}, {vr(o+6,2)}")
    A("s_waitcnt lgkmcnt(0)")
    A(f"v_pk_add_f32 {vr(o+8,2)}, {vr(o+8,2)}, {vr(o+12,2)}")
    A(f"v_pk_add_f32 {vr(o+10,2)}, {vr(o+10,2)}, {vr(o+14,2)}")
    A(f"v_pk_add_f32 {vr(o,2)}, {vr(o,2)}, {vr(o+8,2)}")
    A(f"v_pk_add_f32 {vr(o+2,2)}, {vr(o+2,2)}, {vr(o+10,2)}")
    nop(2)
    for k in range(4):
        dpp("v_add_f32", o + k, o + k, o + k, "row_ror:8")
    tag(o)
    A("s_mov_b64 exec, 0xff")
    A(f"buffer_store_dwordx4 {vr(o)}, v{vA0}, s[{rWS}:{rWS+3}], s{sTMP} offen sc1")
    A("s_mov_b64 exec, -1")
    A("L_noy:")
    stamp("ypub")
    A(f"s_cmp_lg_u32 s{sGX}, 0")
    A("s_cbranch_scc1 L_fin")

    A(f"v_lshrrev_b32 v{vA0}, 1, v{vCH}")
    A(f"v_lshlrev_b32 v{vA0}, 7, v{vA0}")
    A(f"v_lshl_add_u32 v{vA0}, v{vXX}, 13, v{vA0}")
    A(f"v_lshl_add_u32 v{vA0}, v{vBB}, 6, v{vA0}")
    A(f"v_and_b32 v{vA1}, 1, v{vG}")
    A(f"v_lshl_add_u32 v{vA0}, v{vA1}, 5, v{vA0}")
    A(f"s_lshl_b32 s{sTMP}, s{sWV}, 9")
    A(f"s_add_u32 s{sTMP}, s{sTMP}, {WS_YP}")
    A(f"s_add_u32 s{sTMP2}, s{sTMP}, 4096")

    def b_issue():
        A(f"buffer_load_dwordx4 {vr(g0)}, v{vA0}, s[{rWS}:{rWS+3}], s{sTMP} offen sc1")
        A(f"buffer_load_dwordx4 {vr(g0+4)}, v{vA0}, s[{rWS}:{rWS+3}], s{sTMP} offen offset:16 sc1")
        A(f"buffer_load_dwordx4 {vr(g0+8)}, v{vA0}, s[{rWS}:{rWS+3}], s{sTMP2} offen sc1")
        A(f"buffer_load_dwordx4 {vr(g0+12)}, v{vA0}, s[{rWS}:{rWS+3}], s{sTMP2} offen offset:16 sc1")
    b_issue()
    vW1, vW2 = vV, vV + 24
    sW6 = sXW
    A(f"s_mul_i32 s{sW6}, s{sWV}, 6144")
    A(f"v_add_u32 v{vA1}, s{sW6}, v{vTR}")
    for tau in range(3):
        for u in range(2):
            for e in range(2):
                A(f"ds_read_b64_tr_b16 {vr(vW1+8*tau+4*u+2*e,2)}, v{vA1} offset:{L_W1 + (tau*2+u)*1024 + e*128}")
    A("s_waitcnt lgkmcnt(0)")
    A(f"v_lshrrev_b32 v{vA1}, 2, v{vC}")
    A(f"v_lshl_add_u32 v{vA1}, v{vG}, 3, v{vA1}")
    A(f"v_lshlrev_b32 v{vA1}, 7, v{vA1}")
    A(f"v_lshl_add_u32 v{vA1}, v{vXX}, 3, v{vA1}")
    A(f"s_add_u32 s{sW6}, s{sW6}, {L_W2}")
    A(f"v_add_u32 v{vA1}, s{sW6}, v{vA1}")
    for tau in range(4):
        for u in range(2):
            for e in range(2):
                A(f"ds_read_b64_tr_b16 {vr(vW2+8*tau+4*u+2*e,2)}, v{vA1} offset:{(32*u+4*e)*128 + tau*32}")
        if tau == 1:
            A("s_waitcnt lgkmcnt(0)")
    sMK = [sM0, sM1, sM2, sM3]
    for tau in range(4):
        A(f"v_cmp_eq_u32 s[{sMK[tau]}:{sMK[tau]+1}], {tau}, v{vXX}")
    vSA, vSR = vK + 108, vK + 109
    A(f"v_lshlrev_b32 v{vSR}, 6, v{vBB}")
    A(f"v_lshrrev_b32 v{vSA}, 1, v{vG}")
    A(f"v_lshl_add_u32 v{vSA}, v{vSA}, 5, v{vSR}")
    A(f"s_lshl_b32 s{sW6}, s{sWV}, 2")
    A(f"v_add_u32 v{vSA}, s{sW6}, v{vSA}")
    vFW, vFR = vK + 110, vK + 111
    A(f"v_lshlrev_b32 v{vFR}, 8, v{vBB}")
    A(f"v_lshl_add_u32 v{vFW}, v{vXX}, 6, v{vFR}")
    A(f"v_lshl_add_u32 v{vFW}, v{vG}, 4, v{vFW}")
    A(f"s_lshl_b32 s{sW6}, s{sWV}, 9")
    A(f"v_add_u32 v{vFW}, s{sW6}, v{vFW}")
    A(f"v_lshl_add_u32 v{vFR}, v{vXX}, 10, v{vFR}")
    A(f"v_lshl_add_u32 v{vFR}, v{vCH}, 5, v{vFR}")
    vZA = vK + 112
    A(f"v_lshl_add_u32 v{vZA}, v{vXX}, 7, v{vBG}")
    A(f"v_add_u32 v{vZA}, s{sW6}, v{vZA}")
    A(f"v_mov_b32 v{vK+113}, 0x3f803f80")
    A("s_waitcnt lgkmcnt(0)")
    A("s_mov_b32 exec_lo, 0")
    for tau in range(4):
        for k in range(4):
            A(f"v_mov_b32 v{vW2+8*tau+4+k}, 0")
    A("s_mov_b32 exec_lo, -1")
    poll("b", b_issue, [g0, g0 + 4, g0 + 8, g0 + 12], vT0, first_wait=0)
    stamp("hopB")
    for i in range(0, 8, 2):
        A(f"v_pk_add_f32 {vr(g0+i,2)}, {vr(g0+i,2)}, {vr(g0+8+i,2)}")
    G = [g0 + i for i in range(8)]
    unpack(g0 + 8, vXR, 4)
    quad_allreduce(G)
    round_bf16(G, vB)
    for i in range(0, 8, 2):
        A(f"v_pk_add_f32 {vr(g0+i,2)}, {vr(g0+i,2)}, {vr(g0+8+i,2)}")
    for i in range(4):
        A(f"v_cvt_pk_bf16_f32 v{vB+i}, v{g0+2*i}, v{g0+2*i+1}")
    for i in range(4):
        A(f"v_dot2_f32_bf16 v{s0}, v{vB+i}, v{vK+113}, " + ("0" if i == 0 else f"v{s0}"))
        A(f"v_dot2_f32_bf16 v{s1}, v{vB+i}, v{vB+i}, " + ("0" if i == 0 else f"v{s1}"))
    A(f"ds_write_b128 v{vHA}, {vr(vB)} offset:{L_HS}")
    nop(2)
    A(f"v_permlane32_swap_b32 v{s0}, v{s1}")
    nop(1)
    A(f"v_add_f32 v{s0}, v{s0}, v{s1}")
    A(f"v_mov_b32 v{s1}, v{s0}")
    nop(2)
    A(f"v_permlane16_swap_b32 v{s0}, v{s1}")
    nop(1)
    A(f"v_add_f32 v{s0}, v{s0}, v{s1}")
    nop(2)
    dpp("v_add_f32", s0, s0, s0, "row_ror:8")
    A(f"ds_write_b32 v{vSA}, v{s0} offset:{L_ST}")
    unpack(g0, vB, 4)
    A("s_waitcnt lgkmcnt(0)")
    A("s_barrier")
    A(f"s_cmp_ge_u32 s{sR}, 29")
    A("s_cbranch_scc1 L_noffn")
    st = vK
    for i in range(4):
        A(f"ds_read_b128 {vr(st+4*i)}, v{vSR} offset:{L_ST + 16*i}")
    A("s_waitcnt lgkmcnt(2)")
    A(f"v_pk_add_f32 {vr(st,2)}, {vr(st,2)}, {vr(st+2,2)}")
    A(f"v_pk_add_f32 {vr(st+4,2)}, {vr(st+4,2)}, {vr(st+6,2)}")
    A(f"v_pk_add_f32 {vr(st,2)}, {vr(st,2)}, {vr(st+4,2)}")
    A("s_waitcnt lgkmcnt(0)")
    A(f"v_pk_add_f32 {vr(st+8,2)}, {vr(st+8,2)}, {vr(st+10,2)}")
    A(f"v_pk_add_f32 {vr(st+12,2)}, {vr(st+12,2)}, {vr(st+14,2)}")
    A(f"v_pk_add_f32 {vr(st+8,2)}, {vr(st+8,2)}, {vr(st+12,2)}")
    A(f"v_add_f32 v{s0}, v{st}, v{st+1}")
    A(f"v_add_f32 v{s1}, v{st+8}, v{st+9}")
    ln_stats(s0, s1)
    for r in G:
        A(f"v_sub_f32 v{r}, v{r}, v{s0}")
    round_bf16(G, vB)
    for r in G:
        A(f"v_mul_f32 v{r}, v{r}, v{s1}")
    for i in range(4):
        A(f"v_cvt_pk_bf16_f32 v{vB+i}, v{g0+2*i}, v{g0+2*i+1}")
    vBM = vK + 80
    for tau in range(3):
        for k in range(4):
            A(f"v_cndmask_b32 v{vBM+4*tau+k}, 0, v{vB+k}, s[{sMK[tau]}:{sMK[tau]+1}]")
    nop(2)
    for tau in range(3):
        for u in range(2):
            d = vD0 if u == 0 else vD1
            A(f"v_mfma_f32_16x16x32_bf16 {vr(d)}, {vr(vW1+8*tau+4*u)}, {vr(vBM+4*tau)}, " + ("0" if tau == 0 else vr(d)))
    A(f"s_mul_i32 s{sTMP}, s{sR}, 6")
    A(f"s_sub_u32 s{sTMP}, 172, s{sTMP}")
    A(f"s_min_u32 s{sTMP}, s{sTMP}, 6")
    A(f"v_cmp_gt_u32 vcc, s{sTMP}, v{vCH}")
    A(f"s_lshl_b32 s{sTMP}, s{sR}, 12")
    A(f"s_add_u32 s{sTMP}, s{sTMP}, {WS_ZP}")
    for tau in range(4):
        A(f"s_and_b64 s[{sMK[tau]}:{sMK[tau]+1}], s[{sMK[tau]}:{sMK[tau]+1}], vcc")
    A(f"s_mov_b32 s{sEX}, 0x00ff00ff")
    A(f"s_mov_b32 s{sEX+1}, 0x00ff00ff")
    for k in range(4):
        dpp("v_add_f32", vD0 + k, vD1 + k, vD0 + k, "row_ror:8")
    A(f"s_mov_b64 exec, s[{sEX}:{sEX+1}]")
    A(f"ds_write_b128 v{vFW}, {vr(vD0)} offset:{L_F1}")
    A("s_mov_b64 exec, -1")
    unpack(st, vB1R, 4)
    A("s_waitcnt lgkmcnt(0)")
    A("s_barrier")
    A(f"ds_read_b128 {vr(g0)}, v{vFR} offset:{L_F1}")
    A(f"ds_read_b128 {vr(g0+4)}, v{vFR} offset:{L_F1+16}")
    A(f"ds_read_b128 {vr(g0+8)}, v{vFR} offset:{L_F1+512}")
    A(f"ds_read_b128 {vr(g0+12)}, v{vFR} offset:{L_F1+528}")
    A("s_waitcnt lgkmcnt(0)")
    for i in range(0, 8, 2):
        A(f"v_pk_add_f32 {vr(g0+i,2)}, {vr(g0+i,2)}, {vr(g0+8+i,2)}")
    quad_allreduce(G)
    round_bf16(G, vB)
    for i in range(0, 8, 2):
        A(f"v_pk_add_f32 {vr(g0+i,2)}, {vr(g0+i,2)}, {vr(st+i,2)}")
    round_bf16(G, vB)
    for r in G:
        A(f"v_max_f32 v{r}, 0, v{r}")
    for i in range(0, 8, 2):
        A(f"v_pk_mul_f32 {vr(g0+i,2)}, {vr(g0+i,2)}, {vr(g0+i,2)}")
    for i in range(4):
        A(f"v_cvt_pk_bf16_f32 v{vB+i}, v{g0+2*i}, v{g0+2*i+1}")
    for tau in range(4):
        for k in range(4):
            A(f"v_cndmask_b32 v{vBM+4*tau+k}, 0, v{vB+k}, s[{sMK[tau]}:{sMK[tau]+1}]")
    nop(2)
    for tau in range(4):
        for u in range(2):
            d = vD0 if u == 0 else vD1
            A(f"v_mfma_f32_16x16x32_bf16 {vr(d)}, {vr(vW2+8*tau+4*u)}, {vr(vBM+4*tau)}, " + ("0" if tau == 0 else vr(d)))
    nop(8)
    for k in range(4):
        dpp("v_add_f32", vD0 + k, vD1 + k, vD0 + k, "row_ror:8")
    tag(vD0)
    A(f"s_mov_b64 exec, s[{sEX}:{sEX+1}]")
    publish("z", vD0, vZA, f"s{sTMP}")
    A("s_mov_b64 exec, -1")
    A("L_noffn:")
    stamp("zpub")
    A(f"s_cmp_lg_u32 s{sWV}, 0")
    A("s_cbranch_scc1 L_fin")
    A(f"v_lshrrev_b32 v{vA0}, 3, v{vL}")
    A(f"v_lshlrev_b32 v{vA0}, 12, v{vA0}")
    A(f"v_and_b32 v{vA1}, 7, v{vL}")
    A(f"v_lshl_add_u32 v{vA0}, v{vA1}, 4, v{vA0}")
    A(f"s_lshl_b32 s{sTMP}, s{sR}, 7")
    for t in range(4):
        A(f"s_add_u32 s{sTILE+t}, s{sTMP}, {WS_ZP + t*32768}")
    A(f"ds_read_u16 v{vXR}, v{vFC} offset:{L_HS}")

    def c_issue():
        for t in range(3):
            A(f"buffer_load_dwordx4 {vr(g0+4*t)}, v{vA0}, s[{rWS}:{rWS+3}], s{sTILE+t} offen sc1")
        for k in range(4):
            A(f"v_mov_b32 v{g0+12+k}, s{Tk[k]}")
        A("s_mov_b32 exec_hi, 0xff")
        A(f"buffer_load_dwordx4 {vr(g0+12)}, v{vA0}, s[{rWS}:{rWS+3}], s{sTILE+3} offen sc1")
        A("s_mov_b32 exec_hi, -1")
    poll("c", c_issue, [g0, g0 + 4, g0 + 8, g0 + 12], vT0)
    stamp("hopC")
    for i in range(0, 8, 2):
        A(f"v_pk_add_f32 {vr(g0+i,2)}, {vr(g0+i,2)}, {vr(g0+8+i,2)}")
    A(f"v_pk_add_f32 {vr(g0,2)}, {vr(g0,2)}, {vr(g0+4,2)}")
    A(f"v_pk_add_f32 {vr(g0+2,2)}, {vr(g0+2,2)}, {vr(g0+6,2)}")
    A(f"v_lshlrev_b32 v{vB2R}, 16, v{vB2R}")
    A("s_waitcnt lgkmcnt(0)")
    A(f"v_permlane32_swap_b32 v{g0}, v{g0+2}")
    A(f"v_permlane32_swap_b32 v{g0+1}, v{g0+3}")
    A(f"v_lshlrev_b32 v{vXR}, 16, v{vXR}")
    A(f"v_pk_add_f32 {vr(g0,2)}, {vr(g0,2)}, {vr(g0+2,2)}")
    nop(2)
    A(f"v_permlane16_swap_b32 v{g0}, v{g0+1}")
    nop(1)
    A(f"v_add_f32 v{g0}, v{g0}, v{g0+1}")
    nop(2)
    dpp("v_add_f32", g0, g0, g0, "row_ror:8")
    round1(g0)
    A(f"v_add_f32 v{g0}, v{g0}, v{vB2R}")
    round1(g0)
    A(f"v_add_f32 v{g0}, v{g0}, v{vXR}")
    A(f"v_cvt_pk_bf16_f32 v{g0}, v{g0}, v{g0}")
    A("s_mov_b32 exec_lo, 0x00ff00ff")
    A("s_mov_b32 exec_hi, 0x00ff00ff")
    A(f"global_store_short v{vFC}, v{g0}, s[{sOUT}:{sOUT+1}]")
    A(f"s_cmp_lg_u32 s{sR}, 0")
    A("s_cbranch_scc1 L_fin")
    A("s_mov_b64 exec, 1")
    A(f"v_mov_b32 v{vA0}, {WS_E}")
    A(f"v_mov_b32 v{vA1}, s{sT}")
    A(f"buffer_store_dword v{vA1}, v{vA0}, s[{rWS}:{rWS+3}], 0 offen")
    A("L_fin:")
    if diag:
        A("s_mov_b64 exec, -1")
        A("s_waitcnt vmcnt(0)")
        stamp("end")
        A(f"s_getreg_b32 s{sST+13}, hwreg(HW_REG_XCC_ID, 0, 4)")
        A(f"s_mov_b32 s{sST+12}, s{sLOC}")
        for i in range(14):
            A(f"v_mov_b32 v{vK+i}, s{sST+i}")
        A(f"s_lshl_b32 s{sTMP}, s2, 3")
        A(f"s_add_u32 s{sTMP}, s{sTMP}, s{sWV}")
        A(f"s_lshl_b32 s{sTMP}, s{sTMP}, 6")
        A(f"s_add_u32 s{sTMP}, s{sTMP}, {WS_DIAG}")
        A(f"v_mov_b32 v{vA0}, 0")
        A("s_mov_b64 exec, 1")
        for i in range(4):
            A(f"buffer_store_dwordx4 {vr(vK+4*i)}, v{vA0}, s[{rWS}:{rWS+3}], s{sTMP} offen offset:{16*i}")
    A("L_end:")
    A("s_endpgm")
    L.append('.section .rodata,"a"')
    L.append(".p2align 6")
    L.append(f".amdhsa_kernel {NAME}_kernel")
    L.append("  .amdhsa_next_free_vgpr 256")
    L.append("  .amdhsa_next_free_sgpr 102")
    L.append("  .amdhsa_accum_offset 256")
    L.append("  .amdhsa_group_segment_fixed_size 0")
    L.append("  .amdhsa_kernarg_size 104")
    L.append("  .amdhsa_user_sgpr_count 2")
    L.append("  .amdhsa_user_sgpr_kernarg_segment_ptr 1")
    L.append("  .amdhsa_system_sgpr_workgroup_id_x 1")
    L.append("  .amdhsa_float_denorm_mode_32 3")
    L.append(".end_amdhsa_kernel")
    return "\n".join(L) + "\n", stamps


if __name__ == "__main__":
    kw = eval("dict(" + (sys.argv[2] if len(sys.argv) > 2 else "") + ")")
    src, _ = gen(**kw)
    open(sys.argv[1], "w").write(HEADER + src)
```

```python
import sys
NAME = "sequential_preLN__mha_block_cached__dense_activation_squared_relu__decode"

HEADER = open("cdna_kernels/" + NAME + ".s.ref").read().split("; Override launch")[0] \
    if __name__ == "__main__" else ""

WS_E = 0
WS_XC = 0x1000
WS_QP = 0x10000
WS_OP = 0x50000
OSTR = 640
WS_YP = 0x80000
WS_ZP = 0x90000
WS_DIAG = 0x100000
WS_SIZE = 0x200000
L_OW = 0
L_MX = 4096
L_LW = 4096 + 64
L_Y = 4096 + 256
L_ST = L_Y + 1024
L_HS = L_ST + 128
L_F1 = L_HS + 2048
L_WO = 12288
L_W1 = L_WO + 16384
L_W2 = L_W1 + 49152
LDS_BYTES = L_W2 + 49152 + 2048
assert L_F1 + 4096 <= L_WO

LOG2E = 0x3fb8aa3b
SCALE = 0x3db504f3
EPS = 0x3727c5ac


def gen(diag=False, inter=1, wopos="end", wflags=" nt", woflags=" nt", sleep=1, local=True, npre=20, only=None, prio=0, wqflags=" nt", qbar=0, depth=0, k0=8, dchunk=1, minT=0, nowo=0, noffn=0):
    L = []

    def A(s):
        L.append("    " + s if not s.endswith(":") else s)

    def nop(n):
        if n > 0:
            A(f"s_nop {n-1}")

    def vr(a, n=4):
        return f"v[{a}:{a+n-1}]"

    sX, sK, sV, sWQ, sWO, sW1, sB1, sW2, sB2, sOUT, sWS = 8, 10, 12, 14, 16, 20, 22, 24, 26, 28, 32
    rK, rV, rWS, rT = 36, 40, 44, 48
    sGX, sR, sH, sS, sB, sWV = 52, 53, 54, 55, 56, 57
    sT, sT0, sT1, sT2, sT3 = 58, 59, 60, 61, 62
    sLOC, sCNT, sTMP, sTMP2, sXW = 63, 64, 65, 66, 67
    sTILE = 68
    sID = 76
    sM0, sM1, sM2, sM3 = 78, 80, 82, 84
    sEX = 86
    sST = 88
    Tk = [sT0, sT1, sT2, sT3]

    vL, vG, vC = 1, 2, 3
    vKV = 4
    vA0, vA1, vA2 = 5, 6, 7
    vQ = 8
    vMK = 12
    vACC = 16
    vS = 20
    vFF = 28
    vM = 29
    vT0, vT1 = 30, 31
    vTMP = 32
    vK = 48
    vV = 176

    stamps = []

    def stamp(name):
        if not diag:
            return
        if only is not None and name not in only and name not in ("strm", "end"):
            return
        if only is None and name.startswith("_"):
            return
        i = len(stamps)
        stamps.append(name)
        A(f"s_memrealtime s[{sEX+0}:{sEX+1}]")
        A("s_waitcnt lgkmcnt(0)")
        A(f"s_mov_b32 s{sST+i}, s{sEX}")

    def srd(r, p, size):
        A(f"s_mov_b32 s{r}, s{p}")
        A(f"s_mov_b32 s{r+1}, s{p+1}")
        A(f"s_mov_b32 s{r+2}, {size}")
        A(f"s_mov_b32 s{r+3}, 0x20000")

    def tag(base):
        for k in range(4):
            A(f"v_bfi_b32 v{base+k}, v{vFF}, s{Tk[k]}, v{base+k}")

    def untag_check(regs, acc):
        for b in regs:
            for k in range(4):
                A(f"v_xor_b32 v{b+k}, s{Tk[k]}, v{b+k}")
        flat = [b + k for b in regs for k in range(4)]
        A(f"v_or3_b32 v{acc}, v{flat[0]}, v{flat[1]}, v{flat[2]}")
        rest = flat[3:]
        while len(rest) >= 2:
            A(f"v_or3_b32 v{acc}, v{acc}, v{rest[0]}, v{rest[1]}")
            rest = rest[2:]
        if rest:
            A(f"v_or_b32 v{acc}, v{acc}, v{rest[0]}")
        A(f"v_and_b32 v{acc}, v{vFF}, v{acc}")
        A(f"v_cmp_ne_u32 vcc, 0, v{acc}")

    def poll(name, issue, regs, acc, first_wait=None):
        A(f"s_mov_b32 s{sCNT}, 0x4000")
        if first_wait is not None:
            A(f"s_waitcnt vmcnt({first_wait})")
            A(f"s_branch L_{name}_chk")
        A(f"L_{name}_again:")
        issue()
        A("s_waitcnt vmcnt(0)")
        A(f"L_{name}_chk:")
        untag_check(regs, acc)
        A(f"s_cbranch_vccz L_{name}_ok")
        if sleep:
            A(f"s_sleep {sleep}")
        A(f"s_sub_u32 s{sCNT}, s{sCNT}, 1")
        A(f"s_cbranch_scc0 L_{name}_again")
        A(f"L_{name}_ok:")

    def dpp(op, d, s0, s1, ctl, bank=0xf):
        A(f"{op}_dpp v{d}, v{s0}, v{s1} {ctl} row_mask:0xf bank_mask:{hex(bank)}")

    def quad_allreduce(regs):
        pad = max(0, 3 - len(regs))
        for r in regs:
            dpp("v_add_f32", r, r, r, "quad_perm:[1,0,3,2]")
        nop(pad)
        for r in regs:
            dpp("v_add_f32", r, r, r, "quad_perm:[2,3,0,1]")

    def round_bf16(regs, tmp):
        for i in range(0, len(regs), 2):
            A(f"v_cvt_pk_bf16_f32 v{tmp+i//2}, v{regs[i]}, v{regs[i+1]}")
        for i in range(0, len(regs), 2):
            A(f"v_lshlrev_b32 v{regs[i]}, 16, v{tmp+i//2}")
            A(f"v_and_b32 v{regs[i+1]}, 0xffff0000, v{tmp+i//2}")

    def round1(r):
        A(f"v_cvt_pk_bf16_f32 v{r}, v{r}, v{r}")
        A(f"v_lshlrev_b32 v{r}, 16, v{r}")

    def unpack(dst, src, n):
        for i in range(n):
            A(f"v_lshlrev_b32 v{dst+2*i}, 16, v{src+i}")
            A(f"v_and_b32 v{dst+2*i+1}, 0xffff0000, v{src+i}")

    def ln_stats(vsum, vsq):
        A(f"v_mul_f32 v{vsum}, 0x3b000000, v{vsum}")
        A(f"v_mul_f32 v{vsq}, 0x3b000000, v{vsq}")
        A(f"v_fma_f32 v{vsq}, -v{vsum}, v{vsum}, v{vsq}")
        A(f"v_max_f32 v{vsq}, 0, v{vsq}")
        A(f"v_cvt_pk_bf16_f32 v{vsq}, v{vsum}, v{vsq}")
        A(f"v_lshlrev_b32 v{vsum}, 16, v{vsq}")
        A(f"v_and_b32 v{vsq}, 0xffff0000, v{vsq}")
        A(f"v_add_f32 v{vsq}, {hex(EPS)}, v{vsq}")
        round1(vsq)
        A(f"v_sqrt_f32 v{vsq}, v{vsq}")
        nop(1)
        round1(vsq)
        A(f"v_rcp_f32 v{vsq}, v{vsq}")
        nop(1)

    L.append(f"; @launch grid=(256,1,1) block=(512,1,1) lds={LDS_BYTES}")
    L.append('.amdgcn_target "amdgcn-amd-amdhsa--gfx950"')
    L.append(".text")
    L.append(f".globl {NAME}_kernel")
    L.append(".p2align 8")
    L.append(f".type {NAME}_kernel,@function")
    L.append(f"{NAME}_kernel:")
    A("s_cmp_ge_u32 s2, 256")
    A("s_cbranch_scc1 L_end")
    A("s_load_dwordx16 s[8:23], s[0:1], 0")
    A("s_load_dwordx8 s[24:31], s[0:1], 64")
    A("s_load_dwordx2 s[32:33], s[0:1], 96")
    if minT:
        A("s_memrealtime s[100:101]")
    if diag:
        A(f"s_memrealtime s[{sEX}:{sEX+1}]")
        for i in range(14):
            A(f"s_mov_b32 s{sST+i}, 0")
    A(f"v_lshrrev_b32 v{vA0}, 6, v0")
    A(f"v_and_b32 v{vL}, 63, v0")
    A(f"v_readfirstlane_b32 s{sWV}, v{vA0}")
    A(f"v_lshrrev_b32 v{vG}, 4, v{vL}")
    A(f"v_and_b32 v{vC}, 15, v{vL}")
    A(f"s_and_b32 s{sGX}, s2, 7")
    A(f"s_lshr_b32 s{sR}, s2, 3")
    A(f"s_lshl_b32 s{sID}, s{sGX}, 5")
    A(f"s_add_u32 s{sID}, s{sID}, s{sR}")
    A(f"s_lshr_b32 s{sH}, s{sID}, 3")
    A(f"s_and_b32 s{sS}, s{sR}, 7")
    A(f"s_lshr_b32 s{sB}, s{sS}, 2")
    A(f"s_lshl_b32 s{sTMP}, s{sB}, 5")
    A(f"s_add_u32 s{sTMP}, s{sTMP}, s{sH}")
    A(f"s_lshl_b32 s{sTMP}, s{sTMP}, 20")
    A(f"s_and_b32 s{sTMP2}, s{sS}, 3")
    A(f"s_lshl_b32 s{sTMP2}, s{sTMP2}, 18")
    A(f"s_add_u32 s{sTMP}, s{sTMP}, s{sTMP2}")
    A(f"s_lshl_b32 s{sTMP2}, s{sWV}, {12 if inter else 15}")
    A(f"s_add_u32 s{sTMP}, s{sTMP}, s{sTMP2}")
    A(f"v_lshl_add_u32 v{vKV}, v{vL}, 4, s{sTMP}")
    for t in range(8):
        A(f"s_mov_b32 s{sTILE+t}, {t * (32768 if inter else 4096)}")
    A(f"v_mov_b32 v{vFF}, 0xff")
    A("s_waitcnt lgkmcnt(0)")
    if diag:
        A(f"s_mov_b32 s{sST}, s{sEX}")
        stamps.append("start")
    A(f"s_load_dword s{sT}, s[{sWS}:{sWS+1}], {WS_E}")
    srd(rK, sK, 0x4000000)
    srd(rV, sV, 0x4000000)
    srd(rWS, sWS, WS_SIZE)

    def kload(i):
        t, j = divmod(i, 4)
        if depth and i >= depth and i % dchunk == 0:
            A(f"s_waitcnt vmcnt({depth-dchunk})")
        A(f"buffer_load_dwordx4 {vr(vK+4*i)}, v{vKV}, s[{rK}:{rK+3}], s{sTILE+t} offen offset:{j*1024} nt")

    def vreg(i):
        return vV + 4 * i if i < npre else vK + 4 * (i - npre)

    def vload(i):
        t, j = divmod(i, 4)
        if depth and i % dchunk == 0:
            A(f"s_waitcnt vmcnt({depth-dchunk})")
        A(f"buffer_load_dwordx4 {vr(vreg(i))}, v{vKV}, s[{rV}:{rV+3}], s{sTILE+t} offen offset:{j*1024} nt")

    def make_masks():
        A(f"v_and_b32 v{vA0}, 1, v{vL}")
        A(f"v_lshlrev_b32 v{vA0}, 4, v{vA0}")
        A(f"v_mov_b32 v{vA1}, 0xffff")
        A(f"v_lshlrev_b32 v{vA1}, v{vA0}, v{vA1}")
        A(f"v_bfe_u32 v{vA0}, v{vL}, 1, 2")
        for j in range(4):
            A(f"v_cmp_eq_u32 vcc, {j}, v{vA0}")
            nop(2)
            A(f"v_cndmask_b32 v{vMK+j}, 0, v{vA1}, vcc")

    def epoch():
        A("s_waitcnt lgkmcnt(0)")
        A(f"s_add_u32 s{sT}, s{sT}, 0x01010101")
        A(f"s_and_b32 s{sT0}, s{sT}, 0xff")
        A(f"s_bfe_u32 s{sT1}, s{sT}, 0x80008")
        A(f"s_bfe_u32 s{sT2}, s{sT}, 0x80010")
        A(f"s_lshr_b32 s{sT3}, s{sT}, 24")
        A(f"s_getreg_b32 s{sXW}, hwreg(HW_REG_XCC_ID, 0, 4)")
        A(f"s_lshl_b32 s{sXW}, s{sXW}, 28")
        A(f"s_add_u32 s{sXW}, s{sXW}, s{sT}")

    A(f"s_cmp_lg_u32 s{sWV}, 0")
    A("s_cbranch_scc1 L_noq0")
    if prio:
        A(f"s_setprio {prio}")
    vXS, vXA, vW = vK, vK + 8, vV
    A(f"v_lshrrev_b32 v{vA0}, 3, v{vC}")
    A(f"v_lshlrev_b32 v{vA0}, 10, v{vA0}")
    A(f"v_and_b32 v{vA1}, 7, v{vC}")
    A(f"v_lshl_add_u32 v{vA1}, v{vG}, 3, v{vA1}")
    A(f"v_lshl_add_u32 v{vA1}, v{vA1}, 5, v{vA0}")
    A(f"v_lshl_add_u32 v{vA0}, v{vG}, 5, v{vA0}")
    A(f"s_lshl_b32 s{sTMP}, s{sS}, 7")
    A(f"v_add_u32 v{vA0}, s{sTMP}, v{vA0}")
    A(f"global_load_dwordx4 {vr(vXS)}, v{vA1}, s[{sX}:{sX+1}]")
    A(f"global_load_dwordx4 {vr(vXS+4)}, v{vA1}, s[{sX}:{sX+1}] offset:16")
    A(f"global_load_dwordx4 {vr(vXA)}, v{vA0}, s[{sX}:{sX+1}]")
    A(f"global_load_dwordx4 {vr(vXA+4)}, v{vA0}, s[{sX}:{sX+1}] offset:16")
    srd(rT, sWQ, 0x400000)
    A(f"s_lshl_b32 s{sTMP}, s{sS}, 19")
    A(f"s_lshl_b32 s{sTMP2}, s{sH}, 8")
    A(f"s_add_u32 s{sTMP}, s{sTMP}, s{sTMP2}")
    A(f"v_lshlrev_b32 v{vA2}, 17, v{vG}")
    A(f"v_lshl_add_u32 v{vA2}, v{vC}, 4, v{vA2}")
    for j in range(16):
        A(f"buffer_load_dwordx4 {vr(vW+4*j)}, v{vA2}, s[{rT}:{rT+3}], s{sTMP} offen{wqflags}")
        if j < 15:
            A(f"s_add_u32 s{sTMP}, s{sTMP}, 8192")
    make_masks()
    epoch()
    stamp("_ep")
    A(f"v_mov_b32 v{vA0}, 0x3f803f80")
    A("s_waitcnt vmcnt(18)")
    stamp("_x")
    s0, s1 = vT0, vT1
    for i in range(8):
        A(f"v_dot2_f32_bf16 v{s0}, v{vXS+i}, v{vA0}, " + ("0" if i == 0 else f"v{s0}"))
        A(f"v_dot2_f32_bf16 v{s1}, v{vXS+i}, v{vXS+i}, " + ("0" if i == 0 else f"v{s1}"))
    nop(3)
    for ctl in ("quad_perm:[1,0,3,2]", "quad_perm:[2,3,0,1]", "row_half_mirror"):
        dpp("v_add_f32", s0, s0, s0, ctl)
        dpp("v_add_f32", s1, s1, s1, ctl)
        nop(1)
    for sw in ("v_permlane16_swap_b32", "v_permlane32_swap_b32"):
        A(f"v_mov_b32 v{vA0}, v{s0}")
        A(f"v_mov_b32 v{vA1}, v{s1}")
        nop(2)
        A(f"{sw} v{s0}, v{vA0}")
        A(f"{sw} v{s1}, v{vA1}")
        nop(1)
        A(f"v_add_f32 v{s0}, v{s0}, v{vA0}")
        A(f"v_add_f32 v{s1}, v{s1}, v{vA1}")
    ln_stats(s0, s1)
    A("s_waitcnt vmcnt(16)")
    vY = vK + 16
    unpack(vY, vXA, 8)
    for i in range(16):
        A(f"v_sub_f32 v{vY+i}, v{vY+i}, v{s0}")
    round_bf16([vY + i for i in range(16)], vXS)
    for i in range(16):
        A(f"v_mul_f32 v{vY+i}, v{vY+i}, v{s1}")
    for i in range(16):
        A(f"v_cvt_pk_bf16_f32 v{vY+i}, v{vY+i}, v{vY+i}")
    vAB = vK + 32
    for j in range(16):
        for k in range(4):
            A(f"v_and_b32 v{vAB+4*j+k}, v{vMK+k}, v{vY+j}")
    stamp("_ln")
    for j in range(16):
        A(f"s_waitcnt vmcnt({15-j})")
        if j in (0, 7, 15):
            stamp(f"_w{j}")
        A(f"v_mfma_f32_16x16x32_bf16 {vr(vACC)}, {vr(vAB+4*j)}, {vr(vW+4*j)}, " + ("0" if j == 0 else vr(vACC)))
    A(f"v_lshrrev_b32 v{vA0}, 1, v{vG}")
    A(f"v_lshlrev_b32 v{vA0}, 9, v{vA0}")
    A(f"v_lshl_add_u32 v{vA0}, v{vC}, 5, v{vA0}")
    A(f"v_and_b32 v{vA1}, 1, v{vG}")
    A(f"v_lshl_add_u32 v{vA0}, v{vA1}, 4, v{vA0}")
    A(f"s_lshl_b32 s{sTMP}, s{sID}, 10")
    A(f"s_add_u32 s{sTMP}, s{sTMP}, {WS_QP}")
    A(f"s_lshl_b32 s{sTMP2}, s{sID}, 2")
    A(f"s_add_u32 s{sTMP2}, s{sTMP2}, {WS_XC}")
    A(f"v_mov_b32 v{vA1}, s{sXW}")
    A(f"v_mov_b32 v{vA2}, 0")
    tag(vACC)
    A(f"buffer_store_dwordx4 {vr(vACC)}, v{vA0}, s[{rWS}:{rWS+3}], s{sTMP} offen sc1")
    A("s_mov_b64 exec, 1")
    A(f"buffer_store_dword v{vA1}, v{vA2}, s[{rWS}:{rWS+3}], s{sTMP2} offen sc1")
    A("s_mov_b64 exec, -1")
    stamp("qpub")
    if prio:
        A("s_setprio 0")
    if qbar:
        A("s_barrier")
        for i in range(k0):
            kload(i)
        A("s_branch L_noq")
    A("L_noq0:")
    if qbar:
        for i in range(k0):
            kload(i)
        A("s_barrier")
    A("L_noq:")

    def dma(voff, soff, ldsreg_expr, flags):
        A(ldsreg_expr)
        nop(1)
        A(f"buffer_load_dwordx4 v{voff}, s[{rT}:{rT+3}], {soff} offen{flags} lds")

    def wo_dma():
        srd(rT, sWO, 0 if nowo else 0x400000)
        A(f"v_lshrrev_b32 v{vA0}, 1, v{vL}")
        A(f"v_lshlrev_b32 v{vA0}, 10, v{vA0}")
        A(f"v_and_b32 v{vA1}, 1, v{vL}")
        A(f"v_lshl_add_u32 v{vA0}, v{vA1}, 4, v{vA0}")
        A(f"s_lshl_b32 s{sTMP}, s{sGX}, 19")
        A(f"s_lshl_b32 s{sTMP2}, s{sWV}, 16")
        A(f"s_add_u32 s{sTMP}, s{sTMP}, s{sTMP2}")
        A(f"s_lshl_b32 s{sTMP2}, s{sR}, 5")
        A(f"s_add_u32 s{sTMP}, s{sTMP}, s{sTMP2}")
        A(f"s_lshl_b32 s{sTMP2}, s{sWV}, 11")
        for u in range(2):
            dma(vA0, f"s{sTMP}", f"s_add_u32 m0, s{sTMP2}, {L_WO + u*1024}", woflags)
            if u == 0:
                A(f"s_add_u32 s{sTMP}, s{sTMP}, 32768")

    A(f"s_cmp_ge_u32 s{sID}, {0 if noffn else 29}")
    A("s_cbranch_scc1 L_noffnw")
    srd(rT, sW1, 512 * 2752)
    A(f"v_lshrrev_b32 v{vA0}, 1, v{vL}")
    A(f"v_mul_u32_u24 v{vA0}, 2752, v{vA0}")
    A(f"v_and_b32 v{vA1}, 1, v{vL}")
    A(f"v_lshl_add_u32 v{vA0}, v{vA1}, 4, v{vA0}")
    A(f"s_mul_i32 s{sTMP}, s{sWV}, {64*2752}")
    A(f"s_mul_i32 s{sTMP2}, s{sR}, 96")
    A(f"s_add_u32 s{sTMP}, s{sTMP}, s{sTMP2}")
    A(f"s_mul_i32 s{sTMP2}, s{sWV}, 6144")
    for u in range(2):
        for tau in range(3):
            A(f"s_add_u32 s{sCNT}, s{sTMP}, {u*32*2752 + tau*32}")
            dma(vA0, f"s{sCNT}", f"s_add_u32 m0, s{sTMP2}, {L_W1 + (tau*2+u)*1024}", wflags)
    srd(rT, sW2, 1376 * 1024)
    A(f"v_lshrrev_b32 v{vA0}, 3, v{vL}")
    A(f"v_lshlrev_b32 v{vA0}, 10, v{vA0}")
    A(f"v_and_b32 v{vA1}, 7, v{vL}")
    A(f"v_lshl_add_u32 v{vA0}, v{vA1}, 4, v{vA0}")
    A(f"s_mul_i32 s{sTMP}, s{sR}, {48*1024}")
    A(f"s_lshl_b32 s{sCNT}, s{sWV}, 7")
    A(f"s_add_u32 s{sTMP}, s{sTMP}, s{sCNT}")
    for i in range(6):
        dma(vA0, f"s{sTMP}", f"s_add_u32 m0, s{sTMP2}, {L_W2 + i*1024}", wflags)
        if i < 5:
            A(f"s_add_u32 s{sTMP}, s{sTMP}, 8192")
    A("L_noffnw:")
    if wopos == "start":
        wo_dma()

    for i in range(k0 if qbar else 0, 32):
        kload(i)
    vQA, vXCA = vA2, vA1
    A(f"v_lshlrev_b32 v{vQA}, 11, v{vG}")
    A(f"v_lshl_add_u32 v{vQA}, v{vC}, 5, v{vQA}")
    A(f"s_lshl_b32 s{sTMP}, s{sH}, 13")
    A(f"s_lshl_b32 s{sTMP2}, s{sB}, 9")
    A(f"s_add_u32 s{sTMP}, s{sTMP}, s{sTMP2}")
    A(f"s_add_u32 s{sTMP}, s{sTMP}, {WS_QP}")
    A(f"v_and_b32 v{vXCA}, 31, v{vL}")
    A(f"v_lshlrev_b32 v{vXCA}, 2, v{vXCA}")
    A(f"s_lshl_b32 s{sTMP2}, s{sGX}, 7")
    A(f"s_add_u32 s{sTMP2}, s{sTMP2}, {WS_XC}")

    def q_issue():
        for i, off in enumerate((0, 16, 1024, 1040)):
            A(f"buffer_load_dwordx4 {vr(vTMP+4*i)}, v{vQA}, s[{rWS}:{rWS+3}], s{sTMP} offen offset:{off} sc1")
        A(f"buffer_load_dword v{vM}, v{vXCA}, s[{rWS}:{rWS+3}], s{sTMP2} offen sc1")
    q_issue()
    for i in range(npre):
        vload(i)
    A(f"s_cmp_eq_u32 s{sWV}, 0")
    A("s_cbranch_scc1 L_haveep")
    make_masks_tmp = (vA0,)
    A(f"v_mov_b32 v{vT0}, v{vXCA}")
    make_masks()
    A(f"v_mov_b32 v{vXCA}, v{vT0}")
    epoch()
    A("L_haveep:")
    A(f"v_cmp_gt_u32 vcc, 8, v{vC}")
    nop(2)
    for j in range(4):
        A(f"v_cndmask_b32 v{vMK+j}, 0, v{vMK+j}, vcc")
    poll("q", q_issue, [vTMP, vTMP + 4, vTMP + 8, vTMP + 12], vT0, first_wait=npre)
    A(f"v_cmp_ne_u32 vcc, s{sXW}, v{vM}")
    a = vTMP
    for i in range(8):
        A(f"v_add_f32 v{a+i}, v{a+i}, v{a+8+i}")
    A(f"s_cmp_eq_u64 vcc, 0")
    A(f"s_cselect_b32 s{sLOC}, {1 if local else 0}, 0")
    for i in range(4):
        A(f"v_permlane32_swap_b32 v{a+i}, v{a+4+i}")
    for i in range(4):
        A(f"v_add_f32 v{a+i}, v{a+i}, v{a+4+i}")
    nop(2)
    for i in range(2):
        A(f"v_permlane16_swap_b32 v{a+i}, v{a+2+i}")
    nop(1)
    for i in range(2):
        A(f"v_add_f32 v{a+i}, v{a+i}, v{a+2+i}")
    A(f"v_cvt_pk_bf16_f32 v{vQ}, v{a}, v{a+1}")
    A(f"v_mov_b32 v{vQ+1}, v{vQ}")
    nop(2)
    A(f"v_permlane16_swap_b32 v{vQ}, v{vQ+1}")
    nop(1)
    A(f"v_mov_b32 v{vQ+2}, v{vQ}")
    A(f"v_mov_b32 v{vQ+3}, v{vQ+1}")
    nop(2)
    A(f"v_permlane32_swap_b32 v{vQ}, v{vQ+2}")
    A(f"v_permlane32_swap_b32 v{vQ+1}, v{vQ+3}")
    nop(1)
    stamp("qgot")

    nextv = npre
    for tp in range(4):
        tt = [vTMP, vTMP + 4]
        uu = [vTMP + 8, vTMP + 10]
        for e in range(2):
            t = 2 * tp + e
            for k in range(4):
                for r in range(4):
                    A(f"v_dot2_f32_bf16 v{tt[e]+r}, v{vK+16*t+4*r+k}, v{vQ+k}, " + ("0" if k == 0 else f"v{tt[e]+r}"))
        while nextv < 32 and (nextv - npre) < 8 * (tp + 1):
            vload(nextv)
            nextv += 1
        if tp == 1 and wopos == "end":
            assert nextv == 32
            wo_dma()
        nop(3)
        for e in range(2):
            dpp("v_add_f32", uu[e], tt[e], tt[e], "row_ror:8", 0x3)
            dpp("v_add_f32", uu[e], tt[e] + 1, tt[e] + 1, "row_ror:8", 0xc)
            dpp("v_add_f32", uu[e] + 1, tt[e] + 2, tt[e] + 2, "row_ror:8", 0x3)
            dpp("v_add_f32", uu[e] + 1, tt[e] + 3, tt[e] + 3, "row_ror:8", 0xc)
        nop(1)
        for e in range(2):
            dpp("v_add_f32", vS + 2 * tp + e, uu[e], uu[e], "row_shl:4", 0x5)
        for e in range(2):
            dpp("v_add_f32", vS + 2 * tp + e, uu[e] + 1, uu[e] + 1, "row_shr:4", 0xa)
    assert nextv == 32
    vU, vBB, vXX = vK + 100, vK + 101, vK + 102
    vCH = vK + 103
    A(f"v_bfe_u32 v{vU}, v{vL}, 3, 1")
    A(f"v_bfe_u32 v{vBB}, v{vL}, 2, 1")
    A(f"v_and_b32 v{vXX}, 3, v{vL}")
    A(f"v_lshl_add_u32 v{vCH}, v{vU}, 2, v{vG}")
    vXR, vB1R, vB2R = vK + 68, vK + 72, vK + 76
    A(f"v_lshlrev_b32 v{vA0}, 10, v{vBB}")
    A(f"v_lshl_add_u32 v{vA0}, v{vCH}, 4, v{vA0}")
    A(f"s_lshl_b32 s{sTMP}, s{sWV}, 7")
    A(f"v_add_u32 v{vA0}, s{sTMP}, v{vA0}")
    vHA = vK + 106
    A(f"v_mov_b32 v{vHA}, v{vA0}")
    A(f"global_load_dwordx4 {vr(vXR)}, v{vA0}, s[{sX}:{sX+1}]")
    srd(rT, sB1, 2752)
    A(f"v_lshlrev_b32 v{vA0}, 4, v{vCH}")
    A(f"s_mul_i32 s{sTMP}, s{sR}, 96")
    A(f"buffer_load_dwordx4 {vr(vB1R)}, v{vA0}, s[{rT}:{rT+3}], s{sTMP} offen")
    vFC = vK + 107
    A(f"v_lshl_add_u32 v{vFC}, v{vXX}, 2, v{vG}")
    A(f"s_lshl_b32 s{sTMP}, s{sR}, 4")
    A(f"v_add_u32 v{vFC}, s{sTMP}, v{vFC}")
    A(f"v_lshlrev_b32 v{vFC}, 1, v{vFC}")
    A(f"global_load_ushort v{vB2R}, v{vFC}, s[{sB2}:{sB2+1}]")
    A(f"v_lshl_add_u32 v{vFC}, v{vBB}, 10, v{vFC}")
    A(f"global_load_ushort v{vB2R+1}, v{vFC}, s[{sOUT}:{sOUT+1}]")
    S = [vS + i for i in range(8)]
    quad_allreduce(S)
    round_bf16(S, vTMP)
    for r in S:
        A(f"v_mul_f32 v{r}, {hex(SCALE)}, v{r}")
    round_bf16(S, vTMP)
    A(f"v_max3_f32 v{vM}, v{S[0]}, v{S[1]}, v{S[2]}")
    A(f"v_max3_f32 v{vM}, v{vM}, v{S[3]}, v{S[4]}")
    A(f"v_max3_f32 v{vM}, v{vM}, v{S[5]}, v{S[6]}")
    A(f"v_max_f32 v{vM}, v{vM}, v{S[7]}")

    def wave_allreduce_banks(op, r, t):
        nop(2)
        dpp(op, r, r, r, "row_ror:8")
        nop(2)
        dpp(op, r, r, r, "row_ror:4")
        for sw in ("v_permlane16_swap_b32", "v_permlane32_swap_b32"):
            A(f"v_mov_b32 v{t}, v{r}")
            nop(2)
            A(f"{sw} v{r}, v{t}")
            nop(1)
            A(f"{op} v{r}, v{r}, v{t}")
    wave_allreduce_banks("v_max_f32", vM, vT0)
    A(f"s_lshl_b32 s{sTMP}, s{sWV}, 2")
    A(f"v_mov_b32 v{vA0}, s{sTMP}")
    A(f"v_mov_b32 v{vA1}, 0")
    A(f"ds_write_b32 v{vA0}, v{vM} offset:{L_MX}")
    A("s_waitcnt lgkmcnt(0)")
    A("s_barrier")
    A(f"ds_read_b128 {vr(vTMP)}, v{vA1} offset:{L_MX}")
    A(f"ds_read_b128 {vr(vTMP+4)}, v{vA1} offset:{L_MX+16}")
    A("s_waitcnt lgkmcnt(0)")
    A(f"v_max3_f32 v{vM}, v{vTMP}, v{vTMP+1}, v{vTMP+2}")
    A(f"v_max3_f32 v{vM}, v{vM}, v{vTMP+3}, v{vTMP+4}")
    A(f"v_max3_f32 v{vM}, v{vM}, v{vTMP+5}, v{vTMP+6}")
    A(f"v_max_f32 v{vM}, v{vM}, v{vTMP+7}")
    for r in S:
        A(f"v_sub_f32 v{r}, v{r}, v{vM}")
    for r in S:
        A(f"v_mul_f32 v{r}, {hex(LOG2E)}, v{r}")
    for r in S:
        A(f"v_exp_f32 v{r}, v{r}")
    nop(1)
    A(f"v_add_f32 v{vT1}, v{S[0]}, v{S[1]}")
    for r in S[2:]:
        A(f"v_add_f32 v{vT1}, v{vT1}, v{r}")
    for r in S:
        A(f"v_cvt_pk_bf16_f32 v{r}, v{r}, v{r}")
    wave_allreduce_banks("v_add_f32", vT1, vT0)
    A(f"ds_write_b32 v{vA0}, v{vT1} offset:{L_LW}")
    stamp("soft")

    nx = (2 if wopos == "end" else 0) + 4
    bank = [0, 2, 1, 3]
    for t in range(8):
        for r in range(4):
            for k in range(4):
                dpp("v_and_b32", vTMP + 4 * r + k, vS + t, vMK + k, f"row_newbcast:{4*bank[r]}")
        for r in range(4):
            i = 4 * t + r
            if t == 7 or r == 0:
                last = i if t == 7 else 4 * t + 3
                A(f"s_waitcnt vmcnt({31 - last + nx})")
            if r == 0:
                nop(1)
            A(f"v_mfma_f32_16x16x32_bf16 {vr(vACC)}, {vr(vTMP+4*r)}, {vr(vreg(i))}, " + ("0" if i == 0 else vr(vACC)))
    A(f"v_lshlrev_b32 v{vA0}, 5, v{vC}")
    A(f"v_lshl_add_u32 v{vA0}, v{vG}, 4, v{vA0}")
    A(f"s_lshl_b32 s{sTMP}, s{sWV}, 9")
    A(f"v_add_u32 v{vA0}, s{sTMP}, v{vA0}")
    A("s_mov_b32 exec_hi, 0")
    nop(4)
    A(f"ds_write_b128 v{vA0}, {vr(vACC)} offset:{L_OW}")
    A("s_mov_b64 exec, -1")
    A(f"v_lshrrev_b32 v{vA1}, 5, v{vL}")
    A(f"v_lshlrev_b32 v{vA1}, 11, v{vA1}")
    A(f"v_and_b32 v{vA2}, 31, v{vL}")
    A(f"v_lshl_add_u32 v{vA1}, v{vA2}, 4, v{vA1}")
    A(f"v_mov_b32 v{vA2}, 0")
    A("s_waitcnt lgkmcnt(0)")
    A("s_barrier")
    stamp("strm")
    A(f"s_cmp_lg_u32 s{sWV}, 0")
    A("s_cbranch_scc1 L_nos0")
    o = vK
    A(f"ds_read_b128 {vr(o+16)}, v{vA2} offset:{L_LW}")
    A(f"ds_read_b128 {vr(o+20)}, v{vA2} offset:{L_LW+16}")
    for i in range(4):
        A(f"ds_read_b128 {vr(o+4*i)}, v{vA1} offset:{L_OW + i*512}")
    A(f"v_cmp_gt_u32 vcc, 32, v{vL}")
    A(f"v_lshlrev_b32 v{vA0}, 4, v{vL}")
    A(f"s_mul_i32 s{sTMP}, s{sID}, {OSTR}")
    A(f"s_add_u32 s{sTMP}, s{sTMP}, {WS_OP}")
    A(f"v_cndmask_b32 v{o+24}, 0, v{vM}, vcc")
    A(f"v_mov_b32 v{o+26}, 0")
    A(f"v_mov_b32 v{o+27}, 0")
    A("s_waitcnt lgkmcnt(4)")
    A(f"v_pk_add_f32 {vr(o+16,2)}, {vr(o+16,2)}, {vr(o+18,2)}")
    A(f"v_pk_add_f32 {vr(o+20,2)}, {vr(o+20,2)}, {vr(o+22,2)}")
    A(f"v_pk_add_f32 {vr(o+16,2)}, {vr(o+16,2)}, {vr(o+20,2)}")
    A(f"v_add_f32 v{o+16}, v{o+16}, v{o+17}")
    A(f"v_cndmask_b32 v{o+25}, 0, v{o+16}, vcc")
    A("s_waitcnt lgkmcnt(2)")
    A(f"v_pk_add_f32 {vr(o,2)}, {vr(o,2)}, {vr(o+4,2)}")
    A(f"v_pk_add_f32 {vr(o+2,2)}, {vr(o+2,2)}, {vr(o+6,2)}")
    A("s_waitcnt lgkmcnt(0)")
    A(f"v_pk_add_f32 {vr(o+8,2)}, {vr(o+8,2)}, {vr(o+12,2)}")
    A(f"v_pk_add_f32 {vr(o+10,2)}, {vr(o+10,2)}, {vr(o+14,2)}")
    A(f"v_pk_add_f32 {vr(o,2)}, {vr(o,2)}, {vr(o+8,2)}")
    A(f"v_pk_add_f32 {vr(o+2,2)}, {vr(o+2,2)}, {vr(o+10,2)}")
    nop(2)
    for k in range(4):
        A(f"v_permlane32_swap_b32 v{o+k}, v{o+24+k}")
    nop(1)
    A(f"v_pk_add_f32 {vr(o,2)}, {vr(o,2)}, {vr(o+24,2)}")
    A(f"v_pk_add_f32 {vr(o+2,2)}, {vr(o+2,2)}, {vr(o+26,2)}")
    tag(o)
    A("s_mov_b32 exec_hi, 0xff")

    def publish(name, data, voff, soff):
        A(f"s_cmp_eq_u32 s{sLOC}, 0")
        A(f"s_cbranch_scc1 L_{name}_far")
        A(f"buffer_store_dwordx4 {vr(data)}, v{voff}, s[{rWS}:{rWS+3}], {soff} offen")
        A(f"s_branch L_{name}_pub")
        A(f"L_{name}_far:")
        A(f"buffer_store_dwordx4 {vr(data)}, v{voff}, s[{rWS}:{rWS+3}], {soff} offen sc1")
        A(f"L_{name}_pub:")
    publish("o", o, vA0, f"s{sTMP}")
    A("s_mov_b64 exec, -1")
    A("L_nos0:")

    A(f"v_and_b32 v{vA0}, 7, v{vL}")
    A(f"v_mul_u32_u24 v{vA0}, {OSTR}, v{vA0}")
    A(f"v_lshl_add_u32 v{vA1}, v{vCH}, 5, v{vA0}")
    A(f"s_and_b32 s{sTMP2}, s{sWV}, 1")
    A(f"s_lshl_b32 s{sTMP2}, s{sTMP2}, 8")
    A(f"v_add_u32 v{vA1}, s{sTMP2}, v{vA1}")
    A(f"s_lshr_b32 s{sTMP}, s{sWV}, 1")
    A(f"s_lshl_b32 s{sTMP}, s{sTMP}, 3")
    A(f"s_lshl_b32 s{sTMP2}, s{sGX}, 5")
    A(f"s_add_u32 s{sTMP}, s{sTMP}, s{sTMP2}")
    A(f"s_mul_i32 s{sTMP}, s{sTMP}, {OSTR}")
    A(f"s_add_u32 s{sTMP}, s{sTMP}, {WS_OP}")
    g0 = vK + 32

    def a_issue():
        A(f"buffer_load_dwordx4 {vr(g0+8)}, v{vA0}, s[{rWS}:{rWS+3}], s{sTMP} offen offset:512 sc1")
        A(f"buffer_load_dwordx4 {vr(g0)}, v{vA1}, s[{rWS}:{rWS+3}], s{sTMP} offen sc1")
        A(f"buffer_load_dwordx4 {vr(g0+4)}, v{vA1}, s[{rWS}:{rWS+3}], s{sTMP} offen offset:16 sc1")
    a_issue()
    vTR = vK + 104
    A(f"v_lshlrev_b32 v{vTR}, 8, v{vG}")
    A(f"v_lshl_add_u32 v{vTR}, v{vC}, 3, v{vTR}")
    A(f"s_lshl_b32 s{sTMP2}, s{sWV}, 11")
    A(f"v_add_u32 v{vA2}, s{sTMP2}, v{vTR}")
    vWO = vK + 48
    A("s_waitcnt vmcnt(3)")
    for u in range(2):
        for e in range(2):
            A(f"ds_read_b64_tr_b16 {vr(vWO+4*u+2*e,2)}, v{vA2} offset:{L_WO + u*1024 + e*128}")
    A(f"v_lshlrev_b32 v{vA2}, 6, v{vBB}")
    A(f"v_lshl_add_u32 v{vA2}, v{vG}, 4, v{vA2}")
    vBG = vK + 105
    A(f"v_mov_b32 v{vBG}, v{vA2}")
    A(f"s_lshl_b32 s{sTMP2}, s{sWV}, 7")
    A(f"v_add_u32 v{vA2}, s{sTMP2}, v{vA2}")
    poll("a", a_issue, [g0, g0 + 4, g0 + 8], vT0, first_wait=0)
    stamp("hopA")
    mq, lq = g0 + 8, g0 + 9
    dpp("v_max_f32", vT0, mq, mq, "quad_perm:[1,0,3,2]")
    nop(2)
    dpp("v_max_f32", vT0, vT0, vT0, "quad_perm:[2,3,0,1]")
    A(f"v_sub_f32 v{mq}, v{mq}, v{vT0}")
    A(f"v_mul_f32 v{mq}, {hex(LOG2E)}, v{mq}")
    A(f"v_exp_f32 v{mq}, v{mq}")
    nop(1)
    A(f"v_mul_f32 v{lq}, v{lq}, v{mq}")
    for i in range(8):
        A(f"v_mul_f32 v{g0+i}, v{g0+i}, v{mq}")
    quad_allreduce([lq] + [g0 + i for i in range(8)])
    A(f"v_rcp_f32 v{lq}, v{lq}")
    nop(1)
    for i in range(8):
        A(f"v_mul_f32 v{g0+i}, v{g0+i}, v{lq}")
    vB = vK + 56
    for i in range(4):
        A(f"v_cvt_pk_bf16_f32 v{vB+i}, v{g0+2*i}, v{g0+2*i+1}")
    vD0, vD1 = vK + 60, vK + 64
    A("s_waitcnt lgkmcnt(0)")
    nop(1)
    A(f"v_mfma_f32_16x16x32_bf16 {vr(vD0)}, {vr(vWO)}, {vr(vB)}, 0")
    A(f"v_mfma_f32_16x16x32_bf16 {vr(vD1)}, {vr(vWO+4)}, {vr(vB)}, 0")
    A(f"v_and_b32 v{vA0}, 7, v{vL}")
    A(f"v_lshlrev_b32 v{vA0}, 4, v{vA0}")
    A(f"v_lshl_add_u32 v{vA1}, v{vU}, 9, v{vA0}")
    A(f"s_mov_b32 s{sM0}, 0x00ff00ff")
    A(f"s_mov_b32 s{sM0+1}, 0x00ff00ff")
    nop(4)
    for k in range(4):
        dpp("v_add_f32", vD0 + k, vD1 + k, vD0 + k, "row_ror:8")
    A(f"s_mov_b64 exec, s[{sM0}:{sM0+1}]")
    A(f"ds_write_b128 v{vA2}, {vr(vD0)} offset:{L_Y}")
    A("s_mov_b64 exec, -1")
    A("s_waitcnt lgkmcnt(0)")
    A("s_barrier")
    A(f"s_cmp_lg_u32 s{sWV}, 0")
    A("s_cbranch_scc1 L_noy")
    for i in range(4):
        A(f"ds_read_b128 {vr(o+4*i)}, v{vA1} offset:{L_Y + i*128}")
    A(f"s_lshl_b32 s{sTMP}, s{sID}, 7")
    A(f"s_add_u32 s{sTMP}, s{sTMP}, {WS_YP}")
    A("s_waitcnt lgkmcnt(2)")
    A(f"v_pk_add_f32 {vr(o,2)}, {vr(o,2)}, {vr(o+4,2)}")
    A(f"v_pk_add_f32 {vr(o+2,2)}, {vr(o+2,2)}, {vr(o+6,2)}")
    A("s_waitcnt lgkmcnt(0)")
    A(f"v_pk_add_f32 {vr(o+8,2)}, {vr(o+8,2)}, {vr(o+12,2)}")
    A(f"v_pk_add_f32 {vr(o+10,2)}, {vr(o+10,2)}, {vr(o+14,2)}")
    A(f"v_pk_add_f32 {vr(o,2)}, {vr(o,2)}, {vr(o+8,2)}")
    A(f"v_pk_add_f32 {vr(o+2,2)}, {vr(o+2,2)}, {vr(o+10,2)}")
    nop(2)
    for k in range(4):
        dpp("v_add_f32", o + k, o + k, o + k, "row_ror:8")
    tag(o)
    A("s_mov_b64 exec, 0xff")
    A(f"buffer_store_dwordx4 {vr(o)}, v{vA0}, s[{rWS}:{rWS+3}], s{sTMP} offen sc1")
    A("s_mov_b64 exec, -1")
    A("L_noy:")
    stamp("ypub")
    A(f"s_cmp_lg_u32 s{sGX}, 0")
    A("s_cbranch_scc1 L_fin")

    A(f"v_lshrrev_b32 v{vA0}, 1, v{vCH}")
    A(f"v_lshlrev_b32 v{vA0}, 7, v{vA0}")
    A(f"v_lshl_add_u32 v{vA0}, v{vXX}, 13, v{vA0}")
    A(f"v_lshl_add_u32 v{vA0}, v{vBB}, 6, v{vA0}")
    A(f"v_and_b32 v{vA1}, 1, v{vG}")
    A(f"v_lshl_add_u32 v{vA0}, v{vA1}, 5, v{vA0}")
    A(f"s_lshl_b32 s{sTMP}, s{sWV}, 9")
    A(f"s_add_u32 s{sTMP}, s{sTMP}, {WS_YP}")
    A(f"s_add_u32 s{sTMP2}, s{sTMP}, 4096")

    def b_issue():
        A(f"buffer_load_dwordx4 {vr(g0)}, v{vA0}, s[{rWS}:{rWS+3}], s{sTMP} offen sc1")
        A(f"buffer_load_dwordx4 {vr(g0+4)}, v{vA0}, s[{rWS}:{rWS+3}], s{sTMP} offen offset:16 sc1")
        A(f"buffer_load_dwordx4 {vr(g0+8)}, v{vA0}, s[{rWS}:{rWS+3}], s{sTMP2} offen sc1")
        A(f"buffer_load_dwordx4 {vr(g0+12)}, v{vA0}, s[{rWS}:{rWS+3}], s{sTMP2} offen offset:16 sc1")
    b_issue()
    vW1, vW2 = vV, vV + 24
    sW6 = sXW
    A(f"s_mul_i32 s{sW6}, s{sWV}, 6144")
    A(f"v_add_u32 v{vA1}, s{sW6}, v{vTR}")
    for tau in range(3):
        for u in range(2):
            for e in range(2):
                A(f"ds_read_b64_tr_b16 {vr(vW1+8*tau+4*u+2*e,2)}, v{vA1} offset:{L_W1 + (tau*2+u)*1024 + e*128}")
    A("s_waitcnt lgkmcnt(0)")
    A(f"v_lshrrev_b32 v{vA1}, 2, v{vC}")
    A(f"v_lshl_add_u32 v{vA1}, v{vG}, 3, v{vA1}")
    A(f"v_lshlrev_b32 v{vA1}, 7, v{vA1}")
    A(f"v_lshl_add_u32 v{vA1}, v{vXX}, 3, v{vA1}")
    A(f"s_add_u32 s{sW6}, s{sW6}, {L_W2}")
    A(f"v_add_u32 v{vA1}, s{sW6}, v{vA1}")
    for tau in range(4):
        for u in range(2):
            for e in range(2):
                A(f"ds_read_b64_tr_b16 {vr(vW2+8*tau+4*u+2*e,2)}, v{vA1} offset:{(32*u+4*e)*128 + tau*32}")
        if tau == 1:
            A("s_waitcnt lgkmcnt(0)")
    sMK = [sM0, sM1, sM2, sM3]
    for tau in range(4):
        A(f"v_cmp_eq_u32 s[{sMK[tau]}:{sMK[tau]+1}], {tau}, v{vXX}")
    vSA, vSR = vK + 108, vK + 109
    A(f"v_lshlrev_b32 v{vSR}, 6, v{vBB}")
    A(f"v_lshrrev_b32 v{vSA}, 1, v{vG}")
    A(f"v_lshl_add_u32 v{vSA}, v{vSA}, 5, v{vSR}")
    A(f"s_lshl_b32 s{sW6}, s{sWV}, 2")
    A(f"v_add_u32 v{vSA}, s{sW6}, v{vSA}")
    vFW, vFR = vK + 110, vK + 111
    A(f"v_lshlrev_b32 v{vFR}, 8, v{vBB}")
    A(f"v_lshl_add_u32 v{vFW}, v{vXX}, 6, v{vFR}")
    A(f"v_lshl_add_u32 v{vFW}, v{vG}, 4, v{vFW}")
    A(f"s_lshl_b32 s{sW6}, s{sWV}, 9")
    A(f"v_add_u32 v{vFW}, s{sW6}, v{vFW}")
    A(f"v_lshl_add_u32 v{vFR}, v{vXX}, 10, v{vFR}")
    A(f"v_lshl_add_u32 v{vFR}, v{vCH}, 5, v{vFR}")
    vZA = vK + 112
    A(f"v_lshl_add_u32 v{vZA}, v{vXX}, 7, v{vBG}")
    A(f"v_add_u32 v{vZA}, s{sW6}, v{vZA}")
    A(f"v_mov_b32 v{vK+113}, 0x3f803f80")
    A("s_waitcnt lgkmcnt(0)")
    A("s_mov_b32 exec_lo, 0")
    for tau in range(4):
        for k in range(4):
            A(f"v_mov_b32 v{vW2+8*tau+4+k}, 0")
    A("s_mov_b32 exec_lo, -1")
    poll("b", b_issue, [g0, g0 + 4, g0 + 8, g0 + 12], vT0, first_wait=0)
    stamp("hopB")
    for i in range(0, 8, 2):
        A(f"v_pk_add_f32 {vr(g0+i,2)}, {vr(g0+i,2)}, {vr(g0+8+i,2)}")
    G = [g0 + i for i in range(8)]
    unpack(g0 + 8, vXR, 4)
    quad_allreduce(G)
    round_bf16(G, vB)
    for i in range(0, 8, 2):
        A(f"v_pk_add_f32 {vr(g0+i,2)}, {vr(g0+i,2)}, {vr(g0+8+i,2)}")
    for i in range(4):
        A(f"v_cvt_pk_bf16_f32 v{vB+i}, v{g0+2*i}, v{g0+2*i+1}")
    for i in range(4):
        A(f"v_dot2_f32_bf16 v{s0}, v{vB+i}, v{vK+113}, " + ("0" if i == 0 else f"v{s0}"))
        A(f"v_dot2_f32_bf16 v{s1}, v{vB+i}, v{vB+i}, " + ("0" if i == 0 else f"v{s1}"))
    A(f"ds_write_b128 v{vHA}, {vr(vB)} offset:{L_HS}")
    nop(2)
    A(f"v_permlane32_swap_b32 v{s0}, v{s1}")
    nop(1)
    A(f"v_add_f32 v{s0}, v{s0}, v{s1}")
    A(f"v_mov_b32 v{s1}, v{s0}")
    nop(2)
    A(f"v_permlane16_swap_b32 v{s0}, v{s1}")
    nop(1)
    A(f"v_add_f32 v{s0}, v{s0}, v{s1}")
    nop(2)
    dpp("v_add_f32", s0, s0, s0, "row_ror:8")
    A(f"ds_write_b32 v{vSA}, v{s0} offset:{L_ST}")
    unpack(g0, vB, 4)
    A("s_waitcnt lgkmcnt(0)")
    A("s_barrier")
    A(f"s_cmp_ge_u32 s{sR}, 29")
    A("s_cbranch_scc1 L_noffn")
    st = vK
    for i in range(4):
        A(f"ds_read_b128 {vr(st+4*i)}, v{vSR} offset:{L_ST + 16*i}")
    A("s_waitcnt lgkmcnt(2)")
    A(f"v_pk_add_f32 {vr(st,2)}, {vr(st,2)}, {vr(st+2,2)}")
    A(f"v_pk_add_f32 {vr(st+4,2)}, {vr(st+4,2)}, {vr(st+6,2)}")
    A(f"v_pk_add_f32 {vr(st,2)}, {vr(st,2)}, {vr(st+4,2)}")
    A("s_waitcnt lgkmcnt(0)")
    A(f"v_pk_add_f32 {vr(st+8,2)}, {vr(st+8,2)}, {vr(st+10,2)}")
    A(f"v_pk_add_f32 {vr(st+12,2)}, {vr(st+12,2)}, {vr(st+14,2)}")
    A(f"v_pk_add_f32 {vr(st+8,2)}, {vr(st+8,2)}, {vr(st+12,2)}")
    A(f"v_add_f32 v{s0}, v{st}, v{st+1}")
    A(f"v_add_f32 v{s1}, v{st+8}, v{st+9}")
    ln_stats(s0, s1)
    for r in G:
        A(f"v_sub_f32 v{r}, v{r}, v{s0}")
    round_bf16(G, vB)
    for r in G:
        A(f"v_mul_f32 v{r}, v{r}, v{s1}")
    for i in range(4):
        A(f"v_cvt_pk_bf16_f32 v{vB+i}, v{g0+2*i}, v{g0+2*i+1}")
    vBM = vK + 80
    for tau in range(3):
        for k in range(4):
            A(f"v_cndmask_b32 v{vBM+4*tau+k}, 0, v{vB+k}, s[{sMK[tau]}:{sMK[tau]+1}]")
    nop(2)
    for tau in range(3):
        for u in range(2):
            d = vD0 if u == 0 else vD1
            A(f"v_mfma_f32_16x16x32_bf16 {vr(d)}, {vr(vW1+8*tau+4*u)}, {vr(vBM+4*tau)}, " + ("0" if tau == 0 else vr(d)))
    A(f"s_mul_i32 s{sTMP}, s{sR}, 6")
    A(f"s_sub_u32 s{sTMP}, 172, s{sTMP}")
    A(f"s_min_u32 s{sTMP}, s{sTMP}, 6")
    A(f"v_cmp_gt_u32 vcc, s{sTMP}, v{vCH}")
    A(f"s_lshl_b32 s{sTMP}, s{sR}, 12")
    A(f"s_add_u32 s{sTMP}, s{sTMP}, {WS_ZP}")
    for tau in range(4):
        A(f"s_and_b64 s[{sMK[tau]}:{sMK[tau]+1}], s[{sMK[tau]}:{sMK[tau]+1}], vcc")
    A(f"s_mov_b32 s{sEX}, 0x00ff00ff")
    A(f"s_mov_b32 s{sEX+1}, 0x00ff00ff")
    for k in range(4):
        dpp("v_add_f32", vD0 + k, vD1 + k, vD0 + k, "row_ror:8")
    A(f"s_mov_b64 exec, s[{sEX}:{sEX+1}]")
    A(f"ds_write_b128 v{vFW}, {vr(vD0)} offset:{L_F1}")
    A("s_mov_b64 exec, -1")
    unpack(st, vB1R, 4)
    A("s_waitcnt lgkmcnt(0)")
    A("s_barrier")
    A(f"ds_read_b128 {vr(g0)}, v{vFR} offset:{L_F1}")
    A(f"ds_read_b128 {vr(g0+4)}, v{vFR} offset:{L_F1+16}")
    A(f"ds_read_b128 {vr(g0+8)}, v{vFR} offset:{L_F1+512}")
    A(f"ds_read_b128 {vr(g0+12)}, v{vFR} offset:{L_F1+528}")
    A("s_waitcnt lgkmcnt(0)")
    for i in range(0, 8, 2):
        A(f"v_pk_add_f32 {vr(g0+i,2)}, {vr(g0+i,2)}, {vr(g0+8+i,2)}")
    quad_allreduce(G)
    round_bf16(G, vB)
    for i in range(0, 8, 2):
        A(f"v_pk_add_f32 {vr(g0+i,2)}, {vr(g0+i,2)}, {vr(st+i,2)}")
    round_bf16(G, vB)
    for r in G:
        A(f"v_max_f32 v{r}, 0, v{r}")
    for i in range(0, 8, 2):
        A(f"v_pk_mul_f32 {vr(g0+i,2)}, {vr(g0+i,2)}, {vr(g0+i,2)}")
    for i in range(4):
        A(f"v_cvt_pk_bf16_f32 v{vB+i}, v{g0+2*i}, v{g0+2*i+1}")
    for tau in range(4):
        for k in range(4):
            A(f"v_cndmask_b32 v{vBM+4*tau+k}, 0, v{vB+k}, s[{sMK[tau]}:{sMK[tau]+1}]")
    nop(2)
    for tau in range(4):
        for u in range(2):
            d = vD0 if u == 0 else vD1
            A(f"v_mfma_f32_16x16x32_bf16 {vr(d)}, {vr(vW2+8*tau+4*u)}, {vr(vBM+4*tau)}, " + ("0" if tau == 0 else vr(d)))
    nop(8)
    for k in range(4):
        dpp("v_add_f32", vD0 + k, vD1 + k, vD0 + k, "row_ror:8")
    tag(vD0)
    A(f"s_mov_b64 exec, s[{sEX}:{sEX+1}]")
    publish("z", vD0, vZA, f"s{sTMP}")
    A("s_mov_b64 exec, -1")
    A("L_noffn:")
    stamp("zpub")
    A(f"s_cmp_lg_u32 s{sWV}, 0")
    A("s_cbranch_scc1 L_fin")
    A(f"v_lshrrev_b32 v{vA0}, 3, v{vL}")
    A(f"v_lshlrev_b32 v{vA0}, 12, v{vA0}")
    A(f"v_and_b32 v{vA1}, 7, v{vL}")
    A(f"v_lshl_add_u32 v{vA0}, v{vA1}, 4, v{vA0}")
    A(f"s_lshl_b32 s{sTMP}, s{sR}, 7")
    for t in range(4):
        A(f"s_add_u32 s{sTILE+t}, s{sTMP}, {WS_ZP + t*32768}")
    A(f"ds_read_u16 v{vXR}, v{vFC} offset:{L_HS}")

    def c_issue():
        for t in range(3):
            A(f"buffer_load_dwordx4 {vr(g0+4*t)}, v{vA0}, s[{rWS}:{rWS+3}], s{sTILE+t} offen sc1")
        for k in range(4):
            A(f"v_mov_b32 v{g0+12+k}, s{Tk[k]}")
        A("s_mov_b32 exec_hi, 0xff")
        A(f"buffer_load_dwordx4 {vr(g0+12)}, v{vA0}, s[{rWS}:{rWS+3}], s{sTILE+3} offen sc1")
        A("s_mov_b32 exec_hi, -1")
    poll("c", c_issue, [g0, g0 + 4, g0 + 8, g0 + 12], vT0)
    stamp("hopC")
    for i in range(0, 8, 2):
        A(f"v_pk_add_f32 {vr(g0+i,2)}, {vr(g0+i,2)}, {vr(g0+8+i,2)}")
    A(f"v_pk_add_f32 {vr(g0,2)}, {vr(g0,2)}, {vr(g0+4,2)}")
    A(f"v_pk_add_f32 {vr(g0+2,2)}, {vr(g0+2,2)}, {vr(g0+6,2)}")
    A(f"v_lshlrev_b32 v{vB2R}, 16, v{vB2R}")
    A("s_waitcnt lgkmcnt(0)")
    A(f"v_permlane32_swap_b32 v{g0}, v{g0+2}")
    A(f"v_permlane32_swap_b32 v{g0+1}, v{g0+3}")
    A(f"v_lshlrev_b32 v{vXR}, 16, v{vXR}")
    A(f"v_pk_add_f32 {vr(g0,2)}, {vr(g0,2)}, {vr(g0+2,2)}")
    nop(2)
    A(f"v_permlane16_swap_b32 v{g0}, v{g0+1}")
    nop(1)
    A(f"v_add_f32 v{g0}, v{g0}, v{g0+1}")
    nop(2)
    dpp("v_add_f32", g0, g0, g0, "row_ror:8")
    round1(g0)
    A(f"v_add_f32 v{g0}, v{g0}, v{vB2R}")
    round1(g0)
    A(f"v_add_f32 v{g0}, v{g0}, v{vXR}")
    A(f"v_cvt_pk_bf16_f32 v{g0}, v{g0}, v{g0}")
    A("s_mov_b32 exec_lo, 0x00ff00ff")
    A("s_mov_b32 exec_hi, 0x00ff00ff")
    A(f"global_store_short v{vFC}, v{g0}, s[{sOUT}:{sOUT+1}]")
    A(f"s_cmp_lg_u32 s{sR}, 0")
    A("s_cbranch_scc1 L_fin")
    A("s_mov_b64 exec, 1")
    A(f"v_mov_b32 v{vA0}, {WS_E}")
    A(f"v_mov_b32 v{vA1}, s{sT}")
    A(f"buffer_store_dword v{vA1}, v{vA0}, s[{rWS}:{rWS+3}], 0 offen")
    if minT:
        A("L_spin:")
        A("s_memrealtime s[98:99]")
        A("s_waitcnt lgkmcnt(0)")
        A("s_sub_u32 s98, s98, s100")
        A(f"s_cmp_lt_u32 s98, {minT*100}")
        A("s_cbranch_scc1 L_spin")
    A("L_fin:")
    if diag:
        A("s_mov_b64 exec, -1")
        A("s_waitcnt vmcnt(0)")
        stamp("end")
        A(f"s_getreg_b32 s{sST+13}, hwreg(HW_REG_XCC_ID, 0, 4)")
        A(f"s_mov_b32 s{sST+12}, s{sLOC}")
        for i in range(14):
            A(f"v_mov_b32 v{vK+i}, s{sST+i}")
        A(f"s_lshl_b32 s{sTMP}, s2, 3")
        A(f"s_add_u32 s{sTMP}, s{sTMP}, s{sWV}")
        A(f"s_lshl_b32 s{sTMP}, s{sTMP}, 6")
        A(f"s_add_u32 s{sTMP}, s{sTMP}, {WS_DIAG}")
        A(f"v_mov_b32 v{vA0}, 0")
        A("s_mov_b64 exec, 1")
        for i in range(4):
            A(f"buffer_store_dwordx4 {vr(vK+4*i)}, v{vA0}, s[{rWS}:{rWS+3}], s{sTMP} offen offset:{16*i}")
    A("L_end:")
    A("s_endpgm")
    L.append('.section .rodata,"a"')
    L.append(".p2align 6")
    L.append(f".amdhsa_kernel {NAME}_kernel")
    L.append("  .amdhsa_next_free_vgpr 256")
    L.append("  .amdhsa_next_free_sgpr 102")
    L.append("  .amdhsa_accum_offset 256")
    L.append("  .amdhsa_group_segment_fixed_size 0")
    L.append("  .amdhsa_kernarg_size 104")
    L.append("  .amdhsa_user_sgpr_count 2")
    L.append("  .amdhsa_user_sgpr_kernarg_segment_ptr 1")
    L.append("  .amdhsa_system_sgpr_workgroup_id_x 1")
    L.append("  .amdhsa_float_denorm_mode_32 3")
    L.append(".end_amdhsa_kernel")
    return "\n".join(L) + "\n", stamps


if __name__ == "__main__":
    kw = eval("dict(" + (sys.argv[2] if len(sys.argv) > 2 else "") + ")")
    src, _ = gen(**kw)
    open(sys.argv[1], "w").write(HEADER + src)
```

```python
import sys
NAME = "sequential_preLN__mha_block_cached__dense_activation_squared_relu__decode"

WS_E = 0
WS_XC = 0x1000
WS_ML = 0x2000
WS_YP = 0x8000
WS_QP = 0x10000
WS_OP = 0x50000
WS_ZP = 0x70000
ZSTR = 4224
WS_DIAG = 0x100000
WS_SIZE = 0x200000
L_OW = 0
L_F1 = 4096
L_CS = 8192
L_Y = 12288
L_HS = L_Y + 1024
L_ML = L_HS + 2048
L_ST = L_ML + 64
L_Q = L_ST + 192
L_WO = 16384
L_W1 = L_WO + 16384
L_W2 = L_W1 + 49152
LDS_BYTES = L_W2 + 49152 + 2048
assert L_Q + 256 <= L_WO and L_Q % 16 == 0

LOG2E = 0x3fb8aa3b
SCALE = 0x3db504f3
EPS = 0x3727c5ac
NFFN = 29


def gen(diag=False, only=None, wopos=31, wflags=" nt", woflags=" nt", sleep=0, local=True,
        d0=(6,), de=(4,), do=(4,), k0=10, pq=18, pq2=25, qw=1, prew=22, prfl="", boost=0, pf=1, pf2=20, ffn0=2, ffnstep=2,
        p1=8, p2=20, smartb=1, minT=0, now1=0, now2=0, nowo=0, sm=" nt", qst=" sc1", qld=" sc1", wsoff=0, noqw=0, strip=(), pfl="", ffnheavy=1, ffnburst=0, farz=0, pbar=1, fw=7, cld=" sc1"):
    L = []

    def A(s):
        L.append("    " + s if not s.endswith(":") else s)

    def nop(n):
        if n > 0:
            A(f"s_nop {n-1}")

    def vr(a, n=4):
        return f"v[{a}:{a+n-1}]"

    sX, sK, sV, sWQ, sWO, sW1, sB1, sW2, sB2, sOUT, sWS = 8, 10, 12, 14, 16, 20, 22, 24, 26, 28, 32
    sPC = 34
    rK, rV, rWS, rT = 36, 40, 44, 48
    sGX, sR, sH, sS, sB, sWV = 52, 53, 54, 55, 56, 57
    sT, sT0, sT1, sT2, sT3 = 58, 59, 60, 61, 62
    sLOC, sCNT, sTMP, sTMP2, sXW = 63, 64, 65, 66, 67
    sTILE = 68
    sID = 76
    sXCC = 77
    sU0 = 78
    sD1, sD2, sD3 = 80, 81, 82
    sQO, sXO = 83, 84
    sU1 = 4
    sPN = 6
    sEX = 86
    sST = 88
    Tk = [sT0, sT1, sT2, sT3]

    vL, vG, vC = 1, 2, 3
    vKV = 4
    vA0, vA1, vA2 = 5, 6, 7
    vQ = 8
    vMK = 12
    vACC = 16
    vS = 20
    vFF = 28
    vM = 29
    vT0, vT1 = 30, 31
    vTMP = 32
    vK = 48
    vV = 176
    NRING = 20
    vWO = vK
    vW1 = vK + 8
    vW2 = vK + 32
    vF = vK + 64
    vMT = vK + 72
    vXR = vK + 76
    vB1R = vK + 78
    vCS = vK + 80
    vTa, vTb = vK + 82, vK + 83
    vB2R = vK + 84
    vL8 = vK + 85
    vAA = vK + 86
    vYW = vK + 87
    vYR = vK + 88
    vFW = vK + 89
    vSA = vK + 90
    vSR = vK + 91
    vZA = vK + 92
    vFC = vK + 93
    vHR = vK + 94
    vCA = vK + 95
    vONE = vK + 96
    vVAL = vK + 97
    vOWA = vK + 98
    vDUM = vK + 99
    vMLG = vK + 100
    vMLW = vK + 104
    vTR = vK + 106
    vHW = vK + 107
    vD0, vD1 = vK + 108, vK + 112
    vP = vK + 116
    vB = vK + 120
    vL16 = vK + 124
    vFR = vK + 125
    g0 = vV
    vBM = vV + 16
    st = vV + 32

    stamps = []

    def stamp(name):
        if not diag:
            return
        if only is not None and name not in only and name not in ("strm", "end"):
            return
        if only is None and name.startswith("_"):
            return
        if name not in stamps:
            stamps.append(name)
        i = stamps.index(name)
        A(f"s_memrealtime s[{sEX+0}:{sEX+1}]")
        A("s_waitcnt lgkmcnt(0)")
        A(f"s_mov_b32 s{sST+i}, s{sEX}")

    def note(name, sreg):
        if not diag or only is None or name not in only:
            return
        if name not in stamps:
            stamps.append(name)
        i = stamps.index(name)
        A(f"s_sub_u32 s{sST+i}, 0x8000, s{sreg}")
        A(f"s_mul_i32 s{sST+i}, s{sST+i}, 100")
        A(f"s_add_u32 s{sST+i}, s{sST+i}, s{sST}")

    def srd(r, p, size):
        A(f"s_mov_b32 s{r}, s{p}")
        A(f"s_mov_b32 s{r+1}, s{p+1}")
        A(f"s_mov_b32 s{r+2}, {size}")
        A(f"s_mov_b32 s{r+3}, 0x20000")

    def tag4(base):
        for k in range(4):
            A(f"v_bfi_b32 v{base+k}, v{vFF}, s{Tk[k]}, v{base+k}")

    def tag2(base):
        A(f"v_bfi_b32 v{base}, v{vFF}, v{vTa}, v{base}")
        A(f"v_bfi_b32 v{base+1}, v{vFF}, v{vTb}, v{base+1}")

    def check(flat, acc):
        if len(flat) == 2:
            A(f"v_or_b32 v{acc}, v{flat[0]}, v{flat[1]}")
        else:
            A(f"v_or3_b32 v{acc}, v{flat[0]}, v{flat[1]}, v{flat[2]}")
            rest = flat[3:]
            while len(rest) >= 2:
                A(f"v_or3_b32 v{acc}, v{acc}, v{rest[0]}, v{rest[1]}")
                rest = rest[2:]
            if rest:
                A(f"v_or_b32 v{acc}, v{acc}, v{rest[0]}")
        A(f"v_cmp_ne_u32_sdwa vcc, v{acc}, 0 src0_sel:BYTE_0 src1_sel:DWORD")

    def untag4(regs, acc):
        for b in regs:
            for k in range(4):
                A(f"v_xor_b32 v{b+k}, s{Tk[k]}, v{b+k}")
        check([b + k for b in regs for k in range(4)], acc)

    def untag2(regs, acc):
        for b in regs:
            A(f"v_xor_b32 v{b}, v{vTa}, v{b}")
            A(f"v_xor_b32 v{b+1}, v{vTb}, v{b+1}")
        check([b + k for b in regs for k in range(2)], acc)

    cold = []

    def poll_rare(name, issue, untag):
        A(f"s_mov_b32 s{sCNT}, 0x4000")
        A(f"L_{name}_chk:")
        untag()
        A(f"s_cbranch_vccnz L_{name}_again")
        A(f"L_{name}_ok:")

        def retry():
            A(f"L_{name}_again:")
            A(f"s_sub_u32 s{sCNT}, s{sCNT}, 1")
            A(f"s_cbranch_scc1 L_{name}_ok")
            A("s_sleep 2")
            issue()
            A("s_waitcnt vmcnt(0)")
            A(f"s_branch L_{name}_chk")
        cold.append(retry)

    def poll(name, issue, untag):
        A(f"s_mov_b32 s{sCNT}, 0x8000")
        A(f"L_{name}_again:")
        issue()
        A(f"s_sub_u32 s{sCNT}, s{sCNT}, 1")
        A(f"s_cbranch_scc1 L_{name}_ok")
        if sleep:
            A(f"s_sleep {sleep}")
        A("s_waitcnt vmcnt(0)")
        untag()
        A(f"s_cbranch_vccnz L_{name}_again")
        A(f"L_{name}_ok:")

    def pollm(name, issue, untag):
        A(f"s_mov_b32 s{sCNT}, 0x8000")
        A("s_mov_b64 vcc, -1")
        A(f"L_{name}_again:")
        A("s_mov_b64 exec, vcc")
        issue()
        A(f"s_sub_u32 s{sCNT}, s{sCNT}, 1")
        A(f"s_cbranch_scc1 L_{name}_ok")
        if sleep:
            A(f"s_sleep {sleep}")
        A("s_waitcnt vmcnt(0)")
        if diag and name == "c" and only and "_c1" in only:
            A(f"s_cmp_lg_u32 s{sCNT}, 0x7fff")
            A("s_cbranch_scc1 L_c1x")
            stamp("_c1")
            A("L_c1x:")
        untag()
        A(f"s_cbranch_vccnz L_{name}_again")
        A(f"L_{name}_ok:")
        A("s_mov_b64 exec, -1")

    def dpp(op, d, s0, s1, ctl, bank=0xf, row=0xf):
        if s1 is None:
            A(f"{op}_dpp v{d}, v{s0} {ctl} row_mask:{hex(row)} bank_mask:{hex(bank)}")
        else:
            A(f"{op}_dpp v{d}, v{s0}, v{s1} {ctl} row_mask:{hex(row)} bank_mask:{hex(bank)}")

    X1, X2, HM = "quad_perm:[1,0,3,2]", "quad_perm:[2,3,0,1]", "row_half_mirror"

    def round_bf16(regs, tmp):
        for i in range(0, len(regs), 2):
            A(f"v_cvt_pk_bf16_f32 v{tmp+i//2}, v{regs[i]}, v{regs[i+1]}")
        for i in range(0, len(regs), 2):
            A(f"v_lshlrev_b32 v{regs[i]}, 16, v{tmp+i//2}")
            A(f"v_and_b32 v{regs[i+1]}, 0xffff0000, v{tmp+i//2}")

    def round2(r):
        A(f"v_cvt_pk_bf16_f32 v{r+1}, v{r}, v{r+1}")
        A(f"v_lshlrev_b32 v{r}, 16, v{r+1}")
        A(f"v_and_b32 v{r+1}, 0xffff0000, v{r+1}")

    def round1(r):
        A(f"v_cvt_pk_bf16_f32 v{r}, v{r}, v{r}")
        A(f"v_lshlrev_b32 v{r}, 16, v{r}")

    def unpack(dst, src, n):
        for i in range(n):
            A(f"v_lshlrev_b32 v{dst+2*i}, 16, v{src+i}")
            A(f"v_and_b32 v{dst+2*i+1}, 0xffff0000, v{src+i}")

    def pk(op, d, a, b, c=None, extra=""):
        if c is None:
            A(f"v_pk_{op}_f32 {vr(d,2)}, {vr(a,2)}, {vr(b,2)}{extra}")
        else:
            A(f"v_pk_{op}_f32 {vr(d,2)}, {vr(a,2)}, {vr(b,2)}, {vr(c,2)}{extra}")

    def sum8(g):
        for i in range(4):
            pk("add", g + 4 * i, g + 4 * i, g + 4 * i + 2)
        pk("add", g, g, g + 4)
        pk("add", g + 8, g + 8, g + 12)
        pk("add", g, g, g + 8)

    def ln_stats(vsum, vsq):
        A(f"v_mul_f32 v{vsum}, 0x3b000000, v{vsum}")
        A(f"v_mul_f32 v{vsq}, 0x3b000000, v{vsq}")
        A(f"v_fma_f32 v{vsq}, -v{vsum}, v{vsum}, v{vsq}")
        A(f"v_max_f32 v{vsq}, 0, v{vsq}")
        A(f"v_cvt_pk_bf16_f32 v{vsq}, v{vsum}, v{vsq}")
        A(f"v_lshlrev_b32 v{vsum}, 16, v{vsq}")
        A(f"v_and_b32 v{vsq}, 0xffff0000, v{vsq}")
        A(f"v_add_f32 v{vsq}, {hex(EPS)}, v{vsq}")
        round1(vsq)
        A(f"v_sqrt_f32 v{vsq}, v{vsq}")
        nop(1)
        round1(vsq)
        A(f"v_rcp_f32 v{vsq}, v{vsq}")
        nop(1)

    def mfma(d, a, b, c):
        A(f"v_mfma_f32_16x16x32_bf16 {vr(d)}, {vr(a)}, {vr(b)}, " + ("0" if c is None else vr(c)))

    def kload(i):
        t, j = divmod(i, 4)
        A(f"buffer_load_dwordx4 {vr(vK+4*i)}, v{vKV}, s[{rK}:{rK+3}], s{sTILE+t} offen offset:{j*1024} nt")

    def vreg(i):
        return vV + 4 * (i % NRING)

    def vload(i):
        t, j = divmod(i, 4)
        A(f"buffer_load_dwordx4 {vr(vreg(i))}, v{vKV}, s[{rV}:{rV+3}], s{sTILE+t} offen offset:{j*1024} nt")

    def make_masks():
        A(f"v_and_b32 v{vA0}, 1, v{vL}")
        A(f"v_lshlrev_b32 v{vA0}, 4, v{vA0}")
        A(f"v_mov_b32 v{vA1}, 0xffff")
        A(f"v_lshlrev_b32 v{vA1}, v{vA0}, v{vA1}")
        A(f"v_bfe_u32 v{vA0}, v{vL}, 1, 2")
        for j in range(4):
            A(f"v_cmp_eq_u32 vcc, {j}, v{vA0}")
            nop(2)
            A(f"v_cndmask_b32 v{vMK+j}, 0, v{vA1}, vcc")

    def epoch():
        A("s_waitcnt lgkmcnt(0)")
        A(f"s_add_u32 s{sT}, s{sT}, 0x01010101")
        A(f"s_and_b32 s{sT0}, s{sT}, 0xff")
        A(f"s_bfe_u32 s{sT1}, s{sT}, 0x80008")
        A(f"s_bfe_u32 s{sT2}, s{sT}, 0x80010")
        A(f"s_lshr_b32 s{sT3}, s{sT}, 24")
        A(f"s_lshl_b32 s{sXW}, s{sXCC}, 28")
        A(f"s_add_u32 s{sXW}, s{sXW}, s{sT}")

    def code_prefetch(dst, first, last):
        A(f"v_lshlrev_b32 v{dst}, 5, v{vL}")
        A(f"v_add_u32 v{dst}, s{sR}, v{dst}")
        A(f"v_lshlrev_b32 v{dst}, 7, v{dst}")
        A(f"v_add_u32 v{dst}, {first} - L_pc, v{dst}")
        A(f"v_min_u32 v{dst}, {last} - L_pc, v{dst}")
        A("s_mov_b64 exec, 0xff")
        A(f"global_load_dword v{dst}, v{dst}, s[{sPC}:{sPC+1}]{pfl}")
        A("s_mov_b64 exec, -1")

    L.append(f"; @launch grid=(256,1,1) block=(512,1,1) lds={LDS_BYTES}")
    L.append('.amdgcn_target "amdgcn-amd-amdhsa--gfx950"')
    L.append(".text")
    L.append(f".globl {NAME}_kernel")
    L.append(".p2align 8")
    L.append(f".type {NAME}_kernel,@function")
    L.append(f"{NAME}_kernel:")
    A("s_cmp_ge_u32 s2, 256")
    A("s_cbranch_scc1 L_end")
    A("s_load_dwordx16 s[8:23], s[0:1], 0")
    A("s_load_dwordx8 s[24:31], s[0:1], 64")
    A("s_load_dwordx2 s[32:33], s[0:1], 96")
    if minT:
        A("s_memrealtime s[100:101]")
    if diag:
        A(f"s_memrealtime s[{sEX}:{sEX+1}]")
    A(f"s_getpc_b64 s[{sPC}:{sPC+1}]")
    A("L_pc:")
    A(f"v_lshrrev_b32 v{vA0}, 6, v0")
    A(f"v_and_b32 v{vL}, 63, v0")
    A(f"v_readfirstlane_b32 s{sWV}, v{vA0}")
    A(f"s_lshr_b32 s{sR}, s2, 3")
    if pf:
        code_prefetch(vT0, "L_pc", "L_end")
    if diag:
        for i in range(14):
            A(f"s_mov_b32 s{sST+i}, 0")
    A(f"s_and_b32 s{sGX}, s2, 7")
    A(f"s_lshl_b32 s{sID}, s{sGX}, 5")
    A(f"s_add_u32 s{sID}, s{sID}, s{sR}")
    A(f"s_lshr_b32 s{sH}, s{sID}, 3")
    A(f"s_and_b32 s{sS}, s{sR}, 7")
    A(f"s_lshr_b32 s{sB}, s{sS}, 2")
    A(f"s_lshl_b32 s{sTMP}, s{sB}, 5")
    A(f"s_add_u32 s{sTMP}, s{sTMP}, s{sH}")
    A(f"s_lshl_b32 s{sTMP}, s{sTMP}, 20")
    A(f"s_and_b32 s{sTMP2}, s{sS}, 3")
    A(f"s_lshl_b32 s{sTMP2}, s{sTMP2}, 18")
    A(f"s_add_u32 s{sTMP}, s{sTMP}, s{sTMP2}")
    A(f"s_lshl_b32 s{sTMP2}, s{sWV}, 12")
    A(f"s_add_u32 s{sTMP}, s{sTMP}, s{sTMP2}")
    A(f"v_lshl_add_u32 v{vKV}, v{vL}, 4, s{sTMP}")
    A(f"s_mov_b32 s{sTILE}, 0")
    A(f"s_mov_b32 s{rK+2}, 0x4000000")
    A(f"s_mov_b32 s{rK+3}, 0x20000")
    A(f"v_lshrrev_b32 v{vG}, 4, v{vL}")
    A(f"v_and_b32 v{vC}, 15, v{vL}")
    A(f"s_cmp_eq_u32 s{sWV}, 0")
    A("s_waitcnt lgkmcnt(0)")
    A(f"s_mov_b32 s{rK}, s{sK}")
    A(f"s_mov_b32 s{rK+1}, s{sK+1}")
    if "qwave" not in strip:
        A("s_cbranch_scc1 L_qwave")
    for i in range(4):
        kload(i)

    def common_setup():
        if diag:
            A(f"s_mov_b32 s{sST}, s{sEX}")
        if wsoff:
            A(f"s_add_u32 s{sWS}, s{sWS}, {wsoff}")
            A(f"s_addc_u32 s{sWS+1}, s{sWS+1}, 0")
        A(f"s_load_dword s{sT}, s[{sWS}:{sWS+1}], {WS_E}")
        for t in range(1, 8):
            A(f"s_mov_b32 s{sTILE+t}, {t * 32768}")
        A(f"v_mov_b32 v{vFF}, 0xff")
        A(f"s_getreg_b32 s{sXCC}, hwreg(HW_REG_XCC_ID, 0, 4)")
        srd(rV, sV, 0x4000000)
        srd(rWS, sWS, WS_SIZE)
    if diag:
        stamps.append("start")
    common_setup()
    make_masks()
    epoch()
    A("s_barrier")
    for i in range(4, k0):
        A("s_waitcnt vmcnt(3)")
        kload(i)
    A("L_join:")
    stamp("_join")
    A(f"v_cmp_gt_u32 vcc, 8, v{vC}")
    vQA = vA2
    A(f"v_lshlrev_b32 v{vQA}, 4, v{vL}")
    A(f"s_lshl_b32 s{sQO}, s{sH}, 13")
    for j in range(4):
        A(f"v_cndmask_b32 v{vMK+j}, 0, v{vMK+j}, vcc")
    A(f"s_lshl_b32 s{sTMP2}, s{sB}, 12")
    A(f"s_add_u32 s{sQO}, s{sQO}, s{sTMP2}")
    A(f"s_add_u32 s{sQO}, s{sQO}, {WS_QP}")
    A(f"s_lshl_b32 s{sXO}, s{sGX}, 7")
    A(f"s_add_u32 s{sXO}, s{sXO}, {WS_XC}")
    if "g0" not in strip:
        A(f"s_cmp_lt_u32 s{sID}, {NFFN}")
        A("s_cbranch_scc1 L_s_g0")
    if de != do:
        A(f"s_bitcmp1_b32 s{sXCC}, 0")
        A("s_cbranch_scc1 L_s_odd")

    def dma(voff, soff, m0expr, flags):
        A(m0expr)
        nop(1)
        A(f"buffer_load_dwordx4 v{voff}, s[{rT}:{rT+3}], {soff} offen{flags} lds")

    def stream(tagname, depth, g0var):
        ops = ["pre"] * k0
        pos = {("K", i): i for i in range(k0)}
        landed = [0]
        heavy = [("K", i) for i in range(k0)]

        def issue(key, n=1):
            for _ in range(n):
                ops.append(key)
            pos[key] = len(ops) - 1

        def wait_n(n):
            if len(ops) - n > landed[0]:
                A(f"s_waitcnt vmcnt({n})")
                landed[0] = len(ops) - n

        def wait_for(key):
            wait_n(len(ops) - 1 - pos[key])

        def has(key):
            return key in pos and pos[key] < landed[0]

        def q_loads():
            for i in range(4):
                A(f"buffer_load_dwordx4 {vr(vTMP+4*i)}, v{vQA}, s[{rWS}:{rWS+3}], s{sQO} offen offset:{1024*i}{qld}")

        def q_issue():
            A(f"s_cmp_lg_u32 s{sWV}, {qw}")
            A(f"s_cbranch_scc1 L_qi{tagname}")
            q_loads()
            A(f"L_qi{tagname}:")

        def q_finish():
            A(f"s_cmp_lg_u32 s{sWV}, {qw}")
            A(f"s_cbranch_scc1 L_qf{tagname}")
            poll_rare("q" + tagname, q_loads, lambda: untag4([vTMP, vTMP + 4, vTMP + 8, vTMP + 12], vT0))
            a = vTMP
            for i in range(0, 8, 2):
                pk("add", a + i, a + i, a + 8 + i)
            pk("add", a, a, a + 4)
            pk("add", a + 2, a + 2, a + 6)
            A(f"v_and_b32 v{vA0}, 1, v{vG}")
            A(f"v_lshlrev_b32 v{vA0}, 3, v{vA0}")
            A(f"v_permlane32_swap_b32 v{a}, v{a+2}")
            A(f"v_permlane32_swap_b32 v{a+1}, v{a+3}")
            A(f"v_lshl_add_u32 v{vA0}, v{vC}, 4, v{vA0}")
            A(f"v_lshrrev_b32 v{vA1}, 1, v{vG}")
            pk("add", a, a, a + 2)
            A(f"v_lshl_add_u32 v{vA0}, v{vA1}, 2, v{vA0}")
            A(f"v_cvt_pk_bf16_f32 v{a}, v{a}, v{a+1}")
            A(f"ds_write_b32 v{vA0}, v{a} offset:{L_Q}")
            A(f"L_qf{tagname}:")

        def q_read():
            n = "qr" + tagname
            A(f"v_lshlrev_b32 v{vA0}, 4, v{vC}")
            A(f"s_mov_b32 s{sCNT}, 0x40000")
            A(f"L_{n}_spin:")
            A(f"ds_read_b128 {vr(vQ)}, v{vA0} offset:{L_Q}")
            A(f"s_sub_u32 s{sCNT}, s{sCNT}, 1")
            A(f"s_cbranch_scc1 L_{n}_go")
            A("s_waitcnt lgkmcnt(0)")
            A(f"v_max3_u32 v{vA1}, v{vQ}, v{vQ+1}, v{vQ+2}")
            A(f"v_max_u32 v{vA1}, v{vA1}, v{vQ+3}")
            A(f"v_cmp_eq_u32 vcc, -1, v{vA1}")
            A(f"s_cbranch_vccnz L_{n}_spin")
            A(f"L_{n}_go:")
            A("s_waitcnt lgkmcnt(0)")
            stamp("qgot")

        def qk(t):
            tt, uu = vTMP, vTMP + 4
            for k in range(4):
                for r in range(4):
                    A(f"v_dot2_f32_bf16 v{tt+r}, v{vK+16*t+4*r+k}, v{vQ+k}, " + ("0" if k == 0 else f"v{tt+r}"))
            dpp("v_add_f32", uu, tt, tt, "row_ror:8", 0x3)
            dpp("v_add_f32", uu, tt + 1, tt + 1, "row_ror:8", 0xc)
            dpp("v_add_f32", uu + 1, tt + 2, tt + 2, "row_ror:8", 0x3)
            dpp("v_add_f32", uu + 1, tt + 3, tt + 3, "row_ror:8", 0xc)
            dpp("v_add_f32", vS + t, uu, uu, "row_shl:4", 0x5)
            nop(1)
            dpp("v_add_f32", vS + t, uu + 1, uu + 1, "row_shr:4", 0xa)

        def allred(op, r, t):
            nop(2)
            dpp(op, r, r, r, "row_ror:8")
            nop(2)
            dpp(op, r, r, r, "row_ror:4")
            for sw in ("v_permlane16_swap_b32", "v_permlane32_swap_b32"):
                A(f"v_mov_b32 v{t}, v{r}")
                nop(2)
                A(f"{sw} v{r}, v{t}")
                A(f"{op} v{r}, v{r}, v{t}")

        S = [vS + i for i in range(8)]

        def soft_a():
            for r in S:
                dpp("v_add_f32", r, r, r, X1)
            for r in S:
                dpp("v_add_f32", r, r, r, X2)
            round_bf16(S, vTMP)
            for i in range(0, 8):
                A(f"v_mul_f32 v{S[i]}, {hex(SCALE)}, v{S[i]}")
            round_bf16(S, vTMP)

        def soft_b():
            m, l = vT0, vT1
            A(f"v_max3_f32 v{m}, v{S[0]}, v{S[1]}, v{S[2]}")
            A(f"v_max3_f32 v{m}, v{m}, v{S[3]}, v{S[4]}")
            A(f"v_max3_f32 v{m}, v{m}, v{S[5]}, v{S[6]}")
            A(f"v_max_f32 v{m}, v{m}, v{S[7]}")
            allred("v_max_f32", m, vTMP)
            for r in S:
                A(f"v_sub_f32 v{r}, v{r}, v{m}")
            for r in S:
                A(f"v_mul_f32 v{r}, {hex(LOG2E)}, v{r}")
            for r in S:
                A(f"v_exp_f32 v{r}, v{r}")

        def soft_c():
            m, l = vT0, vT1
            A(f"s_lshl_b32 s{sTMP}, s{sWV}, 3")
            A(f"v_add_f32 v{l}, v{S[0]}, v{S[1]}")
            for r in S[2:]:
                A(f"v_add_f32 v{l}, v{l}, v{r}")
            for r in S:
                A(f"v_cvt_pk_bf16_f32 v{r}, v{r}, v{r}")
            allred("v_add_f32", l, vTMP)
            A(f"v_mov_b32 v{vA0}, s{sTMP}")
            A(f"ds_write_b64 v{vA0}, {vr(m,2)} offset:{L_ML}")
            stamp("soft")

        bank = [0, 2, 1, 3]

        def pv_a(t):
            for r in range(4):
                for k in range(4):
                    dpp("v_and_b32", vTMP + 4 * r + k, vS + t, vMK + k, f"row_newbcast:{4*bank[r]}")

        def pv_m(i):
            r = i % 4
            mfma(vACC, vTMP + 4 * r, vreg(i), None if i == 0 else vACC)

        def wo_dma():
            srd(rT, sWO, 0 if nowo else 0x400000)
            A(f"v_lshrrev_b32 v{vA0}, 1, v{vL}")
            A(f"v_lshlrev_b32 v{vA0}, 10, v{vA0}")
            A(f"v_and_b32 v{vA1}, 1, v{vL}")
            A(f"v_lshl_add_u32 v{vA0}, v{vA1}, 4, v{vA0}")
            A(f"s_lshl_b32 s{sTMP}, s{sGX}, 19")
            A(f"s_lshl_b32 s{sTMP2}, s{sWV}, 16")
            A(f"s_add_u32 s{sTMP}, s{sTMP}, s{sTMP2}")
            A(f"s_lshl_b32 s{sTMP2}, s{sR}, 5")
            A(f"s_add_u32 s{sTMP}, s{sTMP}, s{sTMP2}")
            A(f"s_lshl_b32 s{sTMP2}, s{sWV}, 11")
            for u in range(2):
                dma(vA0, f"s{sTMP}", f"s_add_u32 m0, s{sTMP2}, {L_WO + u*1024}", woflags)
                if u == 0:
                    A(f"s_add_u32 s{sTMP}, s{sTMP}, 32768")
            issue("wo", 2)

        def ffn_dma(i):
            if i == 0:
                srd(rT, sW1, 0 if now1 else 512 * 2752)
                A(f"s_mul_i32 s{sD1}, s{sWV}, {64*2752}")
                A(f"s_mul_i32 s{sTMP2}, s{sR}, 96")
                A(f"s_add_u32 s{sD1}, s{sD1}, s{sTMP2}")
                A(f"s_add_u32 s{sD2}, s{sD1}, {32*2752}")
                A(f"s_mul_i32 s{sD3}, s{sWV}, 6144")
            if i < 6:
                j, hi = divmod(i, 2)
                if not hi:
                    A(f"v_add_u32 v{vA0}, {64*j}, v{vL}")
                    A(f"v_mul_u32_u24 v{vM}, 43691, v{vA0}")
                    A(f"v_lshrrev_b32 v{vM}, 18, v{vM}")
                    A(f"v_lshlrev_b32 v{vA0}, 4, v{vA0}")
                    A(f"v_mul_u32_u24 v{vM}, {2752 - 96}, v{vM}")
                    A(f"v_add_u32 v{vM}, v{vM}, v{vA0}")
                dma(vM, f"s{sD2 if hi else sD1}", f"s_add_u32 m0, s{sD3}, {L_W1 + (j + 3*hi)*1024}", wflags)
            else:
                j = i - 6
                if j == 0:
                    srd(rT, sW2, 0 if now2 else 1376 * 1024)
                    A(f"v_lshrrev_b32 v{vM}, 3, v{vL}")
                    A(f"v_lshlrev_b32 v{vM}, 10, v{vM}")
                    A(f"v_and_b32 v{vA0}, 7, v{vL}")
                    A(f"v_lshl_add_u32 v{vM}, v{vA0}, 4, v{vM}")
                    A(f"s_mul_i32 s{sD1}, s{sR}, {48*1024}")
                    A(f"s_lshl_b32 s{sTMP2}, s{sWV}, 7")
                    A(f"s_add_u32 s{sD1}, s{sD1}, s{sTMP2}")
                else:
                    A(f"s_add_u32 s{sD1}, s{sD1}, 8192")
                dma(vM, f"s{sD1}", f"s_add_u32 m0, s{sD3}, {L_W2 + j*1024}", wflags)
            issue(("ffn", i))
            if ffnheavy:
                heavy.append(("ffn", i))

        def tail_setup():
            vB3, vXX, vB2 = vA1, vA2, vDUM
            A(f"v_bfe_u32 v{vB3}, v{vL}, 3, 1")
            A(f"v_bfe_u32 v{vB2}, v{vL}, 2, 1")
            A(f"v_and_b32 v{vXX}, 3, v{vL}")
            A(f"v_lshlrev_b32 v{vL8}, 3, v{vL}")
            A(f"v_lshlrev_b32 v{vL16}, 4, v{vL}")
            srd(rT, sB1, 2752)
            A(f"v_lshl_add_u32 v{vA0}, v{vB3}, 2, v{vXX}")
            A(f"v_lshl_add_u32 v{vM}, v{vG}, 3, v{vA0}")
            A(f"v_lshlrev_b32 v{vM}, 2, v{vM}")
            A(f"s_mul_i32 s{sTMP}, s{sR}, 96")
            A(f"buffer_load_dword v{vB1R+1}, v{vM}, s[{rT}:{rT+3}], s{sTMP} offen{sm}")
            A(f"v_lshlrev_b32 v{vSR}, 6, v{vB2}")
            A(f"v_lshl_add_u32 v{vFR}, v{vA0}, 3, v{vSR}")
            A(f"v_lshl_add_u32 v{vFR}, v{vG}, 7, v{vFR}")
            A(f"v_lshl_add_u32 v{vM}, v{vXX}, 1, v{vB3}")
            A(f"v_lshl_add_u32 v{vM}, v{vG}, 3, v{vM}")
            A(f"v_lshlrev_b32 v{vM}, 2, v{vM}")
            A(f"v_lshl_add_u32 v{vHW}, v{vB2}, 10, v{vM}")
            A(f"s_lshl_b32 s{sTMP}, s{sWV}, 7")
            A(f"v_add_u32 v{vHW}, s{sTMP}, v{vHW}")
            A(f"global_load_dword v{vXR+1}, v{vHW}, s[{sX}:{sX+1}]{sm}")
            A(f"v_lshlrev_b32 v{vYW}, 6, v{vB3}")
            A(f"v_lshl_add_u32 v{vYW}, v{vG}, 4, v{vYW}")
            A(f"v_add_u32 v{vYW}, s{sTMP}, v{vYW}")
            A(f"v_lshl_add_u32 v{vFC}, v{vXX}, 4, v{vG}")
            A(f"s_lshr_b32 s{sTMP2}, s{sR}, 2")
            A(f"s_mul_i32 s{sTMP2}, s{sTMP2}, 48")
            A(f"s_lshl2_add_u32 s{sTMP2}, s{sR}, s{sTMP2}")
            A(f"v_add_u32 v{vFC}, s{sTMP2}, v{vFC}")
            A(f"v_lshlrev_b32 v{vFC}, 1, v{vFC}")
            A(f"global_load_ushort v{vB2R}, v{vFC}, s[{sB2}:{sB2+1}]{sm}")
            A(f"v_lshl_add_u32 v{vFC}, v{vB2}, 10, v{vFC}")
            A(f"v_and_b32 v{vM}, 31, v{vL}")
            A(f"v_lshlrev_b32 v{vM}, 2, v{vM}")
            A(f"buffer_load_dword v{vVAL}, v{vM}, s[{rWS}:{rWS+3}], s{sXO} offen sc1")
            issue("small", 4)
            A(f"v_and_b32 v{vA0}, 0x70, v{vL16}")
            A(f"v_lshl_add_u32 v{vYR}, v{vB3}, 9, v{vA0}")
            A(f"v_lshl_add_u32 v{vAA}, v{vB3}, 2, v{vG}")
            A(f"v_lshl_add_u32 v{vAA}, v{vAA}, 9, v{vA0}")
            A(f"s_and_b32 s{sTMP2}, s{sWV}, 1")
            A(f"s_lshl_b32 s{sTMP2}, s{sTMP2}, 8")
            A(f"s_lshr_b32 s{sD1}, s{sWV}, 1")
            A(f"s_lshl_b32 s{sD1}, s{sD1}, 12")
            A(f"s_add_u32 s{sTMP2}, s{sTMP2}, s{sD1}")
            A(f"s_lshl_b32 s{sD1}, s{sGX}, 14")
            A(f"s_add_u32 s{sTMP2}, s{sTMP2}, s{sD1}")
            A(f"s_add_u32 s{sTMP2}, s{sTMP2}, {WS_OP}")
            A(f"v_add_u32 v{vAA}, s{sTMP2}, v{vAA}")
            A(f"v_mul_u32_u24 v{vZA}, {ZSTR}, v{vG}")
            A(f"s_mul_i32 s{sTMP2}, s{sWV}, {4*ZSTR}")
            A(f"s_lshl_b32 s{sD1}, s{sR}, 7")
            A(f"s_add_u32 s{sTMP2}, s{sTMP2}, s{sD1}")
            A(f"s_add_u32 s{sTMP2}, s{sTMP2}, {WS_ZP}")
            A(f"v_add3_u32 v{vZA}, v{vZA}, v{vA0}, s{sTMP2}")
            A(f"v_lshl_add_u32 v{vFW}, v{vG}, 4, v{vSR}")
            A(f"v_lshl_add_u32 v{vFW}, v{vXX}, 7, v{vFW}")
            A(f"s_lshl_b32 s{sTMP}, s{sWV}, 9")
            A(f"v_add_u32 v{vFW}, s{sTMP}, v{vFW}")
            A(f"v_lshlrev_b32 v{vOWA}, 5, v{vC}")
            A(f"v_lshl_add_u32 v{vOWA}, v{vG}, 4, v{vOWA}")
            A(f"v_add_u32 v{vOWA}, s{sTMP}, v{vOWA}")
            A(f"v_lshrrev_b32 v{vM}, 1, v{vG}")
            A(f"v_lshl_add_u32 v{vSA}, v{vM}, 5, v{vSR}")
            A(f"s_lshl_b32 s{sTMP}, s{sWV}, 2")
            A(f"v_add_u32 v{vSA}, s{sTMP}, v{vSA}")
            A(f"v_lshl_add_u32 v{vCA}, v{vB3}, 2, v{vB2}")
            A(f"v_lshl_add_u32 v{vTR}, v{vM}, 5, v{vCA}")
            A(f"v_and_b32 v{vM}, 1, v{vG}")
            A(f"v_lshl_add_u32 v{vTR}, v{vM}, 1, v{vTR}")
            A(f"v_lshlrev_b32 v{vTR}, 5, v{vTR}")
            A(f"v_lshl_add_u32 v{vTR}, v{vXX}, 3, v{vTR}")
            A(f"s_lshl_b32 s{sTMP}, s{sWV}, 11")
            A(f"v_add_u32 v{vTR}, s{sTMP}, v{vTR}")
            A(f"v_and_b32 v{vM}, 1, v{vL}")
            A(f"v_lshlrev_b32 v{vM}, 4, v{vM}")
            A(f"v_lshrrev_b32 v{vTb}, v{vM}, s{sT}")
            A(f"v_and_b32 v{vTa}, v{vFF}, v{vTb}")
            A(f"v_bfe_u32 v{vTb}, v{vTb}, 8, 8")
            for tau in range(4):
                A(f"v_cmp_eq_u32 vcc, {tau}, v{vXX}")
                nop(2)
                A(f"v_cndmask_b32 v{vMT+tau}, 0, -1, vcc")
            A(f"v_mov_b32 v{vONE}, 0x3f803f80")
            A(f"s_mov_b32 s{sU0}, 0x0f0f0f0f")
            A(f"s_mov_b32 s{sU0+1}, 0x0f0f0f0f")
            A(f"s_mov_b32 s{sU1}, 0x00ff00ff")
            A(f"s_mov_b32 s{sU1+1}, 0x00ff00ff")

        def small_finish():
            A(f"v_cmp_ne_u32 vcc, s{sXW}, v{vVAL}")
            A(f"v_lshlrev_b32 v{vXR}, 16, v{vXR+1}")
            A(f"v_and_b32 v{vXR+1}, 0xffff0000, v{vXR+1}")
            A(f"v_lshlrev_b32 v{vB1R}, 16, v{vB1R+1}")
            A(f"v_and_b32 v{vB1R+1}, 0xffff0000, v{vB1R+1}")
            A(f"v_lshlrev_b32 v{vB2R}, 16, v{vB2R}")
            A(f"s_cmp_eq_u64 vcc, 0")
            A(f"s_cselect_b32 s{sLOC}, {1 if local else 0}, 0")
            A(f"s_mul_i32 s{sTMP}, s{sR}, 3")
            A(f"s_sub_u32 s{sTMP}, 86, s{sTMP}")
            A(f"s_min_u32 s{sTMP}, s{sTMP}, 3")
            A(f"v_cmp_gt_u32 vcc, s{sTMP}, v{vG}")
            nop(2)
            A(f"v_cndmask_b32 v{vVAL}, 0, -1, vcc")

        def preread():
            n = "pw" + tagname
            if g0var:
                A(f"buffer_load_dword v{vDUM}, v{vZA}, s[{rWS}:{rWS+3}], 0 offen{prfl}")
                issue("pr")
            A(f"s_cmp_lg_u32 s{sWV}, 2")
            A(f"s_cbranch_scc1 L_{n}")
            A(f"s_lshl_b32 s{sTMP}, s{sID}, 9")
            A(f"s_add_u32 s{sTMP}, s{sTMP}, {WS_OP}")
            A(f"buffer_load_dword v{vDUM}, v{vL8}, s[{rWS}:{rWS+3}], s{sTMP} offen{prfl}")
            if g0var:
                A(f"s_lshl_b32 s{sTMP}, s{sR}, 10")
                A(f"s_add_u32 s{sTMP}, s{sTMP}, {WS_YP}")
                A(f"buffer_load_dword v{vDUM}, v{vL16}, s[{rWS}:{rWS+3}], s{sTMP} offen{prfl}")
            A(f"L_{n}:")

        def ffn_regs():
            A(f"v_lshl_add_u32 v{vA0}, v{vG}, 4, v{vCA}")
            A(f"v_and_b32 v{vA1}, 3, v{vL}")
            A(f"v_lshlrev_b32 v{vA1}, 3, v{vA1}")
            A(f"v_add_u32 v{vA1}, s{sD3}, v{vA1}")
            A(f"v_mad_u32_u24 v{vA2}, v{vA0}, 48, v{vA1}")
            A(f"v_mad_u32_u24 v{vA2}, v{vA0}, 48, v{vA2}")
            for tau in range(3):
                for u in range(2):
                    for e in range(2):
                        A(f"ds_read_b64_tr_b16 {vr(vW1+8*tau+4*u+2*e,2)}, v{vA2} offset:{L_W1 + (2*u+8*e)*96 + tau*32}")
            A(f"v_lshrrev_b32 v{vA0}, 2, v{vC}")
            A(f"v_lshl_add_u32 v{vA0}, v{vG}, 4, v{vA0}")
            A(f"v_lshl_add_u32 v{vA2}, v{vA0}, 7, v{vA1}")
            A(f"v_add_u32 v{vA2}, {L_W2}, v{vA2}")
            for tau in range(3):
                for k in range(4):
                    A(f"v_and_b32 v{vTMP+4*tau+k}, v{vONE}, v{vMT+tau}")
            A("s_waitcnt lgkmcnt(0)")
            for tau in range(4):
                for u in range(2):
                    for e in range(2):
                        A(f"ds_read_b64_tr_b16 {vr(vW2+8*tau+4*u+2*e,2)}, v{vA2} offset:{(8*u+4*e)*128 + tau*32}")
                if tau == 1:
                    for t3 in range(3):
                        for u in range(2):
                            mfma(vD0, vW1 + 8 * t3 + 4 * u, vTMP + 4 * t3, None if (t3 == 0 and u == 0) else vD0)
                    A("s_waitcnt lgkmcnt(0)")
            A("s_waitcnt lgkmcnt(0)")
            A(f"ds_write_b128 v{vFW}, {vr(vD0)} offset:{L_CS}")
            A("s_mov_b32 exec_lo, 0")
            A("s_mov_b32 exec_hi, 0xffff0000")
            for k in range(32):
                A(f"v_mov_b32 v{vW2+k}, 0")
            A("s_mov_b64 exec, -1")

        def ml_publish():
            n = "ml" + tagname
            A(f"s_cmp_lg_u32 s{sWV}, 0")
            A(f"s_cbranch_scc1 L_{n}_skip")
            m, l = vMLW, vMLW + 1
            A(f"v_and_b32 v{vA0}, 56, v{vL8}")
            A(f"s_mov_b32 s{sCNT}, 0x40000")
            A(f"L_{n}_spin:")
            A(f"ds_read_b64 {vr(m,2)}, v{vA0} offset:{L_ML}")
            A(f"s_sub_u32 s{sCNT}, s{sCNT}, 1")
            A(f"s_cbranch_scc1 L_{n}_go")
            A("s_waitcnt lgkmcnt(0)")
            A(f"v_cmp_eq_u32 vcc, -1, v{l}")
            A(f"s_cbranch_vccnz L_{n}_spin")
            A(f"L_{n}_go:")
            A("s_waitcnt lgkmcnt(0)")
            o = vMLG
            dpp("v_max_f32", o, m, m, X1)
            nop(2)
            dpp("v_max_f32", o, o, o, X2)
            nop(2)
            dpp("v_max_f32", o, o, o, HM)
            A(f"v_sub_f32 v{o+1}, v{m}, v{o}")
            A(f"v_mul_f32 v{o+1}, {hex(LOG2E)}, v{o+1}")
            A(f"v_exp_f32 v{o+1}, v{o+1}")
            A(f"v_mov_b32 v{o+2}, 0")
            A(f"v_mul_f32 v{o+1}, v{o+1}, v{l}")
            A(f"v_mov_b32 v{o+3}, 0")
            A(f"s_lshl_b32 s{sTMP}, s{sID}, 4")
            for ctl in (X1, X2, HM):
                dpp("v_add_f32", o + 1, o + 1, o + 1, ctl)
                nop(2)
            A(f"s_add_u32 s{sTMP}, s{sTMP}, {WS_ML}")
            tag4(o)
            A("s_mov_b64 exec, 1")
            A(f"buffer_store_dwordx4 {vr(o)}, v{vL8}, s[{rWS}:{rWS+3}], s{sTMP} offen sc1")
            A("s_mov_b64 exec, -1")
            A(f"L_{n}_skip:")

        def ml_issue():
            A(f"buffer_load_dwordx4 {vr(vMLG)}, v{vHR}, s[{rWS}:{rWS+3}], s{sD2} offen sc1")

        def ml_gather():
            A(f"v_and_b32 v{vHR}, 3, v{vL}")
            A(f"v_lshlrev_b32 v{vHR}, 4, v{vHR}")
            A(f"s_lshr_b32 s{sD2}, s{sID}, 2")
            A(f"s_lshl_b32 s{sD2}, s{sD2}, 6")
            A(f"s_add_u32 s{sD2}, s{sD2}, {WS_ML}")
            ml_issue()
            issue("ml")

        def ml_finish():
            n = "mf" + tagname
            A(f"s_cmp_lg_u32 s{sWV}, 0")
            A(f"s_cbranch_scc1 L_{n}_skip")
            poll_rare(n, ml_issue, lambda: untag4([vMLG], vA0))
            o = vMLG
            dpp("v_max_f32", o + 2, o, o, X1)
            nop(2)
            dpp("v_max_f32", o + 2, o + 2, o + 2, X2)
            A(f"v_sub_f32 v{o}, v{o}, v{o+2}")
            A(f"v_sub_f32 v{o+3}, v{vMLW}, v{o+2}")
            A(f"v_mul_f32 v{o}, {hex(LOG2E)}, v{o}")
            A(f"v_mul_f32 v{o+3}, {hex(LOG2E)}, v{o+3}")
            A(f"v_exp_f32 v{o}, v{o}")
            A(f"v_exp_f32 v{o+3}, v{o+3}")
            A(f"v_mul_f32 v{o+1}, v{o+1}, v{o}")
            nop(2)
            dpp("v_add_f32", o + 1, o + 1, o + 1, X1)
            nop(2)
            dpp("v_add_f32", o + 1, o + 1, o + 1, X2)
            A(f"v_rcp_f32 v{o+1}, v{o+1}")
            nop(1)
            A(f"v_mul_f32 v{o+3}, v{o+3}, v{o+1}")
            nop(2)
            for j in range(8):
                dpp("v_mov_b32", vF + j, o + 3, None, f"row_newbcast:{j}")
            A(f"L_{n}_skip:")

        if "comp" in strip:
            qk = lambda t: None
            soft_a = soft_b = soft_c = lambda: None
            pv_a = lambda t: None
            pv_m = lambda i: None
        if "qg" in strip:
            q_issue = q_finish = q_read = lambda: None
        if "ml" in strip:
            ml_publish = ml_finish = lambda: None
            ml_gather = lambda: issue("ml", 0)
        if "small" in strip:
            tail_setup = lambda: issue("small", 0)
            small_finish = lambda: A(f"s_mov_b32 s{sLOC}, 0")
            wo_dma = lambda: None
        todo = []
        todo.append((lambda: has(("K", pq + 1)), q_finish))
        todo.append((lambda: ("K", pq2) in pos, q_read))
        for t in range(8):
            todo.append((lambda t=t: has(("K", 4 * t + 3)), lambda t=t: qk(t)))
        todo.append((lambda: True, soft_a))
        todo.append((lambda: True, soft_b))
        todo.append((lambda: True, soft_c))
        todo.append((lambda: True, tail_setup))
        done_flags = set()
        pvdone = [0]

        def pv_tile(t):
            pv_a(t)
            for r in range(4):
                pv_m(4 * t + r)
            pvdone[0] = 4 * t + 4
        extra_after = {}
        for t in range(7):
            todo.append((lambda t=t: has(("V", 4 * t + 3)), lambda t=t: pv_tile(t)))
            if 4 * t + 4 == p1:
                todo.append((lambda: True, ml_publish))
                todo.append((lambda: has("small"), small_finish))
                if g0var:
                    todo.append((lambda: has(("ffn", 11)), ffn_regs))
            if 4 * t == p2:
                todo.append((lambda: has("ml"), ml_finish))
        seq = [("K", i) for i in range(k0, 32)] + [("V", i) for i in range(32)]
        nf = 0
        if wopos == "start":
            wo_dma()
        if g0var:
            while nf < ffnburst:
                ffn_dma(nf)
                nf += 1
        for n, (kind, i) in enumerate(seq):
            d = depth[n % len(depth)]
            if kind == "V" and i >= NRING:
                while pvdone[0] <= i - NRING:
                    pred, emit = todo[0]
                    assert pred(), "ring too small"
                    todo.pop(0)
                    emit()
            if len(heavy) >= d:
                wait_for(heavy[-d])
            if kind == "K":
                kload(i)
            else:
                vload(i)
            issue((kind, i))
            heavy.append((kind, i))
            if kind == "K" and i == pq:
                q_issue()
            if g0var and kind == "K" and nf < 12 and i >= k0 + ffn0 and (i - k0 - ffn0) % ffnstep == 0:
                ffn_dma(nf)
                nf += 1
            if g0var and kind == "K" and i == 31:
                while nf < 12:
                    ffn_dma(nf)
                    nf += 1
            if kind == "V" and i == p2:
                assert "ml" in strip or all(e is not ml_publish for _, e in todo), "ml order"
                ml_gather()
            if kind == "V" and i == prew and prew:
                preread()
            if kind == "V" and i == pf2 and pf:
                code_prefetch(vM, "L_tail", "L_tailend")
                issue("pf")
            if (kind == "V" and i == wopos) or (kind == "K" and i - 32 == wopos):
                assert not (g0var and 0 < nf < 12), "rT busy"
                wo_dma()
            if todo and todo[0][0]():
                todo.pop(0)[1]()
        while todo:
            pred, emit = todo.pop(0)
            while not pred():
                wait_n(len(ops) - landed[0] - 1)
            emit()
        pv_a(7)
        for i in range(28, 32):
            wait_for(("V", i))
            pv_m(i)
        return len(ops) - landed[0]

    A("L_s_even:")
    stream("e", de, False)
    A("L_tail:")
    A("s_mov_b32 exec_hi, 0")
    A(f"s_lshl_b32 s{sTMP}, s{sID}, 9")
    A(f"s_add_u32 s{sTMP}, s{sTMP}, {WS_OP}")
    A(f"s_cmp_lg_u32 s{sWV}, 0")
    nop(4)
    if "small" not in strip:
        A(f"ds_write_b128 v{vOWA}, {vr(vACC)} offset:{L_OW}")
    A("s_mov_b32 exec_hi, -1")
    A("s_waitcnt lgkmcnt(0)")
    stamp("_wend")
    A("s_barrier")
    if diag:
        stamp("strm")
        if "tail" in strip:
            A("s_branch L_fin")
        A(f"s_cmp_lg_u32 s{sWV}, 0")
    A("s_cbranch_scc1 L_nos0")
    for i in range(4):
        A(f"ds_read2st64_b64 {vr(g0+4*i)}, v{vL8} offset0:{L_OW//512 + 2*i} offset1:{L_OW//512 + 2*i+1}")
    A(f"s_cmp_eq_u32 s{sLOC}, 0")
    lo, hi = " op_sel_hi:[1,0]", " op_sel:[0,1]"
    lo3, hi3 = " op_sel_hi:[1,0,1]", " op_sel:[0,1,0]"
    A("s_waitcnt lgkmcnt(3)")
    pk("mul", g0, g0, vF, extra=lo)
    pk("mul", g0 + 2, g0 + 2, vF, extra=hi)
    for i in range(1, 4):
        A(f"s_waitcnt lgkmcnt({3-i})")
        pk("fma", g0, g0 + 4 * i, vF + 2 * i, g0, extra=lo3)
        pk("fma", g0 + 2, g0 + 4 * i + 2, vF + 2 * i, g0 + 2, extra=hi3)
    pk("add", vP, g0, g0 + 2)
    tag2(vP)

    def publish(name, line):
        A(f"s_cbranch_scc1 L_{name}_far")
        A(line)
        A(f"s_branch L_{name}_pub")
        A(f"L_{name}_far:")
        A(line + " sc1")
        A(f"L_{name}_pub:")
    publish("o", f"buffer_store_dwordx2 {vr(vP,2)}, v{vL8}, s[{rWS}:{rWS+3}], s{sTMP} offen")
    stamp("_opub")
    A("L_nos0:")

    A("s_waitcnt vmcnt(1)")
    A(f"s_cmp_lg_u32 s{sWV}, 0")
    A("s_cbranch_scc0 L_wo_rd")
    A("s_waitcnt vmcnt(0)")
    A("L_wo_rd:")
    if pbar:
        A("s_barrier")
    for u in range(2):
        for e in range(2):
            A(f"ds_read_b64_tr_b16 {vr(vWO+4*u+2*e,2)}, v{vTR} offset:{L_WO + u*512 + e*256}")

    def a_issue():
        for i in range(2):
            A(f"buffer_load_dwordx4 {vr(g0+4*i)}, v{vAA}, s[{rWS}:{rWS+3}], 0 offen offset:{128*i} sc1")
    pollm("a", a_issue, lambda: untag4([g0, g0 + 4], vT0))
    stamp("hopA")
    for e in range(4):
        A(f"v_permlane32_swap_b32 v{g0+e}, v{g0+4+e}")
    pk("add", g0, g0, g0 + 4)
    pk("add", g0 + 2, g0 + 2, g0 + 6)
    A(f"s_lshl_b32 s{sTMP}, s{sR}, 10")
    A(f"s_lshl_b32 s{sTMP2}, s{sGX}, 7")
    A(f"v_permlane16_swap_b32 v{g0}, v{g0+2}")
    A(f"v_permlane16_swap_b32 v{g0+1}, v{g0+3}")
    pk("add", g0, g0, g0 + 2)
    A(f"v_cvt_pk_bf16_f32 v{vP}, v{g0}, v{g0+1}")
    A("s_waitcnt lgkmcnt(0)")
    A(f"s_add_u32 s{sTMP}, s{sTMP}, s{sTMP2}")
    for k in range(4):
        dpp("v_mov_b32", vB + k, vP, None, f"quad_perm:[{k},{k},{k},{k}]")
    A(f"s_add_u32 s{sTMP}, s{sTMP}, {WS_YP}")
    A(f"s_cmp_eq_u32 s{sGX}, 0")
    mfma(vD1, vWO + 4, vB, None)
    mfma(vD0, vWO, vB, None)
    A(f"s_cselect_b32 s{sD1}, s{sLOC}, 0")
    A(f"s_cmp_lg_u32 s{sWV}, 0")
    nop(6)
    for k in range(4):
        dpp("v_add_f32", vD0 + k, vD1 + k, vD0 + k, "row_shl:4", 0x5)
    A(f"s_mov_b64 exec, s[{sU0}:{sU0+1}]")
    A(f"ds_write_b128 v{vYW}, {vr(vD0)} offset:{L_Y}")
    A("s_mov_b64 exec, -1")
    A("s_waitcnt lgkmcnt(0)")
    A("s_barrier")
    A("s_cbranch_scc1 L_noy")
    for i in range(4):
        A(f"ds_read_b128 {vr(g0+4*i)}, v{vYR} offset:{L_Y + i*128}")
    A(f"s_cmp_eq_u32 s{sD1}, 0")
    A("s_waitcnt lgkmcnt(2)")
    pk("add", g0, g0, g0 + 4)
    pk("add", g0 + 2, g0 + 2, g0 + 6)
    A("s_waitcnt lgkmcnt(0)")
    pk("add", g0 + 8, g0 + 8, g0 + 12)
    pk("add", g0 + 10, g0 + 10, g0 + 14)
    pk("add", g0, g0, g0 + 8)
    pk("add", g0 + 2, g0 + 2, g0 + 10)
    nop(1)
    for k in range(4):
        dpp("v_add_f32", vD0 + k, g0 + k, g0 + k, "row_ror:8")
    tag4(vD0)
    A("s_mov_b64 exec, 0xff")
    publish("y", f"buffer_store_dwordx4 {vr(vD0)}, v{vYR}, s[{rWS}:{rWS+3}], s{sTMP} offen")
    A("s_mov_b64 exec, -1")
    A("L_noy:")
    stamp("ypub")
    A(f"s_cmp_lg_u32 s{sGX}, 0")
    A("s_cbranch_scc1 L_fin")

    for i in range(4):
        A(f"ds_read2st64_b64 {vr(st+4*i)}, v{vFR} offset0:{L_CS//512 + 2*i} offset1:{L_CS//512 + 2*i+1}")
    A(f"s_lshl_b32 s{sTMP}, s{sWV}, 12")
    A(f"s_add_u32 s{sTMP}, s{sTMP}, {WS_YP}")
    if pbar:
        A("s_barrier")

    def b_issue():
        for i in range(4):
            A(f"buffer_load_dwordx4 {vr(g0+4*i)}, v{vL16}, s[{rWS}:{rWS+3}], s{sTMP} offen offset:{1024*i} sc1")
    b_issue()
    A("s_waitcnt lgkmcnt(0)")
    for i in range(4):
        pk("add", st + 4 * i, st + 4 * i, st + 4 * i + 2)
    pk("add", st, st, st + 4)
    pk("add", st + 8, st + 8, st + 12)
    pk("add", vCS, st, st + 8)
    A(f"s_mov_b32 s{sCNT}, 0x8000")
    A("s_branch L_b_chk")
    A("L_b_again:")
    A("s_mov_b64 exec, vcc")
    b_issue()
    A(f"s_sub_u32 s{sCNT}, s{sCNT}, 1")
    A("s_cbranch_scc1 L_b_ok")
    A("L_b_chk:")
    A("s_waitcnt vmcnt(0)")
    untag4([g0, g0 + 4, g0 + 8, g0 + 12], vT0)
    A("s_cbranch_vccnz L_b_again")
    A("L_b_ok:")
    A("s_mov_b64 exec, -1")
    stamp("hopB")
    note("_nb", sCNT)
    for e in range(8):
        A(f"v_permlane32_swap_b32 v{g0+e}, v{g0+8+e}")
    for e in (0, 4, 2, 6):
        pk("add", g0 + e, g0 + e, g0 + 8 + e)
    for e in range(4):
        if e == 2:
            pass
        A(f"v_permlane16_swap_b32 v{g0+e}, v{g0+4+e}")
    pk("add", g0, g0, g0 + 4)
    pk("add", g0 + 2, g0 + 2, g0 + 6)
    A(f"s_cmp_ge_u32 s{sR}, {NFFN}")
    dpp("v_add_f32", g0 + 4, g0, g0, "row_ror:8", 0x3)
    dpp("v_add_f32", g0 + 5, g0 + 1, g0 + 1, "row_ror:8", 0x3)
    dpp("v_add_f32", g0 + 4, g0 + 2, g0 + 2, "row_ror:8", 0xc)
    dpp("v_add_f32", g0 + 5, g0 + 3, g0 + 3, "row_ror:8", 0xc)
    round2(g0 + 4)
    pk("add", g0 + 4, g0 + 4, vXR)
    A(f"v_cvt_pk_bf16_f32 v{vP}, v{g0+4}, v{g0+5}")
    s0, s1 = vT0, vT1
    A(f"ds_write_b32 v{vHW}, v{vP} offset:{L_HS}")
    A("s_cbranch_scc1 L_noffn")
    A(f"v_dot2_f32_bf16 v{s0}, v{vP}, v{vONE}, 0")
    A(f"v_dot2_f32_bf16 v{s1}, v{vP}, v{vP}, 0")
    for k in range(4):
        dpp("v_and_b32", vBM + k, vP, vMT, f"quad_perm:[{k},{k},{k},{k}]")
    A(f"v_permlane32_swap_b32 v{s0}, v{s1}")
    A(f"v_add_f32 v{s0}, v{s0}, v{s1}")
    mfma(vD0, vW1, vBM, None)
    mfma(vD1, vW1 + 4, vBM, None)
    dpp("v_add_f32", s0, s0, s0, X1)
    for k in range(4):
        dpp("v_and_b32", vBM + 4 + k, vP, vMT + 1, f"quad_perm:[{k},{k},{k},{k}]")
    dpp("v_add_f32", s0, s0, s0, X2)
    dpp("v_and_b32", vBM + 8, vP, vMT + 2, "quad_perm:[0,0,0,0]")
    mfma(vD0, vW1 + 8, vBM + 4, vD0)
    mfma(vD1, vW1 + 12, vBM + 4, vD1)
    dpp("v_add_f32", s0, s0, s0, "row_ror:8")
    for k in range(1, 4):
        dpp("v_and_b32", vBM + 8 + k, vP, vMT + 2, f"quad_perm:[{k},{k},{k},{k}]")
    A(f"v_mov_b32 v{s1}, v{s0}")
    nop(1)
    mfma(vD1, vW1 + 20, vBM + 8, vD1)
    mfma(vD0, vW1 + 16, vBM + 8, vD0)
    A(f"v_permlane16_swap_b32 v{s0}, v{s1}")
    A(f"v_add_f32 v{s0}, v{s0}, v{s1}")
    A(f"ds_write_b32 v{vSA}, v{s0} offset:{L_ST}")
    nop(5)
    for k in range(4):
        dpp("v_add_f32", vD0 + k, vD1 + k, vD0 + k, "row_ror:8")
    A(f"s_mov_b64 exec, s[{sU1}:{sU1+1}]")
    A(f"ds_write_b128 v{vFW}, {vr(vD0)} offset:{L_F1}")
    A("s_mov_b64 exec, -1")
    A("s_waitcnt lgkmcnt(0)")
    stamp("_f1")
    A("s_barrier")
    stamp("_f1b")
    for i in range(4):
        A(f"ds_read_b128 {vr(st+4*i)}, v{vSR} offset:{L_ST + 16*i}")
    for i in range(4):
        A(f"ds_read2st64_b64 {vr(g0+4*i)}, v{vFR} offset0:{L_F1//512 + 2*i} offset1:{L_F1//512 + 2*i+1}")
    A(f"s_cmp_eq_u32 s{sLOC}, 0" if not farz else f"s_cmp_eq_u32 s{sLOC}, s{sLOC}")
    A("s_waitcnt lgkmcnt(6)")
    pk("add", st, st, st + 2)
    pk("add", st + 4, st + 4, st + 6)
    A("s_waitcnt lgkmcnt(4)")
    pk("add", st + 8, st + 8, st + 10)
    pk("add", st + 12, st + 12, st + 14)
    pk("add", st, st, st + 4)
    pk("add", st + 8, st + 8, st + 12)
    A(f"v_add_f32 v{s0}, v{st}, v{st+1}")
    A(f"v_add_f32 v{s1}, v{st+8}, v{st+9}")
    ln_stats(s0, s1)
    A("s_waitcnt lgkmcnt(0)")
    sum8(g0)
    pk("fma", g0, vCS, s0, g0, extra=" op_sel_hi:[1,0,1] neg_lo:[0,1,0] neg_hi:[0,1,0]")
    pk("mul", g0, g0, s0, extra=hi)
    round2(g0)
    pk("add", g0, g0, vB1R)
    round2(g0)
    A(f"v_max_f32 v{g0}, 0, v{g0}")
    A(f"v_max_f32 v{g0+1}, 0, v{g0+1}")
    pk("mul", g0, g0, g0)
    A(f"v_cvt_pk_bf16_f32 v{vP}, v{g0}, v{g0+1}")
    A(f"v_and_b32 v{vP}, v{vVAL}, v{vP}")
    nop(2)
    for tau in range(4):
        for k in range(4):
            dpp("v_and_b32", vBM + 4 * tau + k, vP, vMT + tau, f"quad_perm:[{k},{k},{k},{k}]")
        if tau > 0:
            mfma(vD1, vW2 + 8 * (tau - 1) + 4, vBM + 4 * (tau - 1), None if tau == 1 else vD1)
            mfma(vD0, vW2 + 8 * (tau - 1), vBM + 4 * (tau - 1), None if tau == 1 else vD0)
    mfma(vD1, vW2 + 28, vBM + 12, vD1)
    mfma(vD0, vW2 + 24, vBM + 12, vD0)
    nop(8)
    for k in range(4):
        dpp("v_add_f32", vD0 + k, vD1 + k, vD0 + k, "row_ror:8")
    tag4(vD0)
    A(f"s_mov_b64 exec, s[{sU1}:{sU1+1}]")
    publish("z", f"buffer_store_dwordx4 {vr(vD0)}, v{vZA}, s[{rWS}:{rWS+3}], 0 offen")
    A("s_mov_b64 exec, -1")
    A("L_final:")
    stamp("zpub")

    def noffn():
        A("L_noffn:")
        A("s_waitcnt lgkmcnt(0)")
        A("s_barrier")
        A("s_branch L_final")
    cold.append(noffn)
    A(f"s_mul_i32 s{sTMP}, s{sR}, {ZSTR}")
    A(f"s_add_u32 s{sTMP}, s{sTMP}, {WS_ZP}")
    A(f"s_cmp_lg_u32 s{sWV}, {fw}")
    if pbar:
        A("s_barrier")
    A("s_cbranch_scc1 L_fin")
    A(f"ds_read_u16 v{vXR}, v{vFC} offset:{L_HS}")
    stamp("_c0")

    def c_issue():
        for t in range(3):
            A(f"buffer_load_dwordx4 {vr(g0+4*t)}, v{vL16}, s[{rWS}:{rWS+3}], s{sTMP} offen offset:{1024*t}{cld}")
        for k in range(4):
            A(f"v_mov_b32 v{g0+12+k}, s{Tk[k]}")
        A("s_and_b32 exec_hi, exec_hi, 0xff")
        A("s_cbranch_execz L_c_skip")
        A(f"buffer_load_dwordx4 {vr(g0+12)}, v{vL16}, s[{rWS}:{rWS+3}], s{sTMP} offen offset:3072{cld}")
        A("L_c_skip:")
        A("s_mov_b64 exec, vcc")
    pollm("c", c_issue, lambda: untag4([g0, g0 + 4, g0 + 8, g0 + 12], vT0))
    stamp("hopC")
    note("_nc", sCNT)
    for i in range(0, 8, 2):
        pk("add", g0 + i, g0 + i, g0 + 8 + i)
    pk("add", g0, g0, g0 + 4)
    pk("add", g0 + 2, g0 + 2, g0 + 6)
    A("s_waitcnt lgkmcnt(0)")
    A(f"v_lshlrev_b32 v{vXR}, 16, v{vXR}")
    A(f"v_permlane32_swap_b32 v{g0}, v{g0+2}")
    A(f"v_permlane32_swap_b32 v{g0+1}, v{g0+3}")
    pk("add", g0, g0, g0 + 2)
    nop(2)
    A(f"v_permlane16_swap_b32 v{g0}, v{g0+1}")
    A(f"v_add_f32 v{g0}, v{g0}, v{g0+1}")
    nop(2)
    dpp("v_add_f32", g0, g0, g0, "row_ror:8")
    round1(g0)
    A(f"v_add_f32 v{g0}, v{g0}, v{vB2R}")
    round1(g0)
    A(f"v_add_f32 v{g0}, v{g0}, v{vXR}")
    A(f"v_cvt_pk_bf16_f32 v{g0}, v{g0}, v{g0}")
    A("s_mov_b32 exec_lo, 0x00ff00ff")
    A("s_mov_b32 exec_hi, 0x00ff00ff")
    A(f"global_store_short v{vFC}, v{g0}, s[{sOUT}:{sOUT+1}]")
    A(f"s_cmp_lg_u32 s{sR}, 0")
    A("s_cbranch_scc1 L_fin")
    A("s_mov_b64 exec, 1")
    A(f"v_mov_b32 v{vA1}, s{sT}")
    A(f"buffer_store_dword v{vA1}, v{vL8}, s[{rWS}:{rWS+3}], 0 offen offset:{WS_E}")
    if minT:
        A("L_spin:")
        A("s_memrealtime s[98:99]")
        A("s_waitcnt lgkmcnt(0)")
        A("s_sub_u32 s98, s98, s100")
        A(f"s_cmp_lt_u32 s98, {minT*100}")
        A("s_cbranch_scc1 L_spin")
    A("L_fin:")
    if diag:
        A("s_mov_b64 exec, -1")
        A("s_waitcnt vmcnt(0)")
        stamp("end")
        for _ in range(4):
            A("s_sleep 127")
        A(f"s_mov_b32 s{sST+13}, s{sXCC}")
        A(f"s_mov_b32 s{sST+12}, s{sLOC}")
        for i in range(14):
            A(f"v_mov_b32 v{vK+i}, s{sST+i}")
        A(f"s_lshl_b32 s{sTMP}, s2, 3")
        A(f"s_add_u32 s{sTMP}, s{sTMP}, s{sWV}")
        A(f"s_lshl_b32 s{sTMP}, s{sTMP}, 6")
        A(f"s_add_u32 s{sTMP}, s{sTMP}, {WS_DIAG}")
        A(f"v_mov_b32 v{vA0}, 0")
        A("s_mov_b64 exec, 1")
        for i in range(4):
            A(f"buffer_store_dwordx4 {vr(vK+4*i)}, v{vA0}, s[{rWS}:{rWS+3}], s{sTMP} offen offset:{16*i}")
    A("s_endpgm")
    A("L_tailend:")

    if de != do:
        A("L_s_odd:")
        stream("o", do, False)
        A("s_branch L_tail")
    A("L_s_g0:")
    stream("g", d0, True)
    A("s_branch L_tail")

    A("L_qwave:")
    vXS, vXA, vW = vTMP, vTMP + 8, vV
    vY, vAB = vV + 64, vK + 64
    assert k0 <= 16
    A(f"v_lshrrev_b32 v{vA0}, 3, v{vC}")
    A(f"v_lshlrev_b32 v{vA0}, 10, v{vA0}")
    A(f"v_and_b32 v{vA1}, 7, v{vC}")
    A(f"v_lshl_add_u32 v{vA1}, v{vG}, 3, v{vA1}")
    A(f"v_lshl_add_u32 v{vA1}, v{vA1}, 5, v{vA0}")
    A(f"v_lshl_add_u32 v{vA0}, v{vG}, 5, v{vA0}")
    A(f"s_lshl_b32 s{sTMP}, s{sS}, 7")
    A(f"v_add_u32 v{vA0}, s{sTMP}, v{vA0}")
    A(f"global_load_dwordx4 {vr(vXS)}, v{vA1}, s[{sX}:{sX+1}]")
    A(f"global_load_dwordx4 {vr(vXS+4)}, v{vA1}, s[{sX}:{sX+1}] offset:16")
    A(f"global_load_dwordx4 {vr(vXA)}, v{vA0}, s[{sX}:{sX+1}]")
    A(f"global_load_dwordx4 {vr(vXA+4)}, v{vA0}, s[{sX}:{sX+1}] offset:16")
    srd(rT, sWQ, 0 if noqw else 0x400000)
    A(f"s_lshl_b32 s{sTMP}, s{sS}, 19")
    A(f"s_lshl_b32 s{sTMP2}, s{sH}, 8")
    A(f"s_add_u32 s{sTMP}, s{sTMP}, s{sTMP2}")
    A(f"v_lshlrev_b32 v{vA2}, 17, v{vG}")
    A(f"v_lshl_add_u32 v{vA2}, v{vC}, 4, v{vA2}")
    for j in range(16):
        A(f"buffer_load_dwordx4 {vr(vW+4*j)}, v{vA2}, s[{rT}:{rT+3}], s{sTMP} offen nt")
        if j < 15:
            A(f"s_add_u32 s{sTMP}, s{sTMP}, 8192")
    A(f"v_lshlrev_b32 v{vA0}, 2, v{vC}")
    A(f"v_mov_b32 v{vA1}, -1")
    A(f"ds_write_b32 v{vA0}, v{vA1} offset:{L_ML}")
    A(f"v_lshlrev_b32 v{vA0}, 2, v{vL}")
    A(f"ds_write_b32 v{vA0}, v{vA1} offset:{L_Q}")
    A("s_waitcnt lgkmcnt(0)")
    common_setup()
    for i in range(k0):
        kload(i)
    A("s_barrier")
    make_masks()
    A(f"v_mov_b32 v{vA0}, 0x3f803f80")
    A(f"s_waitcnt vmcnt({18+k0})")
    s0, s1 = vT0, vT1
    for i in range(8):
        A(f"v_dot2_f32_bf16 v{s0}, v{vXS+i}, v{vA0}, " + ("0" if i == 0 else f"v{s0}"))
        A(f"v_dot2_f32_bf16 v{s1}, v{vXS+i}, v{vXS+i}, " + ("0" if i == 0 else f"v{s1}"))
    nop(3)
    for ctl in (X1, X2, HM):
        dpp("v_add_f32", s0, s0, s0, ctl)
        dpp("v_add_f32", s1, s1, s1, ctl)
        nop(1)
    for sw in ("v_permlane16_swap_b32", "v_permlane32_swap_b32"):
        A(f"v_mov_b32 v{vA0}, v{s0}")
        A(f"v_mov_b32 v{vA1}, v{s1}")
        nop(2)
        A(f"{sw} v{s0}, v{vA0}")
        A(f"{sw} v{s1}, v{vA1}")
        A(f"v_add_f32 v{s0}, v{s0}, v{vA0}")
        A(f"v_add_f32 v{s1}, v{s1}, v{vA1}")
    ln_stats(s0, s1)
    A(f"s_waitcnt vmcnt({16+k0})")
    unpack(vY, vXA, 8)
    for i in range(0, 16, 2):
        pk("add", vY + i, vY + i, s0, extra=" op_sel_hi:[1,0] neg_lo:[0,1] neg_hi:[0,1]")
    round_bf16([vY + i for i in range(16)], vXS)
    for i in range(0, 16, 2):
        pk("mul", vY + i, vY + i, s0, extra=" op_sel:[0,1]")
    for i in range(16):
        A(f"v_cvt_pk_bf16_f32 v{vY+i}, v{vY+i}, v{vY+i}")
    for j in range(16):
        for k in range(4):
            A(f"v_and_b32 v{vAB+4*j+k}, v{vMK+k}, v{vY+j}")
    epoch()
    for j in range(16):
        A(f"s_waitcnt vmcnt({15-j+k0})")
        mfma(vACC, vAB + 4 * j, vW + 4 * j, None if j == 0 else vACC)
    A(f"v_lshrrev_b32 v{vA0}, 5, v{vL}")
    A(f"v_lshlrev_b32 v{vA0}, 12, v{vA0}")
    A(f"v_and_b32 v{vA1}, 31, v{vL}")
    A(f"v_lshl_add_u32 v{vA0}, v{vA1}, 4, v{vA0}")
    A(f"s_lshl_b32 s{sTMP}, s{sH}, 13")
    A(f"s_lshl_b32 s{sTMP2}, s{sS}, 9")
    A(f"s_add_u32 s{sTMP}, s{sTMP}, s{sTMP2}")
    A(f"s_add_u32 s{sTMP}, s{sTMP}, {WS_QP}")
    A(f"s_lshl_b32 s{sTMP2}, s{sID}, 2")
    A(f"s_add_u32 s{sTMP2}, s{sTMP2}, {WS_XC}")
    A(f"v_mov_b32 v{vA1}, s{sXW}")
    A(f"v_mov_b32 v{vA2}, 0")
    tag4(vACC)
    A(f"buffer_store_dwordx4 {vr(vACC)}, v{vA0}, s[{rWS}:{rWS+3}], s{sTMP} offen{qst}")
    A("s_mov_b64 exec, 1")
    A(f"buffer_store_dword v{vA1}, v{vA2}, s[{rWS}:{rWS+3}], s{sTMP2} offen sc1")
    A("s_mov_b64 exec, -1")
    stamp("qpub")
    A("s_branch L_join")

    for c in cold:
        c()
    A("L_end:")
    A("s_endpgm")
    L.append('.section .rodata,"a"')
    L.append(".p2align 6")
    L.append(f".amdhsa_kernel {NAME}_kernel")
    L.append("  .amdhsa_next_free_vgpr 256")
    L.append("  .amdhsa_next_free_sgpr 102")
    L.append("  .amdhsa_accum_offset 256")
    L.append("  .amdhsa_group_segment_fixed_size 0")
    L.append("  .amdhsa_kernarg_size 104")
    L.append("  .amdhsa_user_sgpr_count 2")
    L.append("  .amdhsa_user_sgpr_kernarg_segment_ptr 1")
    L.append("  .amdhsa_system_sgpr_workgroup_id_x 1")
    L.append("  .amdhsa_float_denorm_mode_32 3")
    L.append(".end_amdhsa_kernel")
    src = "\n".join(L) + "\n"
    return src, stamps


if __name__ == "__main__":
    header = open("cdna_kernels/" + NAME + ".s.ref").read().split("; Override launch")[0]
    kw = eval("dict(" + (sys.argv[2] if len(sys.argv) > 2 else "") + ")")
    src, _ = gen(**kw)
    open(sys.argv[1], "w").write(header + src)
```

```python
import sys
NAME = "sequential_preLN__mha_block_cached__dense_activation_squared_relu__decode"

WS_E = 0
WS_XC = 0x1000
WS_ML = 0x2000
WS_YP = 0x8000
WS_QP = 0x10000
WS_OP = 0x50000
WS_ZP = 0x70000
ZSTR = 4224
WS_DIAG = 0x100000
WS_SIZE = 0x200000
L_OW = 0
L_F1 = 4096
L_CS = 8192
L_Y = 12288
L_HS = L_Y + 1024
L_ML = L_HS + 2048
L_ST = L_ML + 64
L_Q = L_ST + 192
L_WO = 16384
L_W1 = L_WO + 16384
L_W2 = L_W1 + 49152
LDS_BYTES = L_W2 + 49152 + 2048
assert L_Q + 256 <= L_WO and L_Q % 16 == 0

LOG2E = 0x3fb8aa3b
SCALE = 0x3db504f3
EPS = 0x3727c5ac
NFFN = 29


def gen(diag=False, only=None, wopos=31, wflags=" nt", woflags=" nt", sleep=0, local=True,
        d0=(6,), de=(4,), do=(4,), k0=10, pq=18, pq2=25, qw=1, prew=22, prfl="", boost=0, pf=1, pf2=20, ffn0=2, ffnstep=2,
        p1=8, p2=20, smartb=1, minT=0, now1=0, now2=0, nowo=0, sm=" nt", qst=" sc1", qld=" sc1", wsoff=0, noqw=0, strip=(), pfl="", ffnheavy=1, ffnburst=0, farz=0, pbar=1, fw=7, cld=" sc1", kvfl=" nt", wqfl=" nt"):
    L = []

    def A(s):
        L.append("    " + s if not s.endswith(":") else s)

    def nop(n):
        if n > 0:
            A(f"s_nop {n-1}")

    def vr(a, n=4):
        return f"v[{a}:{a+n-1}]"

    sX, sK, sV, sWQ, sWO, sW1, sB1, sW2, sB2, sOUT, sWS = 8, 10, 12, 14, 16, 20, 22, 24, 26, 28, 32
    sPC = 34
    rK, rV, rWS, rT = 36, 40, 44, 48
    sGX, sR, sH, sS, sB, sWV = 52, 53, 54, 55, 56, 57
    sT, sT0, sT1, sT2, sT3 = 58, 59, 60, 61, 62
    sLOC, sCNT, sTMP, sTMP2, sXW = 63, 64, 65, 66, 67
    sTILE = 68
    sID = 76
    sXCC = 77
    sU0 = 78
    sD1, sD2, sD3 = 80, 81, 82
    sQO, sXO = 83, 84
    sU1 = 4
    sPN = 6
    sEX = 86
    sST = 88
    Tk = [sT0, sT1, sT2, sT3]

    vL, vG, vC = 1, 2, 3
    vKV = 4
    vA0, vA1, vA2 = 5, 6, 7
    vQ = 8
    vMK = 12
    vACC = 16
    vS = 20
    vFF = 28
    vM = 29
    vT0, vT1 = 30, 31
    vTMP = 32
    vK = 48
    vV = 176
    NRING = 20
    vWO = vK
    vW1 = vK + 8
    vW2 = vK + 32
    vF = vK + 64
    vMT = vK + 72
    vXR = vK + 76
    vB1R = vK + 78
    vCS = vK + 80
    vTa, vTb = vK + 82, vK + 83
    vB2R = vK + 84
    vL8 = vK + 85
    vAA = vK + 86
    vYW = vK + 87
    vYR = vK + 88
    vFW = vK + 89
    vSA = vK + 90
    vSR = vK + 91
    vZA = vK + 92
    vFC = vK + 93
    vHR = vK + 94
    vCA = vK + 95
    vONE = vK + 96
    vVAL = vK + 97
    vOWA = vK + 98
    vDUM = vK + 99
    vMLG = vK + 100
    vMLW = vK + 104
    vTR = vK + 106
    vHW = vK + 107
    vD0, vD1 = vK + 108, vK + 112
    vP = vK + 116
    vB = vK + 120
    vL16 = vK + 124
    vFR = vK + 125
    g0 = vV
    vBM = vV + 16
    st = vV + 32

    stamps = []

    def stamp(name):
        if not diag:
            return
        if only is not None and name not in only and name not in ("strm", "end"):
            return
        if only is None and name.startswith("_"):
            return
        if name not in stamps:
            stamps.append(name)
        i = stamps.index(name)
        A(f"s_memrealtime s[{sEX+0}:{sEX+1}]")
        A("s_waitcnt lgkmcnt(0)")
        A(f"s_mov_b32 s{sST+i}, s{sEX}")

    def note(name, sreg):
        if not diag or only is None or name not in only:
            return
        if name not in stamps:
            stamps.append(name)
        i = stamps.index(name)
        A(f"s_sub_u32 s{sST+i}, 0x8000, s{sreg}")
        A(f"s_mul_i32 s{sST+i}, s{sST+i}, 100")
        A(f"s_add_u32 s{sST+i}, s{sST+i}, s{sST}")

    def srd(r, p, size):
        A(f"s_mov_b32 s{r}, s{p}")
        A(f"s_mov_b32 s{r+1}, s{p+1}")
        A(f"s_mov_b32 s{r+2}, {size}")
        A(f"s_mov_b32 s{r+3}, 0x20000")

    def tag4(base):
        for k in range(4):
            A(f"v_bfi_b32 v{base+k}, v{vFF}, s{Tk[k]}, v{base+k}")

    def tag2(base):
        A(f"v_bfi_b32 v{base}, v{vFF}, v{vTa}, v{base}")
        A(f"v_bfi_b32 v{base+1}, v{vFF}, v{vTb}, v{base+1}")

    def check(flat, acc):
        if len(flat) == 2:
            A(f"v_or_b32 v{acc}, v{flat[0]}, v{flat[1]}")
        else:
            A(f"v_or3_b32 v{acc}, v{flat[0]}, v{flat[1]}, v{flat[2]}")
            rest = flat[3:]
            while len(rest) >= 2:
                A(f"v_or3_b32 v{acc}, v{acc}, v{rest[0]}, v{rest[1]}")
                rest = rest[2:]
            if rest:
                A(f"v_or_b32 v{acc}, v{acc}, v{rest[0]}")
        A(f"v_cmp_ne_u32_sdwa vcc, v{acc}, 0 src0_sel:BYTE_0 src1_sel:DWORD")

    def untag4(regs, acc):
        for b in regs:
            for k in range(4):
                A(f"v_xor_b32 v{b+k}, s{Tk[k]}, v{b+k}")
        check([b + k for b in regs for k in range(4)], acc)

    def untag2(regs, acc):
        for b in regs:
            A(f"v_xor_b32 v{b}, v{vTa}, v{b}")
            A(f"v_xor_b32 v{b+1}, v{vTb}, v{b+1}")
        check([b + k for b in regs for k in range(2)], acc)

    cold = []

    def poll_rare(name, issue, untag):
        A(f"s_mov_b32 s{sCNT}, 0x4000")
        A(f"L_{name}_chk:")
        untag()
        A(f"s_cbranch_vccnz L_{name}_again")
        A(f"L_{name}_ok:")

        def retry():
            A(f"L_{name}_again:")
            A(f"s_sub_u32 s{sCNT}, s{sCNT}, 1")
            A(f"s_cbranch_scc1 L_{name}_ok")
            A("s_sleep 2")
            issue()
            A("s_waitcnt vmcnt(0)")
            A(f"s_branch L_{name}_chk")
        cold.append(retry)

    def poll(name, issue, untag):
        A(f"s_mov_b32 s{sCNT}, 0x8000")
        A(f"L_{name}_again:")
        issue()
        A(f"s_sub_u32 s{sCNT}, s{sCNT}, 1")
        A(f"s_cbranch_scc1 L_{name}_ok")
        if sleep:
            A(f"s_sleep {sleep}")
        A("s_waitcnt vmcnt(0)")
        untag()
        A(f"s_cbranch_vccnz L_{name}_again")
        A(f"L_{name}_ok:")

    def pollm(name, issue, untag):
        A(f"s_mov_b32 s{sCNT}, 0x8000")
        A("s_mov_b64 vcc, -1")
        A(f"L_{name}_again:")
        A("s_mov_b64 exec, vcc")
        issue()
        A(f"s_sub_u32 s{sCNT}, s{sCNT}, 1")
        A(f"s_cbranch_scc1 L_{name}_ok")
        if sleep:
            A(f"s_sleep {sleep}")
        A("s_waitcnt vmcnt(0)")
        if diag and name == "c" and only and "_c1" in only:
            A(f"s_cmp_lg_u32 s{sCNT}, 0x7fff")
            A("s_cbranch_scc1 L_c1x")
            stamp("_c1")
            A("L_c1x:")
        untag()
        A(f"s_cbranch_vccnz L_{name}_again")
        A(f"L_{name}_ok:")
        A("s_mov_b64 exec, -1")

    def dpp(op, d, s0, s1, ctl, bank=0xf, row=0xf):
        if s1 is None:
            A(f"{op}_dpp v{d}, v{s0} {ctl} row_mask:{hex(row)} bank_mask:{hex(bank)}")
        else:
            A(f"{op}_dpp v{d}, v{s0}, v{s1} {ctl} row_mask:{hex(row)} bank_mask:{hex(bank)}")

    X1, X2, HM = "quad_perm:[1,0,3,2]", "quad_perm:[2,3,0,1]", "row_half_mirror"

    def round_bf16(regs, tmp):
        for i in range(0, len(regs), 2):
            A(f"v_cvt_pk_bf16_f32 v{tmp+i//2}, v{regs[i]}, v{regs[i+1]}")
        for i in range(0, len(regs), 2):
            A(f"v_lshlrev_b32 v{regs[i]}, 16, v{tmp+i//2}")
            A(f"v_and_b32 v{regs[i+1]}, 0xffff0000, v{tmp+i//2}")

    def round2(r):
        A(f"v_cvt_pk_bf16_f32 v{r+1}, v{r}, v{r+1}")
        A(f"v_lshlrev_b32 v{r}, 16, v{r+1}")
        A(f"v_and_b32 v{r+1}, 0xffff0000, v{r+1}")

    def round1(r):
        A(f"v_cvt_pk_bf16_f32 v{r}, v{r}, v{r}")
        A(f"v_lshlrev_b32 v{r}, 16, v{r}")

    def unpack(dst, src, n):
        for i in range(n):
            A(f"v_lshlrev_b32 v{dst+2*i}, 16, v{src+i}")
            A(f"v_and_b32 v{dst+2*i+1}, 0xffff0000, v{src+i}")

    def pk(op, d, a, b, c=None, extra=""):
        if c is None:
            A(f"v_pk_{op}_f32 {vr(d,2)}, {vr(a,2)}, {vr(b,2)}{extra}")
        else:
            A(f"v_pk_{op}_f32 {vr(d,2)}, {vr(a,2)}, {vr(b,2)}, {vr(c,2)}{extra}")

    def sum8(g):
        for i in range(4):
            pk("add", g + 4 * i, g + 4 * i, g + 4 * i + 2)
        pk("add", g, g, g + 4)
        pk("add", g + 8, g + 8, g + 12)
        pk("add", g, g, g + 8)

    def ln_stats(vsum, vsq):
        A(f"v_mul_f32 v{vsum}, 0x3b000000, v{vsum}")
        A(f"v_mul_f32 v{vsq}, 0x3b000000, v{vsq}")
        A(f"v_fma_f32 v{vsq}, -v{vsum}, v{vsum}, v{vsq}")
        A(f"v_max_f32 v{vsq}, 0, v{vsq}")
        A(f"v_cvt_pk_bf16_f32 v{vsq}, v{vsum}, v{vsq}")
        A(f"v_lshlrev_b32 v{vsum}, 16, v{vsq}")
        A(f"v_and_b32 v{vsq}, 0xffff0000, v{vsq}")
        A(f"v_add_f32 v{vsq}, {hex(EPS)}, v{vsq}")
        round1(vsq)
        A(f"v_sqrt_f32 v{vsq}, v{vsq}")
        nop(1)
        round1(vsq)
        A(f"v_rcp_f32 v{vsq}, v{vsq}")
        nop(1)

    def mfma(d, a, b, c):
        A(f"v_mfma_f32_16x16x32_bf16 {vr(d)}, {vr(a)}, {vr(b)}, " + ("0" if c is None else vr(c)))

    def kload(i):
        t, j = divmod(i, 4)
        A(f"buffer_load_dwordx4 {vr(vK+4*i)}, v{vKV}, s[{rK}:{rK+3}], s{sTILE+t} offen offset:{j*1024}{kvfl}")

    def vreg(i):
        return vV + 4 * (i % NRING)

    def vload(i):
        t, j = divmod(i, 4)
        A(f"buffer_load_dwordx4 {vr(vreg(i))}, v{vKV}, s[{rV}:{rV+3}], s{sTILE+t} offen offset:{j*1024}{kvfl}")

    def make_masks():
        A(f"v_and_b32 v{vA0}, 1, v{vL}")
        A(f"v_lshlrev_b32 v{vA0}, 4, v{vA0}")
        A(f"v_mov_b32 v{vA1}, 0xffff")
        A(f"v_lshlrev_b32 v{vA1}, v{vA0}, v{vA1}")
        A(f"v_bfe_u32 v{vA0}, v{vL}, 1, 2")
        for j in range(4):
            A(f"v_cmp_eq_u32 vcc, {j}, v{vA0}")
            nop(2)
            A(f"v_cndmask_b32 v{vMK+j}, 0, v{vA1}, vcc")

    def epoch():
        A("s_waitcnt lgkmcnt(0)")
        A(f"s_add_u32 s{sT}, s{sT}, 0x01010101")
        A(f"s_and_b32 s{sT0}, s{sT}, 0xff")
        A(f"s_bfe_u32 s{sT1}, s{sT}, 0x80008")
        A(f"s_bfe_u32 s{sT2}, s{sT}, 0x80010")
        A(f"s_lshr_b32 s{sT3}, s{sT}, 24")
        A(f"s_lshl_b32 s{sXW}, s{sXCC}, 28")
        A(f"s_add_u32 s{sXW}, s{sXW}, s{sT}")

    def code_prefetch(dst, first, last):
        A(f"v_lshlrev_b32 v{dst}, 5, v{vL}")
        A(f"v_add_u32 v{dst}, s{sR}, v{dst}")
        A(f"v_lshlrev_b32 v{dst}, 7, v{dst}")
        A(f"v_add_u32 v{dst}, {first} - L_pc, v{dst}")
        A(f"v_min_u32 v{dst}, {last} - L_pc, v{dst}")
        A("s_mov_b64 exec, 0xff")
        A(f"global_load_dword v{dst}, v{dst}, s[{sPC}:{sPC+1}]{pfl}")
        A("s_mov_b64 exec, -1")

    L.append(f"; @launch grid=(256,1,1) block=(512,1,1) lds={LDS_BYTES}")
    L.append('.amdgcn_target "amdgcn-amd-amdhsa--gfx950"')
    L.append(".text")
    L.append(f".globl {NAME}_kernel")
    L.append(".p2align 8")
    L.append(f".type {NAME}_kernel,@function")
    L.append(f"{NAME}_kernel:")
    A("s_cmp_ge_u32 s2, 256")
    A("s_cbranch_scc1 L_end")
    A("s_load_dwordx16 s[8:23], s[0:1], 0")
    A("s_load_dwordx8 s[24:31], s[0:1], 64")
    A("s_load_dwordx2 s[32:33], s[0:1], 96")
    if minT:
        A("s_memrealtime s[100:101]")
    if diag:
        A(f"s_memrealtime s[{sEX}:{sEX+1}]")
    A(f"s_getpc_b64 s[{sPC}:{sPC+1}]")
    A("L_pc:")
    A(f"v_lshrrev_b32 v{vA0}, 6, v0")
    A(f"v_and_b32 v{vL}, 63, v0")
    A(f"v_readfirstlane_b32 s{sWV}, v{vA0}")
    A(f"s_lshr_b32 s{sR}, s2, 3")
    if pf:
        code_prefetch(vT0, "L_pc", "L_end")
    if diag:
        for i in range(14):
            A(f"s_mov_b32 s{sST+i}, 0")
    A(f"s_and_b32 s{sGX}, s2, 7")
    A(f"s_lshl_b32 s{sID}, s{sGX}, 5")
    A(f"s_add_u32 s{sID}, s{sID}, s{sR}")
    A(f"s_lshr_b32 s{sH}, s{sID}, 3")
    A(f"s_and_b32 s{sS}, s{sR}, 7")
    A(f"s_lshr_b32 s{sB}, s{sS}, 2")
    A(f"s_lshl_b32 s{sTMP}, s{sB}, 5")
    A(f"s_add_u32 s{sTMP}, s{sTMP}, s{sH}")
    A(f"s_lshl_b32 s{sTMP}, s{sTMP}, 20")
    A(f"s_and_b32 s{sTMP2}, s{sS}, 3")
    A(f"s_lshl_b32 s{sTMP2}, s{sTMP2}, 18")
    A(f"s_add_u32 s{sTMP}, s{sTMP}, s{sTMP2}")
    A(f"s_lshl_b32 s{sTMP2}, s{sWV}, 12")
    A(f"s_add_u32 s{sTMP}, s{sTMP}, s{sTMP2}")
    A(f"v_lshl_add_u32 v{vKV}, v{vL}, 4, s{sTMP}")
    A(f"s_mov_b32 s{sTILE}, 0")
    A(f"s_mov_b32 s{rK+2}, 0x4000000")
    A(f"s_mov_b32 s{rK+3}, 0x20000")
    A(f"v_lshrrev_b32 v{vG}, 4, v{vL}")
    A(f"v_and_b32 v{vC}, 15, v{vL}")
    A(f"s_cmp_eq_u32 s{sWV}, 0")
    A("s_waitcnt lgkmcnt(0)")
    A(f"s_mov_b32 s{rK}, s{sK}")
    A(f"s_mov_b32 s{rK+1}, s{sK+1}")
    if "qwave" not in strip:
        A("s_cbranch_scc1 L_qwave")
    for i in range(4):
        kload(i)

    def common_setup():
        if diag:
            A(f"s_mov_b32 s{sST}, s{sEX}")
        if wsoff:
            A(f"s_add_u32 s{sWS}, s{sWS}, {wsoff}")
            A(f"s_addc_u32 s{sWS+1}, s{sWS+1}, 0")
        A(f"s_load_dword s{sT}, s[{sWS}:{sWS+1}], {WS_E}")
        for t in range(1, 8):
            A(f"s_mov_b32 s{sTILE+t}, {t * 32768}")
        A(f"v_mov_b32 v{vFF}, 0xff")
        A(f"s_getreg_b32 s{sXCC}, hwreg(HW_REG_XCC_ID, 0, 4)")
        srd(rV, sV, 0x4000000)
        srd(rWS, sWS, WS_SIZE)
    if diag:
        stamps.append("start")
    common_setup()
    make_masks()
    epoch()
    A("s_barrier")
    for i in range(4, k0):
        A("s_waitcnt vmcnt(3)")
        kload(i)
    A("L_join:")
    stamp("_join")
    A(f"v_cmp_gt_u32 vcc, 8, v{vC}")
    vQA = vA2
    A(f"v_lshlrev_b32 v{vQA}, 4, v{vL}")
    A(f"s_lshl_b32 s{sQO}, s{sH}, 13")
    for j in range(4):
        A(f"v_cndmask_b32 v{vMK+j}, 0, v{vMK+j}, vcc")
    A(f"s_lshl_b32 s{sTMP2}, s{sB}, 12")
    A(f"s_add_u32 s{sQO}, s{sQO}, s{sTMP2}")
    A(f"s_add_u32 s{sQO}, s{sQO}, {WS_QP}")
    A(f"s_lshl_b32 s{sXO}, s{sGX}, 7")
    A(f"s_add_u32 s{sXO}, s{sXO}, {WS_XC}")
    if "g0" not in strip:
        A(f"s_cmp_lt_u32 s{sID}, {NFFN}")
        A("s_cbranch_scc1 L_s_g0")
    if de != do:
        A(f"s_bitcmp1_b32 s{sXCC}, 0")
        A("s_cbranch_scc1 L_s_odd")

    def dma(voff, soff, m0expr, flags):
        A(m0expr)
        nop(1)
        A(f"buffer_load_dwordx4 v{voff}, s[{rT}:{rT+3}], {soff} offen{flags} lds")

    def stream(tagname, depth, g0var):
        ops = ["pre"] * k0
        pos = {("K", i): i for i in range(k0)}
        landed = [0]
        heavy = [("K", i) for i in range(k0)]

        def issue(key, n=1):
            for _ in range(n):
                ops.append(key)
            pos[key] = len(ops) - 1

        def wait_n(n):
            if len(ops) - n > landed[0]:
                A(f"s_waitcnt vmcnt({n})")
                landed[0] = len(ops) - n

        def wait_for(key):
            wait_n(len(ops) - 1 - pos[key])

        def has(key):
            return key in pos and pos[key] < landed[0]

        def q_loads():
            for i in range(4):
                A(f"buffer_load_dwordx4 {vr(vTMP+4*i)}, v{vQA}, s[{rWS}:{rWS+3}], s{sQO} offen offset:{1024*i}{qld}")

        def q_issue():
            A(f"s_cmp_lg_u32 s{sWV}, {qw}")
            A(f"s_cbranch_scc1 L_qi{tagname}")
            q_loads()
            A(f"L_qi{tagname}:")

        def q_finish():
            A(f"s_cmp_lg_u32 s{sWV}, {qw}")
            A(f"s_cbranch_scc1 L_qf{tagname}")
            poll_rare("q" + tagname, q_loads, lambda: untag4([vTMP, vTMP + 4, vTMP + 8, vTMP + 12], vT0))
            a = vTMP
            for i in range(0, 8, 2):
                pk("add", a + i, a + i, a + 8 + i)
            pk("add", a, a, a + 4)
            pk("add", a + 2, a + 2, a + 6)
            A(f"v_and_b32 v{vA0}, 1, v{vG}")
            A(f"v_lshlrev_b32 v{vA0}, 3, v{vA0}")
            A(f"v_permlane32_swap_b32 v{a}, v{a+2}")
            A(f"v_permlane32_swap_b32 v{a+1}, v{a+3}")
            A(f"v_lshl_add_u32 v{vA0}, v{vC}, 4, v{vA0}")
            A(f"v_lshrrev_b32 v{vA1}, 1, v{vG}")
            pk("add", a, a, a + 2)
            A(f"v_lshl_add_u32 v{vA0}, v{vA1}, 2, v{vA0}")
            A(f"v_cvt_pk_bf16_f32 v{a}, v{a}, v{a+1}")
            A(f"ds_write_b32 v{vA0}, v{a} offset:{L_Q}")
            A(f"L_qf{tagname}:")

        def q_read():
            n = "qr" + tagname
            A(f"v_lshlrev_b32 v{vA0}, 4, v{vC}")
            A(f"s_mov_b32 s{sCNT}, 0x40000")
            A(f"L_{n}_spin:")
            A(f"ds_read_b128 {vr(vQ)}, v{vA0} offset:{L_Q}")
            A(f"s_sub_u32 s{sCNT}, s{sCNT}, 1")
            A(f"s_cbranch_scc1 L_{n}_go")
            A("s_waitcnt lgkmcnt(0)")
            A(f"v_max3_u32 v{vA1}, v{vQ}, v{vQ+1}, v{vQ+2}")
            A(f"v_max_u32 v{vA1}, v{vA1}, v{vQ+3}")
            A(f"v_cmp_eq_u32 vcc, -1, v{vA1}")
            A(f"s_cbranch_vccnz L_{n}_spin")
            A(f"L_{n}_go:")
            A("s_waitcnt lgkmcnt(0)")
            stamp("qgot")

        def qk(t):
            tt, uu = vTMP, vTMP + 4
            for k in range(4):
                for r in range(4):
                    A(f"v_dot2_f32_bf16 v{tt+r}, v{vK+16*t+4*r+k}, v{vQ+k}, " + ("0" if k == 0 else f"v{tt+r}"))
            dpp("v_add_f32", uu, tt, tt, "row_ror:8", 0x3)
            dpp("v_add_f32", uu, tt + 1, tt + 1, "row_ror:8", 0xc)
            dpp("v_add_f32", uu + 1, tt + 2, tt + 2, "row_ror:8", 0x3)
            dpp("v_add_f32", uu + 1, tt + 3, tt + 3, "row_ror:8", 0xc)
            dpp("v_add_f32", vS + t, uu, uu, "row_shl:4", 0x5)
            nop(1)
            dpp("v_add_f32", vS + t, uu + 1, uu + 1, "row_shr:4", 0xa)

        def allred(op, r, t):
            nop(2)
            dpp(op, r, r, r, "row_ror:8")
            nop(2)
            dpp(op, r, r, r, "row_ror:4")
            for sw in ("v_permlane16_swap_b32", "v_permlane32_swap_b32"):
                A(f"v_mov_b32 v{t}, v{r}")
                nop(2)
                A(f"{sw} v{r}, v{t}")
                A(f"{op} v{r}, v{r}, v{t}")

        S = [vS + i for i in range(8)]

        def soft_a():
            for r in S:
                dpp("v_add_f32", r, r, r, X1)
            for r in S:
                dpp("v_add_f32", r, r, r, X2)
            round_bf16(S, vTMP)
            for i in range(0, 8):
                A(f"v_mul_f32 v{S[i]}, {hex(SCALE)}, v{S[i]}")
            round_bf16(S, vTMP)

        def soft_b():
            m, l = vT0, vT1
            A(f"v_max3_f32 v{m}, v{S[0]}, v{S[1]}, v{S[2]}")
            A(f"v_max3_f32 v{m}, v{m}, v{S[3]}, v{S[4]}")
            A(f"v_max3_f32 v{m}, v{m}, v{S[5]}, v{S[6]}")
            A(f"v_max_f32 v{m}, v{m}, v{S[7]}")
            allred("v_max_f32", m, vTMP)
            for r in S:
                A(f"v_sub_f32 v{r}, v{r}, v{m}")
            for r in S:
                A(f"v_mul_f32 v{r}, {hex(LOG2E)}, v{r}")
            for r in S:
                A(f"v_exp_f32 v{r}, v{r}")

        def soft_c():
            m, l = vT0, vT1
            A(f"s_lshl_b32 s{sTMP}, s{sWV}, 3")
            A(f"v_add_f32 v{l}, v{S[0]}, v{S[1]}")
            for r in S[2:]:
                A(f"v_add_f32 v{l}, v{l}, v{r}")
            for r in S:
                A(f"v_cvt_pk_bf16_f32 v{r}, v{r}, v{r}")
            allred("v_add_f32", l, vTMP)
            A(f"v_mov_b32 v{vA0}, s{sTMP}")
            A(f"ds_write_b64 v{vA0}, {vr(m,2)} offset:{L_ML}")
            stamp("soft")

        bank = [0, 2, 1, 3]

        def pv_a(t):
            for r in range(4):
                for k in range(4):
                    dpp("v_and_b32", vTMP + 4 * r + k, vS + t, vMK + k, f"row_newbcast:{4*bank[r]}")

        def pv_m(i):
            r = i % 4
            mfma(vACC, vTMP + 4 * r, vreg(i), None if i == 0 else vACC)

        def wo_dma():
            srd(rT, sWO, 0 if nowo else 0x400000)
            A(f"v_lshrrev_b32 v{vA0}, 1, v{vL}")
            A(f"v_lshlrev_b32 v{vA0}, 10, v{vA0}")
            A(f"v_and_b32 v{vA1}, 1, v{vL}")
            A(f"v_lshl_add_u32 v{vA0}, v{vA1}, 4, v{vA0}")
            A(f"s_lshl_b32 s{sTMP}, s{sGX}, 19")
            A(f"s_lshl_b32 s{sTMP2}, s{sWV}, 16")
            A(f"s_add_u32 s{sTMP}, s{sTMP}, s{sTMP2}")
            A(f"s_lshl_b32 s{sTMP2}, s{sR}, 5")
            A(f"s_add_u32 s{sTMP}, s{sTMP}, s{sTMP2}")
            A(f"s_lshl_b32 s{sTMP2}, s{sWV}, 11")
            for u in range(2):
                dma(vA0, f"s{sTMP}", f"s_add_u32 m0, s{sTMP2}, {L_WO + u*1024}", woflags)
                if u == 0:
                    A(f"s_add_u32 s{sTMP}, s{sTMP}, 32768")
            issue("wo", 2)

        def ffn_dma(i):
            if i == 0:
                srd(rT, sW1, 0 if now1 else 512 * 2752)
                A(f"s_mul_i32 s{sD1}, s{sWV}, {64*2752}")
                A(f"s_mul_i32 s{sTMP2}, s{sR}, 96")
                A(f"s_add_u32 s{sD1}, s{sD1}, s{sTMP2}")
                A(f"s_add_u32 s{sD2}, s{sD1}, {32*2752}")
                A(f"s_mul_i32 s{sD3}, s{sWV}, 6144")
            if i < 6:
                j, hi = divmod(i, 2)
                if not hi:
                    A(f"v_add_u32 v{vA0}, {64*j}, v{vL}")
                    A(f"v_mul_u32_u24 v{vM}, 43691, v{vA0}")
                    A(f"v_lshrrev_b32 v{vM}, 18, v{vM}")
                    A(f"v_lshlrev_b32 v{vA0}, 4, v{vA0}")
                    A(f"v_mul_u32_u24 v{vM}, {2752 - 96}, v{vM}")
                    A(f"v_add_u32 v{vM}, v{vM}, v{vA0}")
                dma(vM, f"s{sD2 if hi else sD1}", f"s_add_u32 m0, s{sD3}, {L_W1 + (j + 3*hi)*1024}", wflags)
            else:
                j = i - 6
                if j == 0:
                    srd(rT, sW2, 0 if now2 else 1376 * 1024)
                    A(f"v_lshrrev_b32 v{vM}, 3, v{vL}")
                    A(f"v_lshlrev_b32 v{vM}, 10, v{vM}")
                    A(f"v_and_b32 v{vA0}, 7, v{vL}")
                    A(f"v_lshl_add_u32 v{vM}, v{vA0}, 4, v{vM}")
                    A(f"s_mul_i32 s{sD1}, s{sR}, {48*1024}")
                    A(f"s_lshl_b32 s{sTMP2}, s{sWV}, 7")
                    A(f"s_add_u32 s{sD1}, s{sD1}, s{sTMP2}")
                else:
                    A(f"s_add_u32 s{sD1}, s{sD1}, 8192")
                dma(vM, f"s{sD1}", f"s_add_u32 m0, s{sD3}, {L_W2 + j*1024}", wflags)
            issue(("ffn", i))
            if ffnheavy:
                heavy.append(("ffn", i))

        def tail_setup():
            vB3, vXX, vB2 = vA1, vA2, vDUM
            A(f"v_bfe_u32 v{vB3}, v{vL}, 3, 1")
            A(f"v_bfe_u32 v{vB2}, v{vL}, 2, 1")
            A(f"v_and_b32 v{vXX}, 3, v{vL}")
            A(f"v_lshlrev_b32 v{vL8}, 3, v{vL}")
            A(f"v_lshlrev_b32 v{vL16}, 4, v{vL}")
            srd(rT, sB1, 2752)
            A(f"v_lshl_add_u32 v{vA0}, v{vB3}, 2, v{vXX}")
            A(f"v_lshl_add_u32 v{vM}, v{vG}, 3, v{vA0}")
            A(f"v_lshlrev_b32 v{vM}, 2, v{vM}")
            A(f"s_mul_i32 s{sTMP}, s{sR}, 96")
            A(f"buffer_load_dword v{vB1R+1}, v{vM}, s[{rT}:{rT+3}], s{sTMP} offen{sm}")
            A(f"v_lshlrev_b32 v{vSR}, 6, v{vB2}")
            A(f"v_lshl_add_u32 v{vFR}, v{vA0}, 3, v{vSR}")
            A(f"v_lshl_add_u32 v{vFR}, v{vG}, 7, v{vFR}")
            A(f"v_lshl_add_u32 v{vM}, v{vXX}, 1, v{vB3}")
            A(f"v_lshl_add_u32 v{vM}, v{vG}, 3, v{vM}")
            A(f"v_lshlrev_b32 v{vM}, 2, v{vM}")
            A(f"v_lshl_add_u32 v{vHW}, v{vB2}, 10, v{vM}")
            A(f"s_lshl_b32 s{sTMP}, s{sWV}, 7")
            A(f"v_add_u32 v{vHW}, s{sTMP}, v{vHW}")
            A(f"global_load_dword v{vXR+1}, v{vHW}, s[{sX}:{sX+1}]{sm}")
            A(f"v_lshlrev_b32 v{vYW}, 6, v{vB3}")
            A(f"v_lshl_add_u32 v{vYW}, v{vG}, 4, v{vYW}")
            A(f"v_add_u32 v{vYW}, s{sTMP}, v{vYW}")
            A(f"v_lshl_add_u32 v{vFC}, v{vXX}, 4, v{vG}")
            A(f"s_lshr_b32 s{sTMP2}, s{sR}, 2")
            A(f"s_mul_i32 s{sTMP2}, s{sTMP2}, 48")
            A(f"s_lshl2_add_u32 s{sTMP2}, s{sR}, s{sTMP2}")
            A(f"v_add_u32 v{vFC}, s{sTMP2}, v{vFC}")
            A(f"v_lshlrev_b32 v{vFC}, 1, v{vFC}")
            A(f"global_load_ushort v{vB2R}, v{vFC}, s[{sB2}:{sB2+1}]{sm}")
            A(f"v_lshl_add_u32 v{vFC}, v{vB2}, 10, v{vFC}")
            A(f"v_and_b32 v{vM}, 31, v{vL}")
            A(f"v_lshlrev_b32 v{vM}, 2, v{vM}")
            A(f"buffer_load_dword v{vVAL}, v{vM}, s[{rWS}:{rWS+3}], s{sXO} offen sc1")
            issue("small", 4)
            A(f"v_and_b32 v{vA0}, 0x70, v{vL16}")
            A(f"v_lshl_add_u32 v{vYR}, v{vB3}, 9, v{vA0}")
            A(f"v_lshl_add_u32 v{vAA}, v{vB3}, 2, v{vG}")
            A(f"v_lshl_add_u32 v{vAA}, v{vAA}, 9, v{vA0}")
            A(f"s_and_b32 s{sTMP2}, s{sWV}, 1")
            A(f"s_lshl_b32 s{sTMP2}, s{sTMP2}, 8")
            A(f"s_lshr_b32 s{sD1}, s{sWV}, 1")
            A(f"s_lshl_b32 s{sD1}, s{sD1}, 12")
            A(f"s_add_u32 s{sTMP2}, s{sTMP2}, s{sD1}")
            A(f"s_lshl_b32 s{sD1}, s{sGX}, 14")
            A(f"s_add_u32 s{sTMP2}, s{sTMP2}, s{sD1}")
            A(f"s_add_u32 s{sTMP2}, s{sTMP2}, {WS_OP}")
            A(f"v_add_u32 v{vAA}, s{sTMP2}, v{vAA}")
            A(f"v_mul_u32_u24 v{vZA}, {ZSTR}, v{vG}")
            A(f"s_mul_i32 s{sTMP2}, s{sWV}, {4*ZSTR}")
            A(f"s_lshl_b32 s{sD1}, s{sR}, 7")
            A(f"s_add_u32 s{sTMP2}, s{sTMP2}, s{sD1}")
            A(f"s_add_u32 s{sTMP2}, s{sTMP2}, {WS_ZP}")
            A(f"v_add3_u32 v{vZA}, v{vZA}, v{vA0}, s{sTMP2}")
            A(f"v_lshl_add_u32 v{vFW}, v{vG}, 4, v{vSR}")
            A(f"v_lshl_add_u32 v{vFW}, v{vXX}, 7, v{vFW}")
            A(f"s_lshl_b32 s{sTMP}, s{sWV}, 9")
            A(f"v_add_u32 v{vFW}, s{sTMP}, v{vFW}")
            A(f"v_lshlrev_b32 v{vOWA}, 5, v{vC}")
            A(f"v_lshl_add_u32 v{vOWA}, v{vG}, 4, v{vOWA}")
            A(f"v_add_u32 v{vOWA}, s{sTMP}, v{vOWA}")
            A(f"v_lshrrev_b32 v{vM}, 1, v{vG}")
            A(f"v_lshl_add_u32 v{vSA}, v{vM}, 5, v{vSR}")
            A(f"s_lshl_b32 s{sTMP}, s{sWV}, 2")
            A(f"v_add_u32 v{vSA}, s{sTMP}, v{vSA}")
            A(f"v_lshl_add_u32 v{vCA}, v{vB3}, 2, v{vB2}")
            A(f"v_lshl_add_u32 v{vTR}, v{vM}, 5, v{vCA}")
            A(f"v_and_b32 v{vM}, 1, v{vG}")
            A(f"v_lshl_add_u32 v{vTR}, v{vM}, 1, v{vTR}")
            A(f"v_lshlrev_b32 v{vTR}, 5, v{vTR}")
            A(f"v_lshl_add_u32 v{vTR}, v{vXX}, 3, v{vTR}")
            A(f"s_lshl_b32 s{sTMP}, s{sWV}, 11")
            A(f"v_add_u32 v{vTR}, s{sTMP}, v{vTR}")
            A(f"v_and_b32 v{vM}, 1, v{vL}")
            A(f"v_lshlrev_b32 v{vM}, 4, v{vM}")
            A(f"v_lshrrev_b32 v{vTb}, v{vM}, s{sT}")
            A(f"v_and_b32 v{vTa}, v{vFF}, v{vTb}")
            A(f"v_bfe_u32 v{vTb}, v{vTb}, 8, 8")
            for tau in range(4):
                A(f"v_cmp_eq_u32 vcc, {tau}, v{vXX}")
                nop(2)
                A(f"v_cndmask_b32 v{vMT+tau}, 0, -1, vcc")
            A(f"v_mov_b32 v{vONE}, 0x3f803f80")
            A(f"s_mov_b32 s{sU0}, 0x0f0f0f0f")
            A(f"s_mov_b32 s{sU0+1}, 0x0f0f0f0f")
            A(f"s_mov_b32 s{sU1}, 0x00ff00ff")
            A(f"s_mov_b32 s{sU1+1}, 0x00ff00ff")

        def small_finish():
            A(f"v_cmp_ne_u32 vcc, s{sXW}, v{vVAL}")
            A(f"v_lshlrev_b32 v{vXR}, 16, v{vXR+1}")
            A(f"v_and_b32 v{vXR+1}, 0xffff0000, v{vXR+1}")
            A(f"v_lshlrev_b32 v{vB1R}, 16, v{vB1R+1}")
            A(f"v_and_b32 v{vB1R+1}, 0xffff0000, v{vB1R+1}")
            A(f"v_lshlrev_b32 v{vB2R}, 16, v{vB2R}")
            A(f"s_cmp_eq_u64 vcc, 0")
            A(f"s_cselect_b32 s{sLOC}, {1 if local else 0}, 0")
            A(f"s_mul_i32 s{sTMP}, s{sR}, 3")
            A(f"s_sub_u32 s{sTMP}, 86, s{sTMP}")
            A(f"s_min_u32 s{sTMP}, s{sTMP}, 3")
            A(f"v_cmp_gt_u32 vcc, s{sTMP}, v{vG}")
            nop(2)
            A(f"v_cndmask_b32 v{vVAL}, 0, -1, vcc")

        def preread():
            n = "pw" + tagname
            if g0var:
                A(f"buffer_load_dword v{vDUM}, v{vZA}, s[{rWS}:{rWS+3}], 0 offen{prfl}")
                issue("pr")
            A(f"s_cmp_lg_u32 s{sWV}, 2")
            A(f"s_cbranch_scc1 L_{n}")
            A(f"s_lshl_b32 s{sTMP}, s{sID}, 9")
            A(f"s_add_u32 s{sTMP}, s{sTMP}, {WS_OP}")
            A(f"buffer_load_dword v{vDUM}, v{vL8}, s[{rWS}:{rWS+3}], s{sTMP} offen{prfl}")
            if g0var:
                A(f"s_lshl_b32 s{sTMP}, s{sR}, 10")
                A(f"s_add_u32 s{sTMP}, s{sTMP}, {WS_YP}")
                A(f"buffer_load_dword v{vDUM}, v{vL16}, s[{rWS}:{rWS+3}], s{sTMP} offen{prfl}")
            A(f"L_{n}:")

        def ffn_regs():
            A(f"v_lshl_add_u32 v{vA0}, v{vG}, 4, v{vCA}")
            A(f"v_and_b32 v{vA1}, 3, v{vL}")
            A(f"v_lshlrev_b32 v{vA1}, 3, v{vA1}")
            A(f"v_add_u32 v{vA1}, s{sD3}, v{vA1}")
            A(f"v_mad_u32_u24 v{vA2}, v{vA0}, 48, v{vA1}")
            A(f"v_mad_u32_u24 v{vA2}, v{vA0}, 48, v{vA2}")
            for tau in range(3):
                for u in range(2):
                    for e in range(2):
                        A(f"ds_read_b64_tr_b16 {vr(vW1+8*tau+4*u+2*e,2)}, v{vA2} offset:{L_W1 + (2*u+8*e)*96 + tau*32}")
            A(f"v_lshrrev_b32 v{vA0}, 2, v{vC}")
            A(f"v_lshl_add_u32 v{vA0}, v{vG}, 4, v{vA0}")
            A(f"v_lshl_add_u32 v{vA2}, v{vA0}, 7, v{vA1}")
            A(f"v_add_u32 v{vA2}, {L_W2}, v{vA2}")
            for tau in range(3):
                for k in range(4):
                    A(f"v_and_b32 v{vTMP+4*tau+k}, v{vONE}, v{vMT+tau}")
            A("s_waitcnt lgkmcnt(0)")
            for tau in range(4):
                for u in range(2):
                    for e in range(2):
                        A(f"ds_read_b64_tr_b16 {vr(vW2+8*tau+4*u+2*e,2)}, v{vA2} offset:{(8*u+4*e)*128 + tau*32}")
                if tau == 1:
                    for t3 in range(3):
                        for u in range(2):
                            mfma(vD0, vW1 + 8 * t3 + 4 * u, vTMP + 4 * t3, None if (t3 == 0 and u == 0) else vD0)
                    A("s_waitcnt lgkmcnt(0)")
            A("s_waitcnt lgkmcnt(0)")
            A(f"ds_write_b128 v{vFW}, {vr(vD0)} offset:{L_CS}")
            A("s_mov_b32 exec_lo, 0")
            A("s_mov_b32 exec_hi, 0xffff0000")
            for k in range(32):
                A(f"v_mov_b32 v{vW2+k}, 0")
            A("s_mov_b64 exec, -1")

        def ml_publish():
            n = "ml" + tagname
            A(f"s_cmp_lg_u32 s{sWV}, 0")
            A(f"s_cbranch_scc1 L_{n}_skip")
            m, l = vMLW, vMLW + 1
            A(f"v_and_b32 v{vA0}, 56, v{vL8}")
            A(f"s_mov_b32 s{sCNT}, 0x40000")
            A(f"L_{n}_spin:")
            A(f"ds_read_b64 {vr(m,2)}, v{vA0} offset:{L_ML}")
            A(f"s_sub_u32 s{sCNT}, s{sCNT}, 1")
            A(f"s_cbranch_scc1 L_{n}_go")
            A("s_waitcnt lgkmcnt(0)")
            A(f"v_cmp_eq_u32 vcc, -1, v{l}")
            A(f"s_cbranch_vccnz L_{n}_spin")
            A(f"L_{n}_go:")
            A("s_waitcnt lgkmcnt(0)")
            o = vMLG
            dpp("v_max_f32", o, m, m, X1)
            nop(2)
            dpp("v_max_f32", o, o, o, X2)
            nop(2)
            dpp("v_max_f32", o, o, o, HM)
            A(f"v_sub_f32 v{o+1}, v{m}, v{o}")
            A(f"v_mul_f32 v{o+1}, {hex(LOG2E)}, v{o+1}")
            A(f"v_exp_f32 v{o+1}, v{o+1}")
            A(f"v_mov_b32 v{o+2}, 0")
            A(f"v_mul_f32 v{o+1}, v{o+1}, v{l}")
            A(f"v_mov_b32 v{o+3}, 0")
            A(f"s_lshl_b32 s{sTMP}, s{sID}, 4")
            for ctl in (X1, X2, HM):
                dpp("v_add_f32", o + 1, o + 1, o + 1, ctl)
                nop(2)
            A(f"s_add_u32 s{sTMP}, s{sTMP}, {WS_ML}")
            tag4(o)
            A("s_mov_b64 exec, 1")
            A(f"buffer_store_dwordx4 {vr(o)}, v{vL8}, s[{rWS}:{rWS+3}], s{sTMP} offen sc1")
            A("s_mov_b64 exec, -1")
            A(f"L_{n}_skip:")

        def ml_issue():
            A(f"buffer_load_dwordx4 {vr(vMLG)}, v{vHR}, s[{rWS}:{rWS+3}], s{sD2} offen sc1")

        def ml_gather():
            A(f"v_and_b32 v{vHR}, 3, v{vL}")
            A(f"v_lshlrev_b32 v{vHR}, 4, v{vHR}")
            A(f"s_lshr_b32 s{sD2}, s{sID}, 2")
            A(f"s_lshl_b32 s{sD2}, s{sD2}, 6")
            A(f"s_add_u32 s{sD2}, s{sD2}, {WS_ML}")
            ml_issue()
            issue("ml")

        def ml_finish():
            n = "mf" + tagname
            A(f"s_cmp_lg_u32 s{sWV}, 0")
            A(f"s_cbranch_scc1 L_{n}_skip")
            poll_rare(n, ml_issue, lambda: untag4([vMLG], vA0))
            o = vMLG
            dpp("v_max_f32", o + 2, o, o, X1)
            nop(2)
            dpp("v_max_f32", o + 2, o + 2, o + 2, X2)
            A(f"v_sub_f32 v{o}, v{o}, v{o+2}")
            A(f"v_sub_f32 v{o+3}, v{vMLW}, v{o+2}")
            A(f"v_mul_f32 v{o}, {hex(LOG2E)}, v{o}")
            A(f"v_mul_f32 v{o+3}, {hex(LOG2E)}, v{o+3}")
            A(f"v_exp_f32 v{o}, v{o}")
            A(f"v_exp_f32 v{o+3}, v{o+3}")
            A(f"v_mul_f32 v{o+1}, v{o+1}, v{o}")
            nop(2)
            dpp("v_add_f32", o + 1, o + 1, o + 1, X1)
            nop(2)
            dpp("v_add_f32", o + 1, o + 1, o + 1, X2)
            A(f"v_rcp_f32 v{o+1}, v{o+1}")
            nop(1)
            A(f"v_mul_f32 v{o+3}, v{o+3}, v{o+1}")
            nop(2)
            for j in range(8):
                dpp("v_mov_b32", vF + j, o + 3, None, f"row_newbcast:{j}")
            A(f"L_{n}_skip:")

        if "comp" in strip:
            qk = lambda t: None
            soft_a = soft_b = soft_c = lambda: None
            pv_a = lambda t: None
            pv_m = lambda i: None
        if "qg" in strip:
            q_issue = q_finish = q_read = lambda: None
        if "ml" in strip:
            ml_publish = ml_finish = lambda: None
            ml_gather = lambda: issue("ml", 0)
        if "small" in strip:
            tail_setup = lambda: issue("small", 0)
            small_finish = lambda: A(f"s_mov_b32 s{sLOC}, 0")
            wo_dma = lambda: None
        todo = []
        todo.append((lambda: has(("K", pq + 1)), q_finish))
        todo.append((lambda: ("K", pq2) in pos, q_read))
        for t in range(8):
            todo.append((lambda t=t: has(("K", 4 * t + 3)), lambda t=t: qk(t)))
        todo.append((lambda: True, soft_a))
        todo.append((lambda: True, soft_b))
        todo.append((lambda: True, soft_c))
        todo.append((lambda: True, tail_setup))
        done_flags = set()
        pvdone = [0]

        def pv_tile(t):
            pv_a(t)
            for r in range(4):
                pv_m(4 * t + r)
            pvdone[0] = 4 * t + 4
        extra_after = {}
        for t in range(7):
            todo.append((lambda t=t: has(("V", 4 * t + 3)), lambda t=t: pv_tile(t)))
            if 4 * t + 4 == p1:
                todo.append((lambda: True, ml_publish))
                todo.append((lambda: has("small"), small_finish))
                if g0var:
                    todo.append((lambda: has(("ffn", 11)), ffn_regs))
            if 4 * t == p2:
                todo.append((lambda: has("ml"), ml_finish))
        seq = [("K", i) for i in range(k0, 32)] + [("V", i) for i in range(32)]
        nf = 0
        if wopos == "start":
            wo_dma()
        if g0var:
            while nf < ffnburst:
                ffn_dma(nf)
                nf += 1
        for n, (kind, i) in enumerate(seq):
            d = depth[n % len(depth)]
            if kind == "V" and i >= NRING:
                while pvdone[0] <= i - NRING:
                    pred, emit = todo[0]
                    assert pred(), "ring too small"
                    todo.pop(0)
                    emit()
            if len(heavy) >= d:
                wait_for(heavy[-d])
            if kind == "K":
                kload(i)
            else:
                vload(i)
            issue((kind, i))
            heavy.append((kind, i))
            if kind == "K" and i == pq:
                q_issue()
            if g0var and kind == "K" and nf < 12 and i >= k0 + ffn0 and (i - k0 - ffn0) % ffnstep == 0:
                ffn_dma(nf)
                nf += 1
            if g0var and kind == "K" and i == 31:
                while nf < 12:
                    ffn_dma(nf)
                    nf += 1
            if kind == "V" and i == p2:
                assert "ml" in strip or all(e is not ml_publish for _, e in todo), "ml order"
                ml_gather()
            if kind == "V" and i == prew and prew:
                preread()
            if kind == "V" and i == pf2 and pf:
                code_prefetch(vM, "L_tail", "L_tailend")
                issue("pf")
            if (kind == "V" and i == wopos) or (kind == "K" and i - 32 == wopos):
                assert not (g0var and 0 < nf < 12), "rT busy"
                wo_dma()
            if todo and todo[0][0]():
                todo.pop(0)[1]()
        while todo:
            pred, emit = todo.pop(0)
            while not pred():
                wait_n(len(ops) - landed[0] - 1)
            emit()
        pv_a(7)
        for i in range(28, 32):
            wait_for(("V", i))
            pv_m(i)
        return len(ops) - landed[0]

    A("L_s_even:")
    stream("e", de, False)
    A("L_tail:")
    A("s_mov_b32 exec_hi, 0")
    A(f"s_lshl_b32 s{sTMP}, s{sID}, 9")
    A(f"s_add_u32 s{sTMP}, s{sTMP}, {WS_OP}")
    A(f"s_cmp_lg_u32 s{sWV}, 0")
    nop(4)
    if "small" not in strip:
        A(f"ds_write_b128 v{vOWA}, {vr(vACC)} offset:{L_OW}")
    A("s_mov_b32 exec_hi, -1")
    A("s_waitcnt lgkmcnt(0)")
    stamp("_wend")
    A("s_barrier")
    if diag:
        stamp("strm")
        if "tail" in strip:
            A("s_branch L_fin")
        A(f"s_cmp_lg_u32 s{sWV}, 0")
    A("s_cbranch_scc1 L_nos0")
    for i in range(4):
        A(f"ds_read2st64_b64 {vr(g0+4*i)}, v{vL8} offset0:{L_OW//512 + 2*i} offset1:{L_OW//512 + 2*i+1}")
    A(f"s_cmp_eq_u32 s{sLOC}, 0")
    lo, hi = " op_sel_hi:[1,0]", " op_sel:[0,1]"
    lo3, hi3 = " op_sel_hi:[1,0,1]", " op_sel:[0,1,0]"
    A("s_waitcnt lgkmcnt(3)")
    pk("mul", g0, g0, vF, extra=lo)
    pk("mul", g0 + 2, g0 + 2, vF, extra=hi)
    for i in range(1, 4):
        A(f"s_waitcnt lgkmcnt({3-i})")
        pk("fma", g0, g0 + 4 * i, vF + 2 * i, g0, extra=lo3)
        pk("fma", g0 + 2, g0 + 4 * i + 2, vF + 2 * i, g0 + 2, extra=hi3)
    pk("add", vP, g0, g0 + 2)
    tag2(vP)

    def publish(name, line):
        A(f"s_cbranch_scc1 L_{name}_far")
        A(line)
        A(f"s_branch L_{name}_pub")
        A(f"L_{name}_far:")
        A(line + " sc1")
        A(f"L_{name}_pub:")
    publish("o", f"buffer_store_dwordx2 {vr(vP,2)}, v{vL8}, s[{rWS}:{rWS+3}], s{sTMP} offen")
    stamp("_opub")
    A("L_nos0:")

    A("s_waitcnt vmcnt(1)")
    A(f"s_cmp_lg_u32 s{sWV}, 0")
    A("s_cbranch_scc0 L_wo_rd")
    A("s_waitcnt vmcnt(0)")
    A("L_wo_rd:")
    if pbar:
        A("s_barrier")
    for u in range(2):
        for e in range(2):
            A(f"ds_read_b64_tr_b16 {vr(vWO+4*u+2*e,2)}, v{vTR} offset:{L_WO + u*512 + e*256}")

    def a_issue():
        for i in range(2):
            A(f"buffer_load_dwordx4 {vr(g0+4*i)}, v{vAA}, s[{rWS}:{rWS+3}], 0 offen offset:{128*i} sc1")
    pollm("a", a_issue, lambda: untag4([g0, g0 + 4], vT0))
    stamp("hopA")
    for e in range(4):
        A(f"v_permlane32_swap_b32 v{g0+e}, v{g0+4+e}")
    pk("add", g0, g0, g0 + 4)
    pk("add", g0 + 2, g0 + 2, g0 + 6)
    A(f"s_lshl_b32 s{sTMP}, s{sR}, 10")
    A(f"s_lshl_b32 s{sTMP2}, s{sGX}, 7")
    A(f"v_permlane16_swap_b32 v{g0}, v{g0+2}")
    A(f"v_permlane16_swap_b32 v{g0+1}, v{g0+3}")
    pk("add", g0, g0, g0 + 2)
    A(f"v_cvt_pk_bf16_f32 v{vP}, v{g0}, v{g0+1}")
    A("s_waitcnt lgkmcnt(0)")
    A(f"s_add_u32 s{sTMP}, s{sTMP}, s{sTMP2}")
    for k in range(4):
        dpp("v_mov_b32", vB + k, vP, None, f"quad_perm:[{k},{k},{k},{k}]")
    A(f"s_add_u32 s{sTMP}, s{sTMP}, {WS_YP}")
    A(f"s_cmp_eq_u32 s{sGX}, 0")
    mfma(vD1, vWO + 4, vB, None)
    mfma(vD0, vWO, vB, None)
    A(f"s_cselect_b32 s{sD1}, s{sLOC}, 0")
    A(f"s_cmp_lg_u32 s{sWV}, 0")
    nop(6)
    for k in range(4):
        dpp("v_add_f32", vD0 + k, vD1 + k, vD0 + k, "row_shl:4", 0x5)
    A(f"s_mov_b64 exec, s[{sU0}:{sU0+1}]")
    A(f"ds_write_b128 v{vYW}, {vr(vD0)} offset:{L_Y}")
    A("s_mov_b64 exec, -1")
    A("s_waitcnt lgkmcnt(0)")
    A("s_barrier")
    A("s_cbranch_scc1 L_noy")
    for i in range(4):
        A(f"ds_read_b128 {vr(g0+4*i)}, v{vYR} offset:{L_Y + i*128}")
    A(f"s_cmp_eq_u32 s{sD1}, 0")
    A("s_waitcnt lgkmcnt(2)")
    pk("add", g0, g0, g0 + 4)
    pk("add", g0 + 2, g0 + 2, g0 + 6)
    A("s_waitcnt lgkmcnt(0)")
    pk("add", g0 + 8, g0 + 8, g0 + 12)
    pk("add", g0 + 10, g0 + 10, g0 + 14)
    pk("add", g0, g0, g0 + 8)
    pk("add", g0 + 2, g0 + 2, g0 + 10)
    nop(1)
    for k in range(4):
        dpp("v_add_f32", vD0 + k, g0 + k, g0 + k, "row_ror:8")
    tag4(vD0)
    A("s_mov_b64 exec, 0xff")
    publish("y", f"buffer_store_dwordx4 {vr(vD0)}, v{vYR}, s[{rWS}:{rWS+3}], s{sTMP} offen")
    A("s_mov_b64 exec, -1")
    A("L_noy:")
    stamp("ypub")
    A(f"s_cmp_lg_u32 s{sGX}, 0")
    A("s_cbranch_scc1 L_fin")

    for i in range(4):
        A(f"ds_read2st64_b64 {vr(st+4*i)}, v{vFR} offset0:{L_CS//512 + 2*i} offset1:{L_CS//512 + 2*i+1}")
    A(f"s_lshl_b32 s{sTMP}, s{sWV}, 12")
    A(f"s_add_u32 s{sTMP}, s{sTMP}, {WS_YP}")
    if pbar:
        A("s_barrier")

    def b_issue():
        for i in range(4):
            A(f"buffer_load_dwordx4 {vr(g0+4*i)}, v{vL16}, s[{rWS}:{rWS+3}], s{sTMP} offen offset:{1024*i} sc1")
    b_issue()
    A("s_waitcnt lgkmcnt(0)")
    for i in range(4):
        pk("add", st + 4 * i, st + 4 * i, st + 4 * i + 2)
    pk("add", st, st, st + 4)
    pk("add", st + 8, st + 8, st + 12)
    pk("add", vCS, st, st + 8)
    A(f"s_mov_b32 s{sCNT}, 0x8000")
    A("s_branch L_b_chk")
    A("L_b_again:")
    A("s_mov_b64 exec, vcc")
    b_issue()
    A(f"s_sub_u32 s{sCNT}, s{sCNT}, 1")
    A("s_cbranch_scc1 L_b_ok")
    A("L_b_chk:")
    A("s_waitcnt vmcnt(0)")
    untag4([g0, g0 + 4, g0 + 8, g0 + 12], vT0)
    A("s_cbranch_vccnz L_b_again")
    A("L_b_ok:")
    A("s_mov_b64 exec, -1")
    stamp("hopB")
    note("_nb", sCNT)
    for e in range(8):
        A(f"v_permlane32_swap_b32 v{g0+e}, v{g0+8+e}")
    for e in (0, 4, 2, 6):
        pk("add", g0 + e, g0 + e, g0 + 8 + e)
    for e in range(4):
        if e == 2:
            pass
        A(f"v_permlane16_swap_b32 v{g0+e}, v{g0+4+e}")
    pk("add", g0, g0, g0 + 4)
    pk("add", g0 + 2, g0 + 2, g0 + 6)
    A(f"s_cmp_ge_u32 s{sR}, {NFFN}")
    dpp("v_add_f32", g0 + 4, g0, g0, "row_ror:8", 0x3)
    dpp("v_add_f32", g0 + 5, g0 + 1, g0 + 1, "row_ror:8", 0x3)
    dpp("v_add_f32", g0 + 4, g0 + 2, g0 + 2, "row_ror:8", 0xc)
    dpp("v_add_f32", g0 + 5, g0 + 3, g0 + 3, "row_ror:8", 0xc)
    round2(g0 + 4)
    pk("add", g0 + 4, g0 + 4, vXR)
    A(f"v_cvt_pk_bf16_f32 v{vP}, v{g0+4}, v{g0+5}")
    s0, s1 = vT0, vT1
    A(f"ds_write_b32 v{vHW}, v{vP} offset:{L_HS}")
    A("s_cbranch_scc1 L_noffn")
    A(f"v_dot2_f32_bf16 v{s0}, v{vP}, v{vONE}, 0")
    A(f"v_dot2_f32_bf16 v{s1}, v{vP}, v{vP}, 0")
    for k in range(4):
        dpp("v_and_b32", vBM + k, vP, vMT, f"quad_perm:[{k},{k},{k},{k}]")
    A(f"v_permlane32_swap_b32 v{s0}, v{s1}")
    A(f"v_add_f32 v{s0}, v{s0}, v{s1}")
    mfma(vD0, vW1, vBM, None)
    mfma(vD1, vW1 + 4, vBM, None)
    dpp("v_add_f32", s0, s0, s0, X1)
    for k in range(4):
        dpp("v_and_b32", vBM + 4 + k, vP, vMT + 1, f"quad_perm:[{k},{k},{k},{k}]")
    dpp("v_add_f32", s0, s0, s0, X2)
    dpp("v_and_b32", vBM + 8, vP, vMT + 2, "quad_perm:[0,0,0,0]")
    mfma(vD0, vW1 + 8, vBM + 4, vD0)
    mfma(vD1, vW1 + 12, vBM + 4, vD1)
    dpp("v_add_f32", s0, s0, s0, "row_ror:8")
    for k in range(1, 4):
        dpp("v_and_b32", vBM + 8 + k, vP, vMT + 2, f"quad_perm:[{k},{k},{k},{k}]")
    A(f"v_mov_b32 v{s1}, v{s0}")
    nop(1)
    mfma(vD1, vW1 + 20, vBM + 8, vD1)
    mfma(vD0, vW1 + 16, vBM + 8, vD0)
    A(f"v_permlane16_swap_b32 v{s0}, v{s1}")
    A(f"v_add_f32 v{s0}, v{s0}, v{s1}")
    A(f"ds_write_b32 v{vSA}, v{s0} offset:{L_ST}")
    nop(5)
    for k in range(4):
        dpp("v_add_f32", vD0 + k, vD1 + k, vD0 + k, "row_ror:8")
    A(f"s_mov_b64 exec, s[{sU1}:{sU1+1}]")
    A(f"ds_write_b128 v{vFW}, {vr(vD0)} offset:{L_F1}")
    A("s_mov_b64 exec, -1")
    A("s_waitcnt lgkmcnt(0)")
    stamp("_f1")
    A("s_barrier")
    stamp("_f1b")
    for i in range(4):
        A(f"ds_read_b128 {vr(st+4*i)}, v{vSR} offset:{L_ST + 16*i}")
    for i in range(4):
        A(f"ds_read2st64_b64 {vr(g0+4*i)}, v{vFR} offset0:{L_F1//512 + 2*i} offset1:{L_F1//512 + 2*i+1}")
    A(f"s_cmp_eq_u32 s{sLOC}, 0" if not farz else f"s_cmp_eq_u32 s{sLOC}, s{sLOC}")
    A("s_waitcnt lgkmcnt(6)")
    pk("add", st, st, st + 2)
    pk("add", st + 4, st + 4, st + 6)
    A("s_waitcnt lgkmcnt(4)")
    pk("add", st + 8, st + 8, st + 10)
    pk("add", st + 12, st + 12, st + 14)
    pk("add", st, st, st + 4)
    pk("add", st + 8, st + 8, st + 12)
    A(f"v_add_f32 v{s0}, v{st}, v{st+1}")
    A(f"v_add_f32 v{s1}, v{st+8}, v{st+9}")
    ln_stats(s0, s1)
    A("s_waitcnt lgkmcnt(0)")
    sum8(g0)
    pk("fma", g0, vCS, s0, g0, extra=" op_sel_hi:[1,0,1] neg_lo:[0,1,0] neg_hi:[0,1,0]")
    pk("mul", g0, g0, s0, extra=hi)
    round2(g0)
    pk("add", g0, g0, vB1R)
    round2(g0)
    A(f"v_max_f32 v{g0}, 0, v{g0}")
    A(f"v_max_f32 v{g0+1}, 0, v{g0+1}")
    pk("mul", g0, g0, g0)
    A(f"v_cvt_pk_bf16_f32 v{vP}, v{g0}, v{g0+1}")
    A(f"v_and_b32 v{vP}, v{vVAL}, v{vP}")
    nop(2)
    for tau in range(4):
        for k in range(4):
            dpp("v_and_b32", vBM + 4 * tau + k, vP, vMT + tau, f"quad_perm:[{k},{k},{k},{k}]")
        if tau > 0:
            mfma(vD1, vW2 + 8 * (tau - 1) + 4, vBM + 4 * (tau - 1), None if tau == 1 else vD1)
            mfma(vD0, vW2 + 8 * (tau - 1), vBM + 4 * (tau - 1), None if tau == 1 else vD0)
    mfma(vD1, vW2 + 28, vBM + 12, vD1)
    mfma(vD0, vW2 + 24, vBM + 12, vD0)
    nop(8)
    for k in range(4):
        dpp("v_add_f32", vD0 + k, vD1 + k, vD0 + k, "row_ror:8")
    tag4(vD0)
    A(f"s_mov_b64 exec, s[{sU1}:{sU1+1}]")
    publish("z", f"buffer_store_dwordx4 {vr(vD0)}, v{vZA}, s[{rWS}:{rWS+3}], 0 offen")
    A("s_mov_b64 exec, -1")
    A("L_final:")
    stamp("zpub")

    def noffn():
        A("L_noffn:")
        A("s_waitcnt lgkmcnt(0)")
        A("s_barrier")
        A("s_branch L_final")
    cold.append(noffn)
    A(f"s_mul_i32 s{sTMP}, s{sR}, {ZSTR}")
    A(f"s_add_u32 s{sTMP}, s{sTMP}, {WS_ZP}")
    A(f"s_cmp_lg_u32 s{sWV}, {fw}")
    if pbar:
        A("s_barrier")
    A("s_cbranch_scc1 L_fin")
    A(f"ds_read_u16 v{vXR}, v{vFC} offset:{L_HS}")
    stamp("_c0")

    def c_issue():
        for t in range(3):
            A(f"buffer_load_dwordx4 {vr(g0+4*t)}, v{vL16}, s[{rWS}:{rWS+3}], s{sTMP} offen offset:{1024*t}{cld}")
        for k in range(4):
            A(f"v_mov_b32 v{g0+12+k}, s{Tk[k]}")
        A("s_and_b32 exec_hi, exec_hi, 0xff")
        A("s_cbranch_execz L_c_skip")
        A(f"buffer_load_dwordx4 {vr(g0+12)}, v{vL16}, s[{rWS}:{rWS+3}], s{sTMP} offen offset:3072{cld}")
        A("L_c_skip:")
        A("s_mov_b64 exec, vcc")
    pollm("c", c_issue, lambda: untag4([g0, g0 + 4, g0 + 8, g0 + 12], vT0))
    stamp("hopC")
    note("_nc", sCNT)
    for i in range(0, 8, 2):
        pk("add", g0 + i, g0 + i, g0 + 8 + i)
    pk("add", g0, g0, g0 + 4)
    pk("add", g0 + 2, g0 + 2, g0 + 6)
    A("s_waitcnt lgkmcnt(0)")
    A(f"v_lshlrev_b32 v{vXR}, 16, v{vXR}")
    A(f"v_permlane32_swap_b32 v{g0}, v{g0+2}")
    A(f"v_permlane32_swap_b32 v{g0+1}, v{g0+3}")
    pk("add", g0, g0, g0 + 2)
    nop(2)
    A(f"v_permlane16_swap_b32 v{g0}, v{g0+1}")
    A(f"v_add_f32 v{g0}, v{g0}, v{g0+1}")
    nop(2)
    dpp("v_add_f32", g0, g0, g0, "row_ror:8")
    round1(g0)
    A(f"v_add_f32 v{g0}, v{g0}, v{vB2R}")
    round1(g0)
    A(f"v_add_f32 v{g0}, v{g0}, v{vXR}")
    A(f"v_cvt_pk_bf16_f32 v{g0}, v{g0}, v{g0}")
    A("s_mov_b32 exec_lo, 0x00ff00ff")
    A("s_mov_b32 exec_hi, 0x00ff00ff")
    A(f"global_store_short v{vFC}, v{g0}, s[{sOUT}:{sOUT+1}]")
    A(f"s_cmp_lg_u32 s{sR}, 0")
    A("s_cbranch_scc1 L_fin")
    A("s_mov_b64 exec, 1")
    A(f"v_mov_b32 v{vA1}, s{sT}")
    A(f"buffer_store_dword v{vA1}, v{vL8}, s[{rWS}:{rWS+3}], 0 offen offset:{WS_E}")
    if minT:
        A("L_spin:")
        A("s_memrealtime s[98:99]")
        A("s_waitcnt lgkmcnt(0)")
        A("s_sub_u32 s98, s98, s100")
        A(f"s_cmp_lt_u32 s98, {minT*100}")
        A("s_cbranch_scc1 L_spin")
    A("L_fin:")
    if diag:
        A("s_mov_b64 exec, -1")
        A("s_waitcnt vmcnt(0)")
        stamp("end")
        for _ in range(4):
            A("s_sleep 127")
        A(f"s_mov_b32 s{sST+13}, s{sXCC}")
        A(f"s_mov_b32 s{sST+12}, s{sLOC}")
        for i in range(14):
            A(f"v_mov_b32 v{vK+i}, s{sST+i}")
        A(f"s_lshl_b32 s{sTMP}, s2, 3")
        A(f"s_add_u32 s{sTMP}, s{sTMP}, s{sWV}")
        A(f"s_lshl_b32 s{sTMP}, s{sTMP}, 6")
        A(f"s_add_u32 s{sTMP}, s{sTMP}, {WS_DIAG}")
        A(f"v_mov_b32 v{vA0}, 0")
        A("s_mov_b64 exec, 1")
        for i in range(4):
            A(f"buffer_store_dwordx4 {vr(vK+4*i)}, v{vA0}, s[{rWS}:{rWS+3}], s{sTMP} offen offset:{16*i}")
    A("s_endpgm")
    A("L_tailend:")

    if de != do:
        A("L_s_odd:")
        stream("o", do, False)
        A("s_branch L_tail")
    A("L_s_g0:")
    stream("g", d0, True)
    A("s_branch L_tail")

    A("L_qwave:")
    vXS, vXA, vW = vTMP, vTMP + 8, vV
    vY, vAB = vV + 64, vK + 64
    assert k0 <= 16
    A(f"v_lshrrev_b32 v{vA0}, 3, v{vC}")
    A(f"v_lshlrev_b32 v{vA0}, 10, v{vA0}")
    A(f"v_and_b32 v{vA1}, 7, v{vC}")
    A(f"v_lshl_add_u32 v{vA1}, v{vG}, 3, v{vA1}")
    A(f"v_lshl_add_u32 v{vA1}, v{vA1}, 5, v{vA0}")
    A(f"v_lshl_add_u32 v{vA0}, v{vG}, 5, v{vA0}")
    A(f"s_lshl_b32 s{sTMP}, s{sS}, 7")
    A(f"v_add_u32 v{vA0}, s{sTMP}, v{vA0}")
    A(f"global_load_dwordx4 {vr(vXS)}, v{vA1}, s[{sX}:{sX+1}]")
    A(f"global_load_dwordx4 {vr(vXS+4)}, v{vA1}, s[{sX}:{sX+1}] offset:16")
    A(f"global_load_dwordx4 {vr(vXA)}, v{vA0}, s[{sX}:{sX+1}]")
    A(f"global_load_dwordx4 {vr(vXA+4)}, v{vA0}, s[{sX}:{sX+1}] offset:16")
    srd(rT, sWQ, 0 if noqw else 0x400000)
    A(f"s_lshl_b32 s{sTMP}, s{sS}, 19")
    A(f"s_lshl_b32 s{sTMP2}, s{sH}, 8")
    A(f"s_add_u32 s{sTMP}, s{sTMP}, s{sTMP2}")
    A(f"v_lshlrev_b32 v{vA2}, 17, v{vG}")
    A(f"v_lshl_add_u32 v{vA2}, v{vC}, 4, v{vA2}")
    for j in range(16):
        A(f"buffer_load_dwordx4 {vr(vW+4*j)}, v{vA2}, s[{rT}:{rT+3}], s{sTMP} offen{wqfl}")
        if j < 15:
            A(f"s_add_u32 s{sTMP}, s{sTMP}, 8192")
    A(f"v_lshlrev_b32 v{vA0}, 2, v{vC}")
    A(f"v_mov_b32 v{vA1}, -1")
    A(f"ds_write_b32 v{vA0}, v{vA1} offset:{L_ML}")
    A(f"v_lshlrev_b32 v{vA0}, 2, v{vL}")
    A(f"ds_write_b32 v{vA0}, v{vA1} offset:{L_Q}")
    A("s_waitcnt lgkmcnt(0)")
    common_setup()
    for i in range(k0):
        kload(i)
    A("s_barrier")
    make_masks()
    A(f"v_mov_b32 v{vA0}, 0x3f803f80")
    A(f"s_waitcnt vmcnt({18+k0})")
    s0, s1 = vT0, vT1
    for i in range(8):
        A(f"v_dot2_f32_bf16 v{s0}, v{vXS+i}, v{vA0}, " + ("0" if i == 0 else f"v{s0}"))
        A(f"v_dot2_f32_bf16 v{s1}, v{vXS+i}, v{vXS+i}, " + ("0" if i == 0 else f"v{s1}"))
    nop(3)
    for ctl in (X1, X2, HM):
        dpp("v_add_f32", s0, s0, s0, ctl)
        dpp("v_add_f32", s1, s1, s1, ctl)
        nop(1)
    for sw in ("v_permlane16_swap_b32", "v_permlane32_swap_b32"):
        A(f"v_mov_b32 v{vA0}, v{s0}")
        A(f"v_mov_b32 v{vA1}, v{s1}")
        nop(2)
        A(f"{sw} v{s0}, v{vA0}")
        A(f"{sw} v{s1}, v{vA1}")
        A(f"v_add_f32 v{s0}, v{s0}, v{vA0}")
        A(f"v_add_f32 v{s1}, v{s1}, v{vA1}")
    ln_stats(s0, s1)
    A(f"s_waitcnt vmcnt({16+k0})")
    unpack(vY, vXA, 8)
    for i in range(0, 16, 2):
        pk("add", vY + i, vY + i, s0, extra=" op_sel_hi:[1,0] neg_lo:[0,1] neg_hi:[0,1]")
    round_bf16([vY + i for i in range(16)], vXS)
    for i in range(0, 16, 2):
        pk("mul", vY + i, vY + i, s0, extra=" op_sel:[0,1]")
    for i in range(16):
        A(f"v_cvt_pk_bf16_f32 v{vY+i}, v{vY+i}, v{vY+i}")
    for j in range(16):
        for k in range(4):
            A(f"v_and_b32 v{vAB+4*j+k}, v{vMK+k}, v{vY+j}")
    epoch()
    for j in range(16):
        A(f"s_waitcnt vmcnt({15-j+k0})")
        mfma(vACC, vAB + 4 * j, vW + 4 * j, None if j == 0 else vACC)
    A(f"v_lshrrev_b32 v{vA0}, 5, v{vL}")
    A(f"v_lshlrev_b32 v{vA0}, 12, v{vA0}")
    A(f"v_and_b32 v{vA1}, 31, v{vL}")
    A(f"v_lshl_add_u32 v{vA0}, v{vA1}, 4, v{vA0}")
    A(f"s_lshl_b32 s{sTMP}, s{sH}, 13")
    A(f"s_lshl_b32 s{sTMP2}, s{sS}, 9")
    A(f"s_add_u32 s{sTMP}, s{sTMP}, s{sTMP2}")
    A(f"s_add_u32 s{sTMP}, s{sTMP}, {WS_QP}")
    A(f"s_lshl_b32 s{sTMP2}, s{sID}, 2")
    A(f"s_add_u32 s{sTMP2}, s{sTMP2}, {WS_XC}")
    A(f"v_mov_b32 v{vA1}, s{sXW}")
    A(f"v_mov_b32 v{vA2}, 0")
    tag4(vACC)
    A(f"buffer_store_dwordx4 {vr(vACC)}, v{vA0}, s[{rWS}:{rWS+3}], s{sTMP} offen{qst}")
    A("s_mov_b64 exec, 1")
    A(f"buffer_store_dword v{vA1}, v{vA2}, s[{rWS}:{rWS+3}], s{sTMP2} offen sc1")
    A("s_mov_b64 exec, -1")
    stamp("qpub")
    A("s_branch L_join")

    for c in cold:
        c()
    A("L_end:")
    A("s_endpgm")
    L.append('.section .rodata,"a"')
    L.append(".p2align 6")
    L.append(f".amdhsa_kernel {NAME}_kernel")
    L.append("  .amdhsa_next_free_vgpr 256")
    L.append("  .amdhsa_next_free_sgpr 102")
    L.append("  .amdhsa_accum_offset 256")
    L.append("  .amdhsa_group_segment_fixed_size 0")
    L.append("  .amdhsa_kernarg_size 104")
    L.append("  .amdhsa_user_sgpr_count 2")
    L.append("  .amdhsa_user_sgpr_kernarg_segment_ptr 1")
    L.append("  .amdhsa_system_sgpr_workgroup_id_x 1")
    L.append("  .amdhsa_float_denorm_mode_32 3")
    L.append(".end_amdhsa_kernel")
    src = "\n".join(L) + "\n"
    return src, stamps


if __name__ == "__main__":
    header = open("cdna_kernels/" + NAME + ".s.ref").read().split("; Override launch")[0]
    kw = eval("dict(" + (sys.argv[2] if len(sys.argv) > 2 else "") + ")")
    src, _ = gen(**kw)
    open(sys.argv[1], "w").write(header + src)
```

```python
import sys
NAME = "sequential_preLN__mha_block_cached__dense_activation_squared_relu__decode"

WS_E = 0
WS_XC = 0x1000
WS_ML = 0xA0000
WS_YP = 0x8000
WS_QP = 0x10000
WS_OP = 0x50000
WS_ZP = 0x70000
ZSTR = 4224
WS_DIAG = 0x100000
WS_SIZE = 0x200000
L_OW = 0
L_F1 = 4096
L_CS = 8192
L_Y = 12288
L_HS = L_Y + 1024
L_ML = L_HS + 2048
L_ST = L_ML + 64
L_Q = L_ST + 192
L_WO = 16384
L_W1 = L_WO + 16384
L_W2 = L_W1 + 49152
LDS_BYTES = L_W2 + 49152 + 2048
assert L_Q + 256 <= L_WO and L_Q % 16 == 0

LOG2E = 0x3fb8aa3b
SCALE = 0x3db504f3
EPS = 0x3727c5ac
NFFN = 29


def gen(diag=False, only=None, wopos=31, wflags="", woflags="", sleep=0, local=True,
        d0=(4,), de=(4,), do=(4,), k0=8, pq=18, pq2=25, qw=1, prew=22, prfl="", boost=0, pf=1, pf2=20, ffn0=2, ffnstep=2,
        p1=8, p2=20, smartb=1, minT=0, now1=0, now2=0, nowo=0, sm="", qst=" sc1", qld=" sc1", wsoff=0, noqw=0, strip=(), pfl="", ffnheavy=1, ffnburst=0, farz=0, pbar=1, fw=7, cld=" sc1", kvfl=" nt", wqfl="", fg=2, wopf=0, wo0=10, wostep=3, mlloc=1):
    L = []

    def A(s):
        L.append("    " + s if not s.endswith(":") else s)

    def nop(n):
        if n > 0:
            A(f"s_nop {n-1}")

    def vr(a, n=4):
        return f"v[{a}:{a+n-1}]"

    sX, sK, sV, sWQ, sWO, sW1, sB1, sW2, sB2, sOUT, sWS = 8, 10, 12, 14, 16, 20, 22, 24, 26, 28, 32
    sPC = 34
    rK, rV, rWS, rT = 36, 40, 44, 48
    sGX, sR, sH, sS, sB, sWV = 52, 53, 54, 55, 56, 57
    sT, sT0, sT1, sT2, sT3 = 58, 59, 60, 61, 62
    sLOC, sCNT, sTMP, sTMP2, sXW = 63, 64, 65, 66, 67
    sTILE = 68
    sID = 76
    sXCC = 77
    sU0 = 78
    sD1, sD2, sD3 = 80, 81, 82
    sQO, sXO = 83, 84
    sU1 = 4
    sPN = 6
    sEX = 86
    sST = 88
    Tk = [sT0, sT1, sT2, sT3]

    vL, vG, vC = 1, 2, 3
    vKV = 4
    vA0, vA1, vA2 = 5, 6, 7
    vQ = 8
    vMK = 12
    vACC = 16
    vS = 20
    vFF = 28
    vM = 29
    vT0, vT1 = 30, 31
    vTMP = 32
    vK = 48
    vV = 176
    NRING = 20
    vWO = vK
    vW1 = vK + 8
    vW2 = vK + 32
    vF = vK + 64
    vMT = vK + 72
    vXR = vK + 76
    vB1R = vK + 78
    vCS = vK + 80
    vTa, vTb = vK + 82, vK + 83
    vB2R = vK + 84
    vL8 = vK + 85
    vAA = vK + 86
    vYW = vK + 87
    vYR = vK + 88
    vFW = vK + 89
    vSA = vK + 90
    vSR = vK + 91
    vZA = vK + 92
    vFC = vK + 93
    vHR = vK + 94
    vCA = vK + 95
    vONE = vK + 96
    vVAL = vK + 97
    vOWA = vK + 98
    vDUM = vK + 99
    vMLG = vK + 100
    vMLW = vK + 104
    vTR = vK + 106
    vHW = vK + 107
    vD0, vD1 = vK + 108, vK + 112
    vP = vK + 116
    vB = vK + 120
    vL16 = vK + 124
    vFR = vK + 125
    g0 = vV
    vBM = vV + 16
    st = vV + 32

    stamps = []

    def stamp(name):
        if not diag:
            return
        if only is not None and name not in only and name not in ("strm", "end"):
            return
        if only is None and name.startswith("_"):
            return
        if name not in stamps:
            stamps.append(name)
        i = stamps.index(name)
        A(f"s_memrealtime s[{sEX+0}:{sEX+1}]")
        A("s_waitcnt lgkmcnt(0)")
        A(f"s_mov_b32 s{sST+i}, s{sEX}")

    def note(name, sreg):
        if not diag or only is None or name not in only:
            return
        if name not in stamps:
            stamps.append(name)
        i = stamps.index(name)
        A(f"s_sub_u32 s{sST+i}, 0x8000, s{sreg}")
        A(f"s_mul_i32 s{sST+i}, s{sST+i}, 100")
        A(f"s_add_u32 s{sST+i}, s{sST+i}, s{sST}")

    def srd(r, p, size):
        A(f"s_mov_b32 s{r}, s{p}")
        A(f"s_mov_b32 s{r+1}, s{p+1}")
        A(f"s_mov_b32 s{r+2}, {size}")
        A(f"s_mov_b32 s{r+3}, 0x20000")

    def tag4(base):
        for k in range(4):
            A(f"v_bfi_b32 v{base+k}, v{vFF}, s{Tk[k]}, v{base+k}")

    def tag2(base):
        A(f"v_bfi_b32 v{base}, v{vFF}, v{vTa}, v{base}")
        A(f"v_bfi_b32 v{base+1}, v{vFF}, v{vTb}, v{base+1}")

    def check(flat, acc):
        if len(flat) == 2:
            A(f"v_or_b32 v{acc}, v{flat[0]}, v{flat[1]}")
        else:
            A(f"v_or3_b32 v{acc}, v{flat[0]}, v{flat[1]}, v{flat[2]}")
            rest = flat[3:]
            while len(rest) >= 2:
                A(f"v_or3_b32 v{acc}, v{acc}, v{rest[0]}, v{rest[1]}")
                rest = rest[2:]
            if rest:
                A(f"v_or_b32 v{acc}, v{acc}, v{rest[0]}")
        A(f"v_cmp_ne_u32_sdwa vcc, v{acc}, 0 src0_sel:BYTE_0 src1_sel:DWORD")

    def untag4(regs, acc):
        for b in regs:
            for k in range(4):
                A(f"v_xor_b32 v{b+k}, s{Tk[k]}, v{b+k}")
        check([b + k for b in regs for k in range(4)], acc)

    def untag2(regs, acc):
        for b in regs:
            A(f"v_xor_b32 v{b}, v{vTa}, v{b}")
            A(f"v_xor_b32 v{b+1}, v{vTb}, v{b+1}")
        check([b + k for b in regs for k in range(2)], acc)

    cold = []

    def poll_rare(name, issue, untag):
        A(f"s_mov_b32 s{sCNT}, 0x4000")
        A(f"L_{name}_chk:")
        untag()
        A(f"s_cbranch_vccnz L_{name}_again")
        A(f"L_{name}_ok:")

        def retry():
            A(f"L_{name}_again:")
            A(f"s_sub_u32 s{sCNT}, s{sCNT}, 1")
            A(f"s_cbranch_scc1 L_{name}_ok")
            A("s_sleep 2")
            issue()
            A("s_waitcnt vmcnt(0)")
            A(f"s_branch L_{name}_chk")
        cold.append(retry)

    def poll(name, issue, untag):
        A(f"s_mov_b32 s{sCNT}, 0x8000")
        A(f"L_{name}_again:")
        issue()
        A(f"s_sub_u32 s{sCNT}, s{sCNT}, 1")
        A(f"s_cbranch_scc1 L_{name}_ok")
        if sleep:
            A(f"s_sleep {sleep}")
        A("s_waitcnt vmcnt(0)")
        untag()
        A(f"s_cbranch_vccnz L_{name}_again")
        A(f"L_{name}_ok:")

    def pollm(name, issue, untag):
        A(f"s_mov_b32 s{sCNT}, 0x8000")
        A("s_mov_b64 vcc, -1")
        A(f"L_{name}_again:")
        A("s_mov_b64 exec, vcc")
        issue()
        A(f"s_sub_u32 s{sCNT}, s{sCNT}, 1")
        A(f"s_cbranch_scc1 L_{name}_ok")
        if sleep:
            A(f"s_sleep {sleep}")
        A("s_waitcnt vmcnt(0)")
        if diag and name == "c" and only and "_c1" in only:
            A(f"s_cmp_lg_u32 s{sCNT}, 0x7fff")
            A("s_cbranch_scc1 L_c1x")
            stamp("_c1")
            A("L_c1x:")
        untag()
        A(f"s_cbranch_vccnz L_{name}_again")
        A(f"L_{name}_ok:")
        A("s_mov_b64 exec, -1")

    def dpp(op, d, s0, s1, ctl, bank=0xf, row=0xf):
        if s1 is None:
            A(f"{op}_dpp v{d}, v{s0} {ctl} row_mask:{hex(row)} bank_mask:{hex(bank)}")
        else:
            A(f"{op}_dpp v{d}, v{s0}, v{s1} {ctl} row_mask:{hex(row)} bank_mask:{hex(bank)}")

    X1, X2, HM = "quad_perm:[1,0,3,2]", "quad_perm:[2,3,0,1]", "row_half_mirror"

    def round_bf16(regs, tmp):
        for i in range(0, len(regs), 2):
            A(f"v_cvt_pk_bf16_f32 v{tmp+i//2}, v{regs[i]}, v{regs[i+1]}")
        for i in range(0, len(regs), 2):
            A(f"v_lshlrev_b32 v{regs[i]}, 16, v{tmp+i//2}")
            A(f"v_and_b32 v{regs[i+1]}, 0xffff0000, v{tmp+i//2}")

    def round2(r):
        A(f"v_cvt_pk_bf16_f32 v{r+1}, v{r}, v{r+1}")
        A(f"v_lshlrev_b32 v{r}, 16, v{r+1}")
        A(f"v_and_b32 v{r+1}, 0xffff0000, v{r+1}")

    def round1(r):
        A(f"v_cvt_pk_bf16_f32 v{r}, v{r}, v{r}")
        A(f"v_lshlrev_b32 v{r}, 16, v{r}")

    def unpack(dst, src, n):
        for i in range(n):
            A(f"v_lshlrev_b32 v{dst+2*i}, 16, v{src+i}")
            A(f"v_and_b32 v{dst+2*i+1}, 0xffff0000, v{src+i}")

    def pk(op, d, a, b, c=None, extra=""):
        if c is None:
            A(f"v_pk_{op}_f32 {vr(d,2)}, {vr(a,2)}, {vr(b,2)}{extra}")
        else:
            A(f"v_pk_{op}_f32 {vr(d,2)}, {vr(a,2)}, {vr(b,2)}, {vr(c,2)}{extra}")

    def sum8(g):
        for i in range(4):
            pk("add", g + 4 * i, g + 4 * i, g + 4 * i + 2)
        pk("add", g, g, g + 4)
        pk("add", g + 8, g + 8, g + 12)
        pk("add", g, g, g + 8)

    def ln_stats(vsum, vsq):
        A(f"v_mul_f32 v{vsum}, 0x3b000000, v{vsum}")
        A(f"v_mul_f32 v{vsq}, 0x3b000000, v{vsq}")
        A(f"v_fma_f32 v{vsq}, -v{vsum}, v{vsum}, v{vsq}")
        A(f"v_max_f32 v{vsq}, 0, v{vsq}")
        A(f"v_cvt_pk_bf16_f32 v{vsq}, v{vsum}, v{vsq}")
        A(f"v_lshlrev_b32 v{vsum}, 16, v{vsq}")
        A(f"v_and_b32 v{vsq}, 0xffff0000, v{vsq}")
        A(f"v_add_f32 v{vsq}, {hex(EPS)}, v{vsq}")
        round1(vsq)
        A(f"v_sqrt_f32 v{vsq}, v{vsq}")
        nop(1)
        round1(vsq)
        A(f"v_rcp_f32 v{vsq}, v{vsq}")
        nop(1)

    def mfma(d, a, b, c):
        A(f"v_mfma_f32_16x16x32_bf16 {vr(d)}, {vr(a)}, {vr(b)}, " + ("0" if c is None else vr(c)))

    def kload(i):
        t, j = divmod(i, 4)
        A(f"buffer_load_dwordx4 {vr(vK+4*i)}, v{vKV}, s[{rK}:{rK+3}], s{sTILE+t} offen offset:{j*1024}{kvfl}")

    def vreg(i):
        return vV + 4 * (i % NRING)

    def vload(i):
        t, j = divmod(i, 4)
        A(f"buffer_load_dwordx4 {vr(vreg(i))}, v{vKV}, s[{rV}:{rV+3}], s{sTILE+t} offen offset:{j*1024}{kvfl}")

    def make_masks():
        A(f"v_and_b32 v{vA0}, 1, v{vL}")
        A(f"v_lshlrev_b32 v{vA0}, 4, v{vA0}")
        A(f"v_mov_b32 v{vA1}, 0xffff")
        A(f"v_lshlrev_b32 v{vA1}, v{vA0}, v{vA1}")
        A(f"v_bfe_u32 v{vA0}, v{vL}, 1, 2")
        for j in range(4):
            A(f"v_cmp_eq_u32 vcc, {j}, v{vA0}")
            nop(2)
            A(f"v_cndmask_b32 v{vMK+j}, 0, v{vA1}, vcc")

    def epoch():
        A("s_waitcnt lgkmcnt(0)")
        A(f"s_add_u32 s{sT}, s{sT}, 0x01010101")
        A(f"s_and_b32 s{sT0}, s{sT}, 0xff")
        A(f"s_bfe_u32 s{sT1}, s{sT}, 0x80008")
        A(f"s_bfe_u32 s{sT2}, s{sT}, 0x80010")
        A(f"s_lshr_b32 s{sT3}, s{sT}, 24")
        A(f"s_lshl_b32 s{sXW}, s{sXCC}, 28")
        A(f"s_add_u32 s{sXW}, s{sXW}, s{sT}")

    def dma(voff, soff, m0expr, flags):
        A(m0expr)
        nop(1)
        A(f"buffer_load_dwordx4 v{voff}, s[{rT}:{rT+3}], {soff} offen{flags} lds")

    def wo_dma0():
        srd(rT, sWO, 0 if nowo else 0x400000)
        A(f"v_lshrrev_b32 v{vA0}, 1, v{vL}")
        A(f"v_lshlrev_b32 v{vA0}, 10, v{vA0}")
        A(f"v_and_b32 v{vA1}, 1, v{vL}")
        A(f"v_lshl_add_u32 v{vA0}, v{vA1}, 4, v{vA0}")
        A(f"s_lshl_b32 s{sTMP}, s{sGX}, 19")
        A(f"s_lshl_b32 s{sTMP2}, s{sWV}, 16")
        A(f"s_add_u32 s{sTMP}, s{sTMP}, s{sTMP2}")
        A(f"s_lshl_b32 s{sTMP2}, s{sR}, 5")
        A(f"s_add_u32 s{sTMP}, s{sTMP}, s{sTMP2}")
        A(f"s_lshl_b32 s{sTMP2}, s{sWV}, 11")
        for u in range(2):
            dma(vA0, f"s{sTMP}", f"s_add_u32 m0, s{sTMP2}, {L_WO + u*1024}", woflags)
            if u == 0:
                A(f"s_add_u32 s{sTMP}, s{sTMP}, 32768")

    def publish(name, line):
        A(f"s_cbranch_scc1 L_{name}_far")
        A(line)
        A(f"s_branch L_{name}_pub")
        A(f"L_{name}_far:")
        A(line + " sc1")
        A(f"L_{name}_pub:")

    def code_prefetch(dst, first, last):
        A(f"v_lshlrev_b32 v{dst}, 5, v{vL}")
        A(f"v_add_u32 v{dst}, s{sR}, v{dst}")
        A(f"v_lshlrev_b32 v{dst}, 7, v{dst}")
        A(f"v_add_u32 v{dst}, {first} - L_pc, v{dst}")
        A(f"v_min_u32 v{dst}, {last} - L_pc, v{dst}")
        A("s_mov_b64 exec, 0xff")
        A(f"global_load_dword v{dst}, v{dst}, s[{sPC}:{sPC+1}]{pfl}")
        A("s_mov_b64 exec, -1")

    L.append(f"; @launch grid=(256,1,1) block=(512,1,1) lds={LDS_BYTES}")
    L.append('.amdgcn_target "amdgcn-amd-amdhsa--gfx950"')
    L.append(".text")
    L.append(f".globl {NAME}_kernel")
    L.append(".p2align 8")
    L.append(f".type {NAME}_kernel,@function")
    L.append(f"{NAME}_kernel:")
    A("s_cmp_ge_u32 s2, 256")
    A("s_cbranch_scc1 L_end")
    A("s_load_dwordx16 s[8:23], s[0:1], 0")
    A("s_load_dwordx8 s[24:31], s[0:1], 64")
    A("s_load_dwordx2 s[32:33], s[0:1], 96")
    if minT:
        A("s_memrealtime s[100:101]")
    if diag:
        A(f"s_memrealtime s[{sEX}:{sEX+1}]")
    A(f"s_getpc_b64 s[{sPC}:{sPC+1}]")
    A("L_pc:")
    A(f"v_lshrrev_b32 v{vA0}, 6, v0")
    A(f"v_and_b32 v{vL}, 63, v0")
    A(f"v_readfirstlane_b32 s{sWV}, v{vA0}")
    A(f"s_lshr_b32 s{sR}, s2, 3")
    if pf:
        code_prefetch(vT0, "L_pc", "L_end")
    if diag:
        for i in range(14):
            A(f"s_mov_b32 s{sST+i}, 0")
    if fg:
        A(f"s_xor_b32 s{sGX}, s2, {fg}")
        A(f"s_and_b32 s{sGX}, s{sGX}, 7")
    else:
        A(f"s_and_b32 s{sGX}, s2, 7")
    A(f"s_lshl_b32 s{sID}, s{sGX}, 5")
    A(f"s_add_u32 s{sID}, s{sID}, s{sR}")
    A(f"s_lshr_b32 s{sH}, s{sID}, 3")
    A(f"s_and_b32 s{sS}, s{sR}, 7")
    A(f"s_lshr_b32 s{sB}, s{sS}, 2")
    A(f"s_lshl_b32 s{sTMP}, s{sB}, 5")
    A(f"s_add_u32 s{sTMP}, s{sTMP}, s{sH}")
    A(f"s_lshl_b32 s{sTMP}, s{sTMP}, 20")
    A(f"s_and_b32 s{sTMP2}, s{sS}, 3")
    A(f"s_lshl_b32 s{sTMP2}, s{sTMP2}, 18")
    A(f"s_add_u32 s{sTMP}, s{sTMP}, s{sTMP2}")
    A(f"s_lshl_b32 s{sTMP2}, s{sWV}, 12")
    A(f"s_add_u32 s{sTMP}, s{sTMP}, s{sTMP2}")
    A(f"v_lshl_add_u32 v{vKV}, v{vL}, 4, s{sTMP}")
    A(f"s_mov_b32 s{sTILE}, 0")
    A(f"s_mov_b32 s{rK+2}, 0x4000000")
    A(f"s_mov_b32 s{rK+3}, 0x20000")
    A(f"v_lshrrev_b32 v{vG}, 4, v{vL}")
    A(f"v_and_b32 v{vC}, 15, v{vL}")
    A(f"s_cmp_eq_u32 s{sWV}, 0")
    A("s_waitcnt lgkmcnt(0)")
    A(f"s_mov_b32 s{rK}, s{sK}")
    A(f"s_mov_b32 s{rK+1}, s{sK+1}")
    if "qwave" not in strip:
        A("s_cbranch_scc1 L_qwave")
    if wopos == "first":
        wo_dma0()
    for i in range(4):
        kload(i)
    if wopos == "second":
        wo_dma0()

    def common_setup():
        if diag:
            A(f"s_mov_b32 s{sST}, s{sEX}")
        if wsoff:
            A(f"s_add_u32 s{sWS}, s{sWS}, {wsoff}")
            A(f"s_addc_u32 s{sWS+1}, s{sWS+1}, 0")
        A(f"s_load_dword s{sT}, s[{sWS}:{sWS+1}], {WS_E}")
        for t in range(1, 8):
            A(f"s_mov_b32 s{sTILE+t}, {t * 32768}")
        A(f"v_mov_b32 v{vFF}, 0xff")
        A(f"s_getreg_b32 s{sXCC}, hwreg(HW_REG_XCC_ID, 0, 4)")
        srd(rV, sV, 0x4000000)
        srd(rWS, sWS, WS_SIZE)
    if diag:
        stamps.append("start")
    common_setup()
    make_masks()
    epoch()
    A("s_barrier")
    for i in range(4, k0):
        A(f"s_waitcnt vmcnt({5 if wopos == 'second' and i < 8 else 3})")
        kload(i)
    A("L_join:")
    stamp("_join")
    A(f"v_cmp_gt_u32 vcc, 8, v{vC}")
    vQA = vA2
    A(f"v_lshlrev_b32 v{vQA}, 4, v{vL}")
    A(f"s_lshl_b32 s{sQO}, s{sH}, 13")
    for j in range(4):
        A(f"v_cndmask_b32 v{vMK+j}, 0, v{vMK+j}, vcc")
    A(f"s_lshl_b32 s{sTMP2}, s{sB}, 12")
    A(f"s_add_u32 s{sQO}, s{sQO}, s{sTMP2}")
    A(f"s_add_u32 s{sQO}, s{sQO}, {WS_QP}")
    if wopos == "stag":
        assert wo0 >= k0 and wo0 + 15 * wostep < 64
        A(f"s_mov_b32 s{sWO+2}, {0 if nowo else 0x400000}")
        A(f"s_mov_b32 s{sWO+3}, 0x20000")
        A(f"v_lshrrev_b32 v0, 1, v{vL}")
        A(f"v_lshlrev_b32 v0, 10, v0")
        A(f"v_and_b32 v{vA0}, 1, v{vL}")
        A(f"v_lshl_add_u32 v0, v{vA0}, 4, v0")
        A(f"s_lshl_b32 s{sTMP}, s{sGX}, 19")
        A(f"s_lshl_b32 s{sTMP2}, s{sR}, 5")
        A(f"s_add_u32 s{sTMP}, s{sTMP}, s{sTMP2}")
        A(f"v_add_u32 v0, s{sTMP}, v0")
    A(f"s_lshl_b32 s{sXO}, s{sGX}, 7")
    A(f"s_add_u32 s{sXO}, s{sXO}, {WS_XC}")
    if "g0" not in strip:
        A(f"s_cmp_lt_u32 s{sID}, {NFFN}")
        A("s_cbranch_scc1 L_s_g0")
    if de != do:
        A(f"s_bitcmp1_b32 s{sXCC}, 0")
        A("s_cbranch_scc1 L_s_odd")

    def stream(tagname, depth, g0var):
        ops = ["pre"] * k0
        pos = {("K", i): i for i in range(k0)}
        landed = [0]
        heavy = [("K", i) for i in range(k0)]

        def issue(key, n=1):
            for _ in range(n):
                ops.append(key)
            pos[key] = len(ops) - 1

        def wait_n(n):
            if len(ops) - n > landed[0]:
                A(f"s_waitcnt vmcnt({n})")
                landed[0] = len(ops) - n

        def wait_for(key):
            wait_n(len(ops) - 1 - pos[key])

        def has(key):
            return key in pos and pos[key] < landed[0]

        def q_loads():
            for i in range(4):
                A(f"buffer_load_dwordx4 {vr(vTMP+4*i)}, v{vQA}, s[{rWS}:{rWS+3}], s{sQO} offen offset:{1024*i}{qld}")

        def q_issue():
            A(f"s_cmp_lg_u32 s{sWV}, {qw}")
            A(f"s_cbranch_scc1 L_qi{tagname}")
            q_loads()
            A(f"L_qi{tagname}:")

        def q_finish():
            A(f"s_cmp_lg_u32 s{sWV}, {qw}")
            A(f"s_cbranch_scc1 L_qf{tagname}")
            poll_rare("q" + tagname, q_loads, lambda: untag4([vTMP, vTMP + 4, vTMP + 8, vTMP + 12], vT0))
            a = vTMP
            for i in range(0, 8, 2):
                pk("add", a + i, a + i, a + 8 + i)
            pk("add", a, a, a + 4)
            pk("add", a + 2, a + 2, a + 6)
            A(f"v_and_b32 v{vA0}, 1, v{vG}")
            A(f"v_lshlrev_b32 v{vA0}, 3, v{vA0}")
            A(f"v_permlane32_swap_b32 v{a}, v{a+2}")
            A(f"v_permlane32_swap_b32 v{a+1}, v{a+3}")
            A(f"v_lshl_add_u32 v{vA0}, v{vC}, 4, v{vA0}")
            A(f"v_lshrrev_b32 v{vA1}, 1, v{vG}")
            pk("add", a, a, a + 2)
            A(f"v_lshl_add_u32 v{vA0}, v{vA1}, 2, v{vA0}")
            A(f"v_cvt_pk_bf16_f32 v{a}, v{a}, v{a+1}")
            A(f"ds_write_b32 v{vA0}, v{a} offset:{L_Q}")
            A(f"L_qf{tagname}:")

        def q_read():
            n = "qr" + tagname
            A(f"v_lshlrev_b32 v{vA0}, 4, v{vC}")
            A(f"s_mov_b32 s{sCNT}, 0x40000")
            A(f"L_{n}_spin:")
            A(f"ds_read_b128 {vr(vQ)}, v{vA0} offset:{L_Q}")
            A(f"s_sub_u32 s{sCNT}, s{sCNT}, 1")
            A(f"s_cbranch_scc1 L_{n}_go")
            A("s_waitcnt lgkmcnt(0)")
            A(f"v_max3_u32 v{vA1}, v{vQ}, v{vQ+1}, v{vQ+2}")
            A(f"v_max_u32 v{vA1}, v{vA1}, v{vQ+3}")
            A(f"v_cmp_eq_u32 vcc, -1, v{vA1}")
            A(f"s_cbranch_vccnz L_{n}_spin")
            A(f"L_{n}_go:")
            A("s_waitcnt lgkmcnt(0)")
            stamp("qgot")

        def qk(t):
            tt, uu = vTMP, vTMP + 4
            for k in range(4):
                for r in range(4):
                    A(f"v_dot2_f32_bf16 v{tt+r}, v{vK+16*t+4*r+k}, v{vQ+k}, " + ("0" if k == 0 else f"v{tt+r}"))
            dpp("v_add_f32", uu, tt, tt, "row_ror:8", 0x3)
            dpp("v_add_f32", uu, tt + 1, tt + 1, "row_ror:8", 0xc)
            dpp("v_add_f32", uu + 1, tt + 2, tt + 2, "row_ror:8", 0x3)
            dpp("v_add_f32", uu + 1, tt + 3, tt + 3, "row_ror:8", 0xc)
            dpp("v_add_f32", vS + t, uu, uu, "row_shl:4", 0x5)
            nop(1)
            dpp("v_add_f32", vS + t, uu + 1, uu + 1, "row_shr:4", 0xa)

        def allred(op, r, t):
            nop(2)
            dpp(op, r, r, r, "row_ror:8")
            nop(2)
            dpp(op, r, r, r, "row_ror:4")
            for sw in ("v_permlane16_swap_b32", "v_permlane32_swap_b32"):
                A(f"v_mov_b32 v{t}, v{r}")
                nop(2)
                A(f"{sw} v{r}, v{t}")
                A(f"{op} v{r}, v{r}, v{t}")

        S = [vS + i for i in range(8)]

        def soft_a():
            for r in S:
                dpp("v_add_f32", r, r, r, X1)
            for r in S:
                dpp("v_add_f32", r, r, r, X2)
            round_bf16(S, vTMP)
            for i in range(0, 8):
                A(f"v_mul_f32 v{S[i]}, {hex(SCALE)}, v{S[i]}")
            round_bf16(S, vTMP)

        def soft_b():
            m, l = vT0, vT1
            A(f"v_max3_f32 v{m}, v{S[0]}, v{S[1]}, v{S[2]}")
            A(f"v_max3_f32 v{m}, v{m}, v{S[3]}, v{S[4]}")
            A(f"v_max3_f32 v{m}, v{m}, v{S[5]}, v{S[6]}")
            A(f"v_max_f32 v{m}, v{m}, v{S[7]}")
            allred("v_max_f32", m, vTMP)
            for r in S:
                A(f"v_sub_f32 v{r}, v{r}, v{m}")
            for r in S:
                A(f"v_mul_f32 v{r}, {hex(LOG2E)}, v{r}")
            for r in S:
                A(f"v_exp_f32 v{r}, v{r}")

        def soft_c():
            m, l = vT0, vT1
            A(f"s_lshl_b32 s{sTMP}, s{sWV}, 3")
            A(f"v_add_f32 v{l}, v{S[0]}, v{S[1]}")
            for r in S[2:]:
                A(f"v_add_f32 v{l}, v{l}, v{r}")
            for r in S:
                A(f"v_cvt_pk_bf16_f32 v{r}, v{r}, v{r}")
            allred("v_add_f32", l, vTMP)
            A(f"v_mov_b32 v{vA0}, s{sTMP}")
            A(f"ds_write_b64 v{vA0}, {vr(m,2)} offset:{L_ML}")
            stamp("soft")

        bank = [0, 2, 1, 3]

        def pv_a(t):
            for r in range(4):
                for k in range(4):
                    dpp("v_and_b32", vTMP + 4 * r + k, vS + t, vMK + k, f"row_newbcast:{4*bank[r]}")

        def pv_m(i):
            r = i % 4
            mfma(vACC, vTMP + 4 * r, vreg(i), None if i == 0 else vACC)

        def wo_dma():
            wo_dma0()
            issue("wo", 2)

        def wo_site(j):
            w, u = j & 7, j >> 3
            A(f"s_cmp_lg_u32 s{sWV}, {w}")
            A(f"s_cbranch_scc1 L_wo{tagname}{j}")
            A(f"s_mov_b32 m0, {L_WO + w*2048 + u*1024}")
            A(f"s_mov_b32 s{sTMP}, {w*65536 + u*32768}")
            A(f"buffer_load_dwordx4 v0, s[{sWO}:{sWO+3}], s{sTMP} offen{woflags} lds")
            A(f"L_wo{tagname}{j}:")

        def wo_prefetch():
            srd(rT, sWO, 0x400000)
            A(f"v_lshlrev_b32 v{vA0}, 5, v{vL}")
            A(f"s_lshl_b32 s{sTMP}, s{sID}, 14")
            A(f"s_lshl_b32 s{sTMP2}, s{sWV}, 11")
            A(f"s_add_u32 s{sTMP}, s{sTMP}, s{sTMP2}")
            A(f"buffer_load_dword v{vDUM}, v{vA0}, s[{rT}:{rT+3}], s{sTMP} offen")
            issue("wopf")

        def ffn_dma(i):
            if i == 0:
                srd(rT, sW1, 0 if now1 else 512 * 2752)
                A(f"s_mul_i32 s{sD1}, s{sWV}, {64*2752}")
                A(f"s_mul_i32 s{sTMP2}, s{sR}, 96")
                A(f"s_add_u32 s{sD1}, s{sD1}, s{sTMP2}")
                A(f"s_add_u32 s{sD2}, s{sD1}, {32*2752}")
                A(f"s_mul_i32 s{sD3}, s{sWV}, 6144")
            if i < 6:
                j, hi = divmod(i, 2)
                if not hi:
                    A(f"v_add_u32 v{vA0}, {64*j}, v{vL}")
                    A(f"v_mul_u32_u24 v{vM}, 43691, v{vA0}")
                    A(f"v_lshrrev_b32 v{vM}, 18, v{vM}")
                    A(f"v_lshlrev_b32 v{vA0}, 4, v{vA0}")
                    A(f"v_mul_u32_u24 v{vM}, {2752 - 96}, v{vM}")
                    A(f"v_add_u32 v{vM}, v{vM}, v{vA0}")
                dma(vM, f"s{sD2 if hi else sD1}", f"s_add_u32 m0, s{sD3}, {L_W1 + (j + 3*hi)*1024}", wflags)
            else:
                j = i - 6
                if j == 0:
                    srd(rT, sW2, 0 if now2 else 1376 * 1024)
                    A(f"v_lshrrev_b32 v{vM}, 3, v{vL}")
                    A(f"v_lshlrev_b32 v{vM}, 10, v{vM}")
                    A(f"v_and_b32 v{vA0}, 7, v{vL}")
                    A(f"v_lshl_add_u32 v{vM}, v{vA0}, 4, v{vM}")
                    A(f"s_mul_i32 s{sD1}, s{sR}, {48*1024}")
                    A(f"s_lshl_b32 s{sTMP2}, s{sWV}, 7")
                    A(f"s_add_u32 s{sD1}, s{sD1}, s{sTMP2}")
                else:
                    A(f"s_add_u32 s{sD1}, s{sD1}, 8192")
                dma(vM, f"s{sD1}", f"s_add_u32 m0, s{sD3}, {L_W2 + j*1024}", wflags)
            issue(("ffn", i))
            if ffnheavy:
                heavy.append(("ffn", i))

        def tail_setup():
            vB3, vXX, vB2 = vA1, vA2, vDUM
            A(f"v_bfe_u32 v{vB3}, v{vL}, 3, 1")
            A(f"v_bfe_u32 v{vB2}, v{vL}, 2, 1")
            A(f"v_and_b32 v{vXX}, 3, v{vL}")
            A(f"v_lshlrev_b32 v{vL8}, 3, v{vL}")
            A(f"v_lshlrev_b32 v{vL16}, 4, v{vL}")
            srd(rT, sB1, 2752)
            A(f"v_lshl_add_u32 v{vA0}, v{vB3}, 2, v{vXX}")
            A(f"v_lshl_add_u32 v{vM}, v{vG}, 3, v{vA0}")
            A(f"v_lshlrev_b32 v{vM}, 2, v{vM}")
            A(f"s_mul_i32 s{sTMP}, s{sR}, 96")
            A(f"buffer_load_dword v{vB1R+1}, v{vM}, s[{rT}:{rT+3}], s{sTMP} offen{sm}")
            A(f"v_lshlrev_b32 v{vSR}, 6, v{vB2}")
            A(f"v_lshl_add_u32 v{vFR}, v{vA0}, 3, v{vSR}")
            A(f"v_lshl_add_u32 v{vFR}, v{vG}, 7, v{vFR}")
            A(f"v_lshl_add_u32 v{vM}, v{vXX}, 1, v{vB3}")
            A(f"v_lshl_add_u32 v{vM}, v{vG}, 3, v{vM}")
            A(f"v_lshlrev_b32 v{vM}, 2, v{vM}")
            A(f"v_lshl_add_u32 v{vHW}, v{vB2}, 10, v{vM}")
            A(f"s_lshl_b32 s{sTMP}, s{sWV}, 7")
            A(f"v_add_u32 v{vHW}, s{sTMP}, v{vHW}")
            A(f"global_load_dword v{vXR+1}, v{vHW}, s[{sX}:{sX+1}]{sm}")
            A(f"v_lshlrev_b32 v{vYW}, 6, v{vB3}")
            A(f"v_lshl_add_u32 v{vYW}, v{vG}, 4, v{vYW}")
            A(f"v_add_u32 v{vYW}, s{sTMP}, v{vYW}")
            A(f"v_lshl_add_u32 v{vFC}, v{vXX}, 4, v{vG}")
            A(f"s_lshr_b32 s{sTMP2}, s{sR}, 2")
            A(f"s_mul_i32 s{sTMP2}, s{sTMP2}, 48")
            A(f"s_lshl2_add_u32 s{sTMP2}, s{sR}, s{sTMP2}")
            A(f"v_add_u32 v{vFC}, s{sTMP2}, v{vFC}")
            A(f"v_lshlrev_b32 v{vFC}, 1, v{vFC}")
            A(f"global_load_ushort v{vB2R}, v{vFC}, s[{sB2}:{sB2+1}]{sm}")
            A(f"v_lshl_add_u32 v{vFC}, v{vB2}, 10, v{vFC}")
            A(f"v_and_b32 v{vM}, 31, v{vL}")
            A(f"v_lshlrev_b32 v{vM}, 2, v{vM}")
            A(f"buffer_load_dword v{vVAL}, v{vM}, s[{rWS}:{rWS+3}], s{sXO} offen sc1")
            issue("small", 4)
            A(f"v_and_b32 v{vA0}, 0x70, v{vL16}")
            A(f"v_lshl_add_u32 v{vYR}, v{vB3}, 9, v{vA0}")
            A(f"v_lshl_add_u32 v{vAA}, v{vB3}, 2, v{vG}")
            A(f"v_lshl_add_u32 v{vAA}, v{vAA}, 9, v{vA0}")
            A(f"s_and_b32 s{sTMP2}, s{sWV}, 1")
            A(f"s_lshl_b32 s{sTMP2}, s{sTMP2}, 8")
            A(f"s_lshr_b32 s{sD1}, s{sWV}, 1")
            A(f"s_lshl_b32 s{sD1}, s{sD1}, 12")
            A(f"s_add_u32 s{sTMP2}, s{sTMP2}, s{sD1}")
            A(f"s_lshl_b32 s{sD1}, s{sGX}, 14")
            A(f"s_add_u32 s{sTMP2}, s{sTMP2}, s{sD1}")
            A(f"s_add_u32 s{sTMP2}, s{sTMP2}, {WS_OP}")
            A(f"v_add_u32 v{vAA}, s{sTMP2}, v{vAA}")
            A(f"v_mul_u32_u24 v{vZA}, {ZSTR}, v{vG}")
            A(f"s_mul_i32 s{sTMP2}, s{sWV}, {4*ZSTR}")
            A(f"s_lshl_b32 s{sD1}, s{sR}, 7")
            A(f"s_add_u32 s{sTMP2}, s{sTMP2}, s{sD1}")
            A(f"s_add_u32 s{sTMP2}, s{sTMP2}, {WS_ZP}")
            A(f"v_add3_u32 v{vZA}, v{vZA}, v{vA0}, s{sTMP2}")
            A(f"v_lshl_add_u32 v{vFW}, v{vG}, 4, v{vSR}")
            A(f"v_lshl_add_u32 v{vFW}, v{vXX}, 7, v{vFW}")
            A(f"s_lshl_b32 s{sTMP}, s{sWV}, 9")
            A(f"v_add_u32 v{vFW}, s{sTMP}, v{vFW}")
            A(f"v_lshlrev_b32 v{vOWA}, 5, v{vC}")
            A(f"v_lshl_add_u32 v{vOWA}, v{vG}, 4, v{vOWA}")
            A(f"v_add_u32 v{vOWA}, s{sTMP}, v{vOWA}")
            A(f"v_lshrrev_b32 v{vM}, 1, v{vG}")
            A(f"v_lshl_add_u32 v{vSA}, v{vM}, 5, v{vSR}")
            A(f"s_lshl_b32 s{sTMP}, s{sWV}, 2")
            A(f"v_add_u32 v{vSA}, s{sTMP}, v{vSA}")
            A(f"v_lshl_add_u32 v{vCA}, v{vB3}, 2, v{vB2}")
            A(f"v_lshl_add_u32 v{vTR}, v{vM}, 5, v{vCA}")
            A(f"v_and_b32 v{vM}, 1, v{vG}")
            A(f"v_lshl_add_u32 v{vTR}, v{vM}, 1, v{vTR}")
            A(f"v_lshlrev_b32 v{vTR}, 5, v{vTR}")
            A(f"v_lshl_add_u32 v{vTR}, v{vXX}, 3, v{vTR}")
            A(f"s_lshl_b32 s{sTMP}, s{sWV}, 11")
            A(f"v_add_u32 v{vTR}, s{sTMP}, v{vTR}")
            A(f"v_and_b32 v{vM}, 1, v{vL}")
            A(f"v_lshlrev_b32 v{vM}, 4, v{vM}")
            A(f"v_lshrrev_b32 v{vTb}, v{vM}, s{sT}")
            A(f"v_and_b32 v{vTa}, v{vFF}, v{vTb}")
            A(f"v_bfe_u32 v{vTb}, v{vTb}, 8, 8")
            for tau in range(4):
                A(f"v_cmp_eq_u32 vcc, {tau}, v{vXX}")
                nop(2)
                A(f"v_cndmask_b32 v{vMT+tau}, 0, -1, vcc")
            A(f"v_mov_b32 v{vONE}, 0x3f803f80")
            A(f"s_mov_b32 s{sU0}, 0x0f0f0f0f")
            A(f"s_mov_b32 s{sU0+1}, 0x0f0f0f0f")
            A(f"s_mov_b32 s{sU1}, 0x00ff00ff")
            A(f"s_mov_b32 s{sU1+1}, 0x00ff00ff")

        def small_finish():
            A(f"v_cmp_ne_u32 vcc, s{sXW}, v{vVAL}")
            A(f"v_lshlrev_b32 v{vXR}, 16, v{vXR+1}")
            A(f"v_and_b32 v{vXR+1}, 0xffff0000, v{vXR+1}")
            A(f"v_lshlrev_b32 v{vB1R}, 16, v{vB1R+1}")
            A(f"v_and_b32 v{vB1R+1}, 0xffff0000, v{vB1R+1}")
            A(f"v_lshlrev_b32 v{vB2R}, 16, v{vB2R}")
            A(f"s_cmp_eq_u64 vcc, 0")
            A(f"s_cselect_b32 s{sLOC}, {1 if local else 0}, 0")
            A(f"s_mul_i32 s{sTMP}, s{sR}, 3")
            A(f"s_sub_u32 s{sTMP}, 86, s{sTMP}")
            A(f"s_min_u32 s{sTMP}, s{sTMP}, 3")
            A(f"v_cmp_gt_u32 vcc, s{sTMP}, v{vG}")
            nop(2)
            A(f"v_cndmask_b32 v{vVAL}, 0, -1, vcc")

        def preread():
            n = "pw" + tagname
            if g0var:
                A(f"buffer_load_dword v{vDUM}, v{vZA}, s[{rWS}:{rWS+3}], 0 offen{prfl}")
                issue("pr")
            A(f"s_cmp_lg_u32 s{sWV}, 2")
            A(f"s_cbranch_scc1 L_{n}")
            A(f"s_lshl_b32 s{sTMP}, s{sID}, 9")
            A(f"s_add_u32 s{sTMP}, s{sTMP}, {WS_OP}")
            A(f"buffer_load_dword v{vDUM}, v{vL8}, s[{rWS}:{rWS+3}], s{sTMP} offen{prfl}")
            if g0var:
                A(f"s_lshl_b32 s{sTMP}, s{sR}, 10")
                A(f"s_add_u32 s{sTMP}, s{sTMP}, {WS_YP}")
                A(f"buffer_load_dword v{vDUM}, v{vL16}, s[{rWS}:{rWS+3}], s{sTMP} offen{prfl}")
            A(f"L_{n}:")

        def ffn_regs():
            A(f"v_lshl_add_u32 v{vA0}, v{vG}, 4, v{vCA}")
            A(f"v_and_b32 v{vA1}, 3, v{vL}")
            A(f"v_lshlrev_b32 v{vA1}, 3, v{vA1}")
            A(f"v_add_u32 v{vA1}, s{sD3}, v{vA1}")
            A(f"v_mad_u32_u24 v{vA2}, v{vA0}, 48, v{vA1}")
            A(f"v_mad_u32_u24 v{vA2}, v{vA0}, 48, v{vA2}")
            for tau in range(3):
                for u in range(2):
                    for e in range(2):
                        A(f"ds_read_b64_tr_b16 {vr(vW1+8*tau+4*u+2*e,2)}, v{vA2} offset:{L_W1 + (2*u+8*e)*96 + tau*32}")
            A(f"v_lshrrev_b32 v{vA0}, 2, v{vC}")
            A(f"v_lshl_add_u32 v{vA0}, v{vG}, 4, v{vA0}")
            A(f"v_lshl_add_u32 v{vA2}, v{vA0}, 7, v{vA1}")
            A(f"v_add_u32 v{vA2}, {L_W2}, v{vA2}")
            for tau in range(3):
                for k in range(4):
                    A(f"v_and_b32 v{vTMP+4*tau+k}, v{vONE}, v{vMT+tau}")
            A("s_waitcnt lgkmcnt(0)")
            for tau in range(4):
                for u in range(2):
                    for e in range(2):
                        A(f"ds_read_b64_tr_b16 {vr(vW2+8*tau+4*u+2*e,2)}, v{vA2} offset:{(8*u+4*e)*128 + tau*32}")
                if tau == 1:
                    for t3 in range(3):
                        for u in range(2):
                            mfma(vD0, vW1 + 8 * t3 + 4 * u, vTMP + 4 * t3, None if (t3 == 0 and u == 0) else vD0)
                    A("s_waitcnt lgkmcnt(0)")
            A("s_waitcnt lgkmcnt(0)")
            A(f"ds_write_b128 v{vFW}, {vr(vD0)} offset:{L_CS}")
            A("s_mov_b32 exec_lo, 0")
            A("s_mov_b32 exec_hi, 0xffff0000")
            for k in range(32):
                A(f"v_mov_b32 v{vW2+k}, 0")
            A("s_mov_b64 exec, -1")

        def ml_publish():
            n = "ml" + tagname
            A(f"s_cmp_lg_u32 s{sWV}, 0")
            A(f"s_cbranch_scc1 L_{n}_skip")
            m, l = vMLW, vMLW + 1
            A(f"v_and_b32 v{vA0}, 56, v{vL8}")
            A(f"s_mov_b32 s{sCNT}, 0x40000")
            A(f"L_{n}_spin:")
            A(f"ds_read_b64 {vr(m,2)}, v{vA0} offset:{L_ML}")
            A(f"s_sub_u32 s{sCNT}, s{sCNT}, 1")
            A(f"s_cbranch_scc1 L_{n}_go")
            A("s_waitcnt lgkmcnt(0)")
            A(f"v_cmp_eq_u32 vcc, -1, v{l}")
            A(f"s_cbranch_vccnz L_{n}_spin")
            A(f"L_{n}_go:")
            A("s_waitcnt lgkmcnt(0)")
            o = vMLG
            dpp("v_max_f32", o, m, m, X1)
            nop(2)
            dpp("v_max_f32", o, o, o, X2)
            nop(2)
            dpp("v_max_f32", o, o, o, HM)
            A(f"v_sub_f32 v{o+1}, v{m}, v{o}")
            A(f"v_mul_f32 v{o+1}, {hex(LOG2E)}, v{o+1}")
            A(f"v_exp_f32 v{o+1}, v{o+1}")
            A(f"v_mov_b32 v{o+2}, 0")
            A(f"v_mul_f32 v{o+1}, v{o+1}, v{l}")
            A(f"v_mov_b32 v{o+3}, 0")
            A(f"s_lshl_b32 s{sTMP}, s{sID}, 7")
            for ctl in (X1, X2, HM):
                dpp("v_add_f32", o + 1, o + 1, o + 1, ctl)
                nop(2)
            A(f"s_add_u32 s{sTMP}, s{sTMP}, {WS_ML}")
            tag4(o)
            A("s_mov_b64 exec, 0xff")
            A(f"s_cmp_eq_u32 s{sLOC}, 0" if mlloc else f"s_cmp_eq_u32 s{sLOC}, s{sLOC}")
            publish(n, f"buffer_store_dwordx4 {vr(o)}, v{vL16}, s[{rWS}:{rWS+3}], s{sTMP} offen")
            A("s_mov_b64 exec, -1")
            A(f"L_{n}_skip:")

        def ml_issue():
            A("s_mov_b64 exec, 0xff")
            A(f"buffer_load_dwordx4 {vr(vMLG)}, v{vHR}, s[{rWS}:{rWS+3}], s{sD2} offen sc1")
            A("s_mov_b64 exec, -1")

        def ml_gather():
            A(f"s_cmp_lg_u32 s{sWV}, 0")
            A(f"s_cbranch_scc1 L_mg{tagname}")
            A(f"v_and_b32 v{vHR}, 3, v{vL}")
            A(f"v_lshlrev_b32 v{vHR}, 7, v{vHR}")
            A(f"s_lshr_b32 s{sD2}, s{sID}, 2")
            A(f"s_lshl_b32 s{sD2}, s{sD2}, 9")
            A(f"s_add_u32 s{sD2}, s{sD2}, {WS_ML}")
            ml_issue()
            A(f"L_mg{tagname}:")

        def ml_finish():
            n = "mf" + tagname
            A(f"s_cmp_lg_u32 s{sWV}, 0")
            A(f"s_cbranch_scc1 L_{n}_skip")
            def chk():
                A("s_mov_b64 exec, 0xff")
                untag4([vMLG], vA0)
                A("s_mov_b64 exec, -1")
            poll_rare(n, ml_issue, chk)
            o = vMLG
            dpp("v_max_f32", o + 2, o, o, X1)
            nop(2)
            dpp("v_max_f32", o + 2, o + 2, o + 2, X2)
            A(f"v_sub_f32 v{o}, v{o}, v{o+2}")
            A(f"v_sub_f32 v{o+3}, v{vMLW}, v{o+2}")
            A(f"v_mul_f32 v{o}, {hex(LOG2E)}, v{o}")
            A(f"v_mul_f32 v{o+3}, {hex(LOG2E)}, v{o+3}")
            A(f"v_exp_f32 v{o}, v{o}")
            A(f"v_exp_f32 v{o+3}, v{o+3}")
            A(f"v_mul_f32 v{o+1}, v{o+1}, v{o}")
            nop(2)
            dpp("v_add_f32", o + 1, o + 1, o + 1, X1)
            nop(2)
            dpp("v_add_f32", o + 1, o + 1, o + 1, X2)
            A(f"v_rcp_f32 v{o+1}, v{o+1}")
            nop(1)
            A(f"v_mul_f32 v{o+3}, v{o+3}, v{o+1}")
            nop(2)
            for j in range(8):
                A(f"v_readlane_b32 s{sTMP}, v{o+3}, {j}")
                nop(2)
                A(f"v_mov_b32 v{vF+j}, s{sTMP}")
            A(f"L_{n}_skip:")

        if "comp" in strip:
            qk = lambda t: None
            soft_a = soft_b = soft_c = lambda: None
            pv_a = lambda t: None
            pv_m = lambda i: None
        if "qg" in strip:
            q_issue = q_finish = q_read = lambda: None
        if "ml" in strip:
            ml_publish = ml_finish = lambda: None
            ml_gather = lambda: None
        if "small" in strip:
            tail_setup = lambda: issue("small", 0)
            small_finish = lambda: A(f"s_mov_b32 s{sLOC}, 0")
            wo_dma = lambda: None
        todo = []
        todo.append((lambda: has(("K", pq + 1)), q_finish))
        todo.append((lambda: ("K", pq2) in pos, q_read))
        for t in range(8):
            todo.append((lambda t=t: has(("K", 4 * t + 3)), lambda t=t: qk(t)))
        todo.append((lambda: True, soft_a))
        todo.append((lambda: True, soft_b))
        todo.append((lambda: True, soft_c))
        todo.append((lambda: True, tail_setup))
        done_flags = set()
        pvdone = [0]

        def pv_tile(t):
            pv_a(t)
            for r in range(4):
                pv_m(4 * t + r)
            pvdone[0] = 4 * t + 4
        extra_after = {}
        for t in range(7):
            todo.append((lambda t=t: has(("V", 4 * t + 3)), lambda t=t: pv_tile(t)))
            if 4 * t + 4 == p1:
                todo.append((lambda: has("small"), small_finish))
                todo.append((lambda: True, ml_publish))
                if g0var:
                    todo.append((lambda: has(("ffn", 11)), ffn_regs))
            if 4 * t == p2:
                todo.append((lambda: has(("V", p2 + 1)), ml_finish))
        seq = [("K", i) for i in range(k0, 32)] + [("V", i) for i in range(32)]
        nf = 0
        if wopos == "start":
            wo_dma()
        if g0var:
            while nf < ffnburst:
                ffn_dma(nf)
                nf += 1
        for n, (kind, i) in enumerate(seq):
            d = depth[n % len(depth)]
            if kind == "V" and i >= NRING:
                while pvdone[0] <= i - NRING:
                    pred, emit = todo[0]
                    assert pred(), "ring too small"
                    todo.pop(0)
                    emit()
            if len(heavy) >= d:
                wait_for(heavy[-d])
            if kind == "K":
                kload(i)
            else:
                vload(i)
            issue((kind, i))
            heavy.append((kind, i))
            if kind == "K" and i == pq:
                q_issue()
            if g0var and kind == "K" and nf < 12 and i >= k0 + ffn0 and (i - k0 - ffn0) % ffnstep == 0:
                ffn_dma(nf)
                nf += 1
            if g0var and kind == "K" and i == 31:
                while nf < 12:
                    ffn_dma(nf)
                    nf += 1
            if kind == "V" and i == p2:
                assert "ml" in strip or all(e is not ml_publish for _, e in todo), "ml order"
                ml_gather()
            if kind == "V" and i in (8, 16, 24):
                stamp(f"_v{i}")
            if kind == "K" and i in (16, 24):
                stamp(f"_k{i}")
            gi = i if kind == "K" else 32 + i
            if wopos == "stag" and gi >= wo0 and (gi - wo0) % wostep == 0 and (gi - wo0) // wostep < 16:
                wo_site((gi - wo0) // wostep)
            if kind == "V" and i == wopf and wopf:
                wo_prefetch()
            if kind == "V" and i == prew and prew:
                preread()
            if kind == "V" and i == pf2 and pf:
                code_prefetch(vM, "L_tail", "L_tailend")
                issue("pf")
            if (kind == "V" and i == wopos) or (kind == "K" and i - 32 == wopos):
                assert not (g0var and 0 < nf < 12), "rT busy"
                wo_dma()
            if todo and todo[0][0]():
                todo.pop(0)[1]()
        while todo:
            pred, emit = todo.pop(0)
            while not pred():
                wait_n(len(ops) - landed[0] - 1)
            emit()
        pv_a(7)
        for i in range(28, 32):
            wait_for(("V", i))
            pv_m(i)
        return len(ops) - landed[0]

    A("L_s_even:")
    stream("e", de, False)
    A("L_tail:")
    A("s_mov_b32 exec_hi, 0")
    A(f"s_lshl_b32 s{sTMP}, s{sID}, 9")
    A(f"s_add_u32 s{sTMP}, s{sTMP}, {WS_OP}")
    A(f"s_cmp_lg_u32 s{sWV}, 0")
    nop(4)
    if "small" not in strip:
        A(f"ds_write_b128 v{vOWA}, {vr(vACC)} offset:{L_OW}")
    A("s_mov_b32 exec_hi, -1")
    A("s_waitcnt lgkmcnt(0)")
    stamp("_wend")
    A("s_barrier")
    if diag:
        stamp("strm")
        if "tail" in strip:
            A("s_branch L_fin")
        A(f"s_cmp_lg_u32 s{sWV}, 0")
    A("s_cbranch_scc1 L_nos0")
    for i in range(4):
        A(f"ds_read2st64_b64 {vr(g0+4*i)}, v{vL8} offset0:{L_OW//512 + 2*i} offset1:{L_OW//512 + 2*i+1}")
    A(f"s_cmp_eq_u32 s{sLOC}, 0")
    lo, hi = " op_sel_hi:[1,0]", " op_sel:[0,1]"
    lo3, hi3 = " op_sel_hi:[1,0,1]", " op_sel:[0,1,0]"
    A("s_waitcnt lgkmcnt(3)")
    pk("mul", g0, g0, vF, extra=lo)
    pk("mul", g0 + 2, g0 + 2, vF, extra=hi)
    for i in range(1, 4):
        A(f"s_waitcnt lgkmcnt({3-i})")
        pk("fma", g0, g0 + 4 * i, vF + 2 * i, g0, extra=lo3)
        pk("fma", g0 + 2, g0 + 4 * i + 2, vF + 2 * i, g0 + 2, extra=hi3)
    pk("add", vP, g0, g0 + 2)
    tag2(vP)

    publish("o", f"buffer_store_dwordx2 {vr(vP,2)}, v{vL8}, s[{rWS}:{rWS+3}], s{sTMP} offen")
    stamp("_opub")
    A("L_nos0:")

    A("s_waitcnt vmcnt(1)")
    A(f"s_cmp_lg_u32 s{sWV}, 0")
    A("s_cbranch_scc0 L_wo_rd")
    A("s_waitcnt vmcnt(0)")
    A("L_wo_rd:")
    if pbar:
        A("s_barrier")
    for u in range(2):
        for e in range(2):
            A(f"ds_read_b64_tr_b16 {vr(vWO+4*u+2*e,2)}, v{vTR} offset:{L_WO + u*512 + e*256}")

    def a_issue():
        for i in range(2):
            A(f"buffer_load_dwordx4 {vr(g0+4*i)}, v{vAA}, s[{rWS}:{rWS+3}], 0 offen offset:{128*i} sc1")
    pollm("a", a_issue, lambda: untag4([g0, g0 + 4], vT0))
    stamp("hopA")
    for e in range(4):
        A(f"v_permlane32_swap_b32 v{g0+e}, v{g0+4+e}")
    pk("add", g0, g0, g0 + 4)
    pk("add", g0 + 2, g0 + 2, g0 + 6)
    A(f"s_lshl_b32 s{sTMP}, s{sR}, 10")
    A(f"s_lshl_b32 s{sTMP2}, s{sGX}, 7")
    A(f"v_permlane16_swap_b32 v{g0}, v{g0+2}")
    A(f"v_permlane16_swap_b32 v{g0+1}, v{g0+3}")
    pk("add", g0, g0, g0 + 2)
    A(f"v_cvt_pk_bf16_f32 v{vP}, v{g0}, v{g0+1}")
    A("s_waitcnt lgkmcnt(0)")
    A(f"s_add_u32 s{sTMP}, s{sTMP}, s{sTMP2}")
    for k in range(4):
        dpp("v_mov_b32", vB + k, vP, None, f"quad_perm:[{k},{k},{k},{k}]")
    A(f"s_add_u32 s{sTMP}, s{sTMP}, {WS_YP}")
    A(f"s_cmp_eq_u32 s{sGX}, 0")
    mfma(vD1, vWO + 4, vB, None)
    mfma(vD0, vWO, vB, None)
    A(f"s_cselect_b32 s{sD1}, s{sLOC}, 0")
    A(f"s_cmp_lg_u32 s{sWV}, 0")
    nop(6)
    for k in range(4):
        dpp("v_add_f32", vD0 + k, vD1 + k, vD0 + k, "row_shl:4", 0x5)
    A(f"s_mov_b64 exec, s[{sU0}:{sU0+1}]")
    A(f"ds_write_b128 v{vYW}, {vr(vD0)} offset:{L_Y}")
    A("s_mov_b64 exec, -1")
    A("s_waitcnt lgkmcnt(0)")
    A("s_barrier")
    A("s_cbranch_scc1 L_noy")
    for i in range(4):
        A(f"ds_read_b128 {vr(g0+4*i)}, v{vYR} offset:{L_Y + i*128}")
    A(f"s_cmp_eq_u32 s{sD1}, 0")
    A("s_waitcnt lgkmcnt(2)")
    pk("add", g0, g0, g0 + 4)
    pk("add", g0 + 2, g0 + 2, g0 + 6)
    A("s_waitcnt lgkmcnt(0)")
    pk("add", g0 + 8, g0 + 8, g0 + 12)
    pk("add", g0 + 10, g0 + 10, g0 + 14)
    pk("add", g0, g0, g0 + 8)
    pk("add", g0 + 2, g0 + 2, g0 + 10)
    nop(1)
    for k in range(4):
        dpp("v_add_f32", vD0 + k, g0 + k, g0 + k, "row_ror:8")
    tag4(vD0)
    A("s_mov_b64 exec, 0xff")
    publish("y", f"buffer_store_dwordx4 {vr(vD0)}, v{vYR}, s[{rWS}:{rWS+3}], s{sTMP} offen")
    A("s_mov_b64 exec, -1")
    A("L_noy:")
    stamp("ypub")
    A(f"s_cmp_lg_u32 s{sGX}, 0")
    A("s_cbranch_scc1 L_fin")

    for i in range(4):
        A(f"ds_read2st64_b64 {vr(st+4*i)}, v{vFR} offset0:{L_CS//512 + 2*i} offset1:{L_CS//512 + 2*i+1}")
    A(f"s_lshl_b32 s{sTMP}, s{sWV}, 12")
    A(f"s_add_u32 s{sTMP}, s{sTMP}, {WS_YP}")
    if pbar:
        A("s_barrier")

    def b_issue():
        for i in range(4):
            A(f"buffer_load_dwordx4 {vr(g0+4*i)}, v{vL16}, s[{rWS}:{rWS+3}], s{sTMP} offen offset:{1024*i} sc1")
    b_issue()
    A("s_waitcnt lgkmcnt(0)")
    for i in range(4):
        pk("add", st + 4 * i, st + 4 * i, st + 4 * i + 2)
    pk("add", st, st, st + 4)
    pk("add", st + 8, st + 8, st + 12)
    pk("add", vCS, st, st + 8)
    A(f"s_mov_b32 s{sCNT}, 0x8000")
    A("s_branch L_b_chk")
    A("L_b_again:")
    A("s_mov_b64 exec, vcc")
    b_issue()
    A(f"s_sub_u32 s{sCNT}, s{sCNT}, 1")
    A("s_cbranch_scc1 L_b_ok")
    A("L_b_chk:")
    A("s_waitcnt vmcnt(0)")
    untag4([g0, g0 + 4, g0 + 8, g0 + 12], vT0)
    A("s_cbranch_vccnz L_b_again")
    A("L_b_ok:")
    A("s_mov_b64 exec, -1")
    stamp("hopB")
    note("_nb", sCNT)
    for e in range(8):
        A(f"v_permlane32_swap_b32 v{g0+e}, v{g0+8+e}")
    for e in (0, 4, 2, 6):
        pk("add", g0 + e, g0 + e, g0 + 8 + e)
    for e in range(4):
        if e == 2:
            pass
        A(f"v_permlane16_swap_b32 v{g0+e}, v{g0+4+e}")
    pk("add", g0, g0, g0 + 4)
    pk("add", g0 + 2, g0 + 2, g0 + 6)
    A(f"s_cmp_ge_u32 s{sR}, {NFFN}")
    dpp("v_add_f32", g0 + 4, g0, g0, "row_ror:8", 0x3)
    dpp("v_add_f32", g0 + 5, g0 + 1, g0 + 1, "row_ror:8", 0x3)
    dpp("v_add_f32", g0 + 4, g0 + 2, g0 + 2, "row_ror:8", 0xc)
    dpp("v_add_f32", g0 + 5, g0 + 3, g0 + 3, "row_ror:8", 0xc)
    round2(g0 + 4)
    pk("add", g0 + 4, g0 + 4, vXR)
    A(f"v_cvt_pk_bf16_f32 v{vP}, v{g0+4}, v{g0+5}")
    s0, s1 = vT0, vT1
    A(f"ds_write_b32 v{vHW}, v{vP} offset:{L_HS}")
    A("s_cbranch_scc1 L_noffn")
    A(f"v_dot2_f32_bf16 v{s0}, v{vP}, v{vONE}, 0")
    A(f"v_dot2_f32_bf16 v{s1}, v{vP}, v{vP}, 0")
    for k in range(4):
        dpp("v_and_b32", vBM + k, vP, vMT, f"quad_perm:[{k},{k},{k},{k}]")
    A(f"v_permlane32_swap_b32 v{s0}, v{s1}")
    A(f"v_add_f32 v{s0}, v{s0}, v{s1}")
    mfma(vD0, vW1, vBM, None)
    mfma(vD1, vW1 + 4, vBM, None)
    dpp("v_add_f32", s0, s0, s0, X1)
    for k in range(4):
        dpp("v_and_b32", vBM + 4 + k, vP, vMT + 1, f"quad_perm:[{k},{k},{k},{k}]")
    dpp("v_add_f32", s0, s0, s0, X2)
    dpp("v_and_b32", vBM + 8, vP, vMT + 2, "quad_perm:[0,0,0,0]")
    mfma(vD0, vW1 + 8, vBM + 4, vD0)
    mfma(vD1, vW1 + 12, vBM + 4, vD1)
    dpp("v_add_f32", s0, s0, s0, "row_ror:8")
    for k in range(1, 4):
        dpp("v_and_b32", vBM + 8 + k, vP, vMT + 2, f"quad_perm:[{k},{k},{k},{k}]")
    A(f"v_mov_b32 v{s1}, v{s0}")
    nop(1)
    mfma(vD1, vW1 + 20, vBM + 8, vD1)
    mfma(vD0, vW1 + 16, vBM + 8, vD0)
    A(f"v_permlane16_swap_b32 v{s0}, v{s1}")
    A(f"v_add_f32 v{s0}, v{s0}, v{s1}")
    A(f"ds_write_b32 v{vSA}, v{s0} offset:{L_ST}")
    nop(5)
    for k in range(4):
        dpp("v_add_f32", vD0 + k, vD1 + k, vD0 + k, "row_ror:8")
    A(f"s_mov_b64 exec, s[{sU1}:{sU1+1}]")
    A(f"ds_write_b128 v{vFW}, {vr(vD0)} offset:{L_F1}")
    A("s_mov_b64 exec, -1")
    A("s_waitcnt lgkmcnt(0)")
    stamp("_f1")
    A("s_barrier")
    stamp("_f1b")
    for i in range(4):
        A(f"ds_read_b128 {vr(st+4*i)}, v{vSR} offset:{L_ST + 16*i}")
    for i in range(4):
        A(f"ds_read2st64_b64 {vr(g0+4*i)}, v{vFR} offset0:{L_F1//512 + 2*i} offset1:{L_F1//512 + 2*i+1}")
    A(f"s_cmp_eq_u32 s{sLOC}, 0" if not farz else f"s_cmp_eq_u32 s{sLOC}, s{sLOC}")
    A("s_waitcnt lgkmcnt(6)")
    pk("add", st, st, st + 2)
    pk("add", st + 4, st + 4, st + 6)
    A("s_waitcnt lgkmcnt(4)")
    pk("add", st + 8, st + 8, st + 10)
    pk("add", st + 12, st + 12, st + 14)
    pk("add", st, st, st + 4)
    pk("add", st + 8, st + 8, st + 12)
    A(f"v_add_f32 v{s0}, v{st}, v{st+1}")
    A(f"v_add_f32 v{s1}, v{st+8}, v{st+9}")
    ln_stats(s0, s1)
    A("s_waitcnt lgkmcnt(0)")
    sum8(g0)
    pk("fma", g0, vCS, s0, g0, extra=" op_sel_hi:[1,0,1] neg_lo:[0,1,0] neg_hi:[0,1,0]")
    pk("mul", g0, g0, s0, extra=hi)
    round2(g0)
    pk("add", g0, g0, vB1R)
    round2(g0)
    A(f"v_max_f32 v{g0}, 0, v{g0}")
    A(f"v_max_f32 v{g0+1}, 0, v{g0+1}")
    pk("mul", g0, g0, g0)
    A(f"v_cvt_pk_bf16_f32 v{vP}, v{g0}, v{g0+1}")
    A(f"v_and_b32 v{vP}, v{vVAL}, v{vP}")
    nop(2)
    for tau in range(4):
        for k in range(4):
            dpp("v_and_b32", vBM + 4 * tau + k, vP, vMT + tau, f"quad_perm:[{k},{k},{k},{k}]")
        if tau > 0:
            mfma(vD1, vW2 + 8 * (tau - 1) + 4, vBM + 4 * (tau - 1), None if tau == 1 else vD1)
            mfma(vD0, vW2 + 8 * (tau - 1), vBM + 4 * (tau - 1), None if tau == 1 else vD0)
    mfma(vD1, vW2 + 28, vBM + 12, vD1)
    mfma(vD0, vW2 + 24, vBM + 12, vD0)
    nop(8)
    for k in range(4):
        dpp("v_add_f32", vD0 + k, vD1 + k, vD0 + k, "row_ror:8")
    tag4(vD0)
    A(f"s_mov_b64 exec, s[{sU1}:{sU1+1}]")
    publish("z", f"buffer_store_dwordx4 {vr(vD0)}, v{vZA}, s[{rWS}:{rWS+3}], 0 offen")
    A("s_mov_b64 exec, -1")
    A("L_final:")
    stamp("zpub")

    def noffn():
        A("L_noffn:")
        A("s_waitcnt lgkmcnt(0)")
        A("s_barrier")
        A("s_branch L_final")
    cold.append(noffn)
    A(f"s_mul_i32 s{sTMP}, s{sR}, {ZSTR}")
    A(f"s_add_u32 s{sTMP}, s{sTMP}, {WS_ZP}")
    A(f"s_cmp_lg_u32 s{sWV}, {fw}")
    if pbar:
        A("s_barrier")
    A("s_cbranch_scc1 L_fin")
    A(f"ds_read_u16 v{vXR}, v{vFC} offset:{L_HS}")
    stamp("_c0")

    def c_issue():
        for t in range(3):
            A(f"buffer_load_dwordx4 {vr(g0+4*t)}, v{vL16}, s[{rWS}:{rWS+3}], s{sTMP} offen offset:{1024*t}{cld}")
        for k in range(4):
            A(f"v_mov_b32 v{g0+12+k}, s{Tk[k]}")
        A("s_and_b32 exec_hi, exec_hi, 0xff")
        A("s_cbranch_execz L_c_skip")
        A(f"buffer_load_dwordx4 {vr(g0+12)}, v{vL16}, s[{rWS}:{rWS+3}], s{sTMP} offen offset:3072{cld}")
        A("L_c_skip:")
        A("s_mov_b64 exec, vcc")
    pollm("c", c_issue, lambda: untag4([g0, g0 + 4, g0 + 8, g0 + 12], vT0))
    stamp("hopC")
    note("_nc", sCNT)
    for i in range(0, 8, 2):
        pk("add", g0 + i, g0 + i, g0 + 8 + i)
    pk("add", g0, g0, g0 + 4)
    pk("add", g0 + 2, g0 + 2, g0 + 6)
    A("s_waitcnt lgkmcnt(0)")
    A(f"v_lshlrev_b32 v{vXR}, 16, v{vXR}")
    A(f"v_permlane32_swap_b32 v{g0}, v{g0+2}")
    A(f"v_permlane32_swap_b32 v{g0+1}, v{g0+3}")
    pk("add", g0, g0, g0 + 2)
    nop(2)
    A(f"v_permlane16_swap_b32 v{g0}, v{g0+1}")
    A(f"v_add_f32 v{g0}, v{g0}, v{g0+1}")
    nop(2)
    dpp("v_add_f32", g0, g0, g0, "row_ror:8")
    round1(g0)
    A(f"v_add_f32 v{g0}, v{g0}, v{vB2R}")
    round1(g0)
    A(f"v_add_f32 v{g0}, v{g0}, v{vXR}")
    A(f"v_cvt_pk_bf16_f32 v{g0}, v{g0}, v{g0}")
    A("s_mov_b32 exec_lo, 0x00ff00ff")
    A("s_mov_b32 exec_hi, 0x00ff00ff")
    A(f"global_store_short v{vFC}, v{g0}, s[{sOUT}:{sOUT+1}]")
    A(f"s_cmp_lg_u32 s{sR}, 0")
    A("s_cbranch_scc1 L_fin")
    A("s_mov_b64 exec, 1")
    A(f"v_mov_b32 v{vA1}, s{sT}")
    A(f"buffer_store_dword v{vA1}, v{vL8}, s[{rWS}:{rWS+3}], 0 offen offset:{WS_E}")
    if minT:
        A("L_spin:")
        A("s_memrealtime s[98:99]")
        A("s_waitcnt lgkmcnt(0)")
        A("s_sub_u32 s98, s98, s100")
        A(f"s_cmp_lt_u32 s98, {minT*100}")
        A("s_cbranch_scc1 L_spin")
    A("L_fin:")
    if diag:
        A("s_mov_b64 exec, -1")
        A("s_waitcnt vmcnt(0)")
        stamp("end")
        for _ in range(4):
            A("s_sleep 127")
        A(f"s_mov_b32 s{sST+13}, s{sXCC}")
        A(f"s_mov_b32 s{sST+12}, s{sLOC}")
        for i in range(14):
            A(f"v_mov_b32 v{vK+i}, s{sST+i}")
        A(f"s_lshl_b32 s{sTMP}, s2, 3")
        A(f"s_add_u32 s{sTMP}, s{sTMP}, s{sWV}")
        A(f"s_lshl_b32 s{sTMP}, s{sTMP}, 6")
        A(f"s_add_u32 s{sTMP}, s{sTMP}, {WS_DIAG}")
        A(f"v_mov_b32 v{vA0}, 0")
        A("s_mov_b64 exec, 1")
        for i in range(4):
            A(f"buffer_store_dwordx4 {vr(vK+4*i)}, v{vA0}, s[{rWS}:{rWS+3}], s{sTMP} offen offset:{16*i}")
    A("s_endpgm")
    A("L_tailend:")

    if de != do:
        A("L_s_odd:")
        stream("o", do, False)
        A("s_branch L_tail")
    A("L_s_g0:")
    stream("g", d0, True)
    A("s_branch L_tail")

    A("L_qwave:")
    vXS, vXA, vW = vTMP, vTMP + 8, vV
    vY, vAB = vV + 64, vK + 64
    assert k0 <= 16
    A(f"v_lshrrev_b32 v{vA0}, 3, v{vC}")
    A(f"v_lshlrev_b32 v{vA0}, 10, v{vA0}")
    A(f"v_and_b32 v{vA1}, 7, v{vC}")
    A(f"v_lshl_add_u32 v{vA1}, v{vG}, 3, v{vA1}")
    A(f"v_lshl_add_u32 v{vA1}, v{vA1}, 5, v{vA0}")
    A(f"v_lshl_add_u32 v{vA0}, v{vG}, 5, v{vA0}")
    A(f"s_lshl_b32 s{sTMP}, s{sS}, 7")
    A(f"v_add_u32 v{vA0}, s{sTMP}, v{vA0}")
    A(f"global_load_dwordx4 {vr(vXS)}, v{vA1}, s[{sX}:{sX+1}]")
    A(f"global_load_dwordx4 {vr(vXS+4)}, v{vA1}, s[{sX}:{sX+1}] offset:16")
    A(f"global_load_dwordx4 {vr(vXA)}, v{vA0}, s[{sX}:{sX+1}]")
    A(f"global_load_dwordx4 {vr(vXA+4)}, v{vA0}, s[{sX}:{sX+1}] offset:16")
    srd(rT, sWQ, 0 if noqw else 0x400000)
    A(f"s_lshl_b32 s{sTMP}, s{sS}, 19")
    A(f"s_lshl_b32 s{sTMP2}, s{sH}, 8")
    A(f"s_add_u32 s{sTMP}, s{sTMP}, s{sTMP2}")
    A(f"v_lshlrev_b32 v{vA2}, 17, v{vG}")
    A(f"v_lshl_add_u32 v{vA2}, v{vC}, 4, v{vA2}")
    for j in range(16):
        A(f"buffer_load_dwordx4 {vr(vW+4*j)}, v{vA2}, s[{rT}:{rT+3}], s{sTMP} offen{wqfl}")
        if j < 15:
            A(f"s_add_u32 s{sTMP}, s{sTMP}, 8192")
    A(f"v_lshlrev_b32 v{vA0}, 2, v{vC}")
    A(f"v_mov_b32 v{vA1}, -1")
    A(f"ds_write_b32 v{vA0}, v{vA1} offset:{L_ML}")
    A(f"v_lshlrev_b32 v{vA0}, 2, v{vL}")
    A(f"ds_write_b32 v{vA0}, v{vA1} offset:{L_Q}")
    A("s_waitcnt lgkmcnt(0)")
    common_setup()
    for i in range(k0):
        kload(i)
    A("s_barrier")
    make_masks()
    A(f"v_mov_b32 v{vA0}, 0x3f803f80")
    A(f"s_waitcnt vmcnt({18+k0})")
    s0, s1 = vT0, vT1
    for i in range(8):
        A(f"v_dot2_f32_bf16 v{s0}, v{vXS+i}, v{vA0}, " + ("0" if i == 0 else f"v{s0}"))
        A(f"v_dot2_f32_bf16 v{s1}, v{vXS+i}, v{vXS+i}, " + ("0" if i == 0 else f"v{s1}"))
    nop(3)
    for ctl in (X1, X2, HM):
        dpp("v_add_f32", s0, s0, s0, ctl)
        dpp("v_add_f32", s1, s1, s1, ctl)
        nop(1)
    for sw in ("v_permlane16_swap_b32", "v_permlane32_swap_b32"):
        A(f"v_mov_b32 v{vA0}, v{s0}")
        A(f"v_mov_b32 v{vA1}, v{s1}")
        nop(2)
        A(f"{sw} v{s0}, v{vA0}")
        A(f"{sw} v{s1}, v{vA1}")
        A(f"v_add_f32 v{s0}, v{s0}, v{vA0}")
        A(f"v_add_f32 v{s1}, v{s1}, v{vA1}")
    ln_stats(s0, s1)
    A(f"s_waitcnt vmcnt({16+k0})")
    unpack(vY, vXA, 8)
    for i in range(0, 16, 2):
        pk("add", vY + i, vY + i, s0, extra=" op_sel_hi:[1,0] neg_lo:[0,1] neg_hi:[0,1]")
    round_bf16([vY + i for i in range(16)], vXS)
    for i in range(0, 16, 2):
        pk("mul", vY + i, vY + i, s0, extra=" op_sel:[0,1]")
    for i in range(16):
        A(f"v_cvt_pk_bf16_f32 v{vY+i}, v{vY+i}, v{vY+i}")
    for j in range(16):
        for k in range(4):
            A(f"v_and_b32 v{vAB+4*j+k}, v{vMK+k}, v{vY+j}")
    epoch()
    for j in range(16):
        A(f"s_waitcnt vmcnt({15-j+k0})")
        mfma(vACC, vAB + 4 * j, vW + 4 * j, None if j == 0 else vACC)
    A(f"v_lshrrev_b32 v{vA0}, 5, v{vL}")
    A(f"v_lshlrev_b32 v{vA0}, 12, v{vA0}")
    A(f"v_and_b32 v{vA1}, 31, v{vL}")
    A(f"v_lshl_add_u32 v{vA0}, v{vA1}, 4, v{vA0}")
    A(f"s_lshl_b32 s{sTMP}, s{sH}, 13")
    A(f"s_lshl_b32 s{sTMP2}, s{sS}, 9")
    A(f"s_add_u32 s{sTMP}, s{sTMP}, s{sTMP2}")
    A(f"s_add_u32 s{sTMP}, s{sTMP}, {WS_QP}")
    A(f"s_lshl_b32 s{sTMP2}, s{sID}, 2")
    A(f"s_add_u32 s{sTMP2}, s{sTMP2}, {WS_XC}")
    A(f"v_mov_b32 v{vA1}, s{sXW}")
    A(f"v_mov_b32 v{vA2}, 0")
    tag4(vACC)
    A(f"buffer_store_dwordx4 {vr(vACC)}, v{vA0}, s[{rWS}:{rWS+3}], s{sTMP} offen{qst}")
    A("s_mov_b64 exec, 1")
    A(f"buffer_store_dword v{vA1}, v{vA2}, s[{rWS}:{rWS+3}], s{sTMP2} offen sc1")
    A("s_mov_b64 exec, -1")
    if wopos in ("first", "second"):
        wo_dma0()
    stamp("qpub")
    A("s_branch L_join")

    for c in cold:
        c()
    A("L_end:")
    A("s_endpgm")
    L.append('.section .rodata,"a"')
    L.append(".p2align 6")
    L.append(f".amdhsa_kernel {NAME}_kernel")
    L.append("  .amdhsa_next_free_vgpr 256")
    L.append("  .amdhsa_next_free_sgpr 102")
    L.append("  .amdhsa_accum_offset 256")
    L.append("  .amdhsa_group_segment_fixed_size 0")
    L.append("  .amdhsa_kernarg_size 104")
    L.append("  .amdhsa_user_sgpr_count 2")
    L.append("  .amdhsa_user_sgpr_kernarg_segment_ptr 1")
    L.append("  .amdhsa_system_sgpr_workgroup_id_x 1")
    L.append("  .amdhsa_float_denorm_mode_32 3")
    L.append(".end_amdhsa_kernel")
    src = "\n".join(L) + "\n"
    return src, stamps


if __name__ == "__main__":
    header = open("cdna_kernels/" + NAME + ".s.ref").read().split("; Override launch")[0]
    kw = eval("dict(" + (sys.argv[2] if len(sys.argv) > 2 else "") + ")")
    src, _ = gen(**kw)
    open(sys.argv[1], "w").write(header + src)
```

```python
import sys
NAME = "sequential_preLN__mha_block_cached__dense_activation_squared_relu__decode"

WS_E = 0
WS_XC = 0x1000
WS_YP = 0x2000
WS_QP = 0x40000
WS_OP = 0x80000
WS_ZP = 0xB0000
ZSTR = 3200
WS_ML = 0xA0000
WS_DIAG = 0x100000
WS_SIZE = 0x200000
OOB = 0x40000000
L_OW = 0
L_F1 = 4096
L_CS = 8192
L_HS = 12288
L_ML = L_HS + 2048
L_ST = L_ML + 64
L_Q = L_ST + 192
L_WA = 16384
L_WB = L_WA + 65536
LDS_BYTES = L_WB + 65536
assert L_Q + 256 <= L_WA and L_Q % 16 == 0

LOG2E = 0x3fb8aa3b
SCALE = 0x3db504f3
EPS = 0x3727c5ac
NF = 22
NW0 = 22


def gen(diag=False, only=None, local=True, minT=0, strip=(), now=(),
        dn=3, dw=3, df=4, k0=8, k1=4, pq=18, pq2=25, qw=1, sw=3, fw=7,
        p1=8, p2=20, prew=22, pf=1, pf2=20, fg=2,
        w0=2, wstep=6, f0=1, fstep=3, late=6, wsub=1, mx=None, dum=2, rot=(1, 0), fill=1, pfa=0, pfb=0, rsq=0, yw=0, pipe=0, sb=0, sbn=0, sa=0, lov=0, yp=WS_YP, ysh=15, minX=None, fheavy=1, wheavy=0,
        boost=(0, 0, 0, 0, 0, 0, 0, 0), bpos=8, mn=(0, 0), mw=(0, 0), mf=0, m3=0xffffffffffffffff, masks=1,
        kvfl=" nt", wfl="", wqfl="", sleep=0):
    L = []

    def A(s):
        L.append("    " + s if not s.endswith(":") else s)

    def nop(n):
        if n > 0:
            A(f"s_nop {n-1}")

    def vr(a, n=4):
        return f"v[{a}:{a+n-1}]"

    sU1 = 4
    sDM = 6
    sX, sK, sV, sWQ, sWO, sW1, sB1, sW2, sB2, sOUT, sWS = 8, 10, 12, 14, 16, 20, 22, 24, 26, 28, 32
    sPC = 34
    rK, rV, rWS, rT = 36, 40, 44, 48
    sGX, sR, sH, sS, sB, sWV = 52, 53, 54, 55, 56, 57
    sT, sT0, sT1, sT2, sT3 = 58, 59, 60, 61, 62
    sLOC, sCNT, sTMP, sTMP2, sXW = 63, 64, 65, 66, 67
    sTILE = 68
    sID = 76
    sXCC = 77
    sU0 = 78
    sD1, sD2, sD3 = 80, 81, 82
    sQO, sCB, sML = 83, 84, 85
    sEX = 86
    sOOB = 3
    sST = 88
    rB = 96
    Tk = [sT0, sT1, sT2, sT3]

    vL, vG, vC = 1, 2, 3
    vKV = 4
    vA0, vA1, vA2 = 5, 6, 7
    vQ = 8
    vMK = 12
    vACC = 16
    vS = 20
    vFF = 28
    vM = 29
    vT0, vT1 = 30, 31
    vTMP = 32
    vK = 48
    vV = 176
    NRING = 20
    vDA = 0
    vW1 = vK
    vW2 = vK + 32
    vF = vK + 64
    vMT = vK + 72
    vXR = vK + 76
    vB1R = vK + 78
    vCS = vK + 80
    vTa, vTb = vK + 82, vK + 83
    vB2R = vK + 84
    vL8 = vK + 85
    vAA = vK + 86
    vYR = vK + 88
    vFW = vK + 89
    vSA = vK + 90
    vSR = vK + 91
    vZA = vK + 92
    vFC = vK + 93
    vMLA = vK + 94
    vRHO = vK + 95
    vONE = vK + 96
    vVAL = vK + 97
    vOWA = vK + 98
    vDUM = vK + 99
    vMLG = vK + 100
    vMLW = vK + 104
    vG16 = vK + 106
    vHW = vK + 107
    vD0, vD1 = vK + 108, vK + 112
    vP = vK + 116
    vL16 = vK + 118
    vFR = vK + 119
    vMLS = vK + 87
    vD2, vD3 = vK + 120, vK + 124
    vTG = vK + 100
    vBA = vK + 104
    vYS = vK + 105
    g0 = vTMP
    vBM = 8
    vW2b = vV
    gA, gB = vV + 32, vV + 48
    st = vV + 64

    stamps = []

    def stamp(name):
        if not diag:
            return
        if only is not None and name not in only and name not in ("strm", "end"):
            return
        if only is None and name.startswith("_"):
            return
        if name not in stamps:
            stamps.append(name)
        i = stamps.index(name)
        assert i < 12
        A(f"s_memrealtime s[{sEX+0}:{sEX+1}]")
        A("s_waitcnt lgkmcnt(0)")
        A(f"v_writelane_b32 v{vK+127}, s{sEX}, {i}") if False else A(f"s_mov_b32 s{dslot(i)}, s{sEX}")

    def dslot(i):
        return ([88 + k for k in range(8)] + [100, 101, 18, 19])[i]

    def srd(r, p, size):
        A(f"s_mov_b32 s{r}, s{p}")
        A(f"s_mov_b32 s{r+1}, s{p+1}")
        A(f"s_mov_b32 s{r+2}, {size}")
        A(f"s_mov_b32 s{r+3}, 0x20000")

    def tag4(base):
        for k in range(4):
            A(f"v_bfi_b32 v{base+k}, v{vFF}, s{Tk[k]}, v{base+k}")

    def tag2(base):
        A(f"v_bfi_b32 v{base}, v{vFF}, v{vTa}, v{base}")
        A(f"v_bfi_b32 v{base+1}, v{vFF}, v{vTb}, v{base+1}")

    def filler(n):
        if fill:
            for i in range(n):
                A(f"v_mov_b32 v{vM}, v{vFF}")
        else:
            nop(n)

    def warm(n):
        if fill:
            filler(n)

    def untag4(regs, acc, vt=False, src=None):
        for j, b in enumerate(regs):
            for k in range(4):
                t = f"v{vTG+k}" if vt else f"s{Tk[k]}"
                A(f"v_xor_b32 v{b+k}, {t}, v{(b if src is None else src[j])+k}")
        flat = [b + k for b in regs for k in range(4)]
        A(f"v_or3_b32 v{acc}, v{flat[0]}, v{flat[1]}, v{flat[2]}")
        rest = flat[3:]
        while len(rest) >= 2:
            A(f"v_or3_b32 v{acc}, v{acc}, v{rest[0]}, v{rest[1]}")
            rest = rest[2:]
        if rest:
            A(f"v_or_b32 v{acc}, v{acc}, v{rest[0]}")
        A(f"v_cmp_ne_u32_sdwa vcc, v{acc}, 0 src0_sel:BYTE_0 src1_sel:DWORD")

    cold = []
    near = []

    def poll_rare(name, issue, untag):
        A(f"s_mov_b32 s{sCNT}, 0x4000")
        A(f"L_{name}_chk:")
        untag()
        A(f"s_cbranch_vccnz L_{name}_again")
        A(f"L_{name}_ok:")

        def retry():
            A(f"L_{name}_again:")
            A(f"s_sub_u32 s{sCNT}, s{sCNT}, 1")
            A(f"s_cbranch_scc1 L_{name}_ok")
            A("s_sleep 2")
            issue()
            A("s_waitcnt vmcnt(0)")
            A(f"s_branch L_{name}_chk")
        cold.append(retry)

    def pollm(name, issue, n, nfill=0):
        regs = [g0 + 4 * i for i in range(n)]
        A(f"s_mov_b32 s{sCNT}, 0x8000")
        A("s_mov_b64 vcc, -1")
        if not (pipe and name in "ab"):
            A(f"L_{name}_again:")
            A("s_mov_b64 exec, vcc")
            issue(g0)
            A(f"s_sub_u32 s{sCNT}, s{sCNT}, 1")
            A(f"s_cbranch_scc1 L_{name}_ok")
            warm(nfill)
            A(f"L_{name}_chk:")
            A("s_waitcnt vmcnt(0)")
            untag4(regs, vT0, vt=True)
            sl = {"a": sa, "b": sb}.get(name, 0)
            if sl or (name == "b" and sbn):
                A(f"s_cbranch_vccnz L_{name}_nap")

                def nap():
                    A(f"L_{name}_nap:")
                    if sl:
                        A(f"s_sleep {sl}")
                    if name == "b" and sbn:
                        A(f"s_cmp_lt_u32 s{sR}, {NF}")
                        A(f"s_cbranch_scc1 L_{name}_again")
                        A(f"s_sleep {sbn}")
                    A(f"s_branch L_{name}_again")
                near.append(nap)
            else:
                A(f"s_cbranch_vccnz L_{name}_again")
        else:
            issue(gA)
            A(f"L_{name}_again:")
            A("s_mov_b64 exec, vcc")
            issue(gB)
            A(f"s_sub_u32 s{sCNT}, s{sCNT}, 1")
            A(f"s_cbranch_scc1 L_{name}_ok")
            A(f"s_waitcnt vmcnt({n})")
            untag4(regs, vT0, vt=True, src=[gA + 4 * i for i in range(n)])
            A(f"s_cbranch_vccz L_{name}_ok")
            A("s_mov_b64 exec, vcc")
            issue(gA)
            A(f"s_waitcnt vmcnt({n})")
            untag4(regs, vT0, vt=True, src=[gB + 4 * i for i in range(n)])
            A(f"s_cbranch_vccnz L_{name}_again")
        A(f"L_{name}_ok:")
        A("s_mov_b64 exec, -1")

    def publish(name, *lines, farfirst=False):
        A(f"s_cbranch_scc{0 if farfirst else 1} L_{name}_alt")
        for line in lines:
            A(line + (" sc1" if farfirst else ""))
        A(f"s_branch L_{name}_pub")
        A(f"L_{name}_alt:")
        for line in lines:
            A(line + ("" if farfirst else " sc1"))
        A(f"L_{name}_pub:")

    def dpp(op, d, s0, s1, ctl, bank=0xf, row=0xf):
        if s1 is None:
            A(f"{op}_dpp v{d}, v{s0} {ctl} row_mask:{hex(row)} bank_mask:{hex(bank)}")
        else:
            A(f"{op}_dpp v{d}, v{s0}, v{s1} {ctl} row_mask:{hex(row)} bank_mask:{hex(bank)}")

    X1, X2, HM = "quad_perm:[1,0,3,2]", "quad_perm:[2,3,0,1]", "row_half_mirror"

    def qb(k):
        return f"quad_perm:[{k},{k},{k},{k}]"

    def round_bf16(regs, tmp):
        for i in range(0, len(regs), 2):
            A(f"v_cvt_pk_bf16_f32 v{tmp+i//2}, v{regs[i]}, v{regs[i+1]}")
        for i in range(0, len(regs), 2):
            A(f"v_lshlrev_b32 v{regs[i]}, 16, v{tmp+i//2}")
            A(f"v_and_b32 v{regs[i+1]}, 0xffff0000, v{tmp+i//2}")

    def round2(r):
        A(f"v_cvt_pk_bf16_f32 v{r+1}, v{r}, v{r+1}")
        A(f"v_lshlrev_b32 v{r}, 16, v{r+1}")
        A(f"v_and_b32 v{r+1}, 0xffff0000, v{r+1}")

    def round1(r):
        A(f"v_cvt_pk_bf16_f32 v{r}, v{r}, v{r}")
        A(f"v_lshlrev_b32 v{r}, 16, v{r}")

    def unpack(dst, src, n):
        for i in range(n):
            A(f"v_lshlrev_b32 v{dst+2*i}, 16, v{src+i}")
            A(f"v_and_b32 v{dst+2*i+1}, 0xffff0000, v{src+i}")

    def pk(op, d, a, b, c=None, extra=""):
        if c is None:
            A(f"v_pk_{op}_f32 {vr(d,2)}, {vr(a,2)}, {vr(b,2)}{extra}")
        else:
            A(f"v_pk_{op}_f32 {vr(d,2)}, {vr(a,2)}, {vr(b,2)}, {vr(c,2)}{extra}")

    def sum8(g, out=None):
        for i in range(4):
            pk("add", g + 4 * i, g + 4 * i, g + 4 * i + 2)
        pk("add", g, g, g + 4)
        pk("add", g + 8, g + 8, g + 12)
        pk("add", g if out is None else out, g, g + 8)

    def ln_stats(vsum, vsq):
        A(f"v_mul_f32 v{vsum}, 0x3b000000, v{vsum}")
        A(f"v_mul_f32 v{vsq}, 0x3b000000, v{vsq}")
        A(f"v_fma_f32 v{vsq}, -v{vsum}, v{vsum}, v{vsq}")
        A(f"v_max_f32 v{vsq}, 0, v{vsq}")
        A(f"v_cvt_pk_bf16_f32 v{vsq}, v{vsum}, v{vsq}")
        A(f"v_lshlrev_b32 v{vsum}, 16, v{vsq}")
        A(f"v_and_b32 v{vsq}, 0xffff0000, v{vsq}")
        A(f"v_add_f32 v{vsq}, {hex(EPS)}, v{vsq}")
        round1(vsq)
        A(f"v_sqrt_f32 v{vsq}, v{vsq}")
        nop(1)
        round1(vsq)
        A(f"v_rcp_f32 v{vsq}, v{vsq}")
        nop(1)

    def mfma(d, a, b, c):
        A(f"v_mfma_f32_16x16x32_bf16 {vr(d)}, {vr(a)}, {vr(b)}, " + ("0" if c is None else vr(c)))

    def matvec64(blocks, extra=()):
        extra = list(extra)

        def f():
            if extra:
                extra.pop(0)()

        def ands(tau, ks):
            for k in ks:
                dpp("v_and_b32", vBM + 4 * tau + k, vP, vMT + tau, qb(k))
        ands(0, range(4))
        f()
        ands(1, range(2))
        for tau in range(4):
            for bi, (w, d0, d1) in enumerate(blocks):
                mfma(d1, w + 8 * tau + 4, vBM + 4 * tau, None if tau == 0 else d1)
                if bi == 0 and tau < 3:
                    ands(tau + 1, range(2, 4))
                    f()
                mfma(d0, w + 8 * tau, vBM + 4 * tau, None if tau == 0 else d0)
                if bi == 0 and tau < 2:
                    ands(tau + 2, range(2))
                if bi == 0 and tau < 3:
                    had = bool(extra)
                    f()
                    if tau == 2 and len(blocks) == 1 and not had:
                        filler(1)
        assert not extra

    def kload(i):
        t, j = divmod(i, 4)
        A(f"buffer_load_dwordx4 {vr(vK+4*i)}, v{vKV}, s[{rK}:{rK+3}], s{sTILE+t} offen offset:{j*1024}{kvfl}")

    def vreg(i):
        return vV + 4 * (i % NRING)

    def vload(i):
        t, j = divmod(i, 4)
        A(f"buffer_load_dwordx4 {vr(vreg(i))}, v{vKV}, s[{rV}:{rV+3}], s{sTILE+t} offen offset:{j*1024}{kvfl}")

    def make_masks():
        A(f"v_and_b32 v{vA0}, 1, v{vL}")
        A(f"v_lshlrev_b32 v{vA0}, 4, v{vA0}")
        A(f"v_mov_b32 v{vA1}, 0xffff")
        A(f"v_lshlrev_b32 v{vA1}, v{vA0}, v{vA1}")
        A(f"v_bfe_u32 v{vA0}, v{vL}, 1, 2")
        for j in range(4):
            A(f"v_cmp_eq_u32 vcc, {j}, v{vA0}")
            nop(2)
            A(f"v_cndmask_b32 v{vMK+j}, 0, v{vA1}, vcc")

    def epoch():
        A("s_waitcnt lgkmcnt(0)")
        A(f"s_add_u32 s{sT}, s{sT}, 0x01010101")
        A(f"s_and_b32 s{sT0}, s{sT}, 0xff")
        A(f"s_bfe_u32 s{sT1}, s{sT}, 0x80008")
        A(f"s_bfe_u32 s{sT2}, s{sT}, 0x80010")
        A(f"s_lshr_b32 s{sT3}, s{sT}, 24")
        A(f"s_lshl_b32 s{sXW}, s{sXCC}, 28")
        A(f"s_add_u32 s{sXW}, s{sXW}, s{sT}")

    def code_prefetch(dst, first, last, lanes):
        A(f"v_lshlrev_b32 v{dst}, 5, v{vL}")
        A(f"v_add_u32 v{dst}, s{sR}, v{dst}")
        A(f"v_lshlrev_b32 v{dst}, 7, v{dst}")
        A(f"v_add_u32 v{dst}, {first} - L_pc, v{dst}")
        A(f"v_min_u32 v{dst}, {last} - L_pc, v{dst}")
        A(f"s_mov_b64 exec, {(1 << lanes) - 1}")
        A(f"global_load_dword v{dst}, v{dst}, s[{sPC}:{sPC+1}]")
        A("s_mov_b64 exec, -1")

    def role_ops(name, wave, real, n, dst):
        if dum == 0:
            real()
            return n
        A(f"s_cmp_eq_u32 s{sWV}, {wave}")
        if dum == 2:
            A(f"s_cbranch_scc0 L_{name}_j")
            real()
            A(f"L_{name}_j:")
            return 0
        A(f"s_cbranch_scc1 L_{name}_r")
        for _ in range(n):
            A(f"buffer_load_ubyte v{dst}, off, s[{rWS}:{rWS+3}], s{sOOB}")
        A(f"L_{name}_j:")

        def out():
            A(f"L_{name}_r:")
            real()
            A(f"s_branch L_{name}_j")
        cold.append(out)
        return n

    def role_offset(sreg, wave):
        A(f"s_cmp_eq_u32 s{sWV}, {wave}")
        A(f"s_cselect_b32 s{sreg}, s{sreg}, {OOB}")

    L.append(f"; @launch grid=(256,1,1) block=(512,1,1) lds={LDS_BYTES}")
    L.append('.amdgcn_target "amdgcn-amd-amdhsa--gfx950"')
    L.append(".text")
    L.append(f".globl {NAME}_kernel")
    L.append(".p2align 8")
    L.append(f".type {NAME}_kernel,@function")
    L.append(f"{NAME}_kernel:")
    A("s_cmp_ge_u32 s2, 256")
    A("s_cbranch_scc1 L_end")
    A("s_load_dwordx16 s[8:23], s[0:1], 0")
    A("s_load_dwordx8 s[24:31], s[0:1], 64")
    A("s_load_dwordx2 s[32:33], s[0:1], 96")
    if minT:
        A("s_memrealtime s[100:101]")
    if diag:
        A(f"s_memrealtime s[{sEX}:{sEX+1}]")
    A(f"s_getpc_b64 s[{sPC}:{sPC+1}]")
    A("L_pc:")
    A(f"v_lshrrev_b32 v{vA0}, 6, v0")
    A(f"v_and_b32 v{vL}, 63, v0")
    A(f"v_readfirstlane_b32 s{sWV}, v{vA0}")
    A(f"s_lshr_b32 s{sR}, s2, 3")
    if pf:
        code_prefetch(vT0, "L_pc", "L_end", 7)
    A(f"s_xor_b32 s{sGX}, s2, {fg}")
    A(f"s_and_b32 s{sGX}, s{sGX}, 7")
    A(f"s_lshl_b32 s{sID}, s{sGX}, 5")
    A(f"s_add_u32 s{sID}, s{sID}, s{sR}")
    A(f"s_lshr_b32 s{sH}, s{sID}, 3")
    A(f"s_and_b32 s{sS}, s{sR}, 7")
    A(f"s_lshr_b32 s{sB}, s{sS}, 2")
    A(f"s_lshl_b32 s{sTMP}, s{sB}, 5")
    A(f"s_add_u32 s{sTMP}, s{sTMP}, s{sH}")
    A(f"s_lshl_b32 s{sTMP}, s{sTMP}, 20")
    A(f"s_and_b32 s{sTMP2}, s{sS}, 3")
    A(f"s_lshl_b32 s{sTMP2}, s{sTMP2}, 18")
    A(f"s_add_u32 s{sTMP}, s{sTMP}, s{sTMP2}")
    A(f"s_lshl_b32 s{sTMP2}, s{sWV}, 12")
    A(f"s_add_u32 s{sTMP}, s{sTMP}, s{sTMP2}")
    A(f"v_lshl_add_u32 v{vKV}, v{vL}, 4, s{sTMP}")
    if rot is None:
        A(f"s_mov_b32 s{sTILE}, 0")
    else:
        mul, sh = rot[:2]
        A(f"s_mul_i32 s{sTILE}, s{sID}, {mul}")
        if len(rot) > 2:
            A(f"s_mul_i32 s{sTMP2}, s{sWV}, {rot[2]}")
            A(f"s_add_u32 s{sTILE}, s{sTILE}, s{sTMP2}")
        A(f"s_bfe_u32 s{sTILE}, s{sTILE}, {hex(0x30000 + sh)}")
        A(f"s_lshl_b32 s{sTILE}, s{sTILE}, 15")
    A(f"s_mov_b32 s{rK+2}, 0x4000000")
    A(f"s_mov_b32 s{rK+3}, 0x20000")
    A(f"v_lshrrev_b32 v{vG}, 4, v{vL}")
    A(f"v_and_b32 v{vC}, 15, v{vL}")
    A(f"s_cmp_eq_u32 s{sWV}, 0")
    A("s_waitcnt lgkmcnt(0)")
    A(f"s_mov_b32 s{rK}, s{sK}")
    A(f"s_mov_b32 s{rK+1}, s{sK+1}")
    A("s_cbranch_scc1 L_qwave")
    for i in range(k1):
        kload(i)

    def common_setup():
        if diag:
            for i in range(1, 12):
                A(f"s_mov_b32 s{dslot(i)}, 0")
            A(f"s_mov_b32 s{dslot(0)}, s{sEX}")
        A(f"s_load_dword s{sT}, s[{sWS}:{sWS+1}], {WS_E}")
        for t in range(1, 8):
            if rot is None:
                A(f"s_mov_b32 s{sTILE+t}, {t * 32768}")
            else:
                A(f"s_add_u32 s{sTILE+t}, s{sTILE}, {t * 32768}")
                A(f"s_and_b32 s{sTILE+t}, s{sTILE+t}, 0x3ffff")
        A(f"v_mov_b32 v{vFF}, 0xff")
        A(f"s_getreg_b32 s{sXCC}, hwreg(HW_REG_XCC_ID, 0, 4)")
        srd(rV, sV, 0x4000000)
        srd(rWS, sWS, WS_SIZE)
    if diag:
        stamps.append("start")
    common_setup()
    make_masks()
    epoch()
    A("s_barrier")
    for i in range(k1, k0):
        A(f"s_waitcnt vmcnt({k1-1})")
        kload(i)
    A("L_join:")
    stamp("_join")
    A(f"v_cmp_gt_u32 vcc, 8, v{vC}")
    vQA = vA2
    A(f"v_lshlrev_b32 v{vQA}, 4, v{vL}")
    A(f"s_lshl_b32 s{sQO}, s{sH}, 13")
    for j in range(4):
        A(f"v_cndmask_b32 v{vMK+j}, 0, v{vMK+j}, vcc")
    A(f"s_lshl_b32 s{sTMP2}, s{sB}, 12")
    A(f"s_add_u32 s{sQO}, s{sQO}, s{sTMP2}")
    A(f"s_add_u32 s{sQO}, s{sQO}, {WS_QP}")
    role_offset(sQO, qw)
    if masks:
        packed = sum((b // 2) << (4 * w) for w, b in enumerate(boost))
        A(f"s_lshl_b32 s{sTMP}, s{sWV}, 2")
        A(f"s_lshr_b32 s{sTMP}, {hex(packed)}, s{sTMP}")
        A(f"s_and_b32 s{sTMP}, s{sTMP}, 15")
        if mx:
            px = sum((b // 2) << (4 * x) for x, b in enumerate(mx))
            A(f"s_lshl_b32 s{sTMP2}, s{sXCC}, 2")
            A(f"s_lshr_b32 s{sTMP2}, {hex(px)}, s{sTMP2}")
            A(f"s_and_b32 s{sTMP2}, s{sTMP2}, 15")
            A(f"s_add_u32 s{sTMP}, s{sTMP}, s{sTMP2}")
        A(f"s_lshl_b32 s{sTMP}, s{sTMP}, 1")
        A(f"s_bfm_b64 s[{sDM}:{sDM+1}], s{sTMP}, {bpos}")
    A(f"s_mov_b32 s{sOOB}, {OOB}")
    A(f"s_sub_u32 s{sCB}, s{sR}, {NW0}")
    A(f"s_lshl_b32 s{sD3}, s{sWV}, 13")
    if "roles" not in strip:
        A(f"s_cmp_lt_u32 s{sID}, {NF}")
        A("s_cbranch_scc1 L_s_f")
        A(f"s_cmp_lt_u32 s{sCB}, 8")
        A("s_cbranch_scc1 L_s_w")

    def stream(role, depth):
        ops = ["pre"] * k0
        pos = {("K", i): i for i in range(k0)}
        landed = [0]
        heavy = [("K", i) for i in range(k0)]
        if masks:
            m = {"n": mn, "w": mw, "f": (mf, mf)}[role]
            if m[0] or m[1]:
                if m[0] != m[1]:
                    A(f"s_bitcmp1_b32 s{sXCC}, 0")
                    A(f"s_mov_b32 s{sTMP}, {hex(m[0])}")
                    A(f"s_cselect_b32 s{sTMP}, {hex(m[1])}, s{sTMP}")
                else:
                    A(f"s_mov_b32 s{sTMP}, {hex(m[0])}")
                A(f"s_or_b32 s{sDM}, s{sDM}, s{sTMP}")
                A(f"s_or_b32 s{sDM+1}, s{sDM+1}, s{sTMP}")
            if role == "w" and m3:
                A(f"s_cmp_eq_u32 s{sCB}, 3")
                A(f"s_cselect_b32 s{sTMP}, {hex(m3 & 0xffffffff)}, 0")
                A(f"s_cselect_b32 s{sTMP2}, {hex(m3 >> 32)}, 0")
                A(f"s_or_b32 s{sDM}, s{sDM}, s{sTMP}")
                A(f"s_or_b32 s{sDM+1}, s{sDM+1}, s{sTMP2}")

        def issue(key, n=1):
            for _ in range(n):
                ops.append(key)
            pos[key] = len(ops) - 1

        def wait_n(n):
            if len(ops) - n > landed[0]:
                A(f"s_waitcnt vmcnt({n})")
                landed[0] = len(ops) - n

        def wait_for(key):
            wait_n(len(ops) - 1 - pos[key])

        def has(key):
            return key in pos and pos[key] < landed[0]

        def q_loads():
            for i in range(4):
                A(f"buffer_load_dwordx4 {vr(vTMP+4*i)}, v{vQA}, s[{rWS}:{rWS+3}], s{sQO} offen offset:{1024*i} sc1")

        def q_finish():
            A(f"s_cmp_lg_u32 s{sWV}, {qw}")
            A(f"s_cbranch_scc1 L_qf{role}")
            poll_rare("q" + role, q_loads, lambda: untag4([vTMP, vTMP + 4, vTMP + 8, vTMP + 12], vT0))
            a = vTMP
            for i in range(0, 8, 2):
                pk("add", a + i, a + i, a + 8 + i)
            pk("add", a, a, a + 4)
            pk("add", a + 2, a + 2, a + 6)
            A(f"v_and_b32 v{vA0}, 1, v{vG}")
            A(f"v_lshlrev_b32 v{vA0}, 3, v{vA0}")
            A(f"v_permlane32_swap_b32 v{a}, v{a+2}")
            A(f"v_permlane32_swap_b32 v{a+1}, v{a+3}")
            A(f"v_lshl_add_u32 v{vA0}, v{vC}, 4, v{vA0}")
            A(f"v_lshrrev_b32 v{vA1}, 1, v{vG}")
            pk("add", a, a, a + 2)
            A(f"v_lshl_add_u32 v{vA0}, v{vA1}, 2, v{vA0}")
            A(f"v_cvt_pk_bf16_f32 v{a}, v{a}, v{a+1}")
            A(f"ds_write_b32 v{vA0}, v{a} offset:{L_Q}")
            A(f"L_qf{role}:")

        def q_read():
            n = "qr" + role
            A(f"v_lshlrev_b32 v{vA0}, 4, v{vC}")
            A(f"s_mov_b32 s{sCNT}, 0x40000")
            A(f"L_{n}_spin:")
            A(f"ds_read_b128 {vr(vQ)}, v{vA0} offset:{L_Q}")
            A(f"s_sub_u32 s{sCNT}, s{sCNT}, 1")
            A(f"s_cbranch_scc1 L_{n}_go")
            A("s_waitcnt lgkmcnt(0)")
            A(f"v_max3_u32 v{vA1}, v{vQ}, v{vQ+1}, v{vQ+2}")
            A(f"v_max_u32 v{vA1}, v{vA1}, v{vQ+3}")
            A(f"v_cmp_eq_u32 vcc, -1, v{vA1}")
            A(f"s_cbranch_vccnz L_{n}_spin")
            A(f"L_{n}_go:")
            A("s_waitcnt lgkmcnt(0)")
            stamp("qgot")

        def qk(t):
            tt, uu = vTMP, vTMP + 4
            for k in range(4):
                for r in range(4):
                    A(f"v_dot2_f32_bf16 v{tt+r}, v{vK+16*t+4*r+k}, v{vQ+k}, " + ("0" if k == 0 else f"v{tt+r}"))
            dpp("v_add_f32", uu, tt, tt, "row_ror:8", 0x3)
            dpp("v_add_f32", uu, tt + 1, tt + 1, "row_ror:8", 0xc)
            dpp("v_add_f32", uu + 1, tt + 2, tt + 2, "row_ror:8", 0x3)
            dpp("v_add_f32", uu + 1, tt + 3, tt + 3, "row_ror:8", 0xc)
            dpp("v_add_f32", vS + t, uu, uu, "row_shl:4", 0x5)
            nop(1)
            dpp("v_add_f32", vS + t, uu + 1, uu + 1, "row_shr:4", 0xa)

        def allred(op, r, t):
            nop(2)
            dpp(op, r, r, r, "row_ror:8")
            nop(2)
            dpp(op, r, r, r, "row_ror:4")
            for sw_ in ("v_permlane16_swap_b32", "v_permlane32_swap_b32"):
                A(f"v_mov_b32 v{t}, v{r}")
                nop(2)
                A(f"{sw_} v{r}, v{t}")
                A(f"{op} v{r}, v{r}, v{t}")

        S = [vS + i for i in range(8)]

        def soft_a():
            for r in S:
                dpp("v_add_f32", r, r, r, X1)
            for r in S:
                dpp("v_add_f32", r, r, r, X2)
            round_bf16(S, vTMP)
            for i in range(0, 8):
                A(f"v_mul_f32 v{S[i]}, {hex(SCALE)}, v{S[i]}")
            round_bf16(S, vTMP)

        def soft_b():
            m = vT0
            A(f"v_max3_f32 v{m}, v{S[0]}, v{S[1]}, v{S[2]}")
            A(f"v_max3_f32 v{m}, v{m}, v{S[3]}, v{S[4]}")
            A(f"v_max3_f32 v{m}, v{m}, v{S[5]}, v{S[6]}")
            A(f"v_max_f32 v{m}, v{m}, v{S[7]}")
            allred("v_max_f32", m, vTMP)
            for r in S:
                A(f"v_sub_f32 v{r}, v{r}, v{m}")
            for r in S:
                A(f"v_mul_f32 v{r}, {hex(LOG2E)}, v{r}")
            for r in S:
                A(f"v_exp_f32 v{r}, v{r}")

        def soft_c():
            m, l = vT0, vT1
            A(f"s_lshl_b32 s{sTMP}, s{sWV}, 3")
            A(f"v_add_f32 v{l}, v{S[0]}, v{S[1]}")
            for r in S[2:]:
                A(f"v_add_f32 v{l}, v{l}, v{r}")
            for r in S:
                A(f"v_cvt_pk_bf16_f32 v{r}, v{r}, v{r}")
            allred("v_add_f32", l, vTMP)
            A(f"v_mov_b32 v{vA0}, s{sTMP}")
            A(f"ds_write_b64 v{vA0}, {vr(m,2)} offset:{L_ML}")
            stamp("soft")

        bank = [0, 2, 1, 3]

        def pv_a(t):
            for r in range(4):
                for k in range(4):
                    dpp("v_and_b32", vTMP + 4 * r + k, vS + t, vMK + k, f"row_newbcast:{4*bank[r]}")

        def pv_m(i):
            r = i % 4
            mfma(vACC, vTMP + 4 * r, vreg(i), None if i == 0 else vACC)

        def w_part(i, part, nparts):
            lanes = 64 // nparts
            m = ((1 << lanes) - 1) << (lanes * part)
            if part == 0:
                w_dma(i, go=False)
            A(f"s_mov_b32 exec_lo, {hex(m & 0xffffffff)}")
            A(f"s_mov_b32 exec_hi, {hex(m >> 32)}")
            A(f"buffer_load_dwordx4 v{vDA}, s[{rT}:{rT+3}], s{sD1} offen{wfl} lds")
            A("s_mov_b64 exec, -1")
            issue(("w", i) if part == nparts - 1 else ("wp", i, part))

        def w_dma(i, go=True):
            blk, j = divmod(i, 8)
            which = "wo" if role == "w" else ("w1", "w2")[blk]
            pitch = 2752 if which == "w1" else 1024
            if j == 0:
                ptr, size = {"wo": (sWO, 0x400000), "w1": (sW1, 512 * 2752), "w2": (sW2, 1376 * 1024)}[which]
                srd(rT, ptr, 0 if which in now else size)
                A(f"v_lshrrev_b32 v{vDA}, 3, v{vL}")
                A(f"v_mul_u32_u24 v{vDA}, {pitch}, v{vDA}")
                A(f"v_and_b32 v{vA0}, 7, v{vL}")
                A(f"v_lshl_add_u32 v{vDA}, v{vA0}, 4, v{vDA}")
                if which == "wo":
                    A(f"s_lshl_b32 s{sD1}, s{sGX}, 19")
                    A(f"s_lshl_b32 s{sTMP2}, s{sWV}, 16")
                    A(f"s_add_u32 s{sD1}, s{sD1}, s{sTMP2}")
                    A(f"s_lshl_b32 s{sTMP2}, s{sCB}, 7")
                elif which == "w1":
                    A(f"s_mul_i32 s{sD1}, s{sWV}, {64*2752}")
                    A(f"s_lshl_b32 s{sTMP2}, s{sR}, 7")
                else:
                    A(f"s_lshl_b32 s{sD1}, s{sR}, 16")
                    A(f"s_lshl_b32 s{sTMP2}, s{sWV}, 7")
                A(f"s_add_u32 m0, s{sD3}, {(L_WA, L_WB)[blk]}")
                A(f"s_add_u32 s{sD1}, s{sD1}, s{sTMP2}")
            else:
                A(f"s_add_u32 m0, s{sD3}, {(L_WA, L_WB)[blk] + j*1024}")
                A(f"s_add_u32 s{sD1}, s{sD1}, {8*pitch}")
            if not go:
                return
            A(f"buffer_load_dwordx4 v{vDA}, s[{rT}:{rT+3}], s{sD1} offen{wfl} lds")
            issue(("w", i))
            if (fheavy if role == "f" else wheavy):
                heavy.append(("w", i))

        def tail_setup():
            vB3, vXX, vB2 = vA1, vA2, vDUM
            A(f"v_bfe_u32 v{vB3}, v{vL}, 3, 1")
            A(f"v_bfe_u32 v{vB2}, v{vL}, 2, 1")
            A(f"v_and_b32 v{vXX}, 3, v{vL}")
            A(f"v_lshlrev_b32 v{vL8}, 3, v{vL}")
            A(f"v_lshlrev_b32 v{vL16}, 4, v{vL}")
            A(f"v_and_b32 v{vG16}, 0x70, v{vL16}")
            A(f"v_lshlrev_b32 v{vSR}, 6, v{vB2}")
            A(f"v_lshl_add_u32 v{vRHO}, v{vB3}, 2, v{vB2}")
            A(f"v_and_b32 v{vM}, 31, v{vL}")
            A(f"v_lshlrev_b32 v{vM}, 2, v{vM}")
            A(f"s_lshl_b32 s{sTMP}, s{sGX}, 7")
            A(f"s_add_u32 s{sTMP}, s{sTMP}, {WS_XC}")
            A(f"buffer_load_dword v{vVAL}, v{vM}, s[{rWS}:{rWS+3}], s{sTMP} offen sc1")
            A(f"v_lshl_add_u32 v{vM}, v{vXX}, 1, v{vB2}")
            A(f"v_lshl_add_u32 v{vM}, v{vG}, 3, v{vM}")
            A(f"v_lshlrev_b32 v{vM}, 2, v{vM}")
            A(f"v_lshl_add_u32 v{vHW}, v{vB3}, 10, v{vM}")
            A(f"s_lshl_b32 s{sTMP}, s{sWV}, 7")
            A(f"v_add_u32 v{vHW}, s{sTMP}, v{vHW}")
            A(f"global_load_dword v{vXR+1}, v{vHW}, s[{sX}:{sX+1}]")
            A(f"v_lshl_add_u32 v{vFC}, v{vXX}, 4, v{vG}")
            A(f"s_lshr_b32 s{sTMP2}, s{sR}, 2")
            A(f"s_mul_i32 s{sTMP2}, s{sTMP2}, 48")
            A(f"s_lshl2_add_u32 s{sTMP2}, s{sR}, s{sTMP2}")
            A(f"v_add_u32 v{vFC}, s{sTMP2}, v{vFC}")
            A(f"v_lshlrev_b32 v{vFC}, 1, v{vFC}")
            A(f"global_load_ushort v{vB2R}, v{vFC}, s[{sB2}:{sB2+1}]")
            A(f"v_lshl_add_u32 v{vFC}, v{vB2}, 10, v{vFC}")
            nsmall = 3
            if role == "f":
                srd(rB, sB1, 2752)
                A(f"v_lshl_add_u32 v{vA0}, v{vB3}, 2, v{vXX}")
                A(f"v_lshl_add_u32 v{vM}, v{vG}, 3, v{vA0}")
                A(f"v_lshlrev_b32 v{vM}, 2, v{vM}")
                A(f"s_lshl_b32 s{sTMP2}, s{sR}, 7")
                A(f"buffer_load_dword v{vB1R+1}, v{vM}, s[{rB}:{rB+3}], s{sTMP2} offen")
                nsmall = 4
                A(f"v_lshl_add_u32 v{vFR}, v{vA0}, 3, v{vSR}")
                A(f"v_lshl_add_u32 v{vFR}, v{vG}, 7, v{vFR}")
                A(f"v_mul_u32_u24 v{vZA}, {ZSTR}, v{vG}")
                A(f"s_mul_i32 s{sTMP}, s{sWV}, {4*ZSTR}")
                A(f"s_add_u32 s{sTMP2}, s{sTMP2}, s{sTMP}")
                A(f"s_add_u32 s{sTMP2}, s{sTMP2}, {WS_ZP}")
                A(f"v_add3_u32 v{vZA}, v{vZA}, v{vG16}, s{sTMP2}")
                A(f"v_lshrrev_b32 v{vM}, 1, v{vG}")
                A(f"v_lshlrev_b32 v{vSA}, 6, v{vB3}")
                A(f"v_lshl_add_u32 v{vSA}, v{vM}, 5, v{vSA}")
                A(f"s_lshl_b32 s{sTMP}, s{sWV}, 2")
                A(f"v_add_u32 v{vSA}, s{sTMP}, v{vSA}")
                A(f"v_mov_b32 v{vONE}, 0x3f803f80")
            issue("small", nsmall)
            A(f"s_lshl_b32 s{sTMP}, s{sWV}, 9")
            if role != "n":
                if role == "f":
                    A(f"v_lshlrev_b32 v{vFW}, 6, v{vB3}")
                    A(f"v_lshl_add_u32 v{vFW}, v{vG}, 4, v{vFW}")
                else:
                    A(f"v_lshl_add_u32 v{vFW}, v{vG}, 4, v{vSR}")
                A(f"v_lshl_add_u32 v{vFW}, v{vXX}, 7, v{vFW}")
                A(f"v_add_u32 v{vFW}, s{sTMP}, v{vFW}")
                for tau in range(4):
                    A(f"v_cmp_eq_u32 vcc, {tau}, v{vXX}")
                    nop(2)
                    A(f"v_cndmask_b32 v{vMT+tau}, 0, -1, vcc")
                A(f"s_mov_b32 s{sU0}, 0x0f0f0f0f")
                A(f"s_mov_b32 s{sU0+1}, 0x0f0f0f0f")
                A(f"s_mov_b32 s{sU1}, 0x00ff00ff")
                A(f"s_mov_b32 s{sU1+1}, 0x00ff00ff")
            A(f"v_lshlrev_b32 v{vOWA}, 5, v{vC}")
            A(f"v_lshl_add_u32 v{vOWA}, v{vG}, 4, v{vOWA}")
            A(f"v_add_u32 v{vOWA}, s{sTMP}, v{vOWA}")
            if role == "w":
                A(f"v_lshl_add_u32 v{vAA}, v{vB2}, 2, v{vB3}")
                A(f"v_lshlrev_b32 v{vAA}, 9, v{vAA}")
                A(f"v_lshl_add_u32 v{vAA}, v{vG}, 6, v{vAA}")
                A(f"v_lshl_add_u32 v{vAA}, v{vXX}, 4, v{vAA}")
                A(f"s_and_b32 s{sTMP2}, s{sWV}, 1")
                A(f"s_lshl_b32 s{sTMP2}, s{sTMP2}, 8")
                A(f"s_lshr_b32 s{sTMP}, s{sWV}, 1")
                A(f"s_lshl_b32 s{sTMP}, s{sTMP}, 12")
                A(f"s_add_u32 s{sTMP2}, s{sTMP2}, s{sTMP}")
                A(f"s_lshl_b32 s{sTMP}, s{sGX}, 14")
                A(f"s_add_u32 s{sTMP2}, s{sTMP2}, s{sTMP}")
                A(f"s_add_u32 s{sTMP2}, s{sTMP2}, {WS_OP}")
                A(f"v_add_u32 v{vAA}, s{sTMP2}, v{vAA}")
                A(f"v_lshl_add_u32 v{vYR}, v{vG}, 7, v{vG16}")
                A(f"v_lshl_add_u32 v{vYR}, v{vB3}, 11, v{vYR}")
            A(f"v_and_b32 v{vM}, 1, v{vL}")
            A(f"v_lshlrev_b32 v{vM}, 4, v{vM}")
            A(f"v_lshrrev_b32 v{vTb}, v{vM}, s{sT}")
            A(f"v_and_b32 v{vTa}, v{vFF}, v{vTb}")
            A(f"v_bfe_u32 v{vTb}, v{vTb}, 8, 8")
            A(f"v_cmp_gt_u32 vcc, 8, v{vL}")
            A(f"v_mov_b32 v{vM}, {OOB}")
            A(f"v_lshlrev_b32 v{vMLA}, 7, v{vXX}")
            A(f"v_cndmask_b32 v{vMLS}, v{vM}, v{vL16}, vcc")
            A(f"v_cndmask_b32 v{vMLA}, v{vM}, v{vMLA}, vcc")

        def tail_setup2():
            for k in range(4):
                A(f"v_mov_b32 v{vTG+k}, s{Tk[k]}")
            A(f"v_bfe_u32 v{vA0}, v{vL}, 2, 2")
            A(f"v_and_b32 v{vA1}, 0x30, v{vL16}")
            A(f"v_lshl_add_u32 v{vBA}, v{vA0}, 7, v{vA1}")
            A(f"v_lshl_add_u32 v{vBA}, v{vG}, 10, v{vBA}")
            A(f"s_lshl_b32 s{sTMP}, s{sWV}, {ysh}")
            A(f"s_add_u32 s{sTMP}, s{sTMP}, {yp}")
            A(f"v_add_u32 v{vBA}, s{sTMP}, v{vBA}")
            if role == "w":
                A(f"s_lshl_b32 s{sTMP}, s{sCB}, {ysh}")
                A(f"s_lshl_b32 s{sTMP2}, s{sGX}, 7")
                A(f"s_add_u32 s{sTMP}, s{sTMP}, s{sTMP2}")
                A(f"s_add_u32 s{sTMP}, s{sTMP}, {yp}")
                A(f"v_lshl_add_u32 v{vYS}, v{vG}, 10, v{vG16}")
                A(f"v_add_u32 v{vYS}, s{sTMP}, v{vYS}")
                A(f"s_cmp_eq_u32 s{sGX}, 0")
                A(f"s_cselect_b32 s{sD2}, s{sLOC}, 0")

        def small_finish():
            A(f"v_cmp_ne_u32 vcc, s{sXW}, v{vVAL}")
            A(f"v_lshlrev_b32 v{vXR}, 16, v{vXR+1}")
            A(f"v_and_b32 v{vXR+1}, 0xffff0000, v{vXR+1}")
            A(f"v_lshlrev_b32 v{vB2R}, 16, v{vB2R}")
            A(f"s_cmp_eq_u64 vcc, 0")
            A(f"s_cselect_b32 s{sLOC}, {1 if local else 0}, 0")
            if role == "f":
                A(f"v_lshlrev_b32 v{vB1R}, 16, v{vB1R+1}")
                A(f"v_and_b32 v{vB1R+1}, 0xffff0000, v{vB1R+1}")
                A(f"s_lshl_b32 s{sTMP}, s{sR}, 2")
                A(f"s_sub_u32 s{sTMP}, 86, s{sTMP}")
                A(f"v_cmp_gt_u32 vcc, s{sTMP}, v{vG}")
                nop(2)
                A(f"v_cndmask_b32 v{vVAL}, 0, -1, vcc")

        def preread():
            if role == "f":
                A(f"buffer_load_dword v{vDUM}, v{vZA}, s[{rWS}:{rWS+3}], 0 offen")
                issue("pz")
            A(f"s_lshl_b32 s{sTMP}, s{sID}, 9")
            A(f"s_add_u32 s{sTMP}, s{sTMP}, {WS_OP}")
            role_offset(sTMP, 2)
            A(f"buffer_load_dword v{vDUM}, v{vL8}, s[{rWS}:{rWS+3}], s{sTMP} offen")
            issue("po")

        def tr_block(dst, addr, offs):
            for tau in range(4):
                for u in range(2):
                    for e in range(2):
                        A(f"ds_read_b64_tr_b16 {vr(dst+8*tau+4*u+2*e,2)}, v{addr} offset:{offs(u, e) + tau*32}")
                if tau == 1:
                    A("s_waitcnt lgkmcnt(0)")

        def regs_a():
            A(f"v_and_b32 v{vA1}, 3, v{vL}")
            A(f"v_lshlrev_b32 v{vA1}, 3, v{vA1}")
            A(f"v_add_u32 v{vA1}, s{sD3}, v{vA1}")
            A(f"v_lshl_add_u32 v{vA0}, v{vG}, 4, v{vRHO}")
            A(f"v_lshl_add_u32 v{vA2}, v{vA0}, 7, v{vA1}")
            tr_block(vW1, vA2, lambda u, e: L_WA + (2 * u + 8 * e) * 128)
            if role == "f":
                for tau in range(4):
                    for k in range(4):
                        A(f"v_and_b32 v{vTMP+4*tau+k}, v{vONE}, v{vMT+tau}")
                A("s_waitcnt lgkmcnt(0)")
                nop(1)
                for t3 in range(4):
                    for u in range(2):
                        mfma(vD0, vW1 + 8 * t3 + 4 * u, vTMP + 4 * t3, None if (t3 == 0 and u == 0) else vD0)
                nop(8)
                A(f"ds_write_b128 v{vFW}, {vr(vD0)} offset:{L_CS}")

        def regs_b():
            A(f"v_and_b32 v{vA1}, 3, v{vL}")
            A(f"v_lshlrev_b32 v{vA1}, 3, v{vA1}")
            A(f"v_lshrrev_b32 v{vA0}, 2, v{vC}")
            A(f"v_lshl_add_u32 v{vA0}, v{vG}, 4, v{vA0}")
            A(f"v_lshl_add_u32 v{vA2}, v{vA0}, 7, v{vA1}")
            A(f"s_add_u32 s{sTMP}, s{sD3}, {L_WB}")
            A(f"v_add_u32 v{vA2}, s{sTMP}, v{vA2}")
            tr_block(vW2, vA2, lambda u, e: (8 * u + 4 * e) * 128)
            A("s_waitcnt lgkmcnt(0)")
            tr_block(vW2b, vA2, lambda u, e: 32768 + (8 * u + 4 * e) * 128)

        def ml_publish():
            n = "ml" + role
            o = vMLG
            A(f"s_lshl_b32 s{sTMP}, s{sID}, 7")
            A(f"s_add_u32 s{sTMP}, s{sTMP}, {WS_ML}")
            role_offset(sTMP, sw)
            A(f"s_cbranch_scc0 L_{n}_skip")
            m, l = vMLW, vMLW + 1
            A(f"v_and_b32 v{vA0}, 56, v{vL8}")
            A(f"s_mov_b32 s{sCNT}, 0x40000")
            A(f"L_{n}_spin:")
            A(f"ds_read_b64 {vr(m,2)}, v{vA0} offset:{L_ML}")
            A(f"s_sub_u32 s{sCNT}, s{sCNT}, 1")
            A(f"s_cbranch_scc1 L_{n}_go")
            A("s_waitcnt lgkmcnt(0)")
            A(f"v_cmp_eq_u32 vcc, -1, v{l}")
            A(f"s_cbranch_vccnz L_{n}_spin")
            A(f"L_{n}_go:")
            A("s_waitcnt lgkmcnt(0)")
            dpp("v_max_f32", o, m, m, X1)
            nop(2)
            dpp("v_max_f32", o, o, o, X2)
            nop(2)
            dpp("v_max_f32", o, o, o, HM)
            A(f"v_sub_f32 v{o+1}, v{m}, v{o}")
            A(f"v_mul_f32 v{o+1}, {hex(LOG2E)}, v{o+1}")
            A(f"v_exp_f32 v{o+1}, v{o+1}")
            A(f"v_mov_b32 v{o+2}, 0")
            A(f"v_mul_f32 v{o+1}, v{o+1}, v{l}")
            A(f"v_mov_b32 v{o+3}, 0")
            nop(1)
            for ctl in (X1, X2, HM):
                dpp("v_add_f32", o + 1, o + 1, o + 1, ctl)
                nop(2)
            tag4(o)
            A(f"L_{n}_skip:")

            def real():
                A(f"s_cmp_eq_u32 s{sLOC}, 0")
                publish(n, f"buffer_store_dwordx4 {vr(o)}, v{vMLS}, s[{rWS}:{rWS+3}], s{sTMP} offen")
            issue("mlp", role_ops("mp" + role, sw, real, 1, vMLG))

        def ml_issue():
            A(f"buffer_load_dwordx4 {vr(vMLG)}, v{vMLA}, s[{rWS}:{rWS+3}], s{sML} offen sc1")

        def ml_gather():
            A(f"s_lshr_b32 s{sML}, s{sID}, 2")
            A(f"s_lshl_b32 s{sML}, s{sML}, 9")
            A(f"s_add_u32 s{sML}, s{sML}, {WS_ML}")
            role_offset(sML, sw)
            issue("ml", role_ops("mg" + role, sw, ml_issue, 1, vMLG))

        def ml_finish():
            n = "mf" + role
            A(f"s_cmp_lg_u32 s{sWV}, {sw}")
            A(f"s_cbranch_scc1 L_{n}_skip")

            def chk():
                A("s_mov_b64 exec, 0xff")
                untag4([vMLG], vA0)
                A("s_mov_b64 exec, -1")
            poll_rare(n, ml_issue, chk)
            o = vMLG
            dpp("v_max_f32", o + 2, o, o, X1)
            nop(2)
            dpp("v_max_f32", o + 2, o + 2, o + 2, X2)
            A(f"v_sub_f32 v{o}, v{o}, v{o+2}")
            A(f"v_sub_f32 v{o+3}, v{vMLW}, v{o+2}")
            A(f"v_mul_f32 v{o}, {hex(LOG2E)}, v{o}")
            A(f"v_mul_f32 v{o+3}, {hex(LOG2E)}, v{o+3}")
            A(f"v_exp_f32 v{o}, v{o}")
            A(f"v_exp_f32 v{o+3}, v{o+3}")
            A(f"v_mul_f32 v{o+1}, v{o+1}, v{o}")
            nop(2)
            dpp("v_add_f32", o + 1, o + 1, o + 1, X1)
            nop(2)
            dpp("v_add_f32", o + 1, o + 1, o + 1, X2)
            A(f"v_rcp_f32 v{o+1}, v{o+1}")
            nop(1)
            A(f"v_mul_f32 v{o+3}, v{o+3}, v{o+1}")
            nop(1)
            for j in range(8):
                A(f"v_readlane_b32 s{sTMP}, v{o+3}, {j}")
                nop(2)
                A(f"v_mov_b32 v{vF+j}, s{sTMP}")
            A(f"L_{n}_skip:")

        nwd = {"n": 0, "w": 8, "f": 16 - late}[role]
        wd0, wds = (f0, fstep) if role == "f" else (w0, wstep)
        todo = []
        todo.append((lambda: has(("K", pq + 1)), q_finish))
        todo.append((lambda: ("K", pq2) in pos, q_read))
        for t in range(8):
            todo.append((lambda t=t: has(("K", 4 * t + 3)), lambda t=t: qk(t)))
        todo.append((lambda: True, soft_a))
        todo.append((lambda: True, soft_b))
        todo.append((lambda: True, soft_c))
        todo.append((lambda: True, tail_setup))
        pvdone = [0]
        side = []
        if role != "n":
            side.append((lambda: has(("w", 7)) and "small" in pos, regs_a))
        if role == "f":
            def late_w2():
                A("L_late:")
                if 0 < late < 8:
                    srd(rT, sW2, 0 if "w2" in now else 1376 * 1024)
                for i in range(16 - late, 16):
                    w_dma(i)
                for i in range(8):
                    A(f"ds_read_b64 {vr(st+2*i,2)}, v{vFR} offset:{L_CS + 512*i}")
                A("s_waitcnt lgkmcnt(0)")
                sum8(st, vCS)
                if lov:
                    b_issue(g0)
                    A(f"s_mov_b32 s{sCNT}, 0x8000")
                done = "L_b_chk" if lov else "L_late_done"
                A(f"s_cmp_ge_u32 s{sWV}, 4")
                A(f"s_waitcnt vmcnt({4 if lov else 0})")
                A("s_barrier")
                A(f"s_cbranch_scc1 {done}")
                regs_b()
                stamp("_late")
                A(f"s_branch {done}")
            cold.insert(0, late_w2)

        def pv_tile(t):
            pv_a(t)
            for r in range(4):
                pv_m(4 * t + r)
            pvdone[0] = 4 * t + 4
        for t in range(7):
            todo.append((lambda t=t: has(("V", 4 * t + 3)), lambda t=t: pv_tile(t)))
            if 4 * t + 4 == p1:
                todo.append((lambda: has("small"), small_finish))
                todo.append((lambda: True, ml_publish))
            if 4 * t == p2:
                todo.append((lambda: has(("V", p2 + 1)), ml_finish))
                todo.append((lambda: True, tail_setup2))
        seq = [("K", i) for i in range(k0, 32)] + [("V", i) for i in range(32)]
        nd = 0
        nsub = [0]
        for n, (kind, i) in enumerate(seq):
            gi = i if kind == "K" else 32 + i
            if kind == "V" and i >= NRING:
                while pvdone[0] <= i - NRING:
                    pred, emit = todo[0]
                    assert pred(), "ring too small"
                    todo.pop(0)
                    emit()
            if masks:
                A(f"s_bitcmp1_b64 s[{sDM}:{sDM+1}], {gi}")
                wait_for(heavy[-depth - 1])
                A(f"s_cbranch_scc1 L_d{role}{gi}")
                A(f"s_waitcnt vmcnt({len(ops) - 1 - pos[heavy[-depth]]})")
                A(f"L_d{role}{gi}:")
            else:
                wait_for(heavy[-depth])
            if kind == "K":
                kload(i)
            else:
                vload(i)
            issue((kind, i))
            heavy.append((kind, i))
            if kind == "K" and i == pq:
                issue("q", role_ops("qi" + role, qw, q_loads, 4, vTMP))
            if role == "w" and wsub > 1:
                while nd < nwd and n >= wd0 + (nsub[0] * wds) // wsub:
                    w_part(nd, nsub[0] % wsub, wsub)
                    nsub[0] += 1
                    nd = nsub[0] // wsub
            elif nd < nwd and n >= wd0 and (n - wd0) % wds == 0:
                w_dma(nd)
                nd += 1
            if kind == "V" and i == p2:
                assert "mlp" in pos, "ml order"
                ml_gather()
            if kind == "V" and i in (8, 16, 24):
                stamp(f"_v{i}")
            if kind == "K" and i in (16, 24):
                stamp(f"_k{i}")
            if kind == "V" and i == prew and prew:
                preread()
            if kind == "V" and i == pf2 and pf:
                code_prefetch(vM, "L_tail", "L_tailend", 1)
                issue("pf")
            if todo and todo[0][0]():
                todo.pop(0)[1]()
            elif side and side[0][0]():
                side.pop(0)[1]()
        assert nd == nwd and not side, (role, nd, len(side))
        while todo:
            pred, emit = todo.pop(0)
            while not pred():
                wait_n(len(ops) - landed[0] - 1)
            emit()
        pv_a(7)
        for i in range(28, 32):
            wait_for(("V", i))
            pv_m(i)

    A("L_s_n:")
    stream("n", dn)
    A("L_tail:")
    A("s_mov_b32 exec_hi, 0")
    A(f"s_lshl_b32 s{sTMP}, s{sID}, 9")
    A(f"s_add_u32 s{sTMP}, s{sTMP}, {WS_OP}")
    A(f"s_cmp_lg_u32 s{sWV}, {sw}")
    nop(4)
    A(f"ds_write_b128 v{vOWA}, {vr(vACC)} offset:{L_OW}")
    A("s_mov_b32 exec_hi, -1")
    A("s_waitcnt lgkmcnt(0)")
    stamp("_wend")
    A("s_barrier")
    if diag:
        stamp("strm")
        if "tail" in strip:
            A("s_branch L_fin")
    A("s_cbranch_scc1 L_nos0")
    for i in range(8):
        A(f"ds_read_b64 {vr(g0+2*i,2)}, v{vL8} offset:{L_OW + 512*i}")
    A(f"s_cmp_eq_u32 s{sLOC}, 0")
    lo, hi = " op_sel_hi:[1,0]", " op_sel:[0,1]"
    lo3, hi3 = " op_sel_hi:[1,0,1]", " op_sel:[0,1,0]"
    A("s_waitcnt lgkmcnt(6)")
    pk("mul", vP, g0, vF, extra=lo)
    pk("fma", vP, g0 + 2, vF, vP, extra=hi3)
    for i in range(1, 4):
        if i != 2:
            A(f"s_waitcnt lgkmcnt({(2, 0, 0)[i-1]})")
        pk("fma", vP, g0 + 4 * i, vF + 2 * i, vP, extra=lo3)
        pk("fma", vP, g0 + 4 * i + 2, vF + 2 * i, vP, extra=hi3)
    tag2(vP)
    publish("o", f"buffer_store_dwordx2 {vr(vP,2)}, v{vL8}, s[{rWS}:{rWS+3}], s{sTMP} offen")
    stamp("_opub")
    A("L_nos0:")
    A(f"s_cmp_ge_u32 s{sCB}, 8")
    A("s_cbranch_scc1 L_noy")

    A("s_barrier")

    def a_issue(g):
        for i in range(2):
            A(f"buffer_load_dwordx4 {vr(g+4*i)}, v{vAA}, s[{rWS}:{rWS+3}], 0 offen offset:{1024*i} sc1")
    pollm("a", a_issue, 2, pfa)
    stamp("hopA")
    pk("add", g0, g0, g0 + 4)
    pk("add", g0 + 2, g0 + 2, g0 + 6)
    A(f"s_cmp_lg_u32 s{sWV}, {yw}")

    def pair_from_quad(ctl_lo, m_lo, ctl_hi, m_hi, src, dst):
        dpp("v_add_f32", dst, src, src, ctl_lo, m_lo)
        dpp("v_add_f32", dst + 1, src + 1, src + 1, ctl_lo, m_lo)
        dpp("v_add_f32", dst, src + 2, src + 2, ctl_hi, m_hi)
        dpp("v_add_f32", dst + 1, src + 3, src + 3, ctl_hi, m_hi)
    pair_from_quad("row_ror:8", 0x3, "row_ror:8", 0xc, g0, g0 + 4)
    A(f"v_cvt_pk_bf16_f32 v{vP}, v{g0+4}, v{g0+5}")
    filler(2)
    matvec64([(vW1, vD0, vD1)])
    filler(8)
    for k in range(4):
        dpp("v_add_f32", vD0 + k, vD1 + k, vD0 + k, "row_ror:8")
    A(f"s_mov_b64 exec, s[{sU1}:{sU1+1}]")
    A(f"ds_write_b128 v{vFW}, {vr(vD0)} offset:{L_F1}")
    A("s_mov_b64 exec, -1")
    A("s_waitcnt lgkmcnt(0)")
    A("s_barrier")
    A("s_cbranch_scc1 L_noy")
    for i in range(4):
        A(f"ds_read_b128 {vr(g0+4*i)}, v{vYR} offset:{L_F1 + i*512}")
    A(f"s_cmp_eq_u32 s{sD2}, 0")
    A("s_waitcnt lgkmcnt(2)")
    pk("add", g0, g0, g0 + 4)
    pk("add", g0 + 2, g0 + 2, g0 + 6)
    A("s_waitcnt lgkmcnt(1)")
    pk("add", g0, g0, g0 + 8)
    pk("add", g0 + 2, g0 + 2, g0 + 10)
    A("s_waitcnt lgkmcnt(0)")
    pk("add", g0, g0, g0 + 12)
    pk("add", g0 + 2, g0 + 2, g0 + 14)
    nop(1)
    for k in range(4):
        dpp("v_add_f32", vD0 + k, g0 + k, g0 + k, "row_ror:8")
    A(f"s_mov_b64 exec, s[{sU1}:{sU1+1}]")
    tag4(vD0)
    publish("y", f"buffer_store_dwordx4 {vr(vD0)}, v{vYS}, s[{rWS}:{rWS+3}], 0 offen", farfirst=True)
    A("s_mov_b64 exec, -1")
    stamp("ypub")
    A("L_noy:")
    A(f"s_cmp_lg_u32 s{sGX}, 0")
    A("s_cbranch_scc1 L_fin")

    A(f"s_cmp_lt_u32 s{sR}, {NF}")
    A("s_barrier")
    if "roles" not in strip:
        A("s_cbranch_scc1 L_late")
        A("L_late_done:")

    def b_issue(g):
        for i, off in enumerate((0, 64, 512, 576)):
            A(f"buffer_load_dwordx4 {vr(g+4*i)}, v{vBA}, s[{rWS}:{rWS+3}], 0 offen offset:{off} sc1")
    pollm("b", b_issue, 4, pfb)
    stamp("hopB")
    for e in (0, 2, 4, 6):
        pk("add", g0 + e, g0 + e, g0 + 8 + e)
    for e in range(4):
        dpp("v_add_f32", g0 + 8 + e, g0 + e, g0 + e, "row_ror:8", 0x3)
    for e in range(4):
        dpp("v_add_f32", g0 + 8 + e, g0 + 4 + e, g0 + 4 + e, "row_ror:8", 0xc)
    pair_from_quad("row_shl:4", 0x5, "row_shr:4", 0xa, g0 + 8, g0)
    round2(g0)
    pk("add", g0, g0, vXR)
    A(f"s_cmp_ge_u32 s{sR}, {NF}")
    A(f"v_cvt_pk_bf16_f32 v{vP}, v{g0}, v{g0+1}")
    s0, s1 = vT0, vT1
    A("s_cbranch_scc1 L_noffn")
    A(f"v_dot2_f32_bf16 v{s0}, v{vP}, v{vONE}, 0")
    A(f"v_dot2_f32_bf16 v{s1}, v{vP}, v{vP}, 0")

    def f_a():
        A(f"v_permlane32_swap_b32 v{s0}, v{s1}")
        A(f"v_add_f32 v{s0}, v{s0}, v{s1}")

    def f_e():
        A(f"v_permlane16_swap_b32 v{s0}, v{s1}")
        A(f"v_add_f32 v{s0}, v{s0}, v{s1}")
    matvec64([(vW1, vD0, vD1)], extra=[
        f_a,
        lambda: dpp("v_add_f32", s0, s0, s0, X1),
        lambda: dpp("v_add_f32", s0, s0, s0, X2),
        lambda: dpp("v_add_f32", s0, s0, s0, HM),
        lambda: A(f"v_mov_b32 v{s1}, v{s0}"),
        f_e,
        lambda: A(f"ds_write_b32 v{vSA}, v{s0} offset:{L_ST}"),
    ])
    A(f"ds_write_b32 v{vHW}, v{vP} offset:{L_HS}")
    A(f"s_cmp_ge_u32 s{sWV}, 4")
    filler(6)
    for k in range(4):
        dpp("v_add_f32", vD0 + k, vD1 + k, vD0 + k, "row_shl:4", 0x5)
    A(f"s_mov_b64 exec, s[{sU0}:{sU0+1}]")
    A(f"ds_write_b128 v{vFW}, {vr(vD0)} offset:{L_F1}")
    A("s_mov_b64 exec, -1")
    warm(14)
    A("s_waitcnt lgkmcnt(0)")
    stamp("_f1")
    A("s_barrier")
    stamp("_f1b")
    A("s_cbranch_scc1 L_f2skip")
    for i in range(4):
        A(f"ds_read_b128 {vr(st+4*i)}, v{vSR} offset:{L_ST + 16*i}")
    for i in range(8):
        A(f"ds_read_b64 {vr(g0+2*i,2)}, v{vFR} offset:{L_F1 + 512*i}")
    A(f"s_cmp_eq_u32 s{sLOC}, 0")
    A(f"s_mov_b32 s{sTMP}, {16*ZSTR}")
    A("s_waitcnt lgkmcnt(10)")
    pk("add", st, st, st + 2)
    pk("add", st + 4, st + 4, st + 6)
    A("s_waitcnt lgkmcnt(8)")
    pk("add", st + 8, st + 8, st + 10)
    pk("add", st + 12, st + 12, st + 14)
    pk("add", st, st, st + 4)
    pk("add", st + 8, st + 8, st + 12)
    A(f"v_add_f32 v{s0}, v{st}, v{st+1}")
    A(f"v_add_f32 v{s1}, v{st+8}, v{st+9}")
    A(f"v_mul_f32 v{s0}, 0x3b000000, v{s0}")
    A(f"v_mul_f32 v{s1}, 0x3b000000, v{s1}")
    A(f"v_fma_f32 v{s1}, -v{s0}, v{s0}, v{s1}")
    A(f"v_max_f32 v{s1}, 0, v{s1}")
    A("s_waitcnt lgkmcnt(0)")
    if rsq:
        A(f"v_add_f32 v{s1}, {hex(EPS)}, v{s1}")
        A(f"v_rsq_f32 v{s1}, v{s1}")
        sum8(g0)
    else:
        A(f"v_cvt_pk_bf16_f32 v{s1}, v{s0}, v{s1}")
        A(f"v_lshlrev_b32 v{s0}, 16, v{s1}")
        A(f"v_and_b32 v{s1}, 0xffff0000, v{s1}")
        A(f"v_add_f32 v{s1}, {hex(EPS)}, v{s1}")
        round1(s1)
        A(f"v_sqrt_f32 v{s1}, v{s1}")
        for i in range(4):
            pk("add", g0 + 4 * i, g0 + 4 * i, g0 + 4 * i + 2)
        round1(s1)
        A(f"v_rcp_f32 v{s1}, v{s1}")
        pk("add", g0, g0, g0 + 4)
        pk("add", g0 + 8, g0 + 8, g0 + 12)
        pk("add", g0, g0, g0 + 8)
    pk("fma", g0, vCS, s0, g0, extra=" op_sel_hi:[1,0,1] neg_lo:[0,1,0] neg_hi:[0,1,0]")
    pk("mul", g0, g0, s0, extra=hi)
    round2(g0)
    pk("add", g0, g0, vB1R)
    round2(g0)
    A(f"v_max_f32 v{g0}, 0, v{g0}")
    A(f"v_max_f32 v{g0+1}, 0, v{g0+1}")
    pk("mul", g0, g0, g0)
    A(f"v_cvt_pk_bf16_f32 v{vP}, v{g0}, v{g0+1}")
    A(f"v_and_b32 v{vP}, v{vVAL}, v{vP}")
    filler(2)
    matvec64([(vW2, vD0, vD1), (vW2b, vD2, vD3)])
    filler(6)
    for k in range(4):
        dpp("v_add_f32", vD0 + k, vD1 + k, vD0 + k, "row_ror:8")
    for k in range(4):
        dpp("v_add_f32", vD2 + k, vD3 + k, vD2 + k, "row_ror:8")
    A(f"s_mov_b64 exec, s[{sU1}:{sU1+1}]")
    tag4(vD0)
    tag4(vD2)
    publish("z", f"buffer_store_dwordx4 {vr(vD0)}, v{vZA}, s[{rWS}:{rWS+3}], 0 offen",
            f"buffer_store_dwordx4 {vr(vD2)}, v{vZA}, s[{rWS}:{rWS+3}], s{sTMP} offen")
    A("s_mov_b64 exec, -1")
    stamp("zpub")
    A("L_final:")

    def side_paths():
        A("L_f2skip:")
        warm(24)
        A("s_branch L_final")
        A("L_noffn:")
        A(f"ds_write_b32 v{vHW}, v{vP} offset:{L_HS}")
        A("s_waitcnt lgkmcnt(0)")
        A("s_branch L_final")
    near.append(side_paths)
    A(f"s_mul_i32 s{sTMP}, s{sR}, {ZSTR}")
    A(f"s_add_u32 s{sTMP}, s{sTMP}, {WS_ZP}")
    A(f"s_cmp_lg_u32 s{sWV}, {fw}")
    A("s_barrier")
    A("s_cbranch_scc1 L_fin")
    A(f"ds_read_u16 v{vXR}, v{vFC} offset:{L_HS}")

    def c_issue(g):
        for t in range(2):
            A(f"buffer_load_dwordx4 {vr(g+4*t)}, v{vL16}, s[{rWS}:{rWS+3}], s{sTMP} offen offset:{1024*t} sc1")
        for k in range(4):
            A(f"v_mov_b32 v{g+8+k}, v{vTG+k}")
        A("s_and_b32 exec_hi, exec_hi, 0xffff")
        A("s_cbranch_execz L_c_skip")
        A(f"buffer_load_dwordx4 {vr(g+8)}, v{vL16}, s[{rWS}:{rWS+3}], s{sTMP} offen offset:2048 sc1")
        A("L_c_skip:")
        A("s_mov_b64 exec, vcc")
    pollm("c", c_issue, 3)
    stamp("hopC")
    pk("add", g0, g0, g0 + 4)
    pk("add", g0 + 2, g0 + 2, g0 + 6)
    pk("add", g0, g0, g0 + 8)
    pk("add", g0 + 2, g0 + 2, g0 + 10)
    A("s_waitcnt lgkmcnt(0)")
    A(f"v_lshlrev_b32 v{vXR}, 16, v{vXR}")
    A(f"v_permlane32_swap_b32 v{g0}, v{g0+2}")
    A(f"v_permlane32_swap_b32 v{g0+1}, v{g0+3}")
    pk("add", g0, g0, g0 + 2)
    nop(2)
    A(f"v_permlane16_swap_b32 v{g0}, v{g0+1}")
    A(f"v_add_f32 v{g0}, v{g0}, v{g0+1}")
    nop(2)
    dpp("v_add_f32", g0, g0, g0, "row_ror:8")
    round1(g0)
    A(f"v_add_f32 v{g0}, v{g0}, v{vB2R}")
    round1(g0)
    A(f"v_add_f32 v{g0}, v{g0}, v{vXR}")
    A(f"v_cvt_pk_bf16_f32 v{g0}, v{g0}, v{g0}")
    A("s_mov_b32 exec_lo, 0x00ff00ff")
    A("s_mov_b32 exec_hi, 0x00ff00ff")
    A(f"global_store_short v{vFC}, v{g0}, s[{sOUT}:{sOUT+1}]")
    A(f"s_cmp_lg_u32 s{sR}, 0")
    A("s_cbranch_scc1 L_fin")
    A("s_mov_b64 exec, 1")
    A(f"v_mov_b32 v{vA1}, s{sT}")
    A(f"buffer_store_dword v{vA1}, v{vL8}, s[{rWS}:{rWS+3}], 0 offen offset:{WS_E}")
    A("L_fin:")
    if minT:
        A(f"s_cmp_lg_u32 s2, {minX}")
        A("s_cbranch_scc1 L_nospin")
        A("L_spin:")
        A("s_memrealtime s[98:99]")
        A("s_waitcnt lgkmcnt(0)")
        A("s_sub_u32 s98, s98, s100")
        A(f"s_cmp_lt_u32 s98, {minT*100}")
        A("s_cbranch_scc1 L_spin")
        A("L_nospin:")
    if diag:
        A("s_mov_b64 exec, -1")
        A("s_waitcnt vmcnt(0)")
        stamp("end")
        for _ in range(4):
            A("s_sleep 127")
        for i in range(12):
            A(f"v_mov_b32 v{vK+i}, s{dslot(i)}")
        A(f"v_mov_b32 v{vK+12}, s{sLOC}")
        A(f"v_mov_b32 v{vK+13}, s{sXCC}")
        A(f"s_lshl_b32 s{sTMP}, s2, 3")
        A(f"s_add_u32 s{sTMP}, s{sTMP}, s{sWV}")
        A(f"s_lshl_b32 s{sTMP}, s{sTMP}, 6")
        A(f"s_add_u32 s{sTMP}, s{sTMP}, {WS_DIAG}")
        A(f"v_mov_b32 v{vA0}, 0")
        A("s_mov_b64 exec, 1")
        for i in range(4):
            A(f"buffer_store_dwordx4 {vr(vK+4*i)}, v{vA0}, s[{rWS}:{rWS+3}], s{sTMP} offen offset:{16*i}")
    A("s_endpgm")
    for c in near:
        c()
    A("L_tailend:")

    if "roles" not in strip:
        A("L_s_w:")
        stream("w", dw)
        A("s_branch L_tail")
        A("L_s_f:")
        stream("f", df)
        A("s_branch L_tail")

    A("L_qwave:")
    vXS, vXA, vW = vTMP, vTMP + 8, vV
    vY, vAB = vV + 64, vK + 64
    assert k0 <= 16
    A(f"v_lshrrev_b32 v{vA0}, 3, v{vC}")
    A(f"v_lshlrev_b32 v{vA0}, 10, v{vA0}")
    A(f"v_and_b32 v{vA1}, 7, v{vC}")
    A(f"v_lshl_add_u32 v{vA1}, v{vG}, 3, v{vA1}")
    A(f"v_lshl_add_u32 v{vA1}, v{vA1}, 5, v{vA0}")
    A(f"v_lshl_add_u32 v{vA0}, v{vG}, 5, v{vA0}")
    A(f"s_lshl_b32 s{sTMP}, s{sS}, 7")
    A(f"v_add_u32 v{vA0}, s{sTMP}, v{vA0}")
    A(f"global_load_dwordx4 {vr(vXS)}, v{vA1}, s[{sX}:{sX+1}]")
    A(f"global_load_dwordx4 {vr(vXS+4)}, v{vA1}, s[{sX}:{sX+1}] offset:16")
    A(f"global_load_dwordx4 {vr(vXA)}, v{vA0}, s[{sX}:{sX+1}]")
    A(f"global_load_dwordx4 {vr(vXA+4)}, v{vA0}, s[{sX}:{sX+1}] offset:16")
    srd(rT, sWQ, 0 if "wq" in now else 0x400000)
    A(f"s_lshl_b32 s{sTMP}, s{sS}, 19")
    A(f"s_lshl_b32 s{sTMP2}, s{sH}, 8")
    A(f"s_add_u32 s{sTMP}, s{sTMP}, s{sTMP2}")
    A(f"v_lshlrev_b32 v{vA2}, 17, v{vG}")
    A(f"v_lshl_add_u32 v{vA2}, v{vC}, 4, v{vA2}")
    for j in range(16):
        A(f"buffer_load_dwordx4 {vr(vW+4*j)}, v{vA2}, s[{rT}:{rT+3}], s{sTMP} offen{wqfl}")
        if j < 15:
            A(f"s_add_u32 s{sTMP}, s{sTMP}, 8192")
    A(f"v_lshlrev_b32 v{vA0}, 2, v{vC}")
    A(f"v_mov_b32 v{vA1}, -1")
    A(f"ds_write_b32 v{vA0}, v{vA1} offset:{L_ML}")
    A(f"v_lshlrev_b32 v{vA0}, 2, v{vL}")
    A(f"ds_write_b32 v{vA0}, v{vA1} offset:{L_Q}")
    A("s_waitcnt lgkmcnt(0)")
    common_setup()
    for i in range(k0):
        kload(i)
    A("s_barrier")
    make_masks()
    A(f"v_mov_b32 v{vA0}, 0x3f803f80")
    A(f"s_waitcnt vmcnt({18+k0})")
    for i in range(8):
        A(f"v_dot2_f32_bf16 v{s0}, v{vXS+i}, v{vA0}, " + ("0" if i == 0 else f"v{s0}"))
        A(f"v_dot2_f32_bf16 v{s1}, v{vXS+i}, v{vXS+i}, " + ("0" if i == 0 else f"v{s1}"))
    nop(3)
    for ctl in (X1, X2, HM):
        dpp("v_add_f32", s0, s0, s0, ctl)
        dpp("v_add_f32", s1, s1, s1, ctl)
        nop(1)
    for sw_ in ("v_permlane16_swap_b32", "v_permlane32_swap_b32"):
        A(f"v_mov_b32 v{vA0}, v{s0}")
        A(f"v_mov_b32 v{vA1}, v{s1}")
        nop(2)
        A(f"{sw_} v{s0}, v{vA0}")
        A(f"{sw_} v{s1}, v{vA1}")
        A(f"v_add_f32 v{s0}, v{s0}, v{vA0}")
        A(f"v_add_f32 v{s1}, v{s1}, v{vA1}")
    ln_stats(s0, s1)
    A(f"s_waitcnt vmcnt({16+k0})")
    unpack(vY, vXA, 8)
    for i in range(0, 16, 2):
        pk("add", vY + i, vY + i, s0, extra=" op_sel_hi:[1,0] neg_lo:[0,1] neg_hi:[0,1]")
    round_bf16([vY + i for i in range(16)], vXS)
    for i in range(0, 16, 2):
        pk("mul", vY + i, vY + i, s0, extra=" op_sel:[0,1]")
    for i in range(16):
        A(f"v_cvt_pk_bf16_f32 v{vY+i}, v{vY+i}, v{vY+i}")
    for j in range(16):
        for k in range(4):
            A(f"v_and_b32 v{vAB+4*j+k}, v{vMK+k}, v{vY+j}")
    epoch()
    for j in range(16):
        A(f"s_waitcnt vmcnt({15-j+k0})")
        mfma(vACC, vAB + 4 * j, vW + 4 * j, None if j == 0 else vACC)
    A(f"v_lshrrev_b32 v{vA0}, 5, v{vL}")
    A(f"v_lshlrev_b32 v{vA0}, 12, v{vA0}")
    A(f"v_and_b32 v{vA1}, 31, v{vL}")
    A(f"v_lshl_add_u32 v{vA0}, v{vA1}, 4, v{vA0}")
    A(f"s_lshl_b32 s{sTMP}, s{sH}, 13")
    A(f"s_lshl_b32 s{sTMP2}, s{sS}, 9")
    A(f"s_add_u32 s{sTMP}, s{sTMP}, s{sTMP2}")
    A(f"s_add_u32 s{sTMP}, s{sTMP}, {WS_QP}")
    A(f"s_lshl_b32 s{sTMP2}, s{sID}, 2")
    A(f"s_add_u32 s{sTMP2}, s{sTMP2}, {WS_XC}")
    A(f"v_mov_b32 v{vA1}, s{sXW}")
    A(f"v_mov_b32 v{vA2}, 0")
    tag4(vACC)
    A(f"buffer_store_dwordx4 {vr(vACC)}, v{vA0}, s[{rWS}:{rWS+3}], s{sTMP} offen sc1")
    A("s_mov_b64 exec, 1")
    A(f"buffer_store_dword v{vA1}, v{vA2}, s[{rWS}:{rWS+3}], s{sTMP2} offen sc1")
    A("s_mov_b64 exec, -1")
    stamp("qpub")
    A("s_branch L_join")

    for c in cold:
        c()
    A("L_end:")
    A("s_endpgm")
    L.append('.section .rodata,"a"')
    L.append(".p2align 6")
    L.append(f".amdhsa_kernel {NAME}_kernel")
    L.append("  .amdhsa_next_free_vgpr 256")
    L.append("  .amdhsa_next_free_sgpr 102")
    L.append("  .amdhsa_accum_offset 256")
    L.append("  .amdhsa_group_segment_fixed_size 0")
    L.append("  .amdhsa_kernarg_size 104")
    L.append("  .amdhsa_user_sgpr_count 2")
    L.append("  .amdhsa_user_sgpr_kernarg_segment_ptr 1")
    L.append("  .amdhsa_system_sgpr_workgroup_id_x 1")
    L.append("  .amdhsa_float_denorm_mode_32 3")
    L.append(".end_amdhsa_kernel")
    return "\n".join(L) + "\n", stamps


if __name__ == "__main__":
    header = open("cdna_kernels/" + NAME + ".s.ref").read().split("; Override launch")[0]
    kw = eval("dict(" + (sys.argv[2] if len(sys.argv) > 2 else "") + ")")
    src, _ = gen(**kw)
    open(sys.argv[1], "w").write(header + src)
```

```python
import sys
NAME = "sequential_preLN__mha_block_cached__dense_activation_squared_relu__decode"

WS_E = 0
WS_XC = 0x1000
WS_YP = 0x2000
WS_QP = 0x40000
WS_OP = 0x80000
WS_ZP = 0xB0000
ZSTR = 3200
WS_ML = 0xA0000
WS_DIAG = 0x100000
WS_SIZE = 0x200000
OOB = 0x40000000
L_OW = 0
L_F1 = 4096
L_CS = 8192
L_HS = 12288
L_ML = L_HS + 2048
L_ST = L_ML + 64
L_Q = L_ST + 192
L_WA = 16384
L_WB = L_WA + 65536
LDS_BYTES = L_WB + 65536
assert L_Q + 256 <= L_WA and L_Q % 16 == 0

LOG2E = 0x3fb8aa3b
SCALE = 0x3db504f3
EPS = 0x3727c5ac
PFL = 7
NF = 22
NW0 = 22


def gen(diag=False, only=None, local=True, minT=0, strip=(), now=(),
        dn=3, dw=3, df=4, k0=7, k1=4, pq=18, pq2=25, qw=1, sw=3, fw=7,
        p1=8, p2=20, prew=22, pf=1, pf2=20, fg=0,
        w0=2, wstep=6, f0=1, fstep=5, late=4, wsub=1, mx=None, dum=2, rot=(1, 0), fill=0, pfa=0, pfb=0, rsq=0, yw=0, pipe=0, sb=0, sbn=0, sa=0, lov=1, yp=0x8000, ysh=12, minX=None, gperm=None, bar0=2, mid=4, shn=None, bw=None, mim=0, wmid=4, wlate=4, npf=0, fbar=0, cdel=0, fheavy=1, wheavy=0,
        boost=(0, 0, 0, 0, 0, 0, 0, 0), bpos=8, mn=(0, 0), mw=(0xffffffff00000000, 0xffffffff00000000), mf=0, m3=0xfffffffffff00000, masks=1,
        kvfl=" nt", wfl=" nt", wqfl=" nt", sleep=0):
    L = []

    def A(s):
        L.append("    " + s if not s.endswith(":") else s)

    def nop(n):
        if n > 0:
            A(f"s_nop {n-1}")

    def vr(a, n=4):
        return f"v[{a}:{a+n-1}]"

    sU1 = 4
    sDM = 6
    sX, sK, sV, sWQ, sWO, sW1, sB1, sW2, sB2, sOUT, sWS = 8, 10, 12, 14, 16, 20, 22, 24, 26, 28, 32
    sPC = 34
    rK, rV, rWS, rT = 36, 40, 44, 48
    sGX, sR, sH, sS, sB, sWV = 52, 53, 54, 55, 56, 57
    sT, sT0, sT1, sT2, sT3 = 58, 59, 60, 61, 62
    sLOC, sCNT, sTMP, sTMP2, sXW = 63, 64, 65, 66, 67
    sTILE = 68
    sID = 76
    sXCC = 77
    sU0 = 78
    sD1, sD2, sD3 = 80, 81, 82
    sQO, sCB, sML = 83, 84, 85
    sEX = 86
    sOOB = 3
    sST = 88
    rB = 96
    Tk = [sT0, sT1, sT2, sT3]

    vL, vG, vC = 1, 2, 3
    vKV = 4
    vA0, vA1, vA2 = 5, 6, 7
    vQ = 8
    vMK = 12
    vACC = 16
    vS = 20
    vFF = 28
    vM = 29
    vT0, vT1 = 30, 31
    vTMP = 32
    vK = 48
    vV = 176
    NRING = 20
    vDA = 0
    vW1 = vK
    vW2 = vK + 32
    vF = vK + 64
    vMT = vK + 72
    vXR = vK + 76
    vB1R = vK + 78
    vCS = vK + 80
    vTa, vTb = vK + 82, vK + 83
    vB2R = vK + 84
    vL8 = vK + 85
    vAA = vK + 86
    vYR = vK + 88
    vFW = vK + 89
    vSA = vK + 90
    vSR = vK + 91
    vZA = vK + 92
    vFC = vK + 93
    vMLA = vK + 94
    vRHO = vK + 95
    vONE = vK + 96
    vVAL = vK + 97
    vOWA = vK + 98
    vDUM = vK + 99
    vMLG = vK + 100
    vMLW = vK + 104
    vG16 = vK + 106
    vHW = vK + 107
    vD0, vD1 = vK + 108, vK + 112
    vP = vK + 116
    vL16 = vK + 118
    vFR = vK + 119
    vMLS = vK + 87
    vD2, vD3 = vK + 120, vK + 124
    vTG = vK + 100
    vBA = vK + 104
    vYS = vK + 105
    vEPS = vK + 88
    vMT2 = vK + 64
    g0 = vTMP
    vBM = 8
    vW2b = vV
    gA, gB = vV + 32, vV + 48
    st = vV + 64

    stamps = []

    def stamp(name):
        if not diag:
            return
        if only is not None and name not in only and name not in ("strm", "end"):
            return
        if only is None and name.startswith("_"):
            return
        if name not in stamps:
            stamps.append(name)
        i = stamps.index(name)
        assert i < 12
        A(f"s_memrealtime s[{sEX+0}:{sEX+1}]")
        A("s_waitcnt lgkmcnt(0)")
        A(f"v_writelane_b32 v{vK+127}, s{sEX}, {i}") if False else A(f"s_mov_b32 s{dslot(i)}, s{sEX}")

    def dslot(i):
        return ([88 + k for k in range(8)] + [100, 101, 18, 19])[i]

    def srd(r, p, size):
        A(f"s_mov_b32 s{r}, s{p}")
        A(f"s_mov_b32 s{r+1}, s{p+1}")
        A(f"s_mov_b32 s{r+2}, {size}")
        A(f"s_mov_b32 s{r+3}, 0x20000")

    def tag4(base):
        for k in range(4):
            A(f"v_bfi_b32 v{base+k}, v{vFF}, s{Tk[k]}, v{base+k}")

    def tag2(base):
        A(f"v_bfi_b32 v{base}, v{vFF}, v{vTa}, v{base}")
        A(f"v_bfi_b32 v{base+1}, v{vFF}, v{vTb}, v{base+1}")

    def filler(n):
        if fill:
            for i in range(n):
                A(f"v_mov_b32 v{vM}, v{vFF}")
        else:
            nop(n)

    def warm(n):
        if fill:
            filler(n)

    def untag4(regs, acc, vt=False, src=None):
        for j, b in enumerate(regs):
            for k in range(4):
                t = f"v{vTG+k}" if vt else f"s{Tk[k]}"
                A(f"v_xor_b32 v{b+k}, {t}, v{(b if src is None else src[j])+k}")
        flat = [b + k for b in regs for k in range(4)]
        A(f"v_or3_b32 v{acc}, v{flat[0]}, v{flat[1]}, v{flat[2]}")
        rest = flat[3:]
        while len(rest) >= 2:
            A(f"v_or3_b32 v{acc}, v{acc}, v{rest[0]}, v{rest[1]}")
            rest = rest[2:]
        if rest:
            A(f"v_or_b32 v{acc}, v{acc}, v{rest[0]}")
        A(f"v_cmp_ne_u32_sdwa vcc, v{acc}, 0 src0_sel:BYTE_0 src1_sel:DWORD")

    cold = []
    near = []

    def poll_rare(name, issue, untag):
        A(f"s_mov_b32 s{sCNT}, 0x4000")
        A(f"L_{name}_chk:")
        untag()
        A(f"s_cbranch_vccnz L_{name}_again")
        A(f"L_{name}_ok:")

        def retry():
            A(f"L_{name}_again:")
            A(f"s_sub_u32 s{sCNT}, s{sCNT}, 1")
            A(f"s_cbranch_scc1 L_{name}_ok")
            A("s_sleep 2")
            issue()
            A("s_waitcnt vmcnt(0)")
            A(f"s_branch L_{name}_chk")
        cold.append(retry)

    def pollm(name, issue, n, nfill=0, pre=None):
        regs = [g0 + 4 * i for i in range(n)]
        A(f"s_mov_b32 s{sCNT}, 0x8000")
        A("s_mov_b64 vcc, -1")
        if pre:
            pre()
        if not (pipe and name in "ab"):
            A(f"L_{name}_again:")
            A("s_mov_b64 exec, vcc")
            issue(g0)
            A(f"s_sub_u32 s{sCNT}, s{sCNT}, 1")
            A(f"s_cbranch_scc1 L_{name}_ok")
            warm(nfill)
            A(f"L_{name}_chk:")
            A("s_waitcnt vmcnt(0)")
            untag4(regs, vT0, vt=True)
            sl = {"a": sa, "b": sb}.get(name, 0)
            if sl or (name == "b" and sbn):
                A(f"s_cbranch_vccnz L_{name}_nap")

                def nap():
                    A(f"L_{name}_nap:")
                    if sl:
                        A(f"s_sleep {sl}")
                    if name == "b" and sbn:
                        A(f"s_cmp_lt_u32 s{sR}, {NF}")
                        A(f"s_cbranch_scc1 L_{name}_again")
                        A(f"s_sleep {sbn}")
                    A(f"s_branch L_{name}_again")
                near.append(nap)
            else:
                A(f"s_cbranch_vccnz L_{name}_again")
        else:
            issue(gA)
            A(f"L_{name}_again:")
            A("s_mov_b64 exec, vcc")
            issue(gB)
            A(f"s_sub_u32 s{sCNT}, s{sCNT}, 1")
            A(f"s_cbranch_scc1 L_{name}_ok")
            A(f"s_waitcnt vmcnt({n})")
            untag4(regs, vT0, vt=True, src=[gA + 4 * i for i in range(n)])
            A(f"s_cbranch_vccz L_{name}_ok")
            A("s_mov_b64 exec, vcc")
            issue(gA)
            A(f"s_waitcnt vmcnt({n})")
            untag4(regs, vT0, vt=True, src=[gB + 4 * i for i in range(n)])
            A(f"s_cbranch_vccnz L_{name}_again")
        A(f"L_{name}_ok:")
        A("s_mov_b64 exec, -1")

    def publish(name, *lines, farfirst=False):
        A(f"s_cbranch_scc{0 if farfirst else 1} L_{name}_alt")
        for line in lines:
            A(line + (" sc1" if farfirst else ""))
        A(f"s_branch L_{name}_pub")
        A(f"L_{name}_alt:")
        for line in lines:
            A(line + ("" if farfirst else " sc1"))
        A(f"L_{name}_pub:")

    def dpp(op, d, s0, s1, ctl, bank=0xf, row=0xf):
        if s1 is None:
            A(f"{op}_dpp v{d}, v{s0} {ctl} row_mask:{hex(row)} bank_mask:{hex(bank)}")
        else:
            A(f"{op}_dpp v{d}, v{s0}, v{s1} {ctl} row_mask:{hex(row)} bank_mask:{hex(bank)}")

    X1, X2, HM = "quad_perm:[1,0,3,2]", "quad_perm:[2,3,0,1]", "row_half_mirror"

    def qb(k):
        return f"quad_perm:[{k},{k},{k},{k}]"

    def round_bf16(regs, tmp):
        for i in range(0, len(regs), 2):
            A(f"v_cvt_pk_bf16_f32 v{tmp+i//2}, v{regs[i]}, v{regs[i+1]}")
        for i in range(0, len(regs), 2):
            A(f"v_lshlrev_b32 v{regs[i]}, 16, v{tmp+i//2}")
            A(f"v_and_b32 v{regs[i+1]}, 0xffff0000, v{tmp+i//2}")

    def round2(r):
        A(f"v_cvt_pk_bf16_f32 v{r+1}, v{r}, v{r+1}")
        A(f"v_lshlrev_b32 v{r}, 16, v{r+1}")
        A(f"v_and_b32 v{r+1}, 0xffff0000, v{r+1}")

    def round1(r):
        A(f"v_cvt_pk_bf16_f32 v{r}, v{r}, v{r}")
        A(f"v_lshlrev_b32 v{r}, 16, v{r}")

    def unpack(dst, src, n):
        for i in range(n):
            A(f"v_lshlrev_b32 v{dst+2*i}, 16, v{src+i}")
            A(f"v_and_b32 v{dst+2*i+1}, 0xffff0000, v{src+i}")

    def pk(op, d, a, b, c=None, extra=""):
        if c is None:
            A(f"v_pk_{op}_f32 {vr(d,2)}, {vr(a,2)}, {vr(b,2)}{extra}")
        else:
            A(f"v_pk_{op}_f32 {vr(d,2)}, {vr(a,2)}, {vr(b,2)}, {vr(c,2)}{extra}")

    def sum8(g, out=None):
        for i in range(4):
            pk("add", g + 4 * i, g + 4 * i, g + 4 * i + 2)
        pk("add", g, g, g + 4)
        pk("add", g + 8, g + 8, g + 12)
        pk("add", g if out is None else out, g, g + 8)

    def ln_stats(vsum, vsq):
        A(f"v_mul_f32 v{vsum}, 0x3b000000, v{vsum}")
        A(f"v_mul_f32 v{vsq}, 0x3b000000, v{vsq}")
        A(f"v_fma_f32 v{vsq}, -v{vsum}, v{vsum}, v{vsq}")
        A(f"v_max_f32 v{vsq}, 0, v{vsq}")
        A(f"v_cvt_pk_bf16_f32 v{vsq}, v{vsum}, v{vsq}")
        A(f"v_lshlrev_b32 v{vsum}, 16, v{vsq}")
        A(f"v_and_b32 v{vsq}, 0xffff0000, v{vsq}")
        A(f"v_add_f32 v{vsq}, {hex(EPS)}, v{vsq}")
        round1(vsq)
        A(f"v_sqrt_f32 v{vsq}, v{vsq}")
        nop(1)
        round1(vsq)
        A(f"v_rcp_f32 v{vsq}, v{vsq}")
        nop(1)

    def mfma(d, a, b, c):
        A(f"v_mfma_f32_16x16x32_bf16 {vr(d)}, {vr(a)}, {vr(b)}, " + ("0" if c is None else vr(c)))

    def matvec64(blocks, extra=(), vMT=vMT):
        extra = list(extra)

        def f():
            if extra:
                extra.pop(0)()

        def ands(tau, ks):
            for k in ks:
                dpp("v_and_b32", vBM + 4 * tau + k, vP, vMT + tau, qb(k))
        ands(0, range(4))
        f()
        ands(1, range(2))
        for tau in range(4):
            for bi, (w, d0, d1) in enumerate(blocks):
                mfma(d1, w + 8 * tau + 4, vBM + 4 * tau, None if tau == 0 else d1)
                if bi == 0 and tau < 3:
                    ands(tau + 1, range(2, 4))
                    f()
                mfma(d0, w + 8 * tau, vBM + 4 * tau, None if tau == 0 else d0)
                if bi == 0 and tau < 2:
                    ands(tau + 2, range(2))
                if bi == 0 and tau < 3:
                    had = bool(extra)
                    f()
                    if tau == 2 and len(blocks) == 1 and not had:
                        filler(1)
        assert not extra

    def kload(i):
        t, j = divmod(i, 4)
        A(f"buffer_load_dwordx4 {vr(vK+4*i)}, v{vKV}, s[{rK}:{rK+3}], s{sTILE+t} offen offset:{j*1024}{kvfl}")

    def vreg(i):
        return vV + 4 * (i % NRING)

    def vload(i):
        t, j = divmod(i, 4)
        A(f"buffer_load_dwordx4 {vr(vreg(i))}, v{vKV}, s[{rV}:{rV+3}], s{sTILE+t} offen offset:{j*1024}{kvfl}")

    def make_masks():
        A(f"v_and_b32 v{vA0}, 1, v{vL}")
        A(f"v_lshlrev_b32 v{vA0}, 4, v{vA0}")
        A(f"v_mov_b32 v{vA1}, 0xffff")
        A(f"v_lshlrev_b32 v{vA1}, v{vA0}, v{vA1}")
        A(f"v_bfe_u32 v{vA0}, v{vL}, 1, 2")
        for j in range(4):
            A(f"v_cmp_eq_u32 vcc, {j}, v{vA0}")
            nop(2)
            A(f"v_cndmask_b32 v{vMK+j}, 0, v{vA1}, vcc")

    def epoch():
        A("s_waitcnt lgkmcnt(0)")
        if diag:
            for i in range(1, 12):
                A(f"s_mov_b32 s{dslot(i)}, 0")
            A(f"s_mov_b32 s{dslot(0)}, s{sEX}")
        srd(rV, sV, 0x4000000)
        A(f"s_add_u32 s{sT}, s{sT}, 0x01010101")
        A(f"s_and_b32 s{sT0}, s{sT}, 0xff")
        A(f"s_bfe_u32 s{sT1}, s{sT}, 0x80008")
        A(f"s_bfe_u32 s{sT2}, s{sT}, 0x80010")
        A(f"s_lshr_b32 s{sT3}, s{sT}, 24")
        A(f"s_lshl_b32 s{sXW}, s{sXCC}, 28")
        A(f"s_add_u32 s{sXW}, s{sXW}, s{sT}")

    def code_prefetch(dst, first, last, lanes):
        A(f"v_lshlrev_b32 v{dst}, 5, v{vL}")
        A(f"v_add_u32 v{dst}, s{sR}, v{dst}")
        A(f"v_lshlrev_b32 v{dst}, 7, v{dst}")
        A(f"v_add_u32 v{dst}, {first} - L_pc, v{dst}")
        A(f"v_min_u32 v{dst}, {last} - L_pc, v{dst}")
        A(f"s_mov_b64 exec, {(1 << lanes) - 1}")
        A(f"global_load_dword v{dst}, v{dst}, s[{sPC}:{sPC+1}]")
        A("s_mov_b64 exec, -1")

    def role_ops(name, wave, real, n, dst):
        if dum == 0:
            real()
            return n
        A(f"s_cmp_eq_u32 s{sWV}, {wave}")
        if dum == 2:
            A(f"s_cbranch_scc0 L_{name}_j")
            real()
            A(f"L_{name}_j:")
            return 0
        A(f"s_cbranch_scc1 L_{name}_r")
        for _ in range(n):
            A(f"buffer_load_ubyte v{dst}, off, s[{rWS}:{rWS+3}], s{sOOB}")
        A(f"L_{name}_j:")

        def out():
            A(f"L_{name}_r:")
            real()
            A(f"s_branch L_{name}_j")
        cold.append(out)
        return n

    def role_offset(sreg, wave):
        A(f"s_cmp_eq_u32 s{sWV}, {wave}")
        A(f"s_cselect_b32 s{sreg}, s{sreg}, {OOB}")

    L.append(f"; @launch grid=(256,1,1) block=(512,1,1) lds={LDS_BYTES}")
    L.append('.amdgcn_target "amdgcn-amd-amdhsa--gfx950"')
    L.append(".text")
    L.append(f".globl {NAME}_kernel")
    L.append(".p2align 8")
    L.append(f".type {NAME}_kernel,@function")
    L.append(f"{NAME}_kernel:")
    sBASE = sD2
    A(f"s_load_dwordx2 s[{rK}:{rK+1}], s[0:1], 8")
    A("s_load_dwordx2 s[32:33], s[0:1], 96")
    A(f"s_lshr_b32 s{sR}, s2, 3")
    A(f"s_cmp_ge_u32 s{sR}, 32")
    A("s_cbranch_scc1 L_end")
    A(f"s_getpc_b64 s[{sPC}:{sPC+1}]")
    A("L_pc:")
    if minT:
        A("s_memrealtime s[100:101]")
    if diag:
        A(f"s_memrealtime s[{sEX}:{sEX+1}]")
    if pf:
        A(f"v_lshl_add_u32 v{vT0}, v0, 5, s{sR}")
        A(f"v_cmp_gt_u32 vcc, {PFL}, v0")
        A(f"v_lshlrev_b32 v{vT0}, 7, v{vT0}")
        A("s_and_b64 exec, exec, vcc")
        A("s_cbranch_scc0 L_nopf")
        A(f"global_load_dword v{vT0}, v{vT0}, s[{sPC}:{sPC+1}]")
        A("L_nopf:")
        A("s_mov_b64 exec, -1")
    A(f"v_lshrrev_b32 v{vA0}, 6, v0")
    A(f"v_and_b32 v{vL}, 63, v0")
    A(f"v_lshlrev_b32 v{vKV}, 12, v{vA0}")
    A(f"v_lshl_add_u32 v{vKV}, v{vL}, 4, v{vKV}")
    A(f"s_xor_b32 s{sGX}, s2, {fg}")
    A(f"s_and_b32 s{sGX}, s{sGX}, 7")
    A(f"s_lshl_b32 s{sID}, s{sGX}, 5")
    A(f"s_add_u32 s{sID}, s{sID}, s{sR}")
    A(f"s_lshr_b32 s{sH}, s{sID}, 3")
    A(f"s_lshl_b32 s{sBASE}, s{sH}, 20")
    A(f"s_and_b32 s{sTMP}, s{sR}, 3")
    A(f"s_lshl_b32 s{sTMP}, s{sTMP}, 18")
    A(f"s_or_b32 s{sBASE}, s{sBASE}, s{sTMP}")
    A(f"s_and_b32 s{sB}, s{sR}, 4")
    A(f"s_lshl_b32 s{sTMP}, s{sB}, 23")
    A(f"s_or_b32 s{sBASE}, s{sBASE}, s{sTMP}")
    A(f"s_and_b32 s{sS}, s{sR}, 7")
    A(f"s_lshl_b32 s{sD1}, s{sS}, 15")
    A(f"s_or_b32 s{sTILE}, s{sBASE}, s{sD1}")
    A(f"s_brev_b32 s{rK+2}, 32")
    A(f"s_mov_b32 s{rK+3}, 0x20000")
    A(f"v_readfirstlane_b32 s{sWV}, v{vA0}")
    A("s_waitcnt lgkmcnt(0)")
    for i in range(k1):
        kload(i)
    A(f"v_lshrrev_b32 v{vG}, 4, v{vL}")
    A(f"v_and_b32 v{vC}, 15, v{vL}")
    A(f"s_cmp_lg_u32 s{sWV}, 0")
    A("s_cbranch_scc1 L_rest")
    A("s_load_dwordx8 s[8:15], s[0:1], 0")

    def more_args(first):
        A(f"s_load_dword s{sT}, s[{sWS}:{sWS+1}], {WS_E}")
        if first:
            A("s_load_dwordx8 s[8:15], s[0:1], 0")
        A("s_load_dwordx16 s[16:31], s[0:1], 32")

    def common_setup():
        for t in range(1, 8):
            A(f"s_add_u32 s{sTILE+t}, s{sD1}, {t * 32768}")
            A(f"s_and_b32 s{sTILE+t}, s{sTILE+t}, 0x3ffff")
            A(f"s_or_b32 s{sTILE+t}, s{sTILE+t}, s{sBASE}")
        A(f"v_mov_b32 v{vFF}, 0xff")
        A(f"s_getreg_b32 s{sXCC}, hwreg(HW_REG_XCC_ID, 0, 4)")
        srd(rWS, sWS, WS_SIZE)
    if diag:
        stamps.append("start")
    s0, s1 = vT0, vT1
    A("L_qwave:")
    vXS, vXA, vW = vTMP, vTMP + 8, vV
    vY, vAB = vV + 64, vK + 64
    assert k0 <= 16
    A(f"v_lshrrev_b32 v{vA0}, 3, v{vC}")
    A(f"v_lshlrev_b32 v{vA0}, 10, v{vA0}")
    A(f"v_and_b32 v{vA1}, 7, v{vC}")
    A(f"v_lshl_add_u32 v{vA1}, v{vG}, 3, v{vA1}")
    A(f"v_lshl_add_u32 v{vA1}, v{vA1}, 5, v{vA0}")
    A(f"v_lshl_add_u32 v{vA0}, v{vG}, 5, v{vA0}")
    A(f"s_lshl_b32 s{sTMP}, s{sS}, 7")
    A(f"v_add_u32 v{vA0}, s{sTMP}, v{vA0}")
    A("s_waitcnt lgkmcnt(0)")
    A(f"global_load_dwordx4 {vr(vXS)}, v{vA1}, s[{sX}:{sX+1}]")
    A(f"global_load_dwordx4 {vr(vXS+4)}, v{vA1}, s[{sX}:{sX+1}] offset:16")
    A(f"global_load_dwordx4 {vr(vXA)}, v{vA0}, s[{sX}:{sX+1}]")
    A(f"global_load_dwordx4 {vr(vXA+4)}, v{vA0}, s[{sX}:{sX+1}] offset:16")
    srd(rT, sWQ, 0 if "wq" in now else 0x400000)
    A(f"s_lshl_b32 s{sTMP}, s{sS}, 19")
    A(f"s_lshl_b32 s{sTMP2}, s{sH}, 8")
    A(f"s_add_u32 s{sTMP}, s{sTMP}, s{sTMP2}")
    A(f"v_lshlrev_b32 v{vA2}, 17, v{vG}")
    A(f"v_lshl_add_u32 v{vA2}, v{vC}, 4, v{vA2}")
    for j in range(16):
        A(f"buffer_load_dwordx4 {vr(vW+4*j)}, v{vA2}, s[{rT}:{rT+3}], s{sTMP} offen{wqfl}")
        if j < 15:
            A(f"s_add_u32 s{sTMP}, s{sTMP}, 8192")
    A(f"v_lshlrev_b32 v{vA0}, 2, v{vC}")
    A(f"v_mov_b32 v{vA1}, -1")
    A(f"ds_write_b32 v{vA0}, v{vA1} offset:{L_ML}")
    A(f"v_lshlrev_b32 v{vA0}, 2, v{vL}")
    A(f"ds_write_b32 v{vA0}, v{vA1} offset:{L_Q}")
    common_setup()
    for i in range(k1, k0):
        kload(i)
    A("s_waitcnt lgkmcnt(0)")
    more_args(False)
    if bar0:
        A("s_barrier")
    make_masks()
    A(f"v_mov_b32 v{vA0}, 0x3f803f80")
    A(f"s_waitcnt vmcnt({18+k0-k1})")
    for i in range(8):
        A(f"v_dot2_f32_bf16 v{s0}, v{vXS+i}, v{vA0}, " + ("0" if i == 0 else f"v{s0}"))
        A(f"v_dot2_f32_bf16 v{s1}, v{vXS+i}, v{vXS+i}, " + ("0" if i == 0 else f"v{s1}"))
    nop(3)
    for ctl in (X1, X2, HM):
        dpp("v_add_f32", s0, s0, s0, ctl)
        dpp("v_add_f32", s1, s1, s1, ctl)
        nop(1)
    for sw_ in ("v_permlane16_swap_b32", "v_permlane32_swap_b32"):
        A(f"v_mov_b32 v{vA0}, v{s0}")
        A(f"v_mov_b32 v{vA1}, v{s1}")
        nop(2)
        A(f"{sw_} v{s0}, v{vA0}")
        A(f"{sw_} v{s1}, v{vA1}")
        A(f"v_add_f32 v{s0}, v{s0}, v{vA0}")
        A(f"v_add_f32 v{s1}, v{s1}, v{vA1}")
    ln_stats(s0, s1)
    A(f"s_waitcnt vmcnt({16+k0-k1})")
    unpack(vY, vXA, 8)
    for i in range(0, 16, 2):
        pk("add", vY + i, vY + i, s0, extra=" op_sel_hi:[1,0] neg_lo:[0,1] neg_hi:[0,1]")
    round_bf16([vY + i for i in range(16)], vXS)
    for i in range(0, 16, 2):
        pk("mul", vY + i, vY + i, s0, extra=" op_sel:[0,1]")
    for i in range(16):
        A(f"v_cvt_pk_bf16_f32 v{vY+i}, v{vY+i}, v{vY+i}")
    for j in range(16):
        for k in range(4):
            A(f"v_and_b32 v{vAB+4*j+k}, v{vMK+k}, v{vY+j}")
    epoch()
    for j in range(16):
        A(f"s_waitcnt vmcnt({15-j+k0-k1})")
        mfma(vACC, vAB + 4 * j, vW + 4 * j, None if j == 0 else vACC)
    A(f"v_lshrrev_b32 v{vA0}, 5, v{vL}")
    A(f"v_lshlrev_b32 v{vA0}, 12, v{vA0}")
    A(f"v_and_b32 v{vA1}, 31, v{vL}")
    A(f"v_lshl_add_u32 v{vA0}, v{vA1}, 4, v{vA0}")
    A(f"s_lshl_b32 s{sTMP}, s{sH}, 13")
    A(f"s_lshl_b32 s{sTMP2}, s{sS}, 9")
    A(f"s_add_u32 s{sTMP}, s{sTMP}, s{sTMP2}")
    A(f"s_add_u32 s{sTMP}, s{sTMP}, {WS_QP}")
    A(f"s_lshl_b32 s{sTMP2}, s{sID}, 2")
    A(f"s_add_u32 s{sTMP2}, s{sTMP2}, {WS_XC}")
    A(f"v_mov_b32 v{vA1}, s{sXW}")
    A(f"v_mov_b32 v{vA2}, 0")
    tag4(vACC)
    A(f"buffer_store_dwordx4 {vr(vACC)}, v{vA0}, s[{rWS}:{rWS+3}], s{sTMP} offen sc1")
    A("s_mov_b64 exec, 1")
    A(f"buffer_store_dword v{vA1}, v{vA2}, s[{rWS}:{rWS+3}], s{sTMP2} offen sc1")
    A("s_mov_b64 exec, -1")
    stamp("qpub")
    A("s_branch L_join")

    A("L_rest:")
    more_args(True)
    common_setup()
    make_masks()
    if bar0 == 1:
        A("s_barrier")
    for i in range(k1, k0):
        A(f"s_waitcnt vmcnt({k1-1})")
        kload(i)
    if bar0 == 2:
        A("s_barrier")
    epoch()
    A("L_join:")
    stamp("_join")
    A(f"v_cmp_gt_u32 vcc, 8, v{vC}")
    vQA = vA2
    A(f"v_lshlrev_b32 v{vQA}, 4, v{vL}")
    A(f"s_lshl_b32 s{sQO}, s{sH}, 13")
    for j in range(4):
        A(f"v_cndmask_b32 v{vMK+j}, 0, v{vMK+j}, vcc")
    A(f"s_lshl_b32 s{sTMP2}, s{sB}, 10")
    A(f"s_add_u32 s{sQO}, s{sQO}, s{sTMP2}")
    A(f"s_add_u32 s{sQO}, s{sQO}, {WS_QP}")
    role_offset(sQO, qw)
    if masks:
        packed = sum((b // 2) << (4 * w) for w, b in enumerate(boost))
        A(f"s_lshl_b32 s{sTMP}, s{sWV}, 2")
        A(f"s_lshr_b32 s{sTMP}, {hex(packed)}, s{sTMP}")
        A(f"s_and_b32 s{sTMP}, s{sTMP}, 15")
        if mx:
            px = sum((b // 2) << (4 * x) for x, b in enumerate(mx))
            A(f"s_lshl_b32 s{sTMP2}, s{sXCC}, 2")
            A(f"s_lshr_b32 s{sTMP2}, {hex(px)}, s{sTMP2}")
            A(f"s_and_b32 s{sTMP2}, s{sTMP2}, 15")
            A(f"s_add_u32 s{sTMP}, s{sTMP}, s{sTMP2}")
        A(f"s_lshl_b32 s{sTMP}, s{sTMP}, 1")
        A(f"s_bfm_b64 s[{sDM}:{sDM+1}], s{sTMP}, {bpos}")
    A(f"s_mov_b32 s{sOOB}, {OOB}")
    A(f"s_sub_u32 s{sCB}, s{sR}, {NW0}")
    A(f"s_lshl_b32 s{sD3}, s{sWV}, 13")
    if "roles" not in strip:
        A(f"s_cmp_lt_u32 s{sID}, {NF}")
        A("s_cbranch_scc1 L_s_f")
        A(f"s_cmp_lt_u32 s{sCB}, 8")
        A("s_cbranch_scc1 L_s_w")

    def stream(role, depth):
        ops = ["pre"] * k0
        pos = {("K", i): i for i in range(k0)}
        landed = [0]
        heavy = [("K", i) for i in range(k0)]
        if masks:
            m = {"n": mn, "w": mw, "f": (mf, mf)}[role]
            if m[0] or m[1]:
                lo32, hi32 = [x & 0xffffffff for x in m], [x >> 32 for x in m]
                A(f"s_mov_b32 s{sTMP}, {hex(lo32[0])}")
                A(f"s_mov_b32 s{sTMP2}, {hex(hi32[0])}")
                if m[0] != m[1]:
                    A(f"s_bitcmp1_b32 s{sXCC}, 0")
                    A(f"s_cselect_b32 s{sTMP}, {hex(lo32[1])}, s{sTMP}")
                    A(f"s_cselect_b32 s{sTMP2}, {hex(hi32[1])}, s{sTMP2}")
                A(f"s_or_b32 s{sDM}, s{sDM}, s{sTMP}")
                A(f"s_or_b32 s{sDM+1}, s{sDM+1}, s{sTMP2}")
            def spread(counts):
                pat = sum(1 << (10 + 6 * i) for i in range(9))
                A(f"s_lshl_b32 s{sTMP}, s{sWV}, 2")
                A(f"s_lshr_b32 s{sTMP}, {hex(sum(c << (4*w) for w, c in enumerate(counts)))}, s{sTMP}")
                A(f"s_and_b32 s{sTMP}, s{sTMP}, 15")
                A(f"s_mul_i32 s{sTMP}, s{sTMP}, 6")
                A(f"s_bfm_b64 s[{sEX}:{sEX+1}], s{sTMP}, 10")
                A(f"s_and_b32 s{sEX}, s{sEX}, {hex(pat & 0xffffffff)}")
                A(f"s_and_b32 s{sEX+1}, s{sEX+1}, {hex(pat >> 32)}")
            if role == "n" and shn:
                spread(shn)
                A(f"s_not_b64 s[{sDM}:{sDM+1}], s[{sEX}:{sEX+1}]")
            if role == "w" and bw:
                spread(bw)
                A(f"s_or_b64 s[{sDM}:{sDM+1}], s[{sDM}:{sDM+1}], s[{sEX}:{sEX+1}]")
            if role == "w" and m3:
                A(f"s_cmp_eq_u32 s{sCB}, 3")
                A(f"s_cselect_b32 s{sTMP}, {hex(m3 & 0xffffffff)}, 0")
                A(f"s_cselect_b32 s{sTMP2}, {hex(m3 >> 32)}, 0")
                A(f"s_or_b32 s{sDM}, s{sDM}, s{sTMP}")
                A(f"s_or_b32 s{sDM+1}, s{sDM+1}, s{sTMP2}")

        def issue(key, n=1):
            for _ in range(n):
                ops.append(key)
            pos[key] = len(ops) - 1

        def wait_n(n):
            if len(ops) - n > landed[0]:
                A(f"s_waitcnt vmcnt({n})")
                landed[0] = len(ops) - n

        def wait_for(key):
            wait_n(len(ops) - 1 - pos[key])

        def has(key):
            return key in pos and pos[key] < landed[0]

        def q_loads():
            for i in range(4):
                A(f"buffer_load_dwordx4 {vr(vTMP+4*i)}, v{vQA}, s[{rWS}:{rWS+3}], s{sQO} offen offset:{1024*i} sc1")

        def q_finish():
            A(f"s_cmp_lg_u32 s{sWV}, {qw}")
            A(f"s_cbranch_scc1 L_qf{role}")
            poll_rare("q" + role, q_loads, lambda: untag4([vTMP, vTMP + 4, vTMP + 8, vTMP + 12], vT0))
            a = vTMP
            for i in range(0, 8, 2):
                pk("add", a + i, a + i, a + 8 + i)
            pk("add", a, a, a + 4)
            pk("add", a + 2, a + 2, a + 6)
            A(f"v_and_b32 v{vA0}, 1, v{vG}")
            A(f"v_lshlrev_b32 v{vA0}, 3, v{vA0}")
            A(f"v_permlane32_swap_b32 v{a}, v{a+2}")
            A(f"v_permlane32_swap_b32 v{a+1}, v{a+3}")
            A(f"v_lshl_add_u32 v{vA0}, v{vC}, 4, v{vA0}")
            A(f"v_lshrrev_b32 v{vA1}, 1, v{vG}")
            pk("add", a, a, a + 2)
            A(f"v_lshl_add_u32 v{vA0}, v{vA1}, 2, v{vA0}")
            A(f"v_cvt_pk_bf16_f32 v{a}, v{a}, v{a+1}")
            A(f"ds_write_b32 v{vA0}, v{a} offset:{L_Q}")
            A(f"L_qf{role}:")

        def q_read():
            n = "qr" + role
            A(f"v_lshlrev_b32 v{vA0}, 4, v{vC}")
            A(f"s_mov_b32 s{sCNT}, 0x40000")
            A(f"L_{n}_spin:")
            A(f"ds_read_b128 {vr(vQ)}, v{vA0} offset:{L_Q}")
            A(f"s_sub_u32 s{sCNT}, s{sCNT}, 1")
            A(f"s_cbranch_scc1 L_{n}_go")
            A("s_waitcnt lgkmcnt(0)")
            A(f"v_max3_u32 v{vA1}, v{vQ}, v{vQ+1}, v{vQ+2}")
            A(f"v_max_u32 v{vA1}, v{vA1}, v{vQ+3}")
            A(f"v_cmp_eq_u32 vcc, -1, v{vA1}")
            A(f"s_cbranch_vccnz L_{n}_spin")
            A(f"L_{n}_go:")
            A("s_waitcnt lgkmcnt(0)")
            stamp("qgot")

        def qk(t):
            tt, uu = vTMP, vTMP + 4
            for k in range(4):
                for r in range(4):
                    A(f"v_dot2_f32_bf16 v{tt+r}, v{vK+16*t+4*r+k}, v{vQ+k}, " + ("0" if k == 0 else f"v{tt+r}"))
            dpp("v_add_f32", uu, tt, tt, "row_ror:8", 0x3)
            dpp("v_add_f32", uu, tt + 1, tt + 1, "row_ror:8", 0xc)
            dpp("v_add_f32", uu + 1, tt + 2, tt + 2, "row_ror:8", 0x3)
            dpp("v_add_f32", uu + 1, tt + 3, tt + 3, "row_ror:8", 0xc)
            dpp("v_add_f32", vS + t, uu, uu, "row_shl:4", 0x5)
            nop(1)
            dpp("v_add_f32", vS + t, uu + 1, uu + 1, "row_shr:4", 0xa)

        def allred(op, r, t):
            nop(2)
            dpp(op, r, r, r, "row_ror:8")
            nop(2)
            dpp(op, r, r, r, "row_ror:4")
            for sw_ in ("v_permlane16_swap_b32", "v_permlane32_swap_b32"):
                A(f"v_mov_b32 v{t}, v{r}")
                nop(2)
                A(f"{sw_} v{r}, v{t}")
                A(f"{op} v{r}, v{r}, v{t}")

        S = [vS + i for i in range(8)]

        def soft_a():
            for r in S:
                dpp("v_add_f32", r, r, r, X1)
            for r in S:
                dpp("v_add_f32", r, r, r, X2)
            round_bf16(S, vTMP)
            for i in range(0, 8):
                A(f"v_mul_f32 v{S[i]}, {hex(SCALE)}, v{S[i]}")
            round_bf16(S, vTMP)

        def soft_b():
            m = vT0
            A(f"v_max3_f32 v{m}, v{S[0]}, v{S[1]}, v{S[2]}")
            A(f"v_max3_f32 v{m}, v{m}, v{S[3]}, v{S[4]}")
            A(f"v_max3_f32 v{m}, v{m}, v{S[5]}, v{S[6]}")
            A(f"v_max_f32 v{m}, v{m}, v{S[7]}")
            allred("v_max_f32", m, vTMP)
            for r in S:
                A(f"v_sub_f32 v{r}, v{r}, v{m}")
            for r in S:
                A(f"v_mul_f32 v{r}, {hex(LOG2E)}, v{r}")
            for r in S:
                A(f"v_exp_f32 v{r}, v{r}")

        def soft_c():
            m, l = vT0, vT1
            A(f"s_lshl_b32 s{sTMP}, s{sWV}, 3")
            A(f"v_add_f32 v{l}, v{S[0]}, v{S[1]}")
            for r in S[2:]:
                A(f"v_add_f32 v{l}, v{l}, v{r}")
            for r in S:
                A(f"v_cvt_pk_bf16_f32 v{r}, v{r}, v{r}")
            allred("v_add_f32", l, vTMP)
            A(f"v_mov_b32 v{vA0}, s{sTMP}")
            A(f"ds_write_b64 v{vA0}, {vr(m,2)} offset:{L_ML}")
            stamp("soft")

        bank = [0, 2, 1, 3]

        def pv_a(t):
            for r in range(4):
                for k in range(4):
                    dpp("v_and_b32", vTMP + 4 * r + k, vS + t, vMK + k, f"row_newbcast:{4*bank[r]}")

        def pv_m(i):
            r = i % 4
            mfma(vACC, vTMP + 4 * r, vreg(i), None if i == 0 else vACC)

        def w_part(i, part, nparts):
            lanes = 64 // nparts
            m = ((1 << lanes) - 1) << (lanes * part)
            if part == 0:
                w_dma(i, go=False)
            A(f"s_mov_b32 exec_lo, {hex(m & 0xffffffff)}")
            A(f"s_mov_b32 exec_hi, {hex(m >> 32)}")
            A(f"buffer_load_dwordx4 v{vDA}, s[{rT}:{rT+3}], s{sD1} offen{wfl} lds")
            A("s_mov_b64 exec, -1")
            issue(("w", i) if part == nparts - 1 else ("wp", i, part))

        def w_dma(i, go=True):
            blk, j = divmod(i, 8)
            which = "wo" if role == "w" else ("w1", "w2")[blk]
            pitch = 2752 if which == "w1" else 1024
            if j == 0:
                ptr, size = {"wo": (sWO, 0x400000), "w1": (sW1, 512 * 2752), "w2": (sW2, 1376 * 1024)}[which]
                srd(rT, ptr, 0 if which in now else size)
                A(f"v_lshrrev_b32 v{vDA}, 3, v{vL}")
                A(f"v_mul_u32_u24 v{vDA}, {pitch}, v{vDA}")
                A(f"v_and_b32 v{vA0}, 7, v{vL}")
                A(f"v_lshl_add_u32 v{vDA}, v{vA0}, 4, v{vDA}")
                if which == "wo":
                    A(f"s_lshl_b32 s{sD1}, s{sGX}, 19")
                    A(f"s_lshl_b32 s{sTMP2}, s{sWV}, 16")
                    A(f"s_add_u32 s{sD1}, s{sD1}, s{sTMP2}")
                    A(f"s_lshl_b32 s{sTMP2}, s{sCB}, 7")
                elif which == "w1":
                    A(f"s_mul_i32 s{sD1}, s{sWV}, {64*2752}")
                    A(f"s_lshl_b32 s{sTMP2}, s{sR}, 7")
                else:
                    A(f"s_lshl_b32 s{sD1}, s{sR}, 16")
                    A(f"s_lshl_b32 s{sTMP2}, s{sWV}, 7")
                A(f"s_add_u32 m0, s{sD3}, {(L_WA, L_WB)[blk]}")
                A(f"s_add_u32 s{sD1}, s{sD1}, s{sTMP2}")
            else:
                A(f"s_add_u32 m0, s{sD3}, {(L_WA, L_WB)[blk] + j*1024}")
                A(f"s_add_u32 s{sD1}, s{sD1}, {8*pitch}")
            if not go:
                return
            A(f"buffer_load_dwordx4 v{vDA}, s[{rT}:{rT+3}], s{sD1} offen{wfl} lds")
            issue(("w", i))
            if (fheavy if role == "f" else wheavy):
                heavy.append(("w", i))

        def tail_setup():
            vB3, vXX, vB2 = vA1, vA2, vDUM
            A(f"v_bfe_u32 v{vB3}, v{vL}, 3, 1")
            A(f"v_bfe_u32 v{vB2}, v{vL}, 2, 1")
            A(f"v_and_b32 v{vXX}, 3, v{vL}")
            A(f"v_lshlrev_b32 v{vL8}, 3, v{vL}")
            A(f"v_lshlrev_b32 v{vL16}, 4, v{vL}")
            A(f"v_and_b32 v{vG16}, 0x70, v{vL16}")
            A(f"v_lshlrev_b32 v{vSR}, 6, v{vB2}")
            A(f"v_lshl_add_u32 v{vRHO}, v{vB3}, 2, v{vB2}")
            A(f"v_and_b32 v{vM}, 31, v{vL}")
            A(f"v_lshlrev_b32 v{vM}, 2, v{vM}")
            A(f"s_lshl_b32 s{sTMP}, s{sGX}, 7")
            A(f"s_add_u32 s{sTMP}, s{sTMP}, {WS_XC}")
            A(f"buffer_load_dword v{vVAL}, v{vM}, s[{rWS}:{rWS+3}], s{sTMP} offen sc1")
            A(f"v_lshl_add_u32 v{vM}, v{vXX}, 1, v{vB2}")
            A(f"v_lshl_add_u32 v{vM}, v{vG}, 3, v{vM}")
            A(f"v_lshlrev_b32 v{vM}, 2, v{vM}")
            A(f"v_lshl_add_u32 v{vHW}, v{vB3}, 10, v{vM}")
            A(f"s_lshl_b32 s{sTMP}, s{sWV}, 7")
            A(f"v_add_u32 v{vHW}, s{sTMP}, v{vHW}")
            A(f"global_load_dword v{vXR+1}, v{vHW}, s[{sX}:{sX+1}]")
            A(f"v_lshl_add_u32 v{vFC}, v{vXX}, 4, v{vG}")
            A(f"s_lshr_b32 s{sTMP2}, s{sR}, 2")
            A(f"s_mul_i32 s{sTMP2}, s{sTMP2}, 48")
            A(f"s_lshl2_add_u32 s{sTMP2}, s{sR}, s{sTMP2}")
            A(f"v_add_u32 v{vFC}, s{sTMP2}, v{vFC}")
            A(f"v_lshlrev_b32 v{vFC}, 1, v{vFC}")
            A(f"global_load_ushort v{vB2R}, v{vFC}, s[{sB2}:{sB2+1}]")
            A(f"v_lshl_add_u32 v{vFC}, v{vB2}, 10, v{vFC}")
            nsmall = 3
            if role == "f":
                srd(rB, sB1, 2752)
                A(f"v_lshl_add_u32 v{vA0}, v{vB3}, 2, v{vXX}")
                A(f"v_lshl_add_u32 v{vM}, v{vG}, 3, v{vA0}")
                A(f"v_lshlrev_b32 v{vM}, 2, v{vM}")
                A(f"s_lshl_b32 s{sTMP2}, s{sR}, 7")
                A(f"buffer_load_dword v{vB1R+1}, v{vM}, s[{rB}:{rB+3}], s{sTMP2} offen")
                nsmall = 4
                A(f"v_lshl_add_u32 v{vFR}, v{vA0}, 3, v{vSR}")
                A(f"v_lshl_add_u32 v{vFR}, v{vG}, 7, v{vFR}")
                A(f"v_mul_u32_u24 v{vZA}, {ZSTR}, v{vG}")
                A(f"s_mul_i32 s{sTMP}, s{sWV}, {4*ZSTR}")
                A(f"s_add_u32 s{sTMP2}, s{sTMP2}, s{sTMP}")
                A(f"s_add_u32 s{sTMP2}, s{sTMP2}, {WS_ZP}")
                A(f"v_add3_u32 v{vZA}, v{vZA}, v{vG16}, s{sTMP2}")
                A(f"v_lshrrev_b32 v{vM}, 1, v{vG}")
                A(f"v_lshlrev_b32 v{vSA}, 6, v{vB3}")
                A(f"v_lshl_add_u32 v{vSA}, v{vM}, 2, v{vSA}")
                A(f"v_mov_b32 v{vEPS}, {hex(EPS)}")
                A(f"s_lshl_b32 s{sTMP}, s{sWV}, 3")
                A(f"v_add_u32 v{vSA}, s{sTMP}, v{vSA}")
                A(f"v_mov_b32 v{vONE}, 0x3f803f80")
            issue("small", nsmall)
            A(f"s_lshl_b32 s{sTMP}, s{sWV}, 9")
            if role != "n":
                if role == "f":
                    A(f"v_lshlrev_b32 v{vFW}, 6, v{vB3}")
                    A(f"v_lshl_add_u32 v{vFW}, v{vG}, 4, v{vFW}")
                else:
                    A(f"v_lshl_add_u32 v{vFW}, v{vG}, 4, v{vSR}")
                A(f"v_lshl_add_u32 v{vFW}, v{vXX}, 7, v{vFW}")
                A(f"v_add_u32 v{vFW}, s{sTMP}, v{vFW}")
                for tau in range(4):
                    A(f"v_cmp_eq_u32 vcc, {tau}, v{vXX}")
                    nop(2)
                    A(f"v_cndmask_b32 v{vMT+tau}, 0, -1, vcc")
                A(f"s_mov_b32 s{sU0}, 0x0f0f0f0f")
                A(f"s_mov_b32 s{sU0+1}, 0x0f0f0f0f")
                A(f"s_mov_b32 s{sU1}, 0x00ff00ff")
                A(f"s_mov_b32 s{sU1+1}, 0x00ff00ff")
            A(f"v_lshlrev_b32 v{vOWA}, 5, v{vC}")
            A(f"v_lshl_add_u32 v{vOWA}, v{vG}, 4, v{vOWA}")
            A(f"v_add_u32 v{vOWA}, s{sTMP}, v{vOWA}")
            if role == "w":
                A(f"v_lshl_add_u32 v{vAA}, v{vB2}, 2, v{vB3}")
                A(f"v_lshlrev_b32 v{vAA}, 9, v{vAA}")
                A(f"v_lshl_add_u32 v{vAA}, v{vG}, 6, v{vAA}")
                A(f"v_lshl_add_u32 v{vAA}, v{vXX}, 4, v{vAA}")
                A(f"s_and_b32 s{sTMP2}, s{sWV}, 1")
                A(f"s_lshl_b32 s{sTMP2}, s{sTMP2}, 8")
                A(f"s_lshr_b32 s{sTMP}, s{sWV}, 1")
                A(f"s_lshl_b32 s{sTMP}, s{sTMP}, 12")
                A(f"s_add_u32 s{sTMP2}, s{sTMP2}, s{sTMP}")
                A(f"s_lshl_b32 s{sTMP}, s{sGX}, 14")
                A(f"s_add_u32 s{sTMP2}, s{sTMP2}, s{sTMP}")
                A(f"s_add_u32 s{sTMP2}, s{sTMP2}, {WS_OP}")
                A(f"v_add_u32 v{vAA}, s{sTMP2}, v{vAA}")
                A(f"v_lshl_add_u32 v{vYR}, v{vG}, 7, v{vG16}")
                A(f"v_lshl_add_u32 v{vYR}, v{vB3}, 11, v{vYR}")
            A(f"v_and_b32 v{vM}, 1, v{vL}")
            A(f"v_lshlrev_b32 v{vM}, 4, v{vM}")
            A(f"v_lshrrev_b32 v{vTb}, v{vM}, s{sT}")
            A(f"v_and_b32 v{vTa}, v{vFF}, v{vTb}")
            A(f"v_bfe_u32 v{vTb}, v{vTb}, 8, 8")
            A(f"v_cmp_gt_u32 vcc, 8, v{vL}")
            A(f"v_mov_b32 v{vM}, {OOB}")
            A(f"v_lshlrev_b32 v{vMLA}, 7, v{vXX}")
            A(f"v_cndmask_b32 v{vMLS}, v{vM}, v{vL16}, vcc")
            A(f"v_cndmask_b32 v{vMLA}, v{vM}, v{vMLA}, vcc")

        def tail_setup2():
            for k in range(4):
                A(f"v_mov_b32 v{vTG+k}, s{Tk[k]}")
            A(f"v_bfe_u32 v{vA0}, v{vL}, 2, 2")
            A(f"v_and_b32 v{vA1}, 0x30, v{vL16}")
            A(f"v_lshl_add_u32 v{vBA}, v{vA0}, 7, v{vA1}")
            A(f"v_lshl_add_u32 v{vBA}, v{vG}, 10, v{vBA}")
            A(f"s_lshl_b32 s{sTMP}, s{sWV}, {ysh}")
            A(f"s_add_u32 s{sTMP}, s{sTMP}, {yp}")
            A(f"v_add_u32 v{vBA}, s{sTMP}, v{vBA}")
            if role == "f":
                A(f"v_bfe_u32 v{vA0}, v{vL}, 3, 1")
                A(f"s_mov_b32 s{sTMP}, {16*ZSTR}")
                A(f"v_mad_u32_u24 v{vYS}, v{vA0}, s{sTMP}, v{vZA}")
            if role == "w":
                A(f"s_lshl_b32 s{sTMP}, s{sCB}, {ysh}")
                A(f"s_lshl_b32 s{sTMP2}, s{sGX}, 7")
                A(f"s_add_u32 s{sTMP}, s{sTMP}, s{sTMP2}")
                A(f"s_add_u32 s{sTMP}, s{sTMP}, {yp}")
                A(f"v_lshl_add_u32 v{vYS}, v{vG}, 10, v{vG16}")
                A(f"v_add_u32 v{vYS}, s{sTMP}, v{vYS}")
                A(f"s_cmp_eq_u32 s{sGX}, 0")
                A(f"s_cselect_b32 s{sD2}, s{sLOC}, 0")

        def small_finish():
            A(f"v_cmp_ne_u32 vcc, s{sXW}, v{vVAL}")
            A(f"v_lshlrev_b32 v{vXR}, 16, v{vXR+1}")
            A(f"v_and_b32 v{vXR+1}, 0xffff0000, v{vXR+1}")
            A(f"v_lshlrev_b32 v{vB2R}, 16, v{vB2R}")
            A(f"s_cmp_eq_u64 vcc, 0")
            A(f"s_cselect_b32 s{sLOC}, {1 if local else 0}, 0")
            if role == "f":
                A(f"v_lshlrev_b32 v{vB1R}, 16, v{vB1R+1}")
                A(f"v_and_b32 v{vB1R+1}, 0xffff0000, v{vB1R+1}")
                A(f"s_lshl_b32 s{sTMP}, s{sR}, 2")
                A(f"s_sub_u32 s{sTMP}, 86, s{sTMP}")
                A(f"v_cmp_gt_u32 vcc, s{sTMP}, v{vG}")
                nop(2)
                A(f"v_cndmask_b32 v{vVAL}, 0, -1, vcc")

        def preread():
            if role == "f":
                A(f"buffer_load_dword v{vDUM}, v{vZA}, s[{rWS}:{rWS+3}], 0 offen")
                issue("pz")
            A(f"s_lshl_b32 s{sTMP}, s{sID}, 9")
            A(f"s_add_u32 s{sTMP}, s{sTMP}, {WS_OP}")
            role_offset(sTMP, 2)
            A(f"buffer_load_dword v{vDUM}, v{vL8}, s[{rWS}:{rWS+3}], s{sTMP} offen")
            issue("po")

        def tr_block(dst, addr, offs):
            for tau in range(4):
                for u in range(2):
                    for e in range(2):
                        A(f"ds_read_b64_tr_b16 {vr(dst+8*tau+4*u+2*e,2)}, v{addr} offset:{offs(u, e) + tau*32}")
                if tau == 1:
                    A("s_waitcnt lgkmcnt(0)")

        def regs_a():
            A(f"v_and_b32 v{vA1}, 3, v{vL}")
            A(f"v_lshlrev_b32 v{vA1}, 3, v{vA1}")
            A(f"v_add_u32 v{vA1}, s{sD3}, v{vA1}")
            A(f"v_lshl_add_u32 v{vA0}, v{vG}, 4, v{vRHO}")
            A(f"v_lshl_add_u32 v{vA2}, v{vA0}, 7, v{vA1}")
            tr_block(vW1, vA2, lambda u, e: L_WA + (2 * u + 8 * e) * 128)
            if role == "f":
                for tau in range(4):
                    for k in range(4):
                        A(f"v_and_b32 v{vTMP+4*tau+k}, v{vONE}, v{vMT+tau}")
                A("s_waitcnt lgkmcnt(0)")
                nop(1)
                for t3 in range(4):
                    for u in range(2):
                        mfma(vD0, vW1 + 8 * t3 + 4 * u, vTMP + 4 * t3, None if (t3 == 0 and u == 0) else vD0)
                nop(8)
                A(f"ds_write_b128 v{vFW}, {vr(vD0)} offset:{L_CS}")

        def regs_b():
            A(f"v_and_b32 v{vA1}, 3, v{vL}")
            A(f"v_lshlrev_b32 v{vA1}, 3, v{vA1}")
            A(f"v_lshrrev_b32 v{vA0}, 2, v{vC}")
            A(f"v_lshl_add_u32 v{vA0}, v{vG}, 4, v{vA0}")
            A(f"v_lshl_add_u32 v{vA2}, v{vA0}, 7, v{vA1}")
            A(f"s_add_u32 s{sTMP}, s{sD3}, {L_WB}")
            A(f"v_add_u32 v{vA2}, s{sTMP}, v{vA2}")
            tr_block(vW2, vA2, lambda u, e: (8 * u + 4 * e) * 128)
            A("s_waitcnt lgkmcnt(0)")
            tr_block(vW2b, vA2, lambda u, e: 32768 + (8 * u + 4 * e) * 128)

        def ml_publish():
            n = "ml" + role
            o = vMLG
            A(f"s_lshl_b32 s{sTMP}, s{sID}, 7")
            A(f"s_add_u32 s{sTMP}, s{sTMP}, {WS_ML}")
            role_offset(sTMP, sw)
            A(f"s_cbranch_scc0 L_{n}_skip")
            m, l = vMLW, vMLW + 1
            A(f"v_and_b32 v{vA0}, 56, v{vL8}")
            A(f"s_mov_b32 s{sCNT}, 0x40000")
            A(f"L_{n}_spin:")
            A(f"ds_read_b64 {vr(m,2)}, v{vA0} offset:{L_ML}")
            A(f"s_sub_u32 s{sCNT}, s{sCNT}, 1")
            A(f"s_cbranch_scc1 L_{n}_go")
            A("s_waitcnt lgkmcnt(0)")
            A(f"v_cmp_eq_u32 vcc, -1, v{l}")
            A(f"s_cbranch_vccnz L_{n}_spin")
            A(f"L_{n}_go:")
            A("s_waitcnt lgkmcnt(0)")
            dpp("v_max_f32", o, m, m, X1)
            nop(2)
            dpp("v_max_f32", o, o, o, X2)
            nop(2)
            dpp("v_max_f32", o, o, o, HM)
            A(f"v_sub_f32 v{o+1}, v{m}, v{o}")
            A(f"v_mul_f32 v{o+1}, {hex(LOG2E)}, v{o+1}")
            A(f"v_exp_f32 v{o+1}, v{o+1}")
            A(f"v_mov_b32 v{o+2}, 0")
            A(f"v_mul_f32 v{o+1}, v{o+1}, v{l}")
            A(f"v_mov_b32 v{o+3}, 0")
            nop(1)
            for ctl in (X1, X2, HM):
                dpp("v_add_f32", o + 1, o + 1, o + 1, ctl)
                nop(2)
            tag4(o)
            A(f"L_{n}_skip:")

            def real():
                A(f"s_cmp_eq_u32 s{sLOC}, 0")
                publish(n, f"buffer_store_dwordx4 {vr(o)}, v{vMLS}, s[{rWS}:{rWS+3}], s{sTMP} offen")
            issue("mlp", role_ops("mp" + role, sw, real, 1, vMLG))

        def ml_issue():
            A(f"buffer_load_dwordx4 {vr(vMLG)}, v{vMLA}, s[{rWS}:{rWS+3}], s{sML} offen sc1")

        def ml_gather():
            A(f"s_lshr_b32 s{sML}, s{sID}, 2")
            A(f"s_lshl_b32 s{sML}, s{sML}, 9")
            A(f"s_add_u32 s{sML}, s{sML}, {WS_ML}")
            role_offset(sML, sw)
            issue("ml", role_ops("mg" + role, sw, ml_issue, 1, vMLG))

        def ml_finish():
            n = "mf" + role
            A(f"s_cmp_lg_u32 s{sWV}, {sw}")
            A(f"s_cbranch_scc1 L_{n}_skip")

            def chk():
                A("s_mov_b64 exec, 0xff")
                untag4([vMLG], vA0)
                A("s_mov_b64 exec, -1")
            poll_rare(n, ml_issue, chk)
            o = vMLG
            dpp("v_max_f32", o + 2, o, o, X1)
            nop(2)
            dpp("v_max_f32", o + 2, o + 2, o + 2, X2)
            A(f"v_sub_f32 v{o}, v{o}, v{o+2}")
            A(f"v_sub_f32 v{o+3}, v{vMLW}, v{o+2}")
            A(f"v_mul_f32 v{o}, {hex(LOG2E)}, v{o}")
            A(f"v_mul_f32 v{o+3}, {hex(LOG2E)}, v{o+3}")
            A(f"v_exp_f32 v{o}, v{o}")
            A(f"v_exp_f32 v{o+3}, v{o+3}")
            A(f"v_mul_f32 v{o+1}, v{o+1}, v{o}")
            nop(2)
            dpp("v_add_f32", o + 1, o + 1, o + 1, X1)
            nop(2)
            dpp("v_add_f32", o + 1, o + 1, o + 1, X2)
            A(f"v_rcp_f32 v{o+1}, v{o+1}")
            nop(1)
            A(f"v_mul_f32 v{o+3}, v{o+3}, v{o+1}")
            nop(1)
            for j in range(8):
                A(f"v_readlane_b32 s{sTMP}, v{o+3}, {j}")
                nop(2)
                A(f"v_mov_b32 v{vF+j}, s{sTMP}")
            A(f"L_{n}_skip:")

        nwd = {"n": 0, "w": 8 - wmid - wlate, "f": 16 - late - mid}[role]
        wd0, wds = (f0, fstep) if role == "f" else (w0, wstep)
        todo = []
        todo.append((lambda: has(("K", pq + 1)), q_finish))
        todo.append((lambda: ("K", pq2) in pos, q_read))
        for t in range(8):
            todo.append((lambda t=t: has(("K", 4 * t + 3)), lambda t=t: qk(t)))
        todo.append((lambda: True, soft_a))
        todo.append((lambda: True, soft_b))
        todo.append((lambda: True, soft_c))
        todo.append((lambda: True, tail_setup))
        pvdone = [0]
        side = []
        if role == "f" or (role == "w" and not wmid):
            side.append((lambda: has(("w", 7)) and "small" in pos, regs_a))
        if role == "w" and wmid:
            def late_wo():
                A("L_wlate:")
                if wlate:
                    srd(rT, sWO, 0 if "wo" in now else 0x400000)
                for i in range(8 - wlate, 8):
                    w_dma(i)
                a_issue(g0)
                A(f"s_mov_b32 s{sCNT}, 0x8000")
                A("s_waitcnt vmcnt(2)")
                regs_a()
                A("s_waitcnt lgkmcnt(0)")
                A("s_branch L_a_chk")
            cold.insert(0, late_wo)
        if role == "f":
            def late_w2():
                A("L_late:")
                if 0 < late < 8:
                    srd(rT, sW2, 0 if "w2" in now else 1376 * 1024)
                for i in range(16 - late, 16):
                    w_dma(i)
                for i in range(8):
                    A(f"ds_read_b64 {vr(st+2*i,2)}, v{vFR} offset:{L_CS + 512*i}")
                A("s_waitcnt lgkmcnt(0)")
                sum8(st, vCS)
                for tau in range(4):
                    A(f"v_and_b32 v{vMT2+tau}, v{vVAL}, v{vMT+tau}")
                A(f"v_mov_b32 v{vONE}, 0x3b003b00")
                A(f"s_cmp_ge_u32 s{sWV}, 4")
                A("s_waitcnt vmcnt(0)")
                A("s_barrier")
                stamp("_late")
                if lov:
                    b_issue(g0)
                    A(f"s_mov_b32 s{sCNT}, 0x8000")
                done = "L_b_chk" if lov else "L_late_done"
                A(f"s_cbranch_scc1 {done}")
                regs_b()
                A(f"s_branch {done}")
            cold.insert(0, late_w2)

        def pv_tile(t):
            pv_a(t)
            for r in range(4):
                pv_m(4 * t + r)
            pvdone[0] = 4 * t + 4
        for t in range(7):
            todo.append((lambda t=t: has(("V", 4 * t + 3)), lambda t=t: pv_tile(t)))
            if 4 * t + 4 == p1:
                todo.append((lambda: has("small"), small_finish))
                todo.append((lambda: True, ml_publish))
            if 4 * t == p2:
                todo.append((lambda: has(("V", p2 + 1)), ml_finish))
                todo.append((lambda: True, tail_setup2))
        seq = [("K", i) for i in range(k0, 32)] + [("V", i) for i in range(32)]
        nd = 0
        nsub = [0]
        for n, (kind, i) in enumerate(seq):
            gi = i if kind == "K" else 32 + i
            if kind == "V" and i >= NRING:
                while pvdone[0] <= i - NRING:
                    pred, emit = todo[0]
                    assert pred(), "ring too small"
                    todo.pop(0)
                    emit()
            if masks:
                A(f"s_bitcmp1_b64 s[{sDM}:{sDM+1}], {gi}")
                wait_for(heavy[-depth - 1])
                A(f"s_cbranch_scc1 L_d{role}{gi}")
                A(f"s_waitcnt vmcnt({len(ops) - 1 - pos[heavy[-depth]]})")
                A(f"L_d{role}{gi}:")
            else:
                wait_for(heavy[-depth])
            if kind == "K":
                kload(i)
            else:
                vload(i)
            issue((kind, i))
            heavy.append((kind, i))
            if kind == "K" and i == pq:
                issue("q", role_ops("qi" + role, qw, q_loads, 4, vTMP))
            if role == "w" and wsub > 1:
                while nd < nwd and n >= wd0 + (nsub[0] * wds) // wsub:
                    w_part(nd, nsub[0] % wsub, wsub)
                    nsub[0] += 1
                    nd = nsub[0] // wsub
            elif nd < nwd and n >= wd0 and (n - wd0) % wds == 0:
                w_dma(nd)
                nd += 1
            if kind == "V" and i == p2:
                assert "mlp" in pos, "ml order"
                ml_gather()
            if kind == "V" and i in (8, 16, 24):
                stamp(f"_v{i}")
            if kind == "K" and i in (16, 24):
                stamp(f"_k{i}")
            if kind == "V" and i == npf and npf and role == "n":
                nrow = 8 * (wlate + wmid)
                nline = nrow * 8
                per = -(-nline // 24)
                srd(rT, sWO, 0 if "wo" in now else 0x400000)
                A(f"s_sub_u32 s{sTMP}, s{sR}, 8")
                A(f"s_cmp_lt_u32 s{sR}, {NW0}")
                A(f"s_cselect_b32 s{sTMP}, s{sR}, s{sTMP}")
                A(f"s_mul_i32 s{sTMP}, s{sTMP}, {per}")
                A(f"v_min_u32 v{vA0}, {per-1}, v{vL}")
                A(f"v_add_u32 v{vA0}, s{sTMP}, v{vA0}")
                A(f"v_min_u32 v{vA0}, {nline-1}, v{vA0}")
                A(f"v_lshlrev_b32 v{vA0}, 7, v{vA0}")
                A(f"s_lshl_b32 s{sTMP}, s{sGX}, 19")
                A(f"s_lshl_b32 s{sTMP2}, s{sWV}, 16")
                A(f"s_add_u32 s{sTMP}, s{sTMP}, s{sTMP2}")
                A(f"s_add_u32 s{sTMP}, s{sTMP}, {(64 - nrow) * 1024}")
                A(f"buffer_load_dword v{vDUM}, v{vA0}, s[{rT}:{rT+3}], s{sTMP} offen")
                issue("npf")
            if kind == "V" and i == prew and prew:
                preread()
            if kind == "V" and i == pf2 and pf:
                code_prefetch(vM, "L_tail", "L_tailend", 1)
                issue("pf")
            if todo and todo[0][0]():
                todo.pop(0)[1]()
            elif side and side[0][0]():
                side.pop(0)[1]()
        assert nd == nwd and not side, (role, nd, len(side))
        while todo:
            pred, emit = todo.pop(0)
            while not pred():
                wait_n(len(ops) - landed[0] - 1)
            emit()
        pv_a(7)
        for i in range(28, 32):
            wait_for(("V", i))
            pv_m(i)
            if role == "f" and i >= 32 - mid:
                w_dma(16 - late - (32 - i))
            if role == "w" and i >= 32 - wmid:
                w_dma(8 - wlate - (32 - i))

    A("L_s_n:")
    stream("n", dn)
    A("L_tail:")
    A("s_mov_b32 exec_hi, 0")
    A(f"s_lshl_b32 s{sTMP}, s{sID}, 9")
    A(f"s_add_u32 s{sTMP}, s{sTMP}, {WS_OP}")
    A(f"s_cmp_lg_u32 s{sWV}, {sw}")
    nop(4)
    A(f"ds_write_b128 v{vOWA}, {vr(vACC)} offset:{L_OW}")
    A("s_mov_b32 exec_hi, -1")
    A("s_waitcnt lgkmcnt(0)")
    stamp("_wend")
    A("s_barrier")
    if diag:
        stamp("strm")
        if "tail" in strip:
            A("s_branch L_fin")
    A("s_cbranch_scc1 L_nos0")
    for i in range(8):
        A(f"ds_read_b64 {vr(g0+2*i,2)}, v{vL8} offset:{L_OW + 512*i}")
    A(f"s_cmp_eq_u32 s{sLOC}, 0")
    lo, hi = " op_sel_hi:[1,0]", " op_sel:[0,1]"
    lo3, hi3 = " op_sel_hi:[1,0,1]", " op_sel:[0,1,0]"
    A("s_waitcnt lgkmcnt(6)")
    pk("mul", vP, g0, vF, extra=lo)
    pk("fma", vP, g0 + 2, vF, vP, extra=hi3)
    for i in range(1, 4):
        if i != 2:
            A(f"s_waitcnt lgkmcnt({(2, 0, 0)[i-1]})")
        pk("fma", vP, g0 + 4 * i, vF + 2 * i, vP, extra=lo3)
        pk("fma", vP, g0 + 4 * i + 2, vF + 2 * i, vP, extra=hi3)
    tag2(vP)
    publish("o", f"buffer_store_dwordx2 {vr(vP,2)}, v{vL8}, s[{rWS}:{rWS+3}], s{sTMP} offen")
    stamp("_opub")
    A("L_nos0:")
    A(f"s_cmp_ge_u32 s{sCB}, 8")
    A("s_cbranch_scc1 L_noy")

    A("s_barrier")

    def a_issue(g):
        for i in range(2):
            A(f"buffer_load_dwordx4 {vr(g+4*i)}, v{vAA}, s[{rWS}:{rWS+3}], 0 offen offset:{1024*i} sc1")
    if wmid:
        A("s_branch L_wlate")
    pollm("a", a_issue, 2, pfa)
    stamp("hopA")
    pk("add", g0, g0, g0 + 4)
    pk("add", g0 + 2, g0 + 2, g0 + 6)
    A(f"s_cmp_lg_u32 s{sWV}, {yw}")

    def pair_from_quad(ctl_lo, m_lo, ctl_hi, m_hi, src, dst):
        dpp("v_add_f32", dst, src, src, ctl_lo, m_lo)
        dpp("v_add_f32", dst + 1, src + 1, src + 1, ctl_lo, m_lo)
        dpp("v_add_f32", dst, src + 2, src + 2, ctl_hi, m_hi)
        dpp("v_add_f32", dst + 1, src + 3, src + 3, ctl_hi, m_hi)
    pair_from_quad("row_ror:8", 0x3, "row_ror:8", 0xc, g0, g0 + 4)
    A(f"v_cvt_pk_bf16_f32 v{vP}, v{g0+4}, v{g0+5}")
    filler(2)
    matvec64([(vW1, vD0, vD1)])
    filler(8)
    for k in range(4):
        dpp("v_add_f32", vD0 + k, vD1 + k, vD0 + k, "row_ror:8")
    A(f"s_mov_b64 exec, s[{sU1}:{sU1+1}]")
    A(f"ds_write_b128 v{vFW}, {vr(vD0)} offset:{L_F1}")
    A("s_mov_b64 exec, -1")
    A("s_waitcnt lgkmcnt(0)")
    A("s_barrier")
    A("s_cbranch_scc1 L_noy")
    for i in range(4):
        A(f"ds_read_b128 {vr(g0+4*i)}, v{vYR} offset:{L_F1 + i*512}")
    A(f"s_cmp_eq_u32 s{sD2}, 0")
    A("s_waitcnt lgkmcnt(2)")
    pk("add", g0, g0, g0 + 4)
    pk("add", g0 + 2, g0 + 2, g0 + 6)
    A("s_waitcnt lgkmcnt(1)")
    pk("add", g0, g0, g0 + 8)
    pk("add", g0 + 2, g0 + 2, g0 + 10)
    A("s_waitcnt lgkmcnt(0)")
    pk("add", g0, g0, g0 + 12)
    pk("add", g0 + 2, g0 + 2, g0 + 14)
    nop(1)
    for k in range(4):
        dpp("v_add_f32", vD0 + k, g0 + k, g0 + k, "row_ror:8")
    A(f"s_mov_b64 exec, s[{sU1}:{sU1+1}]")
    tag4(vD0)
    publish("y", f"buffer_store_dwordx4 {vr(vD0)}, v{vYS}, s[{rWS}:{rWS+3}], 0 offen", farfirst=True)
    A("s_mov_b64 exec, -1")
    stamp("ypub")
    A("L_noy:")
    A(f"s_cmp_lg_u32 s{sGX}, 0")
    A("s_cbranch_scc1 L_fin")

    A(f"s_cmp_lt_u32 s{sR}, {NF}")
    A("s_barrier")
    if "roles" not in strip:
        A("s_cbranch_scc1 L_late")
        A("L_late_done:")

    def b_issue(g):
        for i, off in enumerate((0, 64, 512, 576)):
            A(f"buffer_load_dwordx4 {vr(g+4*i)}, v{vBA}, s[{rWS}:{rWS+3}], 0 offen offset:{off} sc1")
    pollm("b", b_issue, 4, pfb)
    stamp("hopB")
    for e in (0, 2, 4, 6):
        pk("add", g0 + e, g0 + e, g0 + 8 + e)
    for e in range(4):
        dpp("v_add_f32", g0 + 8 + e, g0 + e, g0 + e, "row_ror:8", 0x3)
    for e in range(4):
        dpp("v_add_f32", g0 + 8 + e, g0 + 4 + e, g0 + 4 + e, "row_ror:8", 0xc)
    pair_from_quad("row_shl:4", 0x5, "row_shr:4", 0xa, g0 + 8, g0)
    if mim:
        round2(g0)
    pk("add", g0, g0, vXR)
    A(f"s_cmp_ge_u32 s{sR}, {NF}")
    A(f"v_cvt_pk_bf16_f32 v{vP}, v{g0}, v{g0+1}")
    s0, s1 = vT0, vT1
    A("s_cbranch_scc1 L_noffn")
    A(f"v_dot2_f32_bf16 v{s0}, v{vP}, v{vONE}, 0")
    A(f"v_dot2_f32_bf16 v{s1}, v{vP}, v{vP}, 0")

    def f_a():
        A(f"v_permlane32_swap_b32 v{s0}, v{s1}")
        A(f"v_add_f32 v{s0}, v{s0}, v{s1}")

    def f_e():
        A(f"v_permlane16_swap_b32 v{s0}, v{s1}")
        A(f"v_add_f32 v{s0}, v{s0}, v{s1}")
    matvec64([(vW1, vD0, vD1)], extra=[
        f_a,
        lambda: dpp("v_add_f32", s0, s0, s0, X1),
        lambda: dpp("v_add_f32", s0, s0, s0, X2),
        lambda: dpp("v_add_f32", s0, s0, s0, HM),
        lambda: A(f"v_mov_b32 v{s1}, v{s0}"),
        f_e,
        lambda: A(f"ds_write_b32 v{vSA}, v{s0} offset:{L_ST}"),
    ])
    A(f"ds_write_b32 v{vHW}, v{vP} offset:{L_HS}")
    A(f"s_cmp_ge_u32 s{sWV}, 4")
    filler(6)
    for k in range(4):
        dpp("v_add_f32", vD0 + k, vD1 + k, vD0 + k, "row_shl:4", 0x5)
    A(f"s_mov_b64 exec, s[{sU0}:{sU0+1}]")
    A(f"ds_write_b128 v{vFW}, {vr(vD0)} offset:{L_F1}")
    A("s_mov_b64 exec, -1")
    warm(14)
    A("s_waitcnt lgkmcnt(0)")
    stamp("_f1")
    A("s_barrier")
    stamp("_f1b")
    A("s_cbranch_scc1 L_f2skip")
    for i in range(4):
        A(f"ds_read_b128 {vr(st+4*i)}, v{vSR} offset:{L_ST + 16*i}")
    for i in range(8):
        A(f"ds_read_b64 {vr(g0+2*i,2)}, v{vFR} offset:{L_F1 + 512*i}")
    A(f"s_cmp_eq_u32 s{sLOC}, 0")
    A(f"s_mov_b32 s{sTMP}, 0x3b000000")
    A("s_waitcnt lgkmcnt(10)")
    pk("add", st, st, st + 2)
    pk("add", st + 4, st + 4, st + 6)
    A("s_waitcnt lgkmcnt(8)")
    pk("add", st + 8, st + 8, st + 10)
    pk("add", st + 12, st + 12, st + 14)
    pk("add", st, st, st + 4)
    pk("add", st + 8, st + 8, st + 12)
    pk("add", s0, st, st + 8)
    if mim:
        A(f"v_mul_f32 v{s1}, s{sTMP}, v{s1}")
        A(f"v_fma_f32 v{s1}, -v{s0}, v{s0}, v{s1}")
        A(f"v_max_f32 v{s1}, 0, v{s1}")
        A("s_waitcnt lgkmcnt(0)")
        A(f"v_cvt_pk_bf16_f32 v{s1}, v{s0}, v{s1}")
        A(f"v_lshlrev_b32 v{s0}, 16, v{s1}")
        A(f"v_and_b32 v{s1}, 0xffff0000, v{s1}")
        A(f"v_add_f32 v{s1}, v{vEPS}, v{s1}")
        round1(s1)
        A(f"v_sqrt_f32 v{s1}, v{s1}")
        for i in range(4):
            pk("add", g0 + 4 * i, g0 + 4 * i, g0 + 4 * i + 2)
        round1(s1)
        A(f"v_rcp_f32 v{s1}, v{s1}")
        pk("add", g0, g0, g0 + 4)
        pk("add", g0 + 8, g0 + 8, g0 + 12)
        pk("add", g0, g0, g0 + 8)
    else:
        A(f"v_fma_f32 v{s1}, v{s1}, s{sTMP}, v{vEPS}")
        A(f"v_fma_f32 v{s1}, -v{s0}, v{s0}, v{s1}")
        A(f"v_max_f32 v{s1}, v{vEPS}, v{s1}")
        A(f"v_rsq_f32 v{s1}, v{s1}")
        A("s_waitcnt lgkmcnt(0)")
        sum8(g0)
    pk("fma", g0, vCS, s0, g0, extra=" op_sel_hi:[1,0,1] neg_lo:[0,1,0] neg_hi:[0,1,0]")
    if mim:
        pk("mul", g0, g0, s0, extra=hi)
        round2(g0)
        pk("add", g0, g0, vB1R)
        round2(g0)
    else:
        pk("fma", g0, g0, s0, vB1R, extra=hi3)
    A(f"v_max_f32 v{g0}, 0, v{g0}")
    A(f"v_max_f32 v{g0+1}, 0, v{g0+1}")
    pk("mul", g0, g0, g0)
    A(f"v_cvt_pk_bf16_f32 v{vP}, v{g0}, v{g0+1}")
    filler(2)
    matvec64([(vW2, vD0, vD1), (vW2b, vD2, vD3)], vMT=vMT2)
    filler(6)
    for k in range(4):
        dpp("v_add_f32", vD0 + k, vD1 + k, vD0 + k, "row_ror:8", 0x3)
    for k in range(4):
        dpp("v_add_f32", vD0 + k, vD2 + k, vD3 + k, "row_ror:8", 0xc)
    tag4(vD0)
    publish("z", f"buffer_store_dwordx4 {vr(vD0)}, v{vYS}, s[{rWS}:{rWS+3}], 0 offen")
    stamp("zpub")
    A("L_fbar:")
    if fbar:
        A("s_barrier")
    A("s_branch L_fin")
    A("L_noffn:")
    A(f"ds_write_b32 v{vHW}, v{vP} offset:{L_HS}")
    A("s_waitcnt lgkmcnt(0)")
    A("s_barrier")
    A("L_f2skip:")
    assert fw >= 4
    A(f"ds_read_u16 v{vXR}, v{vFC} offset:{L_HS}")
    A(f"s_mul_i32 s{sTMP}, s{sR}, {ZSTR}")
    A(f"s_add_u32 s{sTMP}, s{sTMP}, {WS_ZP}")
    warm(20)
    A(f"s_cmp_lg_u32 s{sWV}, {fw}")
    A("s_cbranch_scc1 L_fbar")
    A("s_waitcnt lgkmcnt(0)")
    A(f"v_lshlrev_b32 v{vXR}, 16, v{vXR}")
    if not mim:
        A(f"v_add_f32 v{vXR}, v{vXR}, v{vB2R}")

    def c_issue(g):
        for t in range(2):
            A(f"buffer_load_dwordx4 {vr(g+4*t)}, v{vL16}, s[{rWS}:{rWS+3}], s{sTMP} offen offset:{1024*t} sc1")
        for k in range(4):
            A(f"v_mov_b32 v{g+8+k}, v{vTG+k}")
        A("s_and_b32 exec_hi, exec_hi, 0xffff")
        A("s_cbranch_execz L_c_skip")
        A(f"buffer_load_dwordx4 {vr(g+8)}, v{vL16}, s[{rWS}:{rWS+3}], s{sTMP} offen offset:2048 sc1")
        A("L_c_skip:")
        A("s_mov_b64 exec, vcc")
    pollm("c", c_issue, 3, pre=(lambda: (A("s_barrier"), nop(cdel))) if fbar else None)
    stamp("hopC")
    pk("add", g0, g0, g0 + 4)
    pk("add", g0 + 2, g0 + 2, g0 + 6)
    pk("add", g0, g0, g0 + 8)
    pk("add", g0 + 2, g0 + 2, g0 + 10)
    nop(2)
    A(f"v_permlane32_swap_b32 v{g0}, v{g0+2}")
    A(f"v_permlane32_swap_b32 v{g0+1}, v{g0+3}")
    pk("add", g0, g0, g0 + 2)
    nop(2)
    A(f"v_permlane16_swap_b32 v{g0}, v{g0+1}")
    A(f"v_add_f32 v{g0}, v{g0}, v{g0+1}")
    nop(2)
    dpp("v_add_f32", g0, g0, g0, "row_ror:8")
    if mim:
        round1(g0)
        A(f"v_add_f32 v{g0}, v{g0}, v{vB2R}")
        round1(g0)
    A(f"v_add_f32 v{g0}, v{g0}, v{vXR}")
    A(f"v_cvt_pk_bf16_f32 v{g0}, v{g0}, v{g0}")
    A(f"global_store_short v{vFC}, v{g0}, s[{sOUT}:{sOUT+1}]")
    A(f"s_cmp_lg_u32 s{sR}, 0")
    A("s_cbranch_scc1 L_fin")
    A("s_mov_b64 exec, 1")
    A(f"v_mov_b32 v{vA1}, s{sT}")
    A(f"buffer_store_dword v{vA1}, v{vL8}, s[{rWS}:{rWS+3}], 0 offen offset:{WS_E}")
    A("L_fin:")
    if minT:
        A(f"s_cmp_lg_u32 s2, {minX}")
        A("s_cbranch_scc1 L_nospin")
        A("L_spin:")
        A("s_memrealtime s[98:99]")
        A("s_waitcnt lgkmcnt(0)")
        A("s_sub_u32 s98, s98, s100")
        A(f"s_cmp_lt_u32 s98, {minT*100}")
        A("s_cbranch_scc1 L_spin")
        A("L_nospin:")
    if diag:
        A("s_mov_b64 exec, -1")
        A("s_waitcnt vmcnt(0)")
        stamp("end")
        for _ in range(4):
            A("s_sleep 127")
        for i in range(12):
            A(f"v_mov_b32 v{vK+i}, s{dslot(i)}")
        A(f"v_mov_b32 v{vK+12}, s{sLOC}")
        A(f"v_mov_b32 v{vK+13}, s{sXCC}")
        A(f"s_lshl_b32 s{sTMP}, s2, 3")
        A(f"s_add_u32 s{sTMP}, s{sTMP}, s{sWV}")
        A(f"s_lshl_b32 s{sTMP}, s{sTMP}, 6")
        A(f"s_add_u32 s{sTMP}, s{sTMP}, {WS_DIAG}")
        A(f"v_mov_b32 v{vA0}, 0")
        A("s_mov_b64 exec, 1")
        for i in range(4):
            A(f"buffer_store_dwordx4 {vr(vK+4*i)}, v{vA0}, s[{rWS}:{rWS+3}], s{sTMP} offen offset:{16*i}")
    A("s_endpgm")
    for c in near:
        c()
    A("L_tailend:")

    if "roles" not in strip:
        A("L_s_w:")
        stream("w", dw)
        A("s_branch L_tail")
        A("L_s_f:")
        stream("f", df)
        A("s_branch L_tail")

    for c in cold:
        c()
    A("L_end:")
    A("s_endpgm")
    L.append(f".if (. - L_pc) > {PFL*4096}")
    L.append('.error "code prefetch too short"')
    L.append(".endif")
    L.append(f".fill ({PFL*4096} - (. - L_pc)) / 4, 4, 0xbf810000")
    L.append('.section .rodata,"a"')
    L.append(".p2align 6")
    L.append(f".amdhsa_kernel {NAME}_kernel")
    L.append("  .amdhsa_next_free_vgpr 256")
    L.append("  .amdhsa_next_free_sgpr 102")
    L.append("  .amdhsa_accum_offset 256")
    L.append("  .amdhsa_group_segment_fixed_size 0")
    L.append("  .amdhsa_kernarg_size 104")
    L.append("  .amdhsa_user_sgpr_count 2")
    L.append("  .amdhsa_user_sgpr_kernarg_segment_ptr 1")
    L.append("  .amdhsa_system_sgpr_workgroup_id_x 1")
    L.append("  .amdhsa_float_denorm_mode_32 3")
    L.append(".end_amdhsa_kernel")
    return "\n".join(L) + "\n", stamps


if __name__ == "__main__":
    header = open("cdna_kernels/" + NAME + ".s.ref").read().split("; Override launch")[0]
    kw = eval("dict(" + (sys.argv[2] if len(sys.argv) > 2 else "") + ")")
    src, _ = gen(**kw)
    open(sys.argv[1], "w").write(header + src)
```

```python
import sys
NAME = "sequential_preLN__mha_block_cached__dense_activation_squared_relu__decode"

WS_E = 0
WS_XC = 0x1000
WS_YP = 0x8000
WS_Y2 = 0x10000
WS_RACE = 0x20000
WS_QP = 0x40000
WS_OP = 0x80000
WS_ML = 0xA0000
WS_ZP = 0xB0000
ZSTR = 3200
WS_DIAG = 0x100000
WS_SIZE = 0x200000
L_OW = 0
L_F1 = 4096
L_CS = 8192
L_HS = 12288
L_ML = L_HS + 2048
L_ST = L_ML + 64
L_Q = L_ST + 192
L_NEAR = L_Q + 256
L_WA = 16384
L_WB = L_WA + 65536
LDS_BYTES = L_WB + 65536
assert L_Q + 256 <= L_WA and L_Q % 16 == 0

LOG2E = 0x3fb8aa3b
SCALE = 0x3db504f3
EPS = 0x3727c5ac
NF = 22
NW0 = 22

DOC = """
; One launch, one workgroup of 8 waves per CU.  wg = 8 r + X; group X owns heads 4X..4X+3, id = 32 X + r = 8 head + s,
; s = 4 batch + quarter: the workgroup owns 1024 keys of one (batch, head).
;   q      wave 0 multiplies LN(x) (both batches) with 64 rows of the head's wq slice; wave QW adds the 8 partial sums.
;          The four workgroups of a (batch, head) trade (max, sum) half way, so each publishes a normalised partial o.
;   W      8 workgroups of every group multiply o (4 heads) with a 512 x 64 block of wo and publish y.
;   F      22 workgroups of group 0 add the 8 y and x, and run LN + w1 + relu^2 + w2 for 64 hidden columns each
;          (LN is applied after the product: (h w1 - mean colsum(w1)) * rstd); all 32 add the partial sums at the end.
; Hand-offs go through d_ws.  Every word carries one byte of T = E + 0x01010101 in its low byte, E being the epoch word
; group is stored through to memory unless all 32 workgroups of the group have reported the writer's own die.
"""


def gen(diag=False, only=None, local=True, minT=0, minX=None, now=(),
        rn="332" * 6 + "33", rw="3" * 18, rf="33" + "4" * 14, f0=3, fstep=3,
        pq=21, p1=8, p2=19, qw=1, sw=3, fw=7, budget=110, PFL=8, q3=1, mid=4, wmid=3, sx=0, rx="3" * 14 + "444", qskip=0, gap=0, spread="", sbud=1, oi=0, race='r'):
    L = []

    def A(s):
        L.append("    " + s if not s.endswith(":") else s)

    def C(s):
        L.append("    ; " + s)

    def nop(n):
        if n > 0:
            A(f"s_nop {n-1}")

    def vr(a, n=4):
        return f"v[{a}:{a+n-1}]"

    sU1 = 4
    sX, sK, sV, sWQ, sWO, sW1, sB1, sW2, sB2, sOUT, sWS = 8, 10, 12, 14, 16, 20, 22, 24, 26, 28, 32
    sPC = 34
    rK, rV, rWS, rT = 36, 40, 44, 48
    sGX, sR, sH, sS, sB, sWV = 52, 53, 54, 55, 56, 57
    sT, sT0, sT1, sT2, sT3 = 58, 59, 60, 61, 62
    sLOC, sCNT, sTMP, sTMP2, sXW = 63, 64, 65, 66, 67
    sBASE, sTILE = 68, 69
    sID, sXCC = 70, 71
    rB = 72
    sD1, sD3 = 76, 77
    sQO, sCB, sML = 78, 79, 80
    sEX = 86
    Tk = [sT0, sT1, sT2, sT3]

    vDA = 0
    vL, vG, vC = 1, 2, 3
    vKV = 4
    vA0, vA1, vA2 = 5, 6, 7
    vQ = 8
    vMK = 12
    vACC = 16
    vS = 20
    vFF = 28
    vM = 29
    vT0, vT1 = 30, 31
    vTMP = 32
    vK = 48
    vV = 176
    NRING = 20
    vW1 = vK
    vW2 = vK + 32
    vF = vK + 64
    vMT2 = vK + 64
    vMT = vK + 72
    vXR = vK + 76
    vB1R = vK + 78
    vCS = vK + 80
    vTa, vTb = vK + 82, vK + 83
    vB2R = vK + 84
    vL8 = vK + 85
    vAA = vK + 86
    vBA = vK + 87
    vYR = vK + 88
    vEPS = vK + 88
    vFW = vK + 89
    vSA = vK + 90
    vSR = vK + 91
    vZA = vK + 92
    vFC = vK + 93
    vYS = vK + 94
    vRHO = vK + 95
    vONE = vK + 96
    vXC = vK + 97
    vOWA = vK + 98
    vDUM = vK + 99
    vMLG = vK + 100
    vMLW = vK + 104
    vG16 = vK + 106
    vHW = vK + 107
    vD0, vD1 = vK + 108, vK + 112
    vP = vK + 116
    vL16 = vK + 118
    vFR = vK + 119
    vD2, vD3 = vK + 120, vK + 124
    vOS = vK + 80
    vTG = vQ
    g0 = vTMP
    vBM = 12
    vW2b = vV
    gA = vV + 32
    st = vV + 64
    s0, s1 = vT0, vT1

    stamps = []

    def dslot(i):
        return ([88 + k for k in range(12)])[i]

    def stamp(name):
        if not diag:
            return
        if only is not None and name not in only and name not in ("strm", "end"):
            return
        if only is None and name.startswith("_"):
            return
        if name not in stamps:
            stamps.append(name)
        A(f"s_memrealtime s[{sEX}:{sEX+1}]")
        A("s_waitcnt lgkmcnt(0)")
        A(f"s_mov_b32 s{dslot(stamps.index(name))}, s{sEX}")

    def srd(r, p, size):
        A(f"s_mov_b32 s{r}, s{p}")
        A(f"s_mov_b32 s{r+1}, s{p+1}")
        A(f"s_mov_b32 s{r+2}, {size}")
        A(f"s_mov_b32 s{r+3}, 0x20000")

    def tag4(base):
        for k in range(4):
            A(f"v_bfi_b32 v{base+k}, v{vFF}, s{Tk[k]}, v{base+k}")

    def untag(base, n, acc, tags, wait=None):
        for i in range(n):
            if wait is not None:
                A(f"s_waitcnt vmcnt({n - 1 - i})")
            b = base + 4 * i
            for k in range(4):
                A(f"v_xor_b32 v{b+k}, {tags[k]}, v{b+k}")
            if i == 0:
                A(f"v_or3_b32 v{acc}, v{b}, v{b+1}, v{b+2}")
            else:
                A(f"v_or3_b32 v{acc}, v{acc}, v{b-1}, v{b}")
                A(f"v_or3_b32 v{acc}, v{acc}, v{b+1}, v{b+2}")
        A(f"v_or_b32 v{acc}, v{acc}, v{base+4*n-1}")
        A(f"v_cmp_ne_u32_sdwa vcc, v{acc}, 0 src0_sel:BYTE_0 src1_sel:DWORD")
    STAGS = [f"s{t}" for t in Tk]
    VTAGS = [f"v{vTG+k}" for k in range(4)]

    cold = []

    def poll_rare(name, issue, check):
        A(f"s_mov_b32 s{sCNT}, 0x4000")
        A(f"L_{name}_chk:")
        check()
        A(f"s_cbranch_vccnz L_{name}_again")
        A(f"L_{name}_ok:")

        def retry():
            A(f"L_{name}_again:")
            A(f"s_sub_u32 s{sCNT}, s{sCNT}, 1")
            A(f"s_cbranch_scc1 L_{name}_ok")
            issue()
            A("s_waitcnt vmcnt(0)")
            A(f"s_branch L_{name}_chk")
        cold.append(retry)

    def poll(name, issue, n, init=True):
        if init:
            A(f"s_mov_b32 s{sCNT}, 0x8000")
            A("s_mov_b64 vcc, -1")
        A(f"L_{name}_again:")
        A("s_mov_b64 exec, vcc")
        issue()
        A(f"s_sub_u32 s{sCNT}, s{sCNT}, 1")
        A(f"s_cbranch_scc1 L_{name}_ok")
        A(f"L_{name}_chk:")
        untag(g0, n, vT0, VTAGS, wait=True)
        A(f"s_cbranch_vccnz L_{name}_again")
        A(f"L_{name}_ok:")
        A("s_mov_b64 exec, -1")

    def publish(name, *lines, farfirst=False):
        A(f"s_cbranch_scc{0 if farfirst else 1} L_{name}_alt")
        for line in lines:
            A(line + (" sc1" if farfirst else ""))
        A(f"s_branch L_{name}_pub")
        A(f"L_{name}_alt:")
        for line in lines:
            A(line + ("" if farfirst else " sc1"))
        A(f"L_{name}_pub:")

    def dpp(op, d, a, b, ctl, bank=0xf):
        A(f"{op}_dpp v{d}, v{a}, v{b} {ctl} row_mask:0xf bank_mask:{hex(bank)}")

    X1, X2, HM = "quad_perm:[1,0,3,2]", "quad_perm:[2,3,0,1]", "row_half_mirror"

    def round_bf16(regs, tmp):
        for i in range(0, len(regs), 2):
            A(f"v_cvt_pk_bf16_f32 v{tmp+i//2}, v{regs[i]}, v{regs[i+1]}")
        for i in range(0, len(regs), 2):
            A(f"v_lshlrev_b32 v{regs[i]}, 16, v{tmp+i//2}")
            A(f"v_and_b32 v{regs[i+1]}, 0xffff0000, v{tmp+i//2}")

    def round1(r):
        A(f"v_cvt_pk_bf16_f32 v{r}, v{r}, v{r}")
        A(f"v_lshlrev_b32 v{r}, 16, v{r}")

    def unpack(dst, src, n):
        for i in range(n):
            A(f"v_lshlrev_b32 v{dst+2*i}, 16, v{src+i}")
            A(f"v_and_b32 v{dst+2*i+1}, 0xffff0000, v{src+i}")

    def pk(op, d, a, b, c=None, extra=""):
        if c is None:
            A(f"v_pk_{op}_f32 {vr(d,2)}, {vr(a,2)}, {vr(b,2)}{extra}")
        else:
            A(f"v_pk_{op}_f32 {vr(d,2)}, {vr(a,2)}, {vr(b,2)}, {vr(c,2)}{extra}")
    lo, lo3, hi3 = " op_sel_hi:[1,0]", " op_sel_hi:[1,0,1]", " op_sel:[0,1,0]"

    def sum8(g, out=None):
        for i in range(4):
            pk("add", g + 4 * i, g + 4 * i, g + 4 * i + 2)
        pk("add", g, g, g + 4)
        pk("add", g + 8, g + 8, g + 12)
        pk("add", g if out is None else out, g, g + 8)

    def mfma(d, a, b, c):
        A(f"v_mfma_f32_16x16x32_bf16 {vr(d)}, {vr(a)}, {vr(b)}, " + ("0" if c is None else vr(c)))

    def matvec64(blocks, masks, extra=()):
        extra = list(extra)

        def f():
            if extra:
                extra.pop(0)()

        def ands(tau, ks):
            for k in ks:
                dpp("v_and_b32", vBM + 4 * tau + k, vP, masks + tau, f"quad_perm:[{k},{k},{k},{k}]")
        ands(0, range(4))
        f()
        ands(1, range(2))
        for tau in range(4):
            for bi, (w, d0, d1) in enumerate(blocks):
                mfma(d1, w + 8 * tau + 4, vBM + 4 * tau, None if tau == 0 else d1)
                if bi == 0 and tau < 3:
                    ands(tau + 1, range(2, 4))
                    f()
                mfma(d0, w + 8 * tau, vBM + 4 * tau, None if tau == 0 else d0)
                if bi == 0 and tau < 2:
                    ands(tau + 2, range(2))
                if bi == 0 and tau < 3:
                    had = bool(extra)
                    f()
                    if tau == 2 and len(blocks) == 1 and not had:
                        nop(1)
        assert not extra

    def vreg(i):
        return vV + 4 * (i % NRING)

    def kvload(kind, i, settile=None):
        t, j = divmod(i, 4)
        if sx:
            if i:
                A(f"s_xor_b32 s{sTILE}, s{sBASE}, {(t << 15) + (0, 2048, 1024, 3072)[j]}")
            dst, r = (vK + 4 * i, rK) if kind == "K" else (vreg(i), rV)
            A(f"buffer_load_dwordx4 {vr(dst)}, v{vKV}, s[{r}:{r+3}], s{sTILE if i else sBASE} offen nt")
            return
        if t and (j == 0 if settile is None else settile):
            A(f"s_xor_b32 s{sTILE}, s{sBASE}, {t << 15}")
        dst, r = (vK + 4 * i, rK) if kind == "K" else (vreg(i), rV)
        A(f"buffer_load_dwordx4 {vr(dst)}, v{vKV}, s[{r}:{r+3}], s{sTILE if t else sBASE} offen offset:{(0, 2048, 1024, 3072)[j]} nt")

    def make_masks():
        A(f"v_and_b32 v{vA0}, 1, v{vL}")
        A(f"v_lshlrev_b32 v{vA0}, 4, v{vA0}")
        A(f"v_mov_b32 v{vA1}, 0xffff")
        A(f"v_lshlrev_b32 v{vA1}, v{vA0}, v{vA1}")
        A(f"v_bfe_u32 v{vA0}, v{vL}, 1, 2")
        for j in range(4):
            A(f"v_cmp_eq_u32 vcc, {j}, v{vA0}")
            nop(2)
            A(f"v_cndmask_b32 v{vMK+j}, 0, v{vA1}, vcc")

    def epoch():
        A("s_waitcnt lgkmcnt(0)")
        if diag:
            for i in range(1, 12):
                A(f"s_mov_b32 s{dslot(i)}, 0")
            A(f"s_mov_b32 s{dslot(0)}, s{sEX}")
        srd(rV, sV, 0x4000000)
        A(f"s_add_u32 s{sT}, s{sT}, 0x01010101")
        A(f"s_and_b32 s{sT0}, s{sT}, 0xff")
        A(f"s_bfe_u32 s{sT1}, s{sT}, 0x80008")
        A(f"s_bfe_u32 s{sT2}, s{sT}, 0x80010")
        A(f"s_lshr_b32 s{sT3}, s{sT}, 24")
        A(f"s_lshl_b32 s{sXW}, s{sXCC}, 28")
        A(f"s_add_u32 s{sXW}, s{sXW}, s{sT}")

    def ypage(p):
        if race is None:
            A(f"s_lshl_b32 s{sTMP}, s{p}, 12")
            A(f"s_add_u32 s{sTMP}, s{sTMP}, {WS_YP}")
        else:
            A(f"s_and_b32 s{sTMP}, s{p}, 6")
            A(f"s_add_u32 s{sTMP}, s{sTMP}, s{p}")
            A(f"s_lshl_b32 s{sTMP}, s{sTMP}, 12")
            A(f"s_add_u32 s{sTMP}, s{sTMP}, {WS_Y2}")

    def xc_load():
        A(f"v_and_b32 v{vA0}, 31, v{vL}")
        A(f"v_lshlrev_b32 v{vA0}, 2, v{vA0}")
        A(f"s_lshl_b32 s{sTMP}, s{sGX}, 7")
        A(f"s_add_u32 s{sTMP}, s{sTMP}, {WS_XC}")
        A(f"buffer_load_dword v{vXC}, v{vA0}, s[{rWS}:{rWS+3}], s{sTMP} offen sc1")

    def y_copy():
        if race == "r":
            A(f"s_xor_b32 s{sTMP}, s{sXW}, {1 << 27}")
            A(f"v_cmp_eq_u32 vcc, s{sTMP}, v{vXC}")
            A(f"s_bcnt1_i32_b32 s{sTMP}, vcc_lo")
            A(f"s_cmp_ge_u32 s{sTMP}, 15")
            A(f"s_cselect_b32 s{sTMP}, 0, 0x2000")
            A(f"v_add_u32 v{vBA}, s{sTMP}, v{vBA}")

    def xc_check():
        if race == "r":
            A(f"v_xor_b32 v{vXC}, s{sXW}, v{vXC}")
            A(f"v_and_b32 v{vXC}, {0xffffffff ^ (1 << 27)}, v{vXC}")
            A(f"v_cmp_ne_u32 vcc, 0, v{vXC}")
        else:
            A(f"v_cmp_ne_u32 vcc, s{sXW}, v{vXC}")
        A("s_cmp_eq_u64 vcc, 0")
        A(f"s_cselect_b32 s{sLOC}, {1 if local else 0}, 0")

    L.append(f"; @launch grid=(256,1,1) block=(512,1,1) lds={LDS_BYTES}")
    L.extend(DOC.strip("\n").replace("QW", str(qw)).split("\n"))
    L.append('.amdgcn_target "amdgcn-amd-amdhsa--gfx950"')
    L.append(".text")
    L.append(f".globl {NAME}_kernel")
    L.append(".p2align 8")
    L.append(f".type {NAME}_kernel,@function")
    L.append(f"{NAME}_kernel:")
    C("the first 256 bytes arrive with the first instruction fetch: they hold everything up to the first loads")
    A(f"s_load_dwordx2 s[{rK}:{rK+1}], s[0:1], 8")
    A("s_load_dwordx2 s[32:33], s[0:1], 96")
    A(f"s_lshr_b32 s{sR}, s2, 3")
    A(f"s_cmp_ge_u32 s{sR}, 32")
    A("s_cbranch_scc1 L_end")
    A(f"s_getpc_b64 s[{sPC}:{sPC+1}]")
    A("L_pc:")
    if minT:
        A("s_memrealtime s[100:101]")
    if diag:
        A(f"s_memrealtime s[{sEX}:{sEX+1}]")
        stamps.append("start")
    C("pull the kernel's code into this die's L2: line r + 32 lane, a few lanes of wave 0 (values unused)")
    A(f"v_lshl_add_u32 v{vT0}, v0, 5, s{sR}")
    A(f"v_cmp_gt_u32 vcc, {PFL}, v0")
    A(f"v_lshlrev_b32 v{vT0}, 7, v{vT0}")
    A("s_and_b64 exec, exec, vcc")
    A("s_cbranch_scc0 L_nopf")
    A(f"global_load_dword v{vT0}, v{vT0}, s[{sPC}:{sPC+1}]")
    A("L_nopf:")
    A("s_mov_b64 exec, -1")
    A(f"v_lshrrev_b32 v{vA0}, 6, v0")
    A(f"v_and_b32 v{vL}, 63, v0")
    A(f"v_lshlrev_b32 v{vKV}, 12, v{vA0}")
    A(f"v_lshl_add_u32 v{vKV}, v{vL}, 4, v{vKV}")
    A(f"s_and_b32 s{sGX}, s2, 7")
    A(f"s_lshl_b32 s{sID}, s{sGX}, 5")
    A(f"s_add_u32 s{sID}, s{sID}, s{sR}")
    A(f"s_lshr_b32 s{sH}, s{sID}, 3")
    A(f"s_lshl_b32 s{sBASE}, s{sH}, 20")
    A(f"s_and_b32 s{sTMP}, s{sR}, 3")
    A(f"s_lshl_b32 s{sTMP}, s{sTMP}, 18")
    A(f"s_or_b32 s{sBASE}, s{sBASE}, s{sTMP}")
    A(f"s_and_b32 s{sB}, s{sR}, 4")
    A(f"s_lshl_b32 s{sTMP}, s{sB}, 23")
    A(f"s_or_b32 s{sBASE}, s{sBASE}, s{sTMP}")
    A(f"s_and_b32 s{sS}, s{sR}, 7")
    A(f"s_lshl_b32 s{sTMP}, s{sS}, 15")
    A(f"s_or_b32 s{sBASE}, s{sBASE}, s{sTMP}")
    A(f"s_brev_b32 s{rK+2}, 32")
    A(f"s_mov_b32 s{rK+3}, 0x20000")
    A(f"v_readfirstlane_b32 s{sWV}, v{vA0}")
    if race == "r":
        A(f"s_lshl_b32 s{sTMP}, s{sR}, 7")
        A(f"s_bitset1_b32 s{sTMP}, 17")
        A(f"s_lshl3_add_u32 s{sD1}, s{sGX}, s{sWV}")
        A(f"s_cmp_lg_u32 s{sD1}, 2")
    A("s_waitcnt lgkmcnt(0)")
    if race == "r":
        A("s_cbranch_scc1 L_norace")
        A(f"s_load_dword s82, s[{sWS}:{sWS+1}], s{sTMP}")
        A(f"s_bitset1_b32 s{sTMP}, 13")
        A(f"s_load_dword s84, s[{sWS}:{sWS+1}], s{sTMP}")
        A("L_norace:")
    for i in range(4):
        kvload("K", i)
    if race == "r":
        A("s_waitcnt lgkmcnt(1)")
        A(f"s_cmp_lg_u32 s{sWV}, 0")
        A("s_getreg_b32 s83, hwreg(HW_REG_IB_STS, 8, 4)")
    else:
        A(f"s_cmp_lg_u32 s{sWV}, 0")
    A(f"v_lshrrev_b32 v{vG}, 4, v{vL}")
    A(f"v_and_b32 v{vC}, 15, v{vL}")
    A("s_cbranch_scc1 L_rest")

    def more_args(first):
        A(f"s_load_dword s{sT}, s[{sWS}:{sWS+1}], {WS_E}")
        if first:
            A("s_load_dwordx8 s[8:15], s[0:1], 0")
        A("s_load_dwordx16 s[16:31], s[0:1], 32")

    def common_setup():
        A(f"v_mov_b32 v{vFF}, 0xff")
        A(f"s_getreg_b32 s{sXCC}, hwreg(HW_REG_XCC_ID, 0, 4)")
        srd(rWS, sWS, WS_SIZE)

    K0 = 10 if q3 else 7
    C("---------------- wave 0: partial q ----------------")
    A("s_load_dwordx8 s[8:15], s[0:1], 0")
    vXS, vXA, vW = vTMP, vTMP + 8, vV
    vY, vAB = vV + 64, vK + 64
    A(f"v_lshrrev_b32 v{vA0}, 3, v{vC}")
    A(f"v_lshlrev_b32 v{vA0}, 10, v{vA0}")
    A(f"v_and_b32 v{vA1}, 7, v{vC}")
    A(f"v_lshl_add_u32 v{vA1}, v{vG}, 3, v{vA1}")
    A(f"v_lshl_add_u32 v{vA1}, v{vA1}, 5, v{vA0}")
    A(f"v_lshl_add_u32 v{vA0}, v{vG}, 5, v{vA0}")
    A(f"s_lshl_b32 s{sTMP}, s{sS}, 7")
    A(f"v_add_u32 v{vA0}, s{sTMP}, v{vA0}")
    A("s_waitcnt lgkmcnt(0)")
    A(f"global_load_dwordx4 {vr(vXS)}, v{vA1}, s[{sX}:{sX+1}]")
    A(f"global_load_dwordx4 {vr(vXS+4)}, v{vA1}, s[{sX}:{sX+1}] offset:16")
    A(f"global_load_dwordx4 {vr(vXA)}, v{vA0}, s[{sX}:{sX+1}]")
    A(f"global_load_dwordx4 {vr(vXA+4)}, v{vA0}, s[{sX}:{sX+1}] offset:16")
    srd(rT, sWQ, 0 if "wq" in now else 0x400000)
    A(f"s_lshl_b32 s{sTMP}, s{sS}, 19")
    A(f"s_lshl_b32 s{sTMP2}, s{sH}, 8")
    A(f"s_add_u32 s{sTMP}, s{sTMP}, s{sTMP2}")
    A(f"v_lshlrev_b32 v{vA2}, 17, v{vG}")
    A(f"v_lshl_add_u32 v{vA2}, v{vC}, 4, v{vA2}")
    if qskip:
        A(f"s_cmp_lt_u32 s{sID}, {NF}")
        A("s_cbranch_scc1 L_qskip")
    for j in range(16):
        A(f"buffer_load_dwordx4 {vr(vW+4*j)}, v{vA2}, s[{rT}:{rT+3}], s{sTMP} offen nt")
        if j < 15:
            A(f"s_add_u32 s{sTMP}, s{sTMP}, 8192")
    A("L_qskip:")
    C("reset the LDS tables that other waves of this workgroup fill later")
    A(f"v_lshlrev_b32 v{vA0}, 2, v{vC}")
    A(f"v_mov_b32 v{vA1}, -1")
    A(f"ds_write_b32 v{vA0}, v{vA1} offset:{L_ML}")
    A(f"v_lshlrev_b32 v{vA0}, 2, v{vL}")
    A(f"ds_write_b32 v{vA0}, v{vA1} offset:{L_Q}")
    common_setup()
    for i in range(4, 7):
        kvload("K", i)
    A("s_waitcnt lgkmcnt(0)")
    more_args(False)
    A("s_barrier")
    if race == "r":
        A(f"v_mov_b32 v{vM}, 0")
        A(f"ds_read_b32 v{vM}, v{vM} offset:{L_NEAR}")
    make_masks()
    A(f"v_mov_b32 v{vA0}, 0x3f803f80")
    A("s_waitcnt vmcnt(21)")
    for i in range(8):
        A(f"v_dot2_f32_bf16 v{s0}, v{vXS+i}, v{vA0}, " + ("0" if i == 0 else f"v{s0}"))
        A(f"v_dot2_f32_bf16 v{s1}, v{vXS+i}, v{vXS+i}, " + ("0" if i == 0 else f"v{s1}"))
    nop(3)
    for ctl in (X1, X2, HM):
        dpp("v_add_f32", s0, s0, s0, ctl)
        dpp("v_add_f32", s1, s1, s1, ctl)
        nop(1)
    for sw_ in ("v_permlane16_swap_b32", "v_permlane32_swap_b32"):
        A(f"v_mov_b32 v{vA0}, v{s0}")
        A(f"v_mov_b32 v{vA1}, v{s1}")
        nop(2)
        A(f"{sw_} v{s0}, v{vA0}")
        A(f"{sw_} v{s1}, v{vA1}")
        A(f"v_add_f32 v{s0}, v{s0}, v{vA0}")
        A(f"v_add_f32 v{s1}, v{s1}, v{vA1}")
    C("mean and 1 / sqrt(var + eps), rounded to bf16 where the reference rounds")
    A(f"v_mul_f32 v{s0}, 0x3b000000, v{s0}")
    A(f"v_mul_f32 v{s1}, 0x3b000000, v{s1}")
    A(f"v_fma_f32 v{s1}, -v{s0}, v{s0}, v{s1}")
    A(f"v_max_f32 v{s1}, 0, v{s1}")
    A(f"v_cvt_pk_bf16_f32 v{s1}, v{s0}, v{s1}")
    A(f"v_lshlrev_b32 v{s0}, 16, v{s1}")
    A(f"v_and_b32 v{s1}, 0xffff0000, v{s1}")
    A(f"v_add_f32 v{s1}, {hex(EPS)}, v{s1}")
    round1(s1)
    A(f"v_sqrt_f32 v{s1}, v{s1}")
    nop(1)
    round1(s1)
    A(f"v_rcp_f32 v{s1}, v{s1}")
    A("s_waitcnt vmcnt(19)")
    unpack(vY, vXA, 8)
    for i in range(0, 16, 2):
        pk("add", vY + i, vY + i, s0, extra=" op_sel_hi:[1,0] neg_lo:[0,1] neg_hi:[0,1]")
    round_bf16([vY + i for i in range(16)], vXS)
    for i in range(0, 16, 2):
        pk("mul", vY + i, vY + i, s0, extra=" op_sel:[0,1]")
    for i in range(16):
        A(f"v_cvt_pk_bf16_f32 v{vY+i}, v{vY+i}, v{vY+i}")
    for j in range(16):
        for k in range(4):
            A(f"v_and_b32 v{vAB+4*j+k}, v{vMK+k}, v{vY+j}")
    epoch()
    for j in range(16):
        A(f"s_waitcnt vmcnt({18-j})")
        mfma(vACC, vAB + 4 * j, vW + 4 * j, None if j == 0 else vACC)
    for i in range(7, K0):
        kvload("K", i)
    A(f"v_lshrrev_b32 v{vA0}, 5, v{vL}")
    A(f"v_lshlrev_b32 v{vA0}, 12, v{vA0}")
    A(f"v_and_b32 v{vA1}, 31, v{vL}")
    A(f"v_lshl_add_u32 v{vA0}, v{vA1}, 4, v{vA0}")
    A(f"s_lshl_b32 s{sTMP}, s{sH}, 13")
    A(f"s_lshl_b32 s{sTMP2}, s{sS}, 9")
    A(f"s_add_u32 s{sTMP}, s{sTMP}, s{sTMP2}")
    A(f"s_add_u32 s{sTMP}, s{sTMP}, {WS_QP}")
    A(f"s_lshl_b32 s{sTMP2}, s{sID}, 2")
    A(f"s_add_u32 s{sTMP2}, s{sTMP2}, {WS_XC}")
    A(f"v_xor_b32 v{vA1}, s{sXW}, v{vM}" if race == "r" else f"v_mov_b32 v{vA1}, s{sXW}")
    A(f"v_mov_b32 v{vA2}, 0")
    tag4(vACC)
    A(f"buffer_store_dwordx4 {vr(vACC)}, v{vA0}, s[{rWS}:{rWS+3}], s{sTMP} offen sc1")
    A("s_mov_b64 exec, 1")
    A(f"buffer_store_dword v{vA1}, v{vA2}, s[{rWS}:{rWS+3}], s{sTMP2} offen sc1")
    A("s_mov_b64 exec, -1")
    stamp("qpub")
    A("s_branch L_join")

    C("---------------- waves 1..7 ----------------")
    A("L_rest:")
    if race == "r":
        A(f"s_cmp_lg_u32 s{sWV}, 2")
        A("s_cbranch_scc1 L_novote")
        A(f"s_lshl_b32 s{sTMP}, s83, 27")
        A(f"v_mov_b32 v{vA0}, 0")
        A(f"v_mov_b32 v{vA1}, s{sTMP}")
        A(f"ds_write_b32 v{vA0}, v{vA1} offset:{L_NEAR}")
        A("s_waitcnt lgkmcnt(0)")
        A("L_novote:")
    more_args(True)
    common_setup()
    make_masks()
    for i in range(4, 7):
        A("s_waitcnt vmcnt(3)")
        kvload("K", i)
    A("s_barrier")
    epoch()
    for i in range(7, K0):
        A("s_waitcnt vmcnt(2)")
        kvload("K", i)
    A("L_join:")
    stamp("_join")
    A(f"v_cmp_gt_u32 vcc, 8, v{vC}")
    A(f"s_sub_u32 s{sCB}, s{sR}, {NW0}")
    A(f"s_lshl_b32 s{sD3}, s{sWV}, 13")
    for j in range(4):
        A(f"v_cndmask_b32 v{vMK+j}, 0, v{vMK+j}, vcc")
    A(f"v_lshlrev_b32 v{vA2}, 4, v{vL}")
    A(f"s_mov_b32 s{sLOC}, 0")
    A(f"s_cmp_lt_u32 s{sID}, {NF}")
    A("s_cbranch_scc1 L_s_f")
    A(f"s_cmp_lt_u32 s{sCB}, 8")
    A("s_cbranch_scc1 L_s_w")

    def w_dma(which, j):
        pitch = 2752 if which == "w1" else 1024
        base = L_WB if which == "w2" else L_WA
        if j == 0:
            w_srd(which)
            A(f"v_lshrrev_b32 v{vDA}, 3, v{vL}")
            A(f"v_mul_u32_u24 v{vDA}, {pitch}, v{vDA}")
            A(f"v_and_b32 v{vA0}, 7, v{vL}")
            A(f"v_lshl_add_u32 v{vDA}, v{vA0}, 4, v{vDA}")
            if which == "wo":
                A(f"s_lshl_b32 s{sD1}, s{sGX}, 19")
                A(f"s_lshl_b32 s{sTMP2}, s{sWV}, 16")
                A(f"s_add_u32 s{sD1}, s{sD1}, s{sTMP2}")
                A(f"s_lshl_b32 s{sTMP2}, s{sCB}, 7")
            elif which == "w1":
                A(f"s_mul_i32 s{sD1}, s{sWV}, {64*2752}")
                A(f"s_lshl_b32 s{sTMP2}, s{sR}, 7")
            else:
                A(f"s_lshl_b32 s{sD1}, s{sR}, 16")
                A(f"s_lshl_b32 s{sTMP2}, s{sWV}, 7")
            A(f"s_add_u32 m0, s{sD3}, {base}")
            A(f"s_add_u32 s{sD1}, s{sD1}, s{sTMP2}")
        else:
            A(f"s_add_u32 m0, s{sD3}, {base + j*1024}")
            A(f"s_add_u32 s{sD1}, s{sD1}, {8*pitch}")
        A(f"buffer_load_dwordx4 v{vDA}, s[{rT}:{rT+3}], s{sD1} offen nt lds")

    def w_srd(which):
        ptr, size = {"wo": (sWO, 0x400000), "w1": (sW1, 512 * 2752), "w2": (sW2, 1376 * 1024)}[which]
        srd(rT, ptr, 0 if which in now else size)

    def tr_block(dst, addr, offs):
        for tau in range(4):
            for u in range(2):
                for e in range(2):
                    A(f"ds_read_b64_tr_b16 {vr(dst+8*tau+4*u+2*e,2)}, v{addr} offset:{offs(u, e) + tau*32}")
            if tau == 1:
                A("s_waitcnt lgkmcnt(0)")

    def regs_a():
        A(f"v_and_b32 v{vA1}, 3, v{vL}")
        A(f"v_lshlrev_b32 v{vA1}, 3, v{vA1}")
        A(f"v_add_u32 v{vA1}, s{sD3}, v{vA1}")
        A(f"v_lshl_add_u32 v{vA0}, v{vG}, 4, v{vRHO}")
        A(f"v_lshl_add_u32 v{vA2}, v{vA0}, 7, v{vA1}")
        tr_block(vW1, vA2, lambda u, e: L_WA + (2 * u + 8 * e) * 128)

    def stream(role, rounds, lab=None):
        lab = lab or role
        ops = [("K", i) for i in range(K0)]
        landed = [0]

        def wait_n(n):
            if len(ops) - n > landed[0]:
                A(f"s_waitcnt vmcnt({n})")
                landed[0] = len(ops) - n

        def wait_for(key):
            wait_n(len(ops) - 1 - ops.index(key))

        def has(key):
            return key in ops and ops.index(key) < landed[0]

        mark = {}

        def only_wave(name, wave, body):
            A(f"s_cmp_lg_u32 s{sWV}, {wave}")
            A(f"s_cbranch_scc1 L_{name}{lab}_skip")
            body()
            A(f"L_{name}{lab}_skip:")
            mark[name] = len(ops)

        def later(name):
            return name in mark and len(ops) > mark[name]

        def wait_own(name):
            A(f"s_waitcnt vmcnt({len(ops) - mark[name]})")

        def q_loads():
            for i in range(4):
                A(f"buffer_load_dwordx4 {vr(vTMP+4*i)}, v{vA2}, s[{rWS}:{rWS+3}], s{sQO} offen offset:{1024*i} sc1")

        def q_issue():
            def body():
                A(f"s_lshl_b32 s{sQO}, s{sH}, 13")
                A(f"s_lshl_b32 s{sTMP2}, s{sB}, 10")
                A(f"s_add_u32 s{sQO}, s{sQO}, s{sTMP2}")
                A(f"s_add_u32 s{sQO}, s{sQO}, {WS_QP}")
                q_loads()
            only_wave("qi", qw, body)

        def q_finish():
            def body():
                wait_own("qi")
                poll_rare("q" + lab, q_loads, lambda: untag(vTMP, 4, vT0, STAGS))
                a = vTMP
                for i in range(0, 8, 2):
                    pk("add", a + i, a + i, a + 8 + i)
                pk("add", a, a, a + 4)
                pk("add", a + 2, a + 2, a + 6)
                A(f"v_and_b32 v{vA0}, 1, v{vG}")
                A(f"v_lshlrev_b32 v{vA0}, 3, v{vA0}")
                A(f"v_permlane32_swap_b32 v{a}, v{a+2}")
                A(f"v_permlane32_swap_b32 v{a+1}, v{a+3}")
                A(f"v_lshl_add_u32 v{vA0}, v{vC}, 4, v{vA0}")
                A(f"v_lshrrev_b32 v{vA1}, 1, v{vG}")
                pk("add", a, a, a + 2)
                A(f"v_lshl_add_u32 v{vA0}, v{vA1}, 2, v{vA0}")
                A(f"v_cvt_pk_bf16_f32 v{a}, v{a}, v{a+1}")
                A(f"ds_write_b32 v{vA0}, v{a} offset:{L_Q}")
            only_wave("qf", qw, body)

        def q_read():
            n = "qr" + lab
            A(f"v_lshlrev_b32 v{vA0}, 4, v{vC}")
            A(f"s_mov_b32 s{sCNT}, 0x80000")
            A(f"L_{n}_spin:")
            A(f"ds_read_b128 {vr(vQ)}, v{vA0} offset:{L_Q}")
            A(f"s_sub_u32 s{sCNT}, s{sCNT}, 1")
            A(f"s_cbranch_scc1 L_{n}_go")
            A("s_waitcnt lgkmcnt(0)")
            A(f"v_max3_u32 v{vA1}, v{vQ}, v{vQ+1}, v{vQ+2}")
            A(f"v_max_u32 v{vA1}, v{vA1}, v{vQ+3}")
            A(f"v_cmp_eq_u32 vcc, -1, v{vA1}")
            A(f"s_cbranch_vccnz L_{n}_spin")
            A(f"L_{n}_go:")
            A("s_waitcnt lgkmcnt(0)")
            stamp("qgot")

        def qk(t):
            tt, uu = vTMP, vTMP + 4
            for k in range(4):
                for r in range(4):
                    A(f"v_dot2_f32_bf16 v{tt+r}, v{vK+16*t+4*r+k}, v{vQ+k}, " + ("0" if k == 0 else f"v{tt+r}"))
            dpp("v_add_f32", uu, tt, tt, "row_ror:8", 0x3)
            dpp("v_add_f32", uu, tt + 1, tt + 1, "row_ror:8", 0xc)
            dpp("v_add_f32", uu + 1, tt + 2, tt + 2, "row_ror:8", 0x3)
            dpp("v_add_f32", uu + 1, tt + 3, tt + 3, "row_ror:8", 0xc)
            dpp("v_add_f32", vS + t, uu, uu, "row_shl:4", 0x5)
            nop(1)
            dpp("v_add_f32", vS + t, uu + 1, uu + 1, "row_shr:4", 0xa)

        def allred(op, r, t):
            nop(2)
            dpp(op, r, r, r, "row_ror:8")
            nop(2)
            dpp(op, r, r, r, "row_ror:4")
            for sw_ in ("v_permlane16_swap_b32", "v_permlane32_swap_b32"):
                A(f"v_mov_b32 v{t}, v{r}")
                nop(2)
                A(f"{sw_} v{r}, v{t}")
                A(f"{op} v{r}, v{r}, v{t}")

        S = [vS + i for i in range(8)]

        def soft_a():
            for r in S:
                dpp("v_add_f32", r, r, r, X1)
            for r in S:
                dpp("v_add_f32", r, r, r, X2)
            round_bf16(S, vTMP)
            for r in S:
                A(f"v_mul_f32 v{r}, {hex(SCALE)}, v{r}")
            round_bf16(S, vTMP)

        def soft_b():
            m = vT0
            A(f"v_max3_f32 v{m}, v{S[0]}, v{S[1]}, v{S[2]}")
            A(f"v_max3_f32 v{m}, v{m}, v{S[3]}, v{S[4]}")
            A(f"v_max3_f32 v{m}, v{m}, v{S[5]}, v{S[6]}")
            A(f"v_max_f32 v{m}, v{m}, v{S[7]}")
            allred("v_max_f32", m, vTMP)
            for r in S:
                A(f"v_sub_f32 v{r}, v{r}, v{m}")
            for r in S:
                A(f"v_mul_f32 v{r}, {hex(LOG2E)}, v{r}")
            for r in S:
                A(f"v_exp_f32 v{r}, v{r}")

        def soft_c():
            m, l = vT0, vT1
            A(f"s_lshl_b32 s{sTMP}, s{sWV}, 3")
            A(f"v_add_f32 v{l}, v{S[0]}, v{S[1]}")
            for r in S[2:]:
                A(f"v_add_f32 v{l}, v{l}, v{r}")
            for r in S:
                A(f"v_cvt_pk_bf16_f32 v{r}, v{r}, v{r}")
            allred("v_add_f32", l, vTMP)
            A(f"v_mov_b32 v{vA0}, s{sTMP}")
            A(f"ds_write_b64 v{vA0}, {vr(m,2)} offset:{L_ML}")
            only_wave("xc", sw, xc_load)
            stamp("soft")

        bank = [0, 2, 1, 3]

        def pv_a(t):
            for r in range(4):
                for k in range(4):
                    dpp("v_and_b32", vTMP + 4 * r + k, vS + t, vMK + k, f"row_newbcast:{4*bank[r]}")

        def pv_m(i):
            mfma(vACC, vTMP + 4 * (i % 4), vreg(i), None if i == 0 else vACC)

        pvdone = [0]

        def pv_tile(t):
            pv_a(t)
            for r in range(4):
                pv_m(4 * t + r)
            pvdone[0] = 4 * t + 4

        def tail_setup():
            vB3, vXX, vB2 = vA1, vA2, vDUM
            for k in range(4):
                A(f"v_mov_b32 v{vTG+k}, s{Tk[k]}")
            A(f"v_bfe_u32 v{vB3}, v{vL}, 3, 1")
            A(f"v_bfe_u32 v{vB2}, v{vL}, 2, 1")
            A(f"v_and_b32 v{vXX}, 3, v{vL}")
            A(f"v_lshlrev_b32 v{vL8}, 3, v{vL}")
            A(f"v_lshlrev_b32 v{vL16}, 4, v{vL}")
            A(f"v_and_b32 v{vG16}, 0x70, v{vL16}")
            A(f"v_lshl_add_u32 v{vM}, v{vXX}, 1, v{vB3}")
            A(f"v_lshl_add_u32 v{vM}, v{vG}, 3, v{vM}")
            A(f"v_lshlrev_b32 v{vM}, 2, v{vM}")
            A(f"v_lshl_add_u32 v{vHW}, v{vB2}, 10, v{vM}")
            A(f"s_lshl_b32 s{sTMP}, s{sWV}, 7")
            A(f"v_add_u32 v{vHW}, s{sTMP}, v{vHW}")
            A(f"v_lshl_add_u32 v{vFC}, v{vXX}, 4, v{vG}")
            A(f"s_lshr_b32 s{sTMP2}, s{sR}, 2")
            A(f"s_mul_i32 s{sTMP2}, s{sTMP2}, 48")
            A(f"s_lshl2_add_u32 s{sTMP2}, s{sR}, s{sTMP2}")
            A(f"v_add_u32 v{vFC}, s{sTMP2}, v{vFC}")
            A(f"v_lshlrev_b32 v{vFC}, 1, v{vFC}")
            A(f"v_lshl_add_u32 v{vFC}, v{vB2}, 10, v{vFC}")
            A(f"v_lshlrev_b32 v{vBA}, 4, v{vC}")
            A(f"v_lshl_add_u32 v{vBA}, v{vG}, 10, v{vBA}")
            ypage(sWV)
            A(f"v_add_u32 v{vBA}, s{sTMP}, v{vBA}")
            A(f"s_lshl_b32 s{sTMP}, s{sWV}, 9")
            A(f"v_lshlrev_b32 v{vOWA}, 5, v{vC}")
            A(f"v_lshl_add_u32 v{vOWA}, v{vG}, 4, v{vOWA}")
            A(f"v_add_u32 v{vOWA}, s{sTMP}, v{vOWA}")
            if oi:
                A(f"v_lshrrev_b32 v{vM}, 3, v{vL}")
                A(f"v_lshl_add_u32 v{vOS}, v{vM}, 6, v{vL8}")
                A(f"s_and_b32 s{sTMP2}, s{sR}, 3")
                A(f"s_lshl2_add_u32 s{sTMP2}, s{sH}, s{sTMP2}")
                A(f"s_lshl_b32 s{sTMP2}, s{sTMP2}, 10")
                A(f"s_lshl4_add_u32 s{sTMP2}, s{sB}, s{sTMP2}")
            else:
                A(f"v_mov_b32 v{vOS}, v{vL8}")
                A(f"s_lshl_b32 s{sTMP2}, s{sID}, 9")
            A(f"s_add_u32 s{sTMP2}, s{sTMP2}, {WS_OP}")
            A(f"v_add_u32 v{vOS}, s{sTMP2}, v{vOS}")
            A(f"v_and_b32 v{vM}, 1, v{vL}")
            A(f"v_lshlrev_b32 v{vM}, 4, v{vM}")
            A(f"v_lshrrev_b32 v{vTb}, v{vM}, s{sT}")
            A(f"v_and_b32 v{vTa}, v{vFF}, v{vTb}")
            A(f"v_bfe_u32 v{vTb}, v{vTb}, 8, 8")
            if role == "n":
                return
            A(f"v_lshlrev_b32 v{vSR}, 6, v{vB2}")
            A(f"v_lshl_add_u32 v{vRHO}, v{vB3}, 2, v{vB2}")
            A(f"v_lshl_add_u32 v{vFW}, v{vG}, 4, v{vSR}")
            A(f"s_mov_b32 s{sU1}, 0x00ff00ff")
            A(f"s_mov_b32 s{sU1+1}, 0x00ff00ff")
            A(f"v_lshl_add_u32 v{vFW}, v{vXX}, 7, v{vFW}")
            A(f"v_add_u32 v{vFW}, s{sTMP}, v{vFW}")
            for tau in range(4):
                A(f"v_cmp_eq_u32 vcc, {tau}, v{vXX}")
                nop(2)
                A(f"v_cndmask_b32 v{vMT+tau}, 0, -1, vcc")
            if role == "f":
                A(f"v_lshl_add_u32 v{vA0}, v{vB3}, 2, v{vXX}")
                A(f"v_lshl_add_u32 v{vAA}, v{vG}, 3, v{vA0}")
                A(f"v_lshlrev_b32 v{vAA}, 2, v{vAA}")
                A(f"v_lshl_add_u32 v{vFR}, v{vA0}, 3, v{vSR}")
                A(f"v_lshl_add_u32 v{vFR}, v{vG}, 7, v{vFR}")
                A(f"v_mul_u32_u24 v{vZA}, {ZSTR}, v{vG}")
                A(f"s_lshl_b32 s{sTMP2}, s{sR}, 7")
                A(f"s_mul_i32 s{sTMP}, s{sWV}, {4*ZSTR}")
                A(f"s_add_u32 s{sTMP2}, s{sTMP2}, s{sTMP}")
                A(f"s_add_u32 s{sTMP2}, s{sTMP2}, {WS_ZP}")
                A(f"v_add3_u32 v{vZA}, v{vZA}, v{vG16}, s{sTMP2}")
                A(f"s_mov_b32 s{sTMP}, {16*ZSTR}")
                A(f"v_mad_u32_u24 v{vYS}, v{vB3}, s{sTMP}, v{vZA}")
                A(f"v_lshrrev_b32 v{vM}, 1, v{vG}")
                A(f"v_lshl_add_u32 v{vSA}, v{vM}, 2, v{vSR}")
                A(f"s_lshl_b32 s{sTMP}, s{sWV}, 3")
                A(f"v_add_u32 v{vSA}, s{sTMP}, v{vSA}")
                A(f"v_mov_b32 v{vEPS}, {hex(EPS)}")
                A(f"v_mov_b32 v{vONE}, 0x3f803f80")
            else:
                if oi:
                    A(f"v_lshl_add_u32 v{vAA}, v{vB3}, 10, v{vG16}")
                    A(f"v_lshl_add_u32 v{vAA}, v{vG}, 7, v{vAA}")
                else:
                    A(f"v_lshl_add_u32 v{vAA}, v{vB2}, 2, v{vB3}")
                    A(f"v_lshlrev_b32 v{vAA}, 9, v{vAA}")
                    A(f"v_lshl_add_u32 v{vAA}, v{vG}, 6, v{vAA}")
                    A(f"v_lshl_add_u32 v{vAA}, v{vXX}, 4, v{vAA}")
                A(f"s_and_b32 s{sTMP2}, s{sWV}, 1")
                A(f"s_lshl_b32 s{sTMP2}, s{sTMP2}, {9 if oi else 8}")
                A(f"s_lshr_b32 s{sTMP}, s{sWV}, 1")
                A(f"s_lshl_b32 s{sTMP}, s{sTMP}, 12")
                A(f"s_add_u32 s{sTMP2}, s{sTMP2}, s{sTMP}")
                A(f"s_lshl_b32 s{sTMP}, s{sGX}, 14")
                A(f"s_add_u32 s{sTMP2}, s{sTMP2}, s{sTMP}")
                A(f"s_add_u32 s{sTMP2}, s{sTMP2}, {WS_OP}")
                A(f"v_add_u32 v{vAA}, s{sTMP2}, v{vAA}")
                A(f"v_lshl_add_u32 v{vYR}, v{vG}, 7, v{vG16}")
                A(f"v_lshl_add_u32 v{vYR}, v{vB3}, 11, v{vYR}")
                ypage(sCB)
                A(f"s_lshl_b32 s{sTMP2}, s{sGX}, 7")
                A(f"s_add_u32 s{sTMP}, s{sTMP}, s{sTMP2}")
                A(f"v_lshl_add_u32 v{vYS}, v{vG}, 10, v{vG16}")
                A(f"v_add_u32 v{vYS}, s{sTMP}, v{vYS}")

        def w1_regs():
            regs_a()
            for tau in range(4):
                for k in range(4):
                    A(f"v_and_b32 v{vTMP+4*tau+k}, v{vONE}, v{vMT+tau}")
            A("s_waitcnt lgkmcnt(0)")
            nop(1)
            for t3 in range(4):
                for u in range(2):
                    mfma(vD0, vW1 + 8 * t3 + 4 * u, vTMP + 4 * t3, None if (t3 == 0 and u == 0) else vD0)
            nop(8)
            A(f"ds_write_b128 v{vFW}, {vr(vD0)} offset:{L_CS}")

        def ml_publish():
            def body():
                n = "ml" + lab
                o, m, l = vMLG, vMLW, vMLW + 1
                wait_own("xc")
                xc_check()
                A(f"v_and_b32 v{vA0}, 56, v{vL8}")
                A(f"s_mov_b32 s{sCNT}, 0x80000")
                A(f"L_{n}_spin:")
                A(f"ds_read_b64 {vr(m,2)}, v{vA0} offset:{L_ML}")
                A(f"s_sub_u32 s{sCNT}, s{sCNT}, 1")
                A(f"s_cbranch_scc1 L_{n}_go")
                A("s_waitcnt lgkmcnt(0)")
                A(f"v_cmp_eq_u32 vcc, -1, v{l}")
                A(f"s_cbranch_vccnz L_{n}_spin")
                A(f"L_{n}_go:")
                A("s_waitcnt lgkmcnt(0)")
                nop(2)
                dpp("v_max_f32", o, m, m, X1)
                nop(2)
                dpp("v_max_f32", o, o, o, X2)
                nop(2)
                dpp("v_max_f32", o, o, o, HM)
                A(f"v_sub_f32 v{o+1}, v{m}, v{o}")
                A(f"v_mul_f32 v{o+1}, {hex(LOG2E)}, v{o+1}")
                A(f"v_exp_f32 v{o+1}, v{o+1}")
                A(f"v_mov_b32 v{o+2}, 0")
                A(f"v_mul_f32 v{o+1}, v{o+1}, v{l}")
                A(f"v_mov_b32 v{o+3}, 0")
                A(f"s_lshl_b32 s{sTMP}, s{sID}, 7")
                for ctl in (X1, X2, HM):
                    dpp("v_add_f32", o + 1, o + 1, o + 1, ctl)
                    nop(2)
                A(f"s_add_u32 s{sTMP}, s{sTMP}, {WS_ML}")
                tag4(o)
                A("s_mov_b64 exec, 0xff")
                A(f"s_cmp_eq_u32 s{sLOC}, 0")
                publish(n, f"buffer_store_dwordx4 {vr(o)}, v{vL16}, s[{rWS}:{rWS+3}], s{sTMP} offen")
                A("s_mov_b64 exec, -1")
            only_wave("mp", sw, body)

        def ml_load():
            A("s_mov_b64 exec, 0xff")
            A(f"buffer_load_dwordx4 {vr(vMLG)}, v{vXC}, s[{rWS}:{rWS+3}], s{sML} offen sc1")
            A("s_mov_b64 exec, -1")

        def ml_gather():
            def body():
                A(f"v_and_b32 v{vXC}, 3, v{vL}")
                A(f"v_lshlrev_b32 v{vXC}, 7, v{vXC}")
                A(f"s_lshr_b32 s{sML}, s{sID}, 2")
                A(f"s_lshl_b32 s{sML}, s{sML}, 9")
                A(f"s_add_u32 s{sML}, s{sML}, {WS_ML}")
                ml_load()
                A(f"buffer_load_dword v{vDUM}, v{vOS}, s[{rWS}:{rWS+3}], 0 offen")
            only_wave("mg", sw, body)

        def ml_finish():
            def body():
                def chk():
                    A("s_mov_b64 exec, 0xff")
                    untag(vMLG, 1, vA0, STAGS)
                    A("s_mov_b64 exec, -1")
                wait_own("mg")
                poll_rare("m" + lab, ml_load, chk)
                o = vMLG
                dpp("v_max_f32", o + 2, o, o, X1)
                nop(2)
                dpp("v_max_f32", o + 2, o + 2, o + 2, X2)
                A(f"v_sub_f32 v{o}, v{o}, v{o+2}")
                A(f"v_sub_f32 v{o+3}, v{vMLW}, v{o+2}")
                A(f"v_mul_f32 v{o}, {hex(LOG2E)}, v{o}")
                A(f"v_mul_f32 v{o+3}, {hex(LOG2E)}, v{o+3}")
                A(f"v_exp_f32 v{o}, v{o}")
                A(f"v_exp_f32 v{o+3}, v{o+3}")
                A(f"v_mul_f32 v{o+1}, v{o+1}, v{o}")
                nop(2)
                dpp("v_add_f32", o + 1, o + 1, o + 1, X1)
                nop(2)
                dpp("v_add_f32", o + 1, o + 1, o + 1, X2)
                A(f"v_rcp_f32 v{o+1}, v{o+1}")
                nop(1)
                A(f"v_mul_f32 v{o+3}, v{o+3}, v{o+1}")
                nop(1)
                for j in range(8):
                    A(f"v_readlane_b32 s{sTMP}, v{o+3}, {j}")
                    nop(2)
                    A(f"v_mov_b32 v{vF+j}, s{sTMP}")
            only_wave("mf", sw, body)

        todo = [(lambda: ("K", pq) in ops, q_issue), (lambda: later("qi"), q_finish), (lambda: later("qf"), q_read)]
        for t in range(8):
            todo.append((lambda t=t: has(("K", 4 * t + 3)), lambda t=t: qk(t)))
        todo += [(lambda: True, f) for f in (soft_a, soft_b, soft_c, tail_setup)]
        for t in range(7):
            todo.append((lambda t=t: has(("V", 4 * t + 3)), lambda t=t: pv_tile(t)))
        done = set()
        side = [(lambda: tail_setup in done and later("xc") and ("V", p1) in ops, ml_publish),
                (lambda: later("mp") and ("V", p2) in ops, ml_gather),
                (lambda: later("mg"), ml_finish)]
        side2 = [(lambda: tail_setup in done and has(("w1", 7)), w1_regs)] if role == "f" else []
        seq = [("K", i) for i in range(K0, 32)] + [("V", i) for i in range(32)]
        if role == "f":
            for j in range(8):
                seq.insert(f0 + j * (fstep + 1), ("w1", j))
        rounds = ([] if q3 else [3]) + [int(c) for c in rounds]
        assert sum(rounds) == len(seq), (role, sum(rounds), len(seq))
        prev = 3
        for size in rounds:
            first = len(ops)
            for j in range(size):
                kind, i = seq.pop(0)
                assert kind != "V" or i < NRING or pvdone[0] > i - NRING, "ring too small"
                wait_for(ops[first - prev + min(j + max(0, prev - size), prev - 1)])
                if role != "f":
                    nop(gap)
                if kind == "w1":
                    w_dma(kind, i)
                else:
                    kvload(kind, i)
                ops.append((kind, i))
                if role in spread and j < size - 1 and todo and todo[0][1] not in (q_issue, q_finish, q_read, soft_c) and todo[0][0]():
                    f = todo.pop(0)[1]
                    f()
                    done.add(f)
            prev = size
            n0 = len(L)
            for lst in (side, todo, side2):
                if lst is todo and role in spread:
                    n0 = len(L) - budget + sbud
                while lst and lst[0][0]() and len(L) - n0 < budget:
                    f = lst.pop(0)[1]
                    f()
                    done.add(f)
        assert not side and not side2, role
        while todo:
            pred, emit = todo.pop(0)
            while not pred():
                wait_n(len(ops) - landed[0] - 1)
            emit()
        pv_a(7)
        for i in range(28, 32):
            wait_for(("V", i))
            pv_m(i)
            m = {"n": 0, "w": wmid, "f": mid}[role]
            if i - 28 < m:
                w_dma("wo" if role == "w" else "w2", i - 28)
                ops.append(("late", i))

    C("---------------- stream: plain workgroups ----------------")
    stream("n", rn)
    A("L_tail:")
    C("---------------- sum the eight waves' partial outputs and publish them ----------------")
    A("s_mov_b32 exec_hi, 0")
    A(f"s_cmp_lg_u32 s{sWV}, {sw}")
    nop(6)
    A(f"ds_write_b128 v{vOWA}, {vr(vACC)} offset:{L_OW}")
    A("s_mov_b32 exec_hi, -1")
    A("s_waitcnt lgkmcnt(0)")
    stamp("_wend")
    A("s_barrier")
    stamp("strm")
    A("s_cbranch_scc1 L_nos0")
    for i in range(8):
        A(f"ds_read_b64 {vr(g0+2*i,2)}, v{vL8} offset:{L_OW + 512*i}")
    A(f"s_cmp_eq_u32 s{sLOC}, 0")
    A("s_waitcnt lgkmcnt(6)")
    pk("mul", vP, g0, vF, extra=lo)
    pk("fma", vP, g0 + 2, vF, vP, extra=hi3)
    for i in range(1, 4):
        if i != 2:
            A(f"s_waitcnt lgkmcnt({(2, 0, 0)[i-1]})")
        pk("fma", vP, g0 + 4 * i, vF + 2 * i, vP, extra=lo3)
        pk("fma", vP, g0 + 4 * i + 2, vF + 2 * i, vP, extra=hi3)
    A(f"v_bfi_b32 v{vP}, v{vFF}, v{vTa}, v{vP}")
    A(f"v_bfi_b32 v{vP+1}, v{vFF}, v{vTb}, v{vP+1}")
    publish("o", f"buffer_store_dwordx2 {vr(vP,2)}, v{vOS}, s[{rWS}:{rWS+3}], 0 offen")
    stamp("_opub")
    A("L_nos0:")
    A(f"s_cmp_ge_u32 s{sCB}, 8")
    A("s_cbranch_scc1 L_noy")

    C("---------------- stage W ----------------")
    A("s_barrier")

    def a_issue():
        for i in range(2):
            A(f"buffer_load_dwordx4 {vr(g0+4*i)}, v{vAA}, s[{rWS}:{rWS+3}], 0 offen offset:{(2048 if oi else 1024)*i} sc1")

    def pair_from_quad(src, dst):
        dpp("v_add_f32", dst, src, src, "row_ror:8", 0x3)
        dpp("v_add_f32", dst + 1, src + 1, src + 1, "row_ror:8", 0x3)
        dpp("v_add_f32", dst, src + 2, src + 2, "row_ror:8", 0xc)
        dpp("v_add_f32", dst + 1, src + 3, src + 3, "row_ror:8", 0xc)
    w_srd("wo")
    for j in range(wmid, 8):
        w_dma("wo", j)
    a_issue()
    A(f"s_mov_b32 s{sCNT}, 0x8000")
    A(f"s_cmp_eq_u32 s{sGX}, 0")
    A(f"s_cselect_b32 s{sML}, s{sLOC}, 0")
    A("s_waitcnt vmcnt(2)")
    regs_a()
    A("s_waitcnt lgkmcnt(0)")
    A("s_branch L_a_chk")
    poll("a", a_issue, 2, init=False)
    stamp("hopA")
    pk("add", g0, g0, g0 + 4)
    pk("add", g0 + 2, g0 + 2, g0 + 6)
    A(f"s_cmp_lg_u32 s{sWV}, {sw}")
    pair_from_quad(g0, g0 + 4)
    A(f"v_cvt_pk_bf16_f32 v{vP}, v{g0+4}, v{g0+5}")
    nop(2)
    matvec64([(vW1, vD0, vD1)], vMT)
    nop(8)
    for k in range(4):
        dpp("v_add_f32", vD0 + k, vD1 + k, vD0 + k, "row_ror:8")
    A(f"s_mov_b64 exec, s[{sU1}:{sU1+1}]")
    A(f"ds_write_b128 v{vFW}, {vr(vD0)} offset:{L_F1}")
    A("s_mov_b64 exec, -1")
    A("s_waitcnt lgkmcnt(0)")
    A("s_barrier")
    A("s_cbranch_scc1 L_noy")
    for i in range(4):
        A(f"ds_read_b128 {vr(g0+4*i)}, v{vYR} offset:{L_F1 + i*512}")
    A(f"s_cmp_eq_u32 s{sML}, 0")
    if race is not None:
        A(f"s_movk_i32 s{sTMP}, 0x2000")
    for i in range(1, 4):
        A(f"s_waitcnt lgkmcnt({3-i})")
        pk("add", g0, g0, g0 + 4 * i)
        pk("add", g0 + 2, g0 + 2, g0 + 4 * i + 2)
    nop(1)
    for k in range(4):
        dpp("v_add_f32", vD0 + k, g0 + k, g0 + k, "row_ror:8")
    A(f"s_mov_b64 exec, s[{sU1}:{sU1+1}]")
    tag4(vD0)
    publish("y", *[f"buffer_store_dwordx4 {vr(vD0)}, v{vYS}, s[{rWS}:{rWS+3}], {so} offen" for so in (["0"] if race is None else ["0", f"s{sTMP}"])], farfirst=True)
    A("s_mov_b64 exec, -1")
    stamp("ypub")
    A("L_noy:")
    A(f"s_cmp_lg_u32 s{sGX}, 0")
    A("s_cbranch_scc1 L_fin")

    C("---------------- stage F (group 0) ----------------")
    A(f"v_and_b32 v{vA1}, 0x3ff, v{vFC}")
    if race == 1:
        A(f"v_add_u32 v{vBA}, 0x2000, v{vBA}")
    A("s_barrier")
    A(f"global_load_dword v{vXR+1}, v{vHW}, s[{sX}:{sX+1}]")
    A(f"global_load_ushort v{vB2R}, v{vA1}, s[{sB2}:{sB2+1}]")
    xc_load()
    A(f"s_cmp_lt_u32 s{sR}, {NF}")
    A("s_cbranch_scc1 L_late")
    A("s_waitcnt vmcnt(0)")
    y_copy()
    unpack(vXR, vXR + 1, 1)

    def b_issue():
        for i, off in enumerate((0, 256, 512, 768)):
            A(f"buffer_load_dwordx4 {vr(g0+4*i)}, v{vBA}, s[{rWS}:{rWS+3}], 0 offen offset:{off} sc1")

    def late():
        A("L_late:")
        C("FFN workgroups: the rest of w2 and the small operands")
        w_srd("w2")
        for j in range(mid, 8):
            w_dma("w2", j)
        srd(rB, sB1, 2752)
        A(f"s_lshl_b32 s{sTMP2}, s{sR}, 7")
        A(f"buffer_load_dword v{vB1R+1}, v{vAA}, s[{rB}:{rB+3}], s{sTMP2} offen")
        C("touch the lines of this workgroup's Z slots (values unused)")
        A(f"buffer_load_dword v{vDUM}, v{vZA}, s[{rWS}:{rWS+3}], 0 offen")
        for i in range(8):
            A(f"ds_read_b64 {vr(st+2*i,2)}, v{vFR} offset:{L_CS + 512*i}")
        A(f"s_lshl_b32 s{sTMP}, s{sR}, 2")
        A(f"s_sub_u32 s{sTMP}, 86, s{sTMP}")
        A(f"v_cmp_gt_u32 vcc, s{sTMP}, v{vG}")
        A(f"v_mov_b32 v{vONE}, 0x3b003b00")
        A("s_waitcnt lgkmcnt(0)")
        for tau in range(4):
            A(f"v_cndmask_b32 v{vMT2+tau}, 0, v{vMT+tau}, vcc")
        sum8(st, vCS)
        A(f"s_waitcnt vmcnt({8 - mid + 2})")
        y_copy()
        A("s_waitcnt vmcnt(0)")
        A("s_barrier")
        stamp("_late")
        b_issue()
        unpack(vXR, vXR + 1, 1)
        unpack(vB1R, vB1R + 1, 1)
        xc_check()
        A(f"s_mov_b32 s{sCNT}, 0x8000")
        A(f"s_cmp_ge_u32 s{sWV}, 4")
        A("s_cbranch_scc1 L_b_chk")
        A(f"v_and_b32 v{vA1}, 3, v{vL}")
        A(f"v_lshlrev_b32 v{vA1}, 3, v{vA1}")
        A(f"v_lshrrev_b32 v{vA0}, 2, v{vC}")
        A(f"v_lshl_add_u32 v{vA0}, v{vG}, 4, v{vA0}")
        A(f"v_lshl_add_u32 v{vA2}, v{vA0}, 7, v{vA1}")
        A(f"s_add_u32 s{sTMP}, s{sD3}, {L_WB}")
        A(f"v_add_u32 v{vA2}, s{sTMP}, v{vA2}")
        tr_block(vW2, vA2, lambda u, e: (8 * u + 4 * e) * 128)
        A("s_waitcnt lgkmcnt(0)")
        tr_block(vW2b, vA2, lambda u, e: 32768 + (8 * u + 4 * e) * 128)
        A("s_branch L_b_chk")
    poll("b", b_issue, 4)
    stamp("hopB")
    for e in (0, 2, 4, 6):
        pk("add", g0 + e, g0 + e, g0 + 8 + e)
    pk("add", g0 + 4, g0, g0 + 4)
    pk("add", g0 + 6, g0 + 2, g0 + 6)
    A(f"s_cmp_ge_u32 s{sR}, {NF}")
    pair_from_quad(g0 + 4, g0)
    pk("add", g0, g0, vXR)
    A(f"v_cvt_pk_bf16_f32 v{vP}, v{g0}, v{g0+1}")
    A("s_cbranch_scc1 L_noffn")
    A(f"v_dot2_f32_bf16 v{s0}, v{vP}, v{vONE}, 0")
    A(f"v_dot2_f32_bf16 v{s1}, v{vP}, v{vP}, 0")

    def swap_add(op):
        A(f"{op} v{s0}, v{s1}")
        A(f"v_add_f32 v{s0}, v{s0}, v{s1}")
    matvec64([(vW1, vD0, vD1)], vMT, extra=[
        lambda: swap_add("v_permlane32_swap_b32"),
        lambda: dpp("v_add_f32", s0, s0, s0, X1),
        lambda: dpp("v_add_f32", s0, s0, s0, X2),
        lambda: dpp("v_add_f32", s0, s0, s0, "row_ror:8"),
        lambda: A(f"v_mov_b32 v{s1}, v{s0}"),
        lambda: swap_add("v_permlane16_swap_b32"),
        lambda: A(f"ds_write_b32 v{vSA}, v{s0} offset:{L_ST}"),
    ])
    A(f"ds_write_b32 v{vHW}, v{vP} offset:{L_HS}")
    A(f"s_cmp_ge_u32 s{sWV}, 4")
    nop(6)
    for k in range(4):
        dpp("v_add_f32", vD0 + k, vD1 + k, vD0 + k, "row_ror:8")
    A(f"s_mov_b64 exec, s[{sU1}:{sU1+1}]")
    A(f"ds_write_b128 v{vFW}, {vr(vD0)} offset:{L_F1}")
    A("s_mov_b64 exec, -1")
    A("s_waitcnt lgkmcnt(0)")
    A("s_barrier")
    stamp("_f1b")
    A("s_cbranch_scc1 L_final")
    C("waves 0..3: hidden activations and the product with w2")
    for i in range(4):
        A(f"ds_read_b128 {vr(st+4*i)}, v{vSR} offset:{L_ST + 16*i}")
    for i in range(8):
        A(f"ds_read_b64 {vr(g0+2*i,2)}, v{vFR} offset:{L_F1 + 512*i}")
    A(f"s_cmp_eq_u32 s{sLOC}, 0")
    A(f"s_mov_b32 s{sTMP}, 0x3b000000")
    A("s_waitcnt lgkmcnt(10)")
    pk("add", st, st, st + 2)
    pk("add", st + 4, st + 4, st + 6)
    A("s_waitcnt lgkmcnt(8)")
    pk("add", st + 8, st + 8, st + 10)
    pk("add", st + 12, st + 12, st + 14)
    pk("add", st, st, st + 4)
    pk("add", st + 8, st + 8, st + 12)
    pk("add", s0, st, st + 8)
    A(f"v_fma_f32 v{s1}, v{s1}, s{sTMP}, v{vEPS}")
    A(f"v_fma_f32 v{s1}, -v{s0}, v{s0}, v{s1}")
    A(f"v_max_f32 v{s1}, v{vEPS}, v{s1}")
    A(f"v_rsq_f32 v{s1}, v{s1}")
    A("s_waitcnt lgkmcnt(0)")
    sum8(g0)
    pk("fma", g0, vCS, s0, g0, extra=" op_sel_hi:[1,0,1] neg_lo:[0,1,0] neg_hi:[0,1,0]")
    pk("fma", g0, g0, s0, vB1R, extra=hi3)
    A(f"v_max_f32 v{g0}, 0, v{g0}")
    A(f"v_max_f32 v{g0+1}, 0, v{g0+1}")
    pk("mul", g0, g0, g0)
    A(f"v_cvt_pk_bf16_f32 v{vP}, v{g0}, v{g0+1}")
    nop(2)
    matvec64([(vW2, vD0, vD1), (vW2b, vD2, vD3)], vMT2)
    nop(6)
    for k in range(4):
        dpp("v_add_f32", vD0 + k, vD1 + k, vD0 + k, "row_ror:8", 0x3)
    for k in range(4):
        dpp("v_add_f32", vD0 + k, vD2 + k, vD3 + k, "row_ror:8", 0xc)
    tag4(vD0)
    publish("z", f"buffer_store_dwordx4 {vr(vD0)}, v{vYS}, s[{rWS}:{rWS+3}], 0 offen")
    stamp("zpub")
    A("s_branch L_fin")
    A("L_noffn:")
    A(f"ds_write_b32 v{vHW}, v{vP} offset:{L_HS}")
    C("every y is in, so every wave of the launch has read the epoch word: advance it for the next launch")
    A(f"s_lshl3_add_u32 s{sTMP}, s{sR}, s{sWV}")
    A(f"s_cmp_lg_u32 s{sTMP}, {31*8}")
    A("s_cbranch_scc1 L_noe")
    A("s_mov_b64 exec, 1")
    A(f"v_mov_b32 v{vA1}, s{sT}")
    A(f"buffer_store_dword v{vA1}, v{vL8}, s[{rWS}:{rWS+3}], 0 offen offset:{WS_E} sc1")
    A("s_mov_b64 exec, -1")
    A("L_noe:")
    A("s_waitcnt lgkmcnt(0)")
    A("s_barrier")
    A("L_final:")
    C("---------------- one wave of each group-0 workgroup adds the partial sums of 32 outputs ----------------")
    assert fw >= 4
    A(f"s_cmp_lg_u32 s{sWV}, {fw}")
    A("s_cbranch_scc1 L_fin")
    A(f"ds_read_u16 v{vXR}, v{vFC} offset:{L_HS}")
    A(f"s_mul_i32 s{sTMP}, s{sR}, {ZSTR}")
    A(f"s_add_u32 s{sTMP}, s{sTMP}, {WS_ZP}")
    A(f"v_min_u32 v{vA0}, 47, v{vL}")
    A(f"v_and_b32 v{vA0}, 0x38, v{vA0}")
    A(f"v_lshl_add_u32 v{vA0}, v{vA0}, 4, v{vG16}")
    A(f"v_lshlrev_b32 v{vB2R}, 16, v{vB2R}")
    A("s_waitcnt lgkmcnt(0)")
    A(f"v_lshlrev_b32 v{vXR}, 16, v{vXR}")
    A(f"v_add_f32 v{vXR}, v{vXR}, v{vB2R}")

    def c_issue():
        for t in range(2):
            A(f"buffer_load_dwordx4 {vr(g0+4*t)}, v{vL16}, s[{rWS}:{rWS+3}], s{sTMP} offen offset:{1024*t} sc1")
        A(f"buffer_load_dwordx4 {vr(g0+8)}, v{vA0}, s[{rWS}:{rWS+3}], s{sTMP} offen offset:2048 sc1")
    poll("c", c_issue, 3)
    stamp("hopC")
    pk("add", g0, g0, g0 + 4)
    pk("add", g0 + 2, g0 + 2, g0 + 6)
    A("s_mov_b32 exec_hi, 0xffff")
    pk("add", g0, g0, g0 + 8)
    pk("add", g0 + 2, g0 + 2, g0 + 10)
    A("s_mov_b32 exec_hi, -1")
    nop(1)
    A(f"v_permlane32_swap_b32 v{g0}, v{g0+2}")
    A(f"v_permlane32_swap_b32 v{g0+1}, v{g0+3}")
    pk("add", g0, g0, g0 + 2)
    nop(2)
    A(f"v_permlane16_swap_b32 v{g0}, v{g0+1}")
    A(f"v_add_f32 v{g0}, v{g0}, v{g0+1}")
    nop(2)
    dpp("v_add_f32", g0, g0, g0, "row_ror:8")
    A(f"v_add_f32 v{g0}, v{g0}, v{vXR}")
    A(f"v_cvt_pk_bf16_f32 v{g0}, v{g0}, v{g0}")
    A(f"global_store_short v{vFC}, v{g0}, s[{sOUT}:{sOUT+1}]")
    A("L_fin:")
    if minT:
        A(f"s_cmp_lg_u32 s2, {minX}")
        A("s_cbranch_scc1 L_nospin")
        A("L_spin:")
        A("s_memrealtime s[98:99]")
        A("s_waitcnt lgkmcnt(0)")
        A("s_sub_u32 s98, s98, s100")
        A(f"s_cmp_lt_u32 s98, {minT*100}")
        A("s_cbranch_scc1 L_spin")
        A("L_nospin:")
    if diag:
        A("s_mov_b64 exec, -1")
        A("s_waitcnt vmcnt(0)")
        stamp("end")
        for _ in range(4):
            A("s_sleep 127")
        for i in range(12):
            A(f"v_mov_b32 v{vK+i}, s{dslot(i)}")
        A(f"v_mov_b32 v{vK+12}, s{83 if race == 'r' else sLOC}")
        A(f"v_mov_b32 v{vK+13}, s{sXCC}")
        A(f"s_lshl_b32 s{sTMP}, s2, 3")
        A(f"s_add_u32 s{sTMP}, s{sTMP}, s{sWV}")
        A(f"s_lshl_b32 s{sTMP}, s{sTMP}, 6")
        A(f"s_add_u32 s{sTMP}, s{sTMP}, {WS_DIAG}")
        A(f"v_mov_b32 v{vA0}, 0")
        A("s_mov_b64 exec, 1")
        for i in range(4):
            A(f"buffer_store_dwordx4 {vr(vK+4*i)}, v{vA0}, s[{rWS}:{rWS+3}], s{sTMP} offen offset:{16*i}")
    A("s_endpgm")
    late()

    C("---------------- stream: stage-W workgroups ----------------")
    A("L_s_w:")
    if rx:
        A(f"s_cmp_eq_u32 s{sCB}, 3")
        A("s_cbranch_scc1 L_s_x")
    stream("w", rw)
    A("s_branch L_tail")
    if rx:
        C("column block 3 loads its wo lines at half the rate of the others: it runs further ahead")
        A("L_s_x:")
        stream("w", rx, "x")
        A("s_branch L_tail")
    C("---------------- stream: FFN workgroups ----------------")
    A("L_s_f:")
    stream("f", rf)
    A("s_branch L_tail")
    C("---------------- retry paths ----------------")
    for c in cold:
        c()
    A("L_end:")
    A("s_endpgm")
    C("never executed: keeps the code prefetch inside the section")
    L.append(f".if (. - L_pc) > {PFL*4096}")
    L.append('.error "code prefetch too short"')
    L.append(".endif")
    L.append(f".fill ({PFL*4096} - (. - L_pc)) / 4, 4, 0xbf810000")
    L.append('.section .rodata,"a"')
    L.append(".p2align 6")
    L.append(f".amdhsa_kernel {NAME}_kernel")
    L.append("  .amdhsa_next_free_vgpr 256")
    L.append("  .amdhsa_next_free_sgpr 102")
    L.append("  .amdhsa_accum_offset 256")
    L.append("  .amdhsa_group_segment_fixed_size 0")
    L.append("  .amdhsa_kernarg_size 104")
    L.append("  .amdhsa_user_sgpr_count 2")
    L.append("  .amdhsa_user_sgpr_kernarg_segment_ptr 1")
    L.append("  .amdhsa_system_sgpr_workgroup_id_x 1")
    L.append("  .amdhsa_float_denorm_mode_32 3")
    L.append(".end_amdhsa_kernel")
    return "\n".join(L) + "\n", stamps


if __name__ == "__main__":
    header = open("cdna_kernels/" + NAME + ".s.ref").read().split("; Override launch")[0]
    kw = eval("dict(" + (sys.argv[2] if len(sys.argv) > 2 else "") + ")")
    src, _ = gen(**kw)
    open(sys.argv[1], "w").write(header + src)
```

```python
import sys
NAME = "sequential_preLN__mha_block_cached__dense_activation_squared_relu__decode"

WS_E = 0
WS_XC = 0x1000
WS_YP = 0x10000
WS_RACE = 0x20000
WS_QP = 0x40000
WS_OP = 0x80000
WS_ML = 0xA0000
WS_ZP = 0xB0000
ZSTR = 3200
WS_DIAG = 0x100000
WS_SIZE = 0x200000
L_OW = 0
L_F1 = 4096
L_CS = 8192
L_HS = 12288
L_ML = L_HS + 2048
L_ST = L_ML + 64
L_Q = L_ST + 192
L_FL = L_Q + 256
L_WA = 16384
L_WB = L_WA + 65536
LDS_BYTES = L_WB + 65536
assert L_Q + 256 <= L_WA and L_Q % 16 == 0

LOG2E = 0x3fb8aa3b
SCALE = 0x3db504f3
EPS = 0x3727c5ac
NF = 22
NW0 = 22

DOC = """
; One launch, one workgroup of 8 waves per CU.  wg = 8 r + X; group X owns heads 4X..4X+3, id = 32 X + r = 8 head + s,
; s = 4 batch + quarter: the workgroup owns 1024 keys of one (batch, head).
;   q      wave 0 multiplies LN(x) (both batches) with 64 rows of the head's wq slice; wave QW adds the 8 partial sums.
;          The four workgroups of a (batch, head) trade (max, sum) half way, so each publishes a normalised partial o.
;   W      8 workgroups of every group multiply o (4 heads) with a 512 x 64 block of wo and publish y.  The products of
;          the tail use v_smfmac with the dense weights as B; two 2-of-4 rows of A hold one full activation row.
;   F      22 workgroups of group 0 add the 8 y and x, and run LN + w1 + relu^2 + w2 for 64 hidden columns each
;          (LN is applied after the product: (h w1 - mean colsum(w1)) * rstd); all 32 add the partial sums at the end.
; Hand-offs go through d_ws.  Every word carries one byte of T = E + 0x01010101 in its low byte, E being the epoch word
; group is stored through to memory unless all 32 workgroups of the group have reported the writer's own die.
"""


def gen(diag=False, only=None, local=True, minT=0, minX=None, now=(),
        rn="332" * 6 + "33", rw="3" * 18, rx="3" * 14 + "444", rf="33" + "4" * 14, f0=22,
        pq=21, p1=8, p2=19, qw=1, sw=3, fw=7, budget=110, PFL=8, mid=4, wmid=3):
    L = []

    def A(s):
        L.append("    " + s if not s.endswith(":") else s)

    def C(s):
        L.append("    ; " + s)

    def nop(n):
        if n > 0:
            A(f"s_nop {n-1}")

    def vr(a, n=4):
        return f"v[{a}:{a+n-1}]"

    sU1 = 4
    sX, sK, sV, sWQ, sWO, sW1, sB1, sW2, sB2, sOUT, sWS = 8, 10, 12, 14, 16, 20, 22, 24, 26, 28, 32
    sPC = 34
    rK, rV, rWS, rT = 36, 40, 44, 48
    sGX, sR, sH, sS, sB, sWV = 52, 53, 54, 55, 56, 57
    sT, sT0, sT1, sT2, sT3 = 58, 59, 60, 61, 62
    sLOC, sCNT, sTMP, sTMP2, sXW = 63, 64, 65, 66, 67
    sBASE, sTILE = 68, 69
    sID, sXCC = 70, 71
    rB = 72
    sD1, sD3 = 76, 77
    sQO, sCB, sML = 78, 79, 80
    sVOTE, sR0, sR1 = 81, 82, 83
    sEX = 86
    Tk = [sT0, sT1, sT2, sT3]

    vDA = 0
    vL, vG, vC = 1, 2, 3
    vKV = 4
    vA0, vA1, vA2 = 5, 6, 7
    vQ = 8
    vMK = 12
    vACC = 16
    vS = 20
    vFF = 28
    vM = 29
    vT0, vT1 = 30, 31
    vTMP = 32
    vK = 48
    vV = 176
    NRING = 20
    vW1 = vK
    vW2 = vK + 32
    vF = vK + 64
    vIX = vK + 72
    vVAL = vK + 73
    vXO = vK + 74
    vHR = vK + 75
    vXR = vK + 76
    vB1R = vK + 78
    vCS = vK + 80
    vTa, vTb = vK + 82, vK + 83
    vB2R = vK + 84
    vL8 = vK + 85
    vAA = vK + 86
    vBA = vK + 87
    vYR = vK + 88
    vEPS = vK + 88
    vFW = vK + 89
    vSA = vK + 90
    vSR = vK + 91
    vFC = vK + 93
    vYS = vK + 94
    vRHO = vK + 95
    vONE = vK + 96
    vXC = vK + 97
    vOWA = vK + 98
    vDUM = vK + 99
    vMLG = vK + 100
    vMLW = vK + 104
    vG16 = vK + 106
    vHW = vK + 107
    vD0, vD1 = vK + 108, vK + 112
    vP = vK + 116
    vL16 = vK + 118
    vFR = vK + 119
    vD2, vD3 = vK + 120, vK + 124
    vOS = vK + 80
    vTG = vQ
    g0 = vTMP
    vBM = 12
    vW2b = vV
    vE = vV + 32
    st = vV + 64
    s0, s1 = vT0, vT1

    stamps = []

    def dslot(i):
        return ([88 + k for k in range(12)])[i]

    def stamp(name):
        if not diag:
            return
        if only is not None and name not in only and name not in ("strm", "end"):
            return
        if only is None and name.startswith("_"):
            return
        if name not in stamps:
            stamps.append(name)
        A(f"s_memrealtime s[{sEX}:{sEX+1}]")
        A("s_waitcnt lgkmcnt(0)")
        A(f"s_mov_b32 s{dslot(stamps.index(name))}, s{sEX}")

    def srd(r, p, size):
        A(f"s_mov_b32 s{r}, s{p}")
        A(f"s_mov_b32 s{r+1}, s{p+1}")
        A(f"s_mov_b32 s{r+2}, {size}")
        A(f"s_mov_b32 s{r+3}, 0x20000")

    def tag4(base):
        for k in range(4):
            A(f"v_bfi_b32 v{base+k}, v{vFF}, s{Tk[k]}, v{base+k}")

    def untag(base, n, acc, tags, wait=None):
        for i in range(n):
            if wait is not None:
                A(f"s_waitcnt vmcnt({n - 1 - i})")
            b = base + 4 * i
            for k in range(4):
                A(f"v_xor_b32 v{b+k}, {tags[k]}, v{b+k}")
            if i == 0:
                A(f"v_or3_b32 v{acc}, v{b}, v{b+1}, v{b+2}")
            else:
                A(f"v_or3_b32 v{acc}, v{acc}, v{b-1}, v{b}")
                A(f"v_or3_b32 v{acc}, v{acc}, v{b+1}, v{b+2}")
        A(f"v_or_b32 v{acc}, v{acc}, v{base+4*n-1}")
        A(f"v_cmp_ne_u32_sdwa vcc, v{acc}, 0 src0_sel:BYTE_0 src1_sel:DWORD")
    STAGS = [f"s{t}" for t in Tk]
    VTAGS = [f"v{vTG+k}" for k in range(4)]

    cold = []

    def poll_rare(name, issue, check):
        A(f"s_mov_b32 s{sCNT}, 0x4000")
        A(f"L_{name}_chk:")
        check()
        A(f"s_cbranch_vccnz L_{name}_again")
        A(f"L_{name}_ok:")

        def retry():
            A(f"L_{name}_again:")
            A(f"s_sub_u32 s{sCNT}, s{sCNT}, 1")
            A(f"s_cbranch_scc1 L_{name}_ok")
            issue()
            A("s_waitcnt vmcnt(0)")
            A(f"s_branch L_{name}_chk")
        cold.append(retry)

    def poll(name, issue, n, init=True):
        if init:
            A(f"s_mov_b32 s{sCNT}, 0x8000")
            A("s_mov_b64 vcc, -1")
        A(f"L_{name}_again:")
        A("s_mov_b64 exec, vcc")
        issue()
        A(f"s_sub_u32 s{sCNT}, s{sCNT}, 1")
        A(f"s_cbranch_scc1 L_{name}_ok")
        A(f"L_{name}_chk:")
        untag(g0, n, vT0, VTAGS, wait=True)
        A(f"s_cbranch_vccnz L_{name}_again")
        A(f"L_{name}_ok:")
        A("s_mov_b64 exec, -1")

    def publish(name, *lines, farfirst=False):
        A(f"s_cbranch_scc{0 if farfirst else 1} L_{name}_alt")
        for line in lines:
            A(line + (" sc1" if farfirst else ""))
        A(f"s_branch L_{name}_pub")
        A(f"L_{name}_alt:")
        for line in lines:
            A(line + ("" if farfirst else " sc1"))
        A(f"L_{name}_pub:")

    def dpp(op, d, a, b, ctl, bank=0xf):
        A(f"{op}_dpp v{d}, v{a}, v{b} {ctl} row_mask:0xf bank_mask:{hex(bank)}")

    X1, X2, HM = "quad_perm:[1,0,3,2]", "quad_perm:[2,3,0,1]", "row_half_mirror"

    def round_bf16(regs, tmp):
        for i in range(0, len(regs), 2):
            A(f"v_cvt_pk_bf16_f32 v{tmp+i//2}, v{regs[i]}, v{regs[i+1]}")
        for i in range(0, len(regs), 2):
            A(f"v_lshlrev_b32 v{regs[i]}, 16, v{tmp+i//2}")
            A(f"v_and_b32 v{regs[i+1]}, 0xffff0000, v{tmp+i//2}")

    def round1(r):
        A(f"v_cvt_pk_bf16_f32 v{r}, v{r}, v{r}")
        A(f"v_lshlrev_b32 v{r}, 16, v{r}")

    def unpack(dst, src, n):
        for i in range(n):
            A(f"v_lshlrev_b32 v{dst+2*i}, 16, v{src+i}")
            A(f"v_and_b32 v{dst+2*i+1}, 0xffff0000, v{src+i}")

    def widen(r):
        A(f"v_lshlrev_b32 v{r}, 16, v{r}")
        A(f"v_lshlrev_b32 v{r+1}, 16, v{r+1}")

    def pk(op, d, a, b, c=None, extra=""):
        if c is None:
            A(f"v_pk_{op}_f32 {vr(d,2)}, {vr(a,2)}, {vr(b,2)}{extra}")
        else:
            A(f"v_pk_{op}_f32 {vr(d,2)}, {vr(a,2)}, {vr(b,2)}, {vr(c,2)}{extra}")
    lo, lo3, hi3 = " op_sel_hi:[1,0]", " op_sel_hi:[1,0,1]", " op_sel:[0,1,0]"

    def sum8(g, out=None):
        for i in range(4):
            pk("add", g + 4 * i, g + 4 * i, g + 4 * i + 2)
        pk("add", g, g, g + 4)
        pk("add", g + 8, g + 8, g + 12)
        pk("add", g if out is None else out, g, g + 8)

    def mfma(d, a, b, c):
        A(f"v_mfma_f32_16x16x32_bf16 {vr(d)}, {vr(a)}, {vr(b)}, " + ("0" if c is None else vr(c)))

    DACC = [vD0, vD1, vD2, vD3]

    def smfmac(d, b):
        A(f"v_smfmac_f32_16x16x64_bf16 {vr(d)}, {vr(vBM)}, {vr(b, 8)}, v{vIX}")

    def operand(mask=None):
        for k in range(4):
            ctl = f"quad_perm:[{k},{k},{k},{k}] row_mask:0xf bank_mask:0xf"
            if mask is None:
                A(f"v_mov_b32_dpp v{vBM+k}, v{vP} {ctl}")
            else:
                A(f"v_and_b32_dpp v{vBM+k}, v{vP}, v{mask} {ctl}")

    def zero(regs):
        for r in regs:
            A(f"v_mov_b32 v{r}, 0")

    def merge_tiles(out):
        A(f"v_permlane32_swap_b32 v{vD0}, v{vD2}")
        A(f"v_permlane32_swap_b32 v{vD1}, v{vD3}")
        A(f"v_add_f32 v{out}, v{vD0}, v{vD2}")
        A(f"v_add_f32 v{out+1}, v{vD1}, v{vD3}")

    def vreg(i):
        return vV + 4 * (i % NRING)

    def kvload(kind, i):
        t, j = divmod(i, 4)
        if t and j == 0:
            A(f"s_xor_b32 s{sTILE}, s{sBASE}, {t << 15}")
        dst, r = (vK + 4 * i, rK) if kind == "K" else (vreg(i), rV)
        A(f"buffer_load_dwordx4 {vr(dst)}, v{vKV}, s[{r}:{r+3}], s{sTILE if t else sBASE} offen offset:{(0, 2048, 1024, 3072)[j]} nt")

    def make_masks():
        A(f"v_and_b32 v{vA0}, 1, v{vL}")
        A(f"v_lshlrev_b32 v{vA0}, 4, v{vA0}")
        A(f"v_mov_b32 v{vA1}, 0xffff")
        A(f"v_lshlrev_b32 v{vA1}, v{vA0}, v{vA1}")
        A(f"v_bfe_u32 v{vA0}, v{vL}, 1, 2")
        for j in range(4):
            A(f"v_cmp_eq_u32 vcc, {j}, v{vA0}")
            nop(2)
            A(f"v_cndmask_b32 v{vMK+j}, 0, v{vA1}, vcc")

    def epoch():
        A("s_waitcnt lgkmcnt(0)")
        if diag:
            for i in range(1, 12):
                A(f"s_mov_b32 s{dslot(i)}, 0")
            A(f"s_mov_b32 s{dslot(0)}, s{sEX}")
        srd(rV, sV, 0x4000000)
        A(f"s_add_u32 s{sT}, s{sT}, 0x01010101")
        A(f"s_and_b32 s{sT0}, s{sT}, 0xff")
        A(f"s_bfe_u32 s{sT1}, s{sT}, 0x80008")
        A(f"s_bfe_u32 s{sT2}, s{sT}, 0x80010")
        A(f"s_lshr_b32 s{sT3}, s{sT}, 24")
        A(f"s_lshl_b32 s{sXW}, s{sXCC}, 28")
        A(f"s_add_u32 s{sXW}, s{sXW}, s{sT}")

    def ypage(p):
        A(f"s_and_b32 s{sTMP}, s{p}, 6")
        A(f"s_add_u32 s{sTMP}, s{sTMP}, s{p}")
        A(f"s_lshl_b32 s{sTMP}, s{sTMP}, 12")
        A(f"s_add_u32 s{sTMP}, s{sTMP}, {WS_YP}")

    def xc_load():
        A(f"v_and_b32 v{vA0}, 31, v{vL}")
        A(f"v_lshlrev_b32 v{vA0}, 2, v{vA0}")
        A(f"s_lshl_b32 s{sTMP}, s{sGX}, 7")
        A(f"s_add_u32 s{sTMP}, s{sTMP}, {WS_XC}")
        A(f"buffer_load_dword v{vXC}, v{vA0}, s[{rWS}:{rWS+3}], s{sTMP} offen sc1")

    def xc_check():
        A(f"s_xor_b32 s{sTMP}, s{sXW}, {1 << 27}")
        A(f"v_cmp_eq_u32 vcc, s{sTMP}, v{vXC}")
        A(f"v_xor_b32 v{vXC}, s{sXW}, v{vXC}")
        A(f"v_and_b32 v{vXC}, {hex(0xffffffff ^ (1 << 27))}, v{vXC}")
        A(f"s_bcnt1_i32_b32 s{sTMP}, vcc_lo")
        A(f"v_cmp_ne_u32 vcc, 0, v{vXC}")
        A(f"s_cmp_ge_u32 s{sTMP}, 15")
        A(f"s_cselect_b32 s{sTMP}, 0, 0x2000")
        A("s_cmp_eq_u64 vcc, 0")
        A(f"s_cselect_b32 s{sLOC}, {1 if local else 0}, 0")
        A(f"s_or_b32 s{sTMP}, s{sTMP}, s{sLOC}")
        A(f"v_mov_b32 v{vA0}, {L_FL}")
        A(f"v_mov_b32 v{vA1}, s{sTMP}")
        A(f"ds_write_b32 v{vA0}, v{vA1}")

    L.append(f"; @launch grid=(256,1,1) block=(512,1,1) lds={LDS_BYTES}")
    L.extend(DOC.strip("\n").replace("QW", str(qw)).split("\n"))
    L.append('.amdgcn_target "amdgcn-amd-amdhsa--gfx950"')
    L.append(".text")
    L.append(f".globl {NAME}_kernel")
    L.append(".p2align 8")
    L.append(f".type {NAME}_kernel,@function")
    L.append(f"{NAME}_kernel:")
    C("the first 256 bytes arrive with the first instruction fetch: they hold everything up to the first loads")
    A(f"s_load_dwordx2 s[{rK}:{rK+1}], s[0:1], 8")
    A("s_load_dwordx2 s[32:33], s[0:1], 96")
    A("s_load_dwordx2 s[6:7], s[0:1], 0")
    A(f"s_lshr_b32 s{sR}, s2, 3")
    A(f"s_cmp_ge_u32 s{sR}, 32")
    A("s_cbranch_scc1 L_end")
    A(f"s_getpc_b64 s[{sPC}:{sPC+1}]")
    A("L_pc:")
    if minT:
        A("s_memrealtime s[100:101]")
    if diag:
        if only != ["vote"]:
            A(f"s_memrealtime s[{sEX}:{sEX+1}]")
        stamps.append("start")
    C("pull the kernel's code into this die's L2: line r + 32 lane, a few lanes of wave 0 (values unused)")
    A(f"v_lshl_add_u32 v{vT0}, v0, 5, s{sR}")
    A(f"v_cmp_gt_u32 vcc, {PFL}, v0")
    A(f"v_lshlrev_b32 v{vT0}, 7, v{vT0}")
    A("s_and_b64 exec, exec, vcc")
    A("s_cbranch_scc0 L_nopf")
    A(f"global_load_dword v{vT0}, v{vT0}, s[{sPC}:{sPC+1}]")
    A("L_nopf:")
    A("s_mov_b64 exec, -1")
    A(f"v_lshrrev_b32 v{vA0}, 6, v0")
    A(f"v_and_b32 v{vL}, 63, v0")
    A(f"v_lshlrev_b32 v{vKV}, 12, v{vA0}")
    A(f"v_lshl_add_u32 v{vKV}, v{vL}, 4, v{vKV}")
    A(f"s_and_b32 s{sGX}, s2, 7")
    A(f"s_lshl_b32 s{sID}, s{sGX}, 5")
    A(f"s_add_u32 s{sID}, s{sID}, s{sR}")
    A(f"s_lshr_b32 s{sH}, s{sID}, 3")
    A(f"s_and_b32 s{sB}, s{sR}, 4")
    A(f"s_and_b32 s{sTMP}, s{sR}, 3")
    A(f"s_and_b32 s{sS}, s{sR}, 7")
    A(f"s_lshl3_add_u32 s{sBASE}, s{sB}, s{sH}")
    A(f"s_lshl2_add_u32 s{sBASE}, s{sBASE}, s{sTMP}")
    A(f"s_lshl3_add_u32 s{sBASE}, s{sBASE}, s{sS}")
    A(f"s_lshl_b32 s{sBASE}, s{sBASE}, 15")
    A(f"s_brev_b32 s{rK+2}, 32")
    A(f"s_lshl_b32 s{rK+3}, 1, 17")
    A(f"v_readfirstlane_b32 s{sWV}, v{vA0}")
    A(f"s_lshl_b32 s{sTMP}, s{sR}, 6")
    A(f"s_lshl3_add_u32 s{sD1}, s{sGX}, s{sWV}")
    A(f"s_cmp_lg_u32 s{sWV}, 3")
    A("s_waitcnt lgkmcnt(0)")
    A("s_cbranch_scc1 L_nox")
    C("wave 3 pulls x into this die's L2 ahead of the K traffic (value unused)")
    A(f"s_load_dword s{sR0}, s[6:7], s{sTMP}")
    A("L_nox:")
    C("wave 2 of the group-0 workgroups reads one word under each value of address bit 13, which picks the memory half")
    C("(values unused): if the second is still under way when the first is back, the first half is the nearer one")
    assert WS_RACE == 1 << 17
    A(f"s_cmp_lg_u32 s{sD1}, 2")
    A("s_cbranch_scc1 L_norace")
    A(f"s_bitset1_b32 s{sTMP}, 17")
    A(f"s_load_dword s{sR0}, s[{sWS}:{sWS+1}], s{sTMP}")
    A(f"s_bitset1_b32 s{sTMP}, 13")
    A(f"s_load_dword s{sR1}, s[{sWS}:{sWS+1}], s{sTMP}")
    A("L_norace:")
    for i in range(4):
        kvload("K", i)
    A("s_waitcnt lgkmcnt(1)")
    A(f"s_cmp_lg_u32 s{sWV}, 0")
    A(f"s_getreg_b32 s{sVOTE}, hwreg(HW_REG_IB_STS, 8, 1)")
    A(f"v_lshrrev_b32 v{vG}, 4, v{vL}")
    A(f"v_and_b32 v{vC}, 15, v{vL}")
    A("s_cbranch_scc1 L_rest")

    def more_args(first):
        A(f"s_load_dword s{sT}, s[{sWS}:{sWS+1}], {WS_E}")
        if first:
            A("s_load_dwordx8 s[8:15], s[0:1], 0")
        A("s_load_dwordx16 s[16:31], s[0:1], 32")

    def common_setup():
        A(f"v_mov_b32 v{vFF}, 0xff")
        A(f"s_getreg_b32 s{sXCC}, hwreg(HW_REG_XCC_ID, 0, 4)")
        srd(rWS, sWS, WS_SIZE)

    K0 = 10
    C("---------------- wave 0: partial q ----------------")
    A("s_load_dwordx8 s[8:15], s[0:1], 0")
    vXS, vXA, vW = vTMP, vTMP + 8, vV
    vY, vAB = vV + 64, vK + 64
    A(f"v_lshrrev_b32 v{vA0}, 3, v{vC}")
    A(f"v_lshlrev_b32 v{vA0}, 10, v{vA0}")
    A(f"v_and_b32 v{vA1}, 7, v{vC}")
    A(f"v_lshl_add_u32 v{vA1}, v{vG}, 3, v{vA1}")
    A(f"v_lshl_add_u32 v{vA1}, v{vA1}, 5, v{vA0}")
    A(f"v_lshl_add_u32 v{vA0}, v{vG}, 5, v{vA0}")
    A(f"s_lshl_b32 s{sTMP}, s{sS}, 7")
    A(f"v_add_u32 v{vA0}, s{sTMP}, v{vA0}")
    A("s_waitcnt lgkmcnt(0)")
    A(f"global_load_dwordx4 {vr(vXS)}, v{vA1}, s[{sX}:{sX+1}]")
    A(f"global_load_dwordx4 {vr(vXS+4)}, v{vA1}, s[{sX}:{sX+1}] offset:16")
    A(f"global_load_dwordx4 {vr(vXA)}, v{vA0}, s[{sX}:{sX+1}]")
    A(f"global_load_dwordx4 {vr(vXA+4)}, v{vA0}, s[{sX}:{sX+1}] offset:16")
    srd(rT, sWQ, 0 if "wq" in now else 0x400000)
    A(f"s_lshl_b32 s{sTMP}, s{sS}, 19")
    A(f"s_lshl_b32 s{sTMP2}, s{sH}, 8")
    A(f"s_add_u32 s{sTMP}, s{sTMP}, s{sTMP2}")
    A(f"v_lshlrev_b32 v{vA2}, 17, v{vG}")
    A(f"v_lshl_add_u32 v{vA2}, v{vC}, 4, v{vA2}")
    for j in range(16):
        A(f"buffer_load_dwordx4 {vr(vW+4*j)}, v{vA2}, s[{rT}:{rT+3}], s{sTMP} offen nt")
        if j < 15:
            A(f"s_add_u32 s{sTMP}, s{sTMP}, 8192")
    common_setup()
    for i in range(4, 7):
        kvload("K", i)
    more_args(False)
    A("s_barrier")
    make_masks()
    A(f"v_mov_b32 v{vA0}, 0x3f803f80")
    A("s_waitcnt vmcnt(21)")
    for i in range(8):
        A(f"v_dot2_f32_bf16 v{s0}, v{vXS+i}, v{vA0}, " + ("0" if i == 0 else f"v{s0}"))
        A(f"v_dot2_f32_bf16 v{s1}, v{vXS+i}, v{vXS+i}, " + ("0" if i == 0 else f"v{s1}"))
    nop(3)
    for ctl in (X1, X2, HM):
        dpp("v_add_f32", s0, s0, s0, ctl)
        dpp("v_add_f32", s1, s1, s1, ctl)
        nop(1)
    for sw_ in ("v_permlane16_swap_b32", "v_permlane32_swap_b32"):
        A(f"v_mov_b32 v{vA0}, v{s0}")
        A(f"v_mov_b32 v{vA1}, v{s1}")
        nop(2)
        A(f"{sw_} v{s0}, v{vA0}")
        A(f"{sw_} v{s1}, v{vA1}")
        A(f"v_add_f32 v{s0}, v{s0}, v{vA0}")
        A(f"v_add_f32 v{s1}, v{s1}, v{vA1}")
    C("mean and 1 / sqrt(var + eps), rounded to bf16 where the reference rounds")
    A(f"v_mul_f32 v{s0}, 0x3b000000, v{s0}")
    A(f"v_mul_f32 v{s1}, 0x3b000000, v{s1}")
    A(f"v_fma_f32 v{s1}, -v{s0}, v{s0}, v{s1}")
    A(f"v_max_f32 v{s1}, 0, v{s1}")
    A(f"v_cvt_pk_bf16_f32 v{s1}, v{s0}, v{s1}")
    A(f"v_lshlrev_b32 v{s0}, 16, v{s1}")
    A(f"v_and_b32 v{s1}, 0xffff0000, v{s1}")
    A(f"v_add_f32 v{s1}, {hex(EPS)}, v{s1}")
    round1(s1)
    A(f"v_sqrt_f32 v{s1}, v{s1}")
    nop(1)
    round1(s1)
    A(f"v_rcp_f32 v{s1}, v{s1}")
    A("s_waitcnt vmcnt(19)")
    unpack(vY, vXA, 8)
    for i in range(0, 16, 2):
        pk("add", vY + i, vY + i, s0, extra=" op_sel_hi:[1,0] neg_lo:[0,1] neg_hi:[0,1]")
    round_bf16([vY + i for i in range(16)], vXS)
    for i in range(0, 16, 2):
        pk("mul", vY + i, vY + i, s0, extra=" op_sel:[0,1]")
    for i in range(16):
        A(f"v_cvt_pk_bf16_f32 v{vY+i}, v{vY+i}, v{vY+i}")
    for j in range(16):
        for k in range(4):
            A(f"v_and_b32 v{vAB+4*j+k}, v{vMK+k}, v{vY+j}")
    epoch()
    for j in range(16):
        A(f"s_waitcnt vmcnt({18-j})")
        mfma(vACC, vAB + 4 * j, vW + 4 * j, None if j == 0 else vACC)
    for i in range(7, K0):
        kvload("K", i)
    A(f"v_lshrrev_b32 v{vA0}, 5, v{vL}")
    A(f"v_lshlrev_b32 v{vA0}, 12, v{vA0}")
    A(f"v_and_b32 v{vA1}, 31, v{vL}")
    A(f"v_lshl_add_u32 v{vA0}, v{vA1}, 4, v{vA0}")
    A(f"s_lshl_b32 s{sTMP}, s{sH}, 13")
    A(f"s_lshl_b32 s{sTMP2}, s{sS}, 9")
    A(f"s_add_u32 s{sTMP}, s{sTMP}, s{sTMP2}")
    A(f"s_add_u32 s{sTMP}, s{sTMP}, {WS_QP}")
    tag4(vACC)
    A(f"buffer_store_dwordx4 {vr(vACC)}, v{vA0}, s[{rWS}:{rWS+3}], s{sTMP} offen sc1")
    stamp("qpub")
    A("s_branch L_join")

    C("---------------- waves 1..7 ----------------")
    A("L_rest:")
    C("wave 2 resets the LDS tables that other waves of this workgroup fill later")
    A(f"s_cmp_lg_u32 s{sWV}, 2")
    A("s_cbranch_scc1 L_noreset")
    A(f"v_lshlrev_b32 v{vA0}, 2, v{vC}")
    A(f"v_mov_b32 v{vA1}, -1")
    A(f"ds_write_b32 v{vA0}, v{vA1} offset:{L_ML}")
    A(f"v_lshlrev_b32 v{vA0}, 2, v{vL}")
    A(f"ds_write_b32 v{vA0}, v{vA1} offset:{L_Q}")
    A("s_waitcnt lgkmcnt(0)")
    A("L_noreset:")
    more_args(True)
    common_setup()
    make_masks()
    for i in range(4, 7):
        A("s_waitcnt vmcnt(3)")
        kvload("K", i)
    A("s_barrier")
    for i in range(7, K0):
        A("s_waitcnt vmcnt(2)")
        kvload("K", i)
    epoch()
    C("wave 2 reports this workgroup's die")
    A(f"s_cmp_lg_u32 s{sWV}, 2")
    A("s_cbranch_scc1 L_join")
    A(f"s_lshl_b32 s{sTMP}, s{sVOTE}, 27")
    A(f"s_xor_b32 s{sTMP}, s{sTMP}, s{sXW}")
    A(f"s_lshl_b32 s{sTMP2}, s{sID}, 2")
    A(f"s_add_u32 s{sTMP2}, s{sTMP2}, {WS_XC}")
    A(f"v_mov_b32 v{vA1}, s{sTMP}")
    A("s_mov_b64 exec, 1")
    A(f"buffer_store_dword v{vA1}, v{vL}, s[{rWS}:{rWS+3}], s{sTMP2} offen sc1")
    A("s_mov_b64 exec, -1")
    A("L_join:")
    stamp("_join")
    A(f"v_cmp_gt_u32 vcc, 8, v{vC}")
    A(f"s_mov_b32 s{sLOC}, 0")
    C("touch this workgroup's o and (max, sum) slots (values unused): the lines are then valid in this die's L2")
    C("when the stores and the polls reach them")
    A(f"s_lshl3_add_u32 s{sTMP}, s{sID}, s{sWV}")
    A(f"s_lshl_b32 s{sTMP2}, s{sTMP}, 6")
    A(f"s_add_u32 s{sTMP2}, s{sTMP2}, {WS_OP}")
    A(f"s_load_dword s{sR0}, s[{sWS}:{sWS+1}], s{sTMP2}")
    A(f"s_lshl_b32 s{sTMP}, s{sTMP}, 4")
    A(f"s_add_u32 s{sTMP}, s{sTMP}, {WS_ML}")
    A(f"s_load_dword s{sR1}, s[{sWS}:{sWS+1}], s{sTMP}")
    A(f"s_sub_u32 s{sCB}, s{sR}, {NW0}")
    A(f"s_lshl_b32 s{sD3}, s{sWV}, 13")
    for j in range(4):
        A(f"v_cndmask_b32 v{vMK+j}, 0, v{vMK+j}, vcc")
    A(f"v_lshlrev_b32 v{vA2}, 4, v{vL}")
    A(f"s_cmp_lt_u32 s{sID}, {NF}")
    A("s_cbranch_scc1 L_s_f")
    A(f"s_cmp_lt_u32 s{sCB}, 8")
    A("s_cbranch_scc1 L_s_w")

    def w_dma(which, j):
        pitch = 2752 if which == "w1" else 1024
        base = L_WB if which == "w2" else L_WA
        if j == 0:
            w_srd(which)
            A(f"v_lshrrev_b32 v{vDA}, 3, v{vL}")
            A(f"v_mul_u32_u24 v{vDA}, {pitch}, v{vDA}")
            A(f"v_and_b32 v{vA0}, 7, v{vL}")
            A(f"v_lshl_add_u32 v{vDA}, v{vA0}, 4, v{vDA}")
            if which == "wo":
                A(f"s_lshl_b32 s{sD1}, s{sGX}, 19")
                A(f"s_lshl_b32 s{sTMP2}, s{sWV}, 16")
                A(f"s_add_u32 s{sD1}, s{sD1}, s{sTMP2}")
                A(f"s_lshl_b32 s{sTMP2}, s{sCB}, 7")
            elif which == "w1":
                A(f"s_mul_i32 s{sD1}, s{sWV}, {64*2752}")
                A(f"s_lshl_b32 s{sTMP2}, s{sR}, 7")
            else:
                A(f"s_lshl_b32 s{sD1}, s{sR}, 16")
                A(f"s_lshl_b32 s{sTMP2}, s{sWV}, 7")
            A(f"s_add_u32 m0, s{sD3}, {base}")
            A(f"s_add_u32 s{sD1}, s{sD1}, s{sTMP2}")
        else:
            A(f"s_add_u32 m0, s{sD3}, {base + j*1024}")
            A(f"s_add_u32 s{sD1}, s{sD1}, {8*pitch}")
        A(f"buffer_load_dwordx4 v{vDA}, s[{rT}:{rT+3}], s{sD1} offen nt lds")

    def w_srd(which):
        ptr, size = {"wo": (sWO, 0x400000), "w1": (sW1, 512 * 2752), "w2": (sW2, 1376 * 1024)}[which]
        srd(rT, ptr, 0 if which in now else size)

    def tr_block(dst, addr, offs, between="s_waitcnt lgkmcnt(0)"):
        for u in range(2):
            for tau in range(4):
                for e in range(2):
                    A(f"ds_read_b64_tr_b16 {vr(dst+8*tau+4*u+2*e,2)}, v{addr} offset:{offs(u, e) + tau*32}")
            if u == 0:
                A(between)

    def tr_addr(natural, base):
        A(f"v_and_b32 v{vA1}, 3, v{vL}")
        A(f"v_lshlrev_b32 v{vA1}, 3, v{vA1}")
        A(f"s_add_u32 s{sTMP}, s{sD3}, {base}")
        if natural:
            A(f"v_lshrrev_b32 v{vA0}, 2, v{vC}")
            A(f"v_lshl_add_u32 v{vA0}, v{vG}, 3, v{vA0}")
        else:
            A(f"v_lshl_add_u32 v{vA0}, v{vG}, 2, v{vRHO}")
        A(f"v_lshl_add_u32 v{vA2}, v{vA0}, 7, v{vA1}")
        A(f"v_add_u32 v{vA2}, s{sTMP}, v{vA2}")

    def stream(role, rounds, lab=None):
        lab = lab or role
        ops = [("K", i) for i in range(K0)]
        landed = [0]

        def wait_n(n):
            if len(ops) - n > landed[0]:
                A(f"s_waitcnt vmcnt({n})")
                landed[0] = len(ops) - n

        def wait_for(key):
            wait_n(len(ops) - 1 - ops.index(key))

        def has(key):
            return key in ops and ops.index(key) < landed[0]

        mark = {}

        def only_wave(name, wave, body):
            A(f"s_cmp_lg_u32 s{sWV}, {wave}")
            A(f"s_cbranch_scc1 L_{name}{lab}_skip")
            body()
            A(f"L_{name}{lab}_skip:")
            mark[name] = len(ops)

        def later(name):
            return name in mark and len(ops) > mark[name]

        def wait_own(name):
            A(f"s_waitcnt vmcnt({len(ops) - mark[name]})")

        def q_loads():
            for i in range(4):
                A(f"buffer_load_dwordx4 {vr(vTMP+4*i)}, v{vA2}, s[{rWS}:{rWS+3}], s{sQO} offen offset:{1024*i} sc1")

        def q_issue():
            def body():
                A(f"s_lshl_b32 s{sQO}, s{sH}, 13")
                A(f"s_lshl_b32 s{sTMP2}, s{sB}, 10")
                A(f"s_add_u32 s{sQO}, s{sQO}, s{sTMP2}")
                A(f"s_add_u32 s{sQO}, s{sQO}, {WS_QP}")
                q_loads()
            only_wave("qi", qw, body)

        def q_finish():
            def body():
                wait_own("qi")
                poll_rare("q" + lab, q_loads, lambda: untag(vTMP, 4, vT0, STAGS))
                a = vTMP
                for i in range(0, 8, 2):
                    pk("add", a + i, a + i, a + 8 + i)
                pk("add", a, a, a + 4)
                pk("add", a + 2, a + 2, a + 6)
                A(f"v_and_b32 v{vA0}, 1, v{vG}")
                A(f"v_lshlrev_b32 v{vA0}, 3, v{vA0}")
                A(f"v_permlane32_swap_b32 v{a}, v{a+2}")
                A(f"v_permlane32_swap_b32 v{a+1}, v{a+3}")
                A(f"v_lshl_add_u32 v{vA0}, v{vC}, 4, v{vA0}")
                A(f"v_lshrrev_b32 v{vA1}, 1, v{vG}")
                pk("add", a, a, a + 2)
                A(f"v_lshl_add_u32 v{vA0}, v{vA1}, 2, v{vA0}")
                A(f"v_cvt_pk_bf16_f32 v{a}, v{a}, v{a+1}")
                A(f"ds_write_b32 v{vA0}, v{a} offset:{L_Q}")
            only_wave("qf", qw, body)

        def q_read():
            n = "qr" + lab
            A(f"v_lshlrev_b32 v{vA0}, 4, v{vC}")
            A(f"s_mov_b32 s{sCNT}, 0x80000")
            A(f"L_{n}_spin:")
            A(f"ds_read_b128 {vr(vQ)}, v{vA0} offset:{L_Q}")
            A(f"s_sub_u32 s{sCNT}, s{sCNT}, 1")
            A(f"s_cbranch_scc1 L_{n}_go")
            A("s_waitcnt lgkmcnt(0)")
            A(f"v_max3_u32 v{vA1}, v{vQ}, v{vQ+1}, v{vQ+2}")
            A(f"v_max_u32 v{vA1}, v{vA1}, v{vQ+3}")
            A(f"v_cmp_eq_u32 vcc, -1, v{vA1}")
            A(f"s_cbranch_vccnz L_{n}_spin")
            A(f"L_{n}_go:")
            A("s_waitcnt lgkmcnt(0)")
            stamp("qgot")

        def qk(t):
            tt, uu = vTMP, vTMP + 4
            for k in range(4):
                for r in range(4):
                    A(f"v_dot2_f32_bf16 v{tt+r}, v{vK+16*t+4*r+k}, v{vQ+k}, " + ("0" if k == 0 else f"v{tt+r}"))
            dpp("v_add_f32", uu, tt, tt, "row_ror:8", 0x3)
            dpp("v_add_f32", uu, tt + 1, tt + 1, "row_ror:8", 0xc)
            dpp("v_add_f32", uu + 1, tt + 2, tt + 2, "row_ror:8", 0x3)
            dpp("v_add_f32", uu + 1, tt + 3, tt + 3, "row_ror:8", 0xc)
            dpp("v_add_f32", vS + t, uu, uu, "row_shl:4", 0x5)
            nop(1)
            dpp("v_add_f32", vS + t, uu + 1, uu + 1, "row_shr:4", 0xa)

        def allred(op, r, t):
            nop(2)
            dpp(op, r, r, r, "row_ror:8")
            nop(2)
            dpp(op, r, r, r, "row_ror:4")
            for sw_ in ("v_permlane16_swap_b32", "v_permlane32_swap_b32"):
                A(f"v_mov_b32 v{t}, v{r}")
                nop(2)
                A(f"{sw_} v{r}, v{t}")
                A(f"{op} v{r}, v{r}, v{t}")

        S = [vS + i for i in range(8)]

        def soft_a():
            for r in S:
                dpp("v_add_f32", r, r, r, X1)
            for r in S:
                dpp("v_add_f32", r, r, r, X2)
            round_bf16(S, vTMP)
            for r in S:
                A(f"v_mul_f32 v{r}, {hex(SCALE)}, v{r}")
            round_bf16(S, vTMP)

        def soft_b():
            m = vT0
            A(f"v_max3_f32 v{m}, v{S[0]}, v{S[1]}, v{S[2]}")
            A(f"v_max3_f32 v{m}, v{m}, v{S[3]}, v{S[4]}")
            A(f"v_max3_f32 v{m}, v{m}, v{S[5]}, v{S[6]}")
            A(f"v_max_f32 v{m}, v{m}, v{S[7]}")
            allred("v_max_f32", m, vTMP)
            for r in S:
                A(f"v_sub_f32 v{r}, v{r}, v{m}")
            for r in S:
                A(f"v_mul_f32 v{r}, {hex(LOG2E)}, v{r}")
            for r in S:
                A(f"v_exp_f32 v{r}, v{r}")

        def soft_c():
            m, l = vT0, vT1
            A(f"s_lshl_b32 s{sTMP}, s{sWV}, 3")
            A(f"v_add_f32 v{l}, v{S[0]}, v{S[1]}")
            for r in S[2:]:
                A(f"v_add_f32 v{l}, v{l}, v{r}")
            for r in S:
                A(f"v_cvt_pk_bf16_f32 v{r}, v{r}, v{r}")
            allred("v_add_f32", l, vTMP)
            A(f"v_mov_b32 v{vA0}, s{sTMP}")
            A(f"ds_write_b64 v{vA0}, {vr(m,2)} offset:{L_ML}")
            only_wave("xc", sw, xc_load)
            stamp("soft")

        bank = [0, 2, 1, 3]

        def pv_a(t):
            for r in range(4):
                for k in range(4):
                    dpp("v_and_b32", vTMP + 4 * r + k, vS + t, vMK + k, f"row_newbcast:{4*bank[r]}")

        def pv_m(i):
            mfma(vACC, vTMP + 4 * (i % 4), vreg(i), None if i == 0 else vACC)

        pvdone = [0]

        def pv_tile(t):
            pv_a(t)
            for r in range(4):
                pv_m(4 * t + r)
            pvdone[0] = 4 * t + 4

        def tail_setup():
            vB3, vXX, vB2 = vA1, vA2, vDUM
            for k in range(4):
                A(f"v_mov_b32 v{vTG+k}, s{Tk[k]}")
            A(f"v_bfe_u32 v{vB3}, v{vL}, 3, 1")
            A(f"v_bfe_u32 v{vB2}, v{vL}, 2, 1")
            A(f"v_and_b32 v{vXX}, 3, v{vL}")
            A(f"v_lshlrev_b32 v{vL8}, 3, v{vL}")
            A(f"v_lshlrev_b32 v{vL16}, 4, v{vL}")
            A(f"v_and_b32 v{vG16}, 0x70, v{vL16}")
            A(f"v_lshl_add_u32 v{vM}, v{vXX}, 1, v{vB3}")
            A(f"v_and_b32 v{vA0}, 1, v{vG}")
            A(f"v_lshl_add_u32 v{vM}, v{vA0}, 3, v{vM}")
            A(f"v_lshrrev_b32 v{vA0}, 1, v{vG}")
            A(f"v_lshl_add_u32 v{vM}, v{vA0}, 5, v{vM}")
            A(f"v_lshlrev_b32 v{vAA}, 1, v{vM}")
            A(f"v_lshl_add_u32 v{vXO}, v{vB2}, 10, v{vAA}")
            A(f"s_lshl_b32 s{sTMP}, s{sWV}, 7")
            A(f"v_add_u32 v{vXO}, s{sTMP}, v{vXO}")
            A(f"v_lshl_add_u32 v{vM}, v{vB2}, 4, v{vM}")
            A(f"v_lshlrev_b32 v{vFR}, 3, v{vM}")
            A(f"s_lshl_b32 s{sTMP}, s{sWV}, 8")
            A(f"v_lshl_add_u32 v{vHW}, v{vM}, 2, s{sTMP}")
            A(f"s_lshr_b32 s{sTMP}, s{sR}, 3")
            A(f"s_and_b32 s{sTMP2}, s{sR}, 4")
            A(f"s_add_u32 s{sTMP}, s{sTMP}, s{sTMP2}")
            A(f"s_and_b32 s{sTMP2}, s{sR}, 3")
            A(f"s_lshl3_add_u32 s{sTMP2}, s{sTMP}, s{sTMP2}")
            A(f"s_lshl_b32 s{sTMP2}, s{sTMP2}, 5")
            A(f"v_and_b32 v{vM}, 7, v{vL}")
            A(f"v_lshl_add_u32 v{vHR}, v{vA0}, 5, v{vM}")
            A(f"v_lshl_add_u32 v{vHR}, v{vHR}, 2, s{sTMP2}")
            A(f"v_and_b32 v{vA0}, 1, v{vG}")
            A(f"v_lshl_add_u32 v{vHR}, v{vA0}, 1, v{vHR}")
            A(f"s_and_b32 s{sTMP2}, s{sR}, 1")
            A(f"s_lshl3_add_u32 s{sTMP}, s{sTMP}, s{sTMP2}")
            A(f"s_lshl_b32 s{sTMP}, s{sTMP}, 4")
            A(f"s_and_b32 s{sTMP2}, s{sR}, 2")
            A(f"s_lshl_b32 s{sTMP2}, s{sTMP2}, 9")
            A(f"s_add_u32 s{sTMP}, s{sTMP}, s{sTMP2}")
            A(f"v_lshl_add_u32 v{vFC}, v{vG}, 4, v{vM}")
            A(f"v_lshl_add_u32 v{vFC}, v{vFC}, 1, s{sTMP}")
            A(f"v_lshlrev_b32 v{vBA}, 4, v{vC}")
            A(f"v_lshl_add_u32 v{vBA}, v{vG}, 10, v{vBA}")
            ypage(sWV)
            A(f"v_add_u32 v{vBA}, s{sTMP}, v{vBA}")
            A(f"s_lshl_b32 s{sTMP}, s{sWV}, 9")
            A(f"v_lshlrev_b32 v{vOWA}, 5, v{vC}")
            A(f"v_lshl_add_u32 v{vOWA}, v{vG}, 4, v{vOWA}")
            A(f"v_add_u32 v{vOWA}, s{sTMP}, v{vOWA}")
            A(f"s_lshl_b32 s{sTMP2}, s{sID}, 9")
            A(f"s_add_u32 s{sTMP2}, s{sTMP2}, {WS_OP}")
            A(f"v_add_u32 v{vOS}, s{sTMP2}, v{vL8}")
            A(f"v_and_b32 v{vM}, 1, v{vL}")
            A(f"v_lshlrev_b32 v{vM}, 4, v{vM}")
            A(f"v_lshrrev_b32 v{vTb}, v{vM}, s{sT}")
            A(f"v_and_b32 v{vTa}, v{vFF}, v{vTb}")
            A(f"v_bfe_u32 v{vTb}, v{vTb}, 8, 8")
            if role == "n":
                return
            A(f"v_add_u32 v{vFW}, s{sTMP}, v{vL8}")
            A(f"v_mul_u32_u24 v{vIX}, 0xaaaa, v{vB3}")
            A(f"v_add_u32 v{vIX}, 0x4444, v{vIX}")
            if role == "f":
                A(f"v_lshlrev_b32 v{vSR}, 6, v{vB2}")
                A(f"v_lshl_add_u32 v{vRHO}, v{vB2}, 4, v{vB3}")
                A(f"v_lshrrev_b32 v{vM}, 3, v{vL}")
                A(f"v_mul_u32_u24 v{vYS}, {ZSTR}, v{vM}")
                A(f"s_lshl_b32 s{sTMP2}, s{sR}, 7")
                A(f"s_and_b32 s{sTMP}, s{sWV}, 3")
                A(f"s_mul_i32 s{sTMP}, s{sTMP}, {8*ZSTR}")
                A(f"s_add_u32 s{sTMP2}, s{sTMP2}, s{sTMP}")
                A(f"s_add_u32 s{sTMP2}, s{sTMP2}, {WS_ZP}")
                A(f"v_add3_u32 v{vYS}, v{vYS}, v{vG16}, s{sTMP2}")
                A(f"v_lshrrev_b32 v{vM}, 1, v{vG}")
                A(f"v_lshl_add_u32 v{vSA}, v{vM}, 2, v{vSR}")
                A(f"s_lshl_b32 s{sTMP}, s{sWV}, 3")
                A(f"v_add_u32 v{vSA}, s{sTMP}, v{vSA}")
                A(f"v_mov_b32 v{vEPS}, {hex(EPS)}")
                A(f"v_mov_b32 v{vONE}, 0x3b003b00")
            else:
                A(f"s_mov_b32 s{sU1}, 0x00ff00ff")
                A(f"s_mov_b32 s{sU1+1}, 0x00ff00ff")
                A(f"v_lshl_add_u32 v{vAA}, v{vB2}, 2, v{vB3}")
                A(f"v_lshlrev_b32 v{vAA}, 9, v{vAA}")
                A(f"v_lshl_add_u32 v{vAA}, v{vG}, 6, v{vAA}")
                A(f"v_lshl_add_u32 v{vAA}, v{vXX}, 4, v{vAA}")
                A(f"s_and_b32 s{sTMP2}, s{sWV}, 1")
                A(f"s_lshl_b32 s{sTMP2}, s{sTMP2}, 8")
                A(f"s_lshr_b32 s{sTMP}, s{sWV}, 1")
                A(f"s_lshl_b32 s{sTMP}, s{sTMP}, 12")
                A(f"s_add_u32 s{sTMP2}, s{sTMP2}, s{sTMP}")
                A(f"s_lshl_b32 s{sTMP}, s{sGX}, 14")
                A(f"s_add_u32 s{sTMP2}, s{sTMP2}, s{sTMP}")
                A(f"s_add_u32 s{sTMP2}, s{sTMP2}, {WS_OP}")
                A(f"v_add_u32 v{vAA}, s{sTMP2}, v{vAA}")
                A(f"v_and_b32 v{vYR}, 0x1f0, v{vFR}")
                A(f"v_lshl_add_u32 v{vYR}, v{vB3}, 11, v{vYR}")
                ypage(sCB)
                A(f"s_lshl_b32 s{sTMP2}, s{sGX}, 7")
                A(f"s_add_u32 s{sTMP}, s{sTMP}, s{sTMP2}")
                A(f"v_lshl_add_u32 v{vYS}, v{vG}, 10, v{vG16}")
                A(f"v_add_u32 v{vYS}, s{sTMP}, v{vYS}")

        def w1_regs():
            tr_addr(False, L_WA)
            tr_block(vW1, vA2, lambda u, e: (32 * u + 2 * e) * 128)
            zero([d + k for d in DACC for k in range(4)])
            for k in range(4):
                A(f"v_mov_b32 v{vTMP+k}, 0x3f803f80")
            A("s_waitcnt lgkmcnt(0)")
            nop(1)
            for tau in range(4):
                A(f"v_smfmac_f32_16x16x64_bf16 {vr(DACC[tau])}, {vr(vTMP)}, {vr(vW1 + 8*tau, 8)}, v{vIX}")
            nop(8)
            merge_tiles(vP)
            A(f"ds_write_b64 v{vFW}, {vr(vP,2)} offset:{L_CS}")

        def ml_publish():
            def body():
                n = "ml" + lab
                o, m, l = vMLG, vMLW, vMLW + 1
                wait_own("xc")
                xc_check()
                A(f"v_and_b32 v{vA0}, 56, v{vL8}")
                A(f"s_mov_b32 s{sCNT}, 0x80000")
                A(f"L_{n}_spin:")
                A(f"ds_read_b64 {vr(m,2)}, v{vA0} offset:{L_ML}")
                A(f"s_sub_u32 s{sCNT}, s{sCNT}, 1")
                A(f"s_cbranch_scc1 L_{n}_go")
                A("s_waitcnt lgkmcnt(0)")
                A(f"v_cmp_eq_u32 vcc, -1, v{l}")
                A(f"s_cbranch_vccnz L_{n}_spin")
                A(f"L_{n}_go:")
                A("s_waitcnt lgkmcnt(0)")
                nop(2)
                dpp("v_max_f32", o, m, m, X1)
                nop(2)
                dpp("v_max_f32", o, o, o, X2)
                nop(2)
                dpp("v_max_f32", o, o, o, HM)
                A(f"v_sub_f32 v{o+1}, v{m}, v{o}")
                A(f"v_mul_f32 v{o+1}, {hex(LOG2E)}, v{o+1}")
                A(f"v_exp_f32 v{o+1}, v{o+1}")
                A(f"v_mov_b32 v{o+2}, 0")
                A(f"v_mul_f32 v{o+1}, v{o+1}, v{l}")
                A(f"v_mov_b32 v{o+3}, 0")
                A(f"s_lshl_b32 s{sTMP}, s{sID}, 7")
                for ctl in (X1, X2, HM):
                    dpp("v_add_f32", o + 1, o + 1, o + 1, ctl)
                    nop(2)
                A(f"s_add_u32 s{sTMP}, s{sTMP}, {WS_ML}")
                tag4(o)
                A("s_mov_b64 exec, 0xff")
                A(f"s_cmp_eq_u32 s{sLOC}, 0")
                publish(n, f"buffer_store_dwordx4 {vr(o)}, v{vL16}, s[{rWS}:{rWS+3}], s{sTMP} offen")
                A("s_mov_b64 exec, -1")
            only_wave("mp", sw, body)

        def ml_load():
            A("s_mov_b64 exec, 0xff")
            A(f"buffer_load_dwordx4 {vr(vMLG)}, v{vXC}, s[{rWS}:{rWS+3}], s{sML} offen sc1")
            A("s_mov_b64 exec, -1")

        def ml_gather():
            def body():
                A(f"v_and_b32 v{vXC}, 3, v{vL}")
                A(f"v_lshlrev_b32 v{vXC}, 7, v{vXC}")
                A(f"s_lshr_b32 s{sML}, s{sID}, 2")
                A(f"s_lshl_b32 s{sML}, s{sML}, 9")
                A(f"s_add_u32 s{sML}, s{sML}, {WS_ML}")
                ml_load()
            only_wave("mg", sw, body)

        def ml_finish():
            def body():
                def chk():
                    A("s_mov_b64 exec, 0xff")
                    untag(vMLG, 1, vA0, STAGS)
                    A("s_mov_b64 exec, -1")
                wait_own("mg")
                poll_rare("m" + lab, ml_load, chk)
                o = vMLG
                dpp("v_max_f32", o + 2, o, o, X1)
                nop(2)
                dpp("v_max_f32", o + 2, o + 2, o + 2, X2)
                A(f"v_sub_f32 v{o}, v{o}, v{o+2}")
                A(f"v_sub_f32 v{o+3}, v{vMLW}, v{o+2}")
                A(f"v_mul_f32 v{o}, {hex(LOG2E)}, v{o}")
                A(f"v_mul_f32 v{o+3}, {hex(LOG2E)}, v{o+3}")
                A(f"v_exp_f32 v{o}, v{o}")
                A(f"v_exp_f32 v{o+3}, v{o+3}")
                A(f"v_mul_f32 v{o+1}, v{o+1}, v{o}")
                nop(2)
                dpp("v_add_f32", o + 1, o + 1, o + 1, X1)
                nop(2)
                dpp("v_add_f32", o + 1, o + 1, o + 1, X2)
                A(f"v_rcp_f32 v{o+1}, v{o+1}")
                nop(1)
                A(f"v_mul_f32 v{o+3}, v{o+3}, v{o+1}")
                nop(1)
                for j in range(8):
                    A(f"v_readlane_b32 s{sTMP}, v{o+3}, {j}")
                    nop(2)
                    A(f"v_mov_b32 v{vF+j}, s{sTMP}")
            only_wave("mf", sw, body)

        todo = [(lambda: ("K", pq) in ops, q_issue), (lambda: later("qi"), q_finish), (lambda: later("qf"), q_read)]
        for t in range(8):
            todo.append((lambda t=t: has(("K", 4 * t + 3)), lambda t=t: qk(t)))
        todo += [(lambda: True, f) for f in (soft_a, soft_b, soft_c, tail_setup)]
        for t in range(7):
            todo.append((lambda t=t: has(("V", 4 * t + 3)), lambda t=t: pv_tile(t)))
        done = set()
        side = [(lambda: tail_setup in done and later("xc") and ("V", p1) in ops, ml_publish),
                (lambda: later("mp") and ("V", p2) in ops, ml_gather),
                (lambda: later("mg"), ml_finish)]
        side2 = [(lambda: tail_setup in done and has(("w1", 7)), w1_regs)] if role == "f" else []
        seq = [("K", i) for i in range(K0, 32)] + [("V", i) for i in range(32)]
        if role == "f":
            for j in range(8):
                seq.insert(f0 + j, ("w1", j))
        rounds = [int(c) for c in rounds]
        assert sum(rounds) == len(seq), (role, sum(rounds), len(seq))
        prev = 3
        for size in rounds:
            first = len(ops)
            for j in range(size):
                kind, i = seq.pop(0)
                assert kind != "V" or i < NRING or pvdone[0] > i - NRING, "ring too small"
                wait_for(ops[first - prev + min(j + max(0, prev - size), prev - 1)])
                if kind == "w1":
                    w_dma(kind, i)
                else:
                    kvload(kind, i)
                ops.append((kind, i))
            prev = size
            n0 = len(L)
            for lst in (side, todo, side2):
                while lst and lst[0][0]() and len(L) - n0 < budget:
                    f = lst.pop(0)[1]
                    f()
                    done.add(f)
        assert not side and not side2, role
        while todo:
            pred, emit = todo.pop(0)
            while not pred():
                wait_n(len(ops) - landed[0] - 1)
            emit()
        pv_a(7)
        for i in range(28, 32):
            wait_for(("V", i))
            pv_m(i)
            m = {"n": 0, "w": wmid, "f": mid}[role]
            if i - 28 < m:
                w_dma("wo" if role == "w" else "w2", i - 28)
                ops.append(("late", i))

    C("---------------- stream: plain workgroups ----------------")
    stream("n", rn)
    A("L_tail:")
    C("---------------- sum the eight waves' partial outputs and publish them ----------------")
    A("s_mov_b32 exec_hi, 0")
    A(f"s_cmp_lg_u32 s{sWV}, {sw}")
    nop(6)
    A(f"ds_write_b128 v{vOWA}, {vr(vACC)} offset:{L_OW}")
    A("s_mov_b32 exec_hi, -1")
    A("s_waitcnt lgkmcnt(0)")
    stamp("_wend")
    A("s_barrier")
    stamp("strm")
    A("s_cbranch_scc1 L_nos0")
    for i in range(8):
        A(f"ds_read_b64 {vr(g0+2*i,2)}, v{vL8} offset:{L_OW + 512*i}")
    A(f"s_cmp_eq_u32 s{sLOC}, 0")
    A("s_waitcnt lgkmcnt(6)")
    pk("mul", vP, g0, vF, extra=lo)
    pk("fma", vP, g0 + 2, vF, vP, extra=hi3)
    for i in range(1, 4):
        if i != 2:
            A(f"s_waitcnt lgkmcnt({(2, 0, 0)[i-1]})")
        pk("fma", vP, g0 + 4 * i, vF + 2 * i, vP, extra=lo3)
        pk("fma", vP, g0 + 4 * i + 2, vF + 2 * i, vP, extra=hi3)
    A(f"v_bfi_b32 v{vP}, v{vFF}, v{vTa}, v{vP}")
    A(f"v_bfi_b32 v{vP+1}, v{vFF}, v{vTb}, v{vP+1}")
    publish("o", f"buffer_store_dwordx2 {vr(vP,2)}, v{vOS}, s[{rWS}:{rWS+3}], 0 offen")
    stamp("_opub")
    A("L_nos0:")
    A(f"s_cmp_ge_u32 s{sCB}, 8")
    A("s_cbranch_scc1 L_noy")

    C("---------------- stage W ----------------")
    A("s_barrier")

    def a_issue():
        for i in range(2):
            A(f"buffer_load_dwordx4 {vr(g0+4*i)}, v{vAA}, s[{rWS}:{rWS+3}], 0 offen offset:{1024*i} sc1")

    def pair_from_quad(src, dst):
        dpp("v_add_f32", dst, src, src, "row_ror:8", 0x3)
        dpp("v_add_f32", dst + 1, src + 1, src + 1, "row_ror:8", 0x3)
        dpp("v_add_f32", dst, src + 2, src + 2, "row_ror:8", 0xc)
        dpp("v_add_f32", dst + 1, src + 3, src + 3, "row_ror:8", 0xc)
    w_srd("wo")
    for j in range(wmid, 8):
        w_dma("wo", j)
    a_issue()
    A(f"s_mov_b32 s{sCNT}, 0x8000")
    A(f"s_cmp_eq_u32 s{sGX}, 0")
    A(f"s_cselect_b32 s{sML}, s{sLOC}, 0")
    tr_addr(True, L_WA)
    zero([d + k for d in DACC for k in range(4)])
    assert wmid <= 4
    A("s_waitcnt vmcnt(6)")
    tr_block(vW1, vA2, lambda u, e: (32 * u + 4 * e) * 128, between="s_waitcnt vmcnt(2) lgkmcnt(0)")
    A("s_branch L_a_chk")
    poll("a", a_issue, 2, init=False)
    stamp("hopA")
    pk("add", g0, g0, g0 + 4)
    pk("add", g0 + 2, g0 + 2, g0 + 6)
    A(f"s_cmp_lg_u32 s{sWV}, {sw}")
    pair_from_quad(g0, g0 + 4)
    A(f"v_cvt_pk_bf16_f32 v{vP}, v{g0+4}, v{g0+5}")
    A("s_waitcnt lgkmcnt(0)")
    nop(1)
    operand()
    nop(2)
    for tau in (0, 2, 1, 3):
        smfmac(DACC[tau], vW1 + 8 * tau)
    nop(7)
    merge_tiles(g0)
    A(f"ds_write_b64 v{vFW}, {vr(g0,2)} offset:{L_F1}")
    A("s_waitcnt lgkmcnt(0)")
    A("s_barrier")
    A("s_cbranch_scc1 L_noy")
    for i in range(4):
        A(f"ds_read_b128 {vr(g0+4*i)}, v{vYR} offset:{L_F1 + i*512}")
    A(f"s_cmp_eq_u32 s{sML}, 0")
    A(f"s_movk_i32 s{sTMP}, 0x2000")
    for i in range(1, 4):
        A(f"s_waitcnt lgkmcnt({3-i})")
        pk("add", g0, g0, g0 + 4 * i)
        pk("add", g0 + 2, g0 + 2, g0 + 4 * i + 2)
    nop(1)
    for k in range(4):
        dpp("v_add_f32", vD0 + k, g0 + k, g0 + k, "row_ror:8")
    A(f"s_mov_b64 exec, s[{sU1}:{sU1+1}]")
    tag4(vD0)
    publish("y", *[f"buffer_store_dwordx4 {vr(vD0)}, v{vYS}, s[{rWS}:{rWS+3}], {so} offen" for so in ("0", f"s{sTMP}")], farfirst=True)
    A("s_mov_b64 exec, -1")
    stamp("ypub")
    A("L_noy:")
    A(f"s_cmp_lg_u32 s{sGX}, 0")
    A("s_cbranch_scc1 L_fin")

    C("---------------- stage F (group 0) ----------------")
    A(f"v_mov_b32 v{vA0}, {L_FL}")
    A(f"ds_read_b32 v{vA0}, v{vA0}")
    A("s_waitcnt lgkmcnt(0)")
    A(f"v_readfirstlane_b32 s{sLOC}, v{vA0}")
    A(f"v_and_b32 v{vA0}, 0x2000, v{vA0}")
    A(f"v_add_u32 v{vBA}, v{vA0}, v{vBA}")
    A(f"s_and_b32 s{sLOC}, s{sLOC}, 1")
    A(f"s_cmp_lt_u32 s{sR}, {NF}")
    A("s_barrier")
    A("s_cbranch_scc1 L_late")

    def small_loads(name):
        A(f"global_load_ushort v{vXR}, v{vXO}, s[{sX}:{sX+1}]")
        A(f"global_load_ushort v{vXR+1}, v{vXO}, s[{sX}:{sX+1}] offset:32")
        A(f"s_cmp_lg_u32 s{sWV}, {fw}")
        A(f"s_cbranch_scc1 L_{name}")
        A(f"v_and_b32 v{vA1}, 0x3ff, v{vFC}")
        A(f"global_load_ushort v{vB2R}, v{vA1}, s[{sB2}:{sB2+1}]")
        A(f"L_{name}:")
    small_loads("nob2")
    A("s_waitcnt vmcnt(0)")
    widen(vXR)

    def b_issue():
        for i, off in enumerate((0, 256, 512, 768)):
            A(f"buffer_load_dwordx4 {vr(g0+4*i)}, v{vBA}, s[{rWS}:{rWS+3}], 0 offen offset:{off} sc1")

    def late():
        A("L_late:")
        C("FFN workgroups: the rest of w2 and the small operands")
        w_srd("w2")
        for j in range(mid, 8):
            w_dma("w2", j)
        small_loads("nob2f")
        zero([d + k for d in DACC for k in range(4)])
        A(f"s_cmp_ge_u32 s{sWV}, 4")
        A("s_cbranch_scc1 L_late2")
        srd(rB, sB1, 2752)
        A(f"s_lshl_b32 s{sTMP2}, s{sR}, 7")
        A(f"buffer_load_ushort v{vB1R}, v{vAA}, s[{rB}:{rB+3}], s{sTMP2} offen")
        A(f"buffer_load_ushort v{vB1R+1}, v{vAA}, s[{rB}:{rB+3}], s{sTMP2} offen offset:32")
        C("touch the lines of this workgroup's Z slots (values unused)")
        A(f"buffer_load_dword v{vDUM}, v{vYS}, s[{rWS}:{rWS+3}], 0 offen")
        for i in range(8):
            A(f"ds_read_b64 {vr(st+2*i,2)}, v{vFR} offset:{L_CS + 512*i}")
        A(f"s_lshl_b32 s{sTMP}, s{sR}, 2")
        A(f"s_sub_u32 s{sTMP}, 86, s{sTMP}")
        A(f"v_cmp_gt_u32 vcc, s{sTMP}, v{vG}")
        zero([vE + k for k in range(32)])
        A(f"v_cndmask_b32 v{vVAL}, 0, -1, vcc")
        tr_addr(False, L_WB)
        A("s_waitcnt lgkmcnt(0)")
        sum8(st, vCS)
        A("L_late2:")
        A("s_waitcnt vmcnt(0)")
        A("s_barrier")
        stamp("_late")
        b_issue()
        widen(vXR)
        widen(vB1R)
        A(f"s_mov_b32 s{sCNT}, 0x8000")
        A(f"s_cmp_ge_u32 s{sWV}, 4")
        A("s_cbranch_scc1 L_b_chk")
        tr_block(vW2, vA2, lambda u, e: (32 * u + 2 * e) * 128)
        A("s_waitcnt lgkmcnt(0)")
        tr_block(vW2b, vA2, lambda u, e: 32768 + (32 * u + 2 * e) * 128)
        A("s_branch L_b_chk")
    poll("b", b_issue, 4)
    stamp("hopB")
    for e in (0, 2, 4, 6):
        pk("add", g0 + e, g0 + e, g0 + 8 + e)
    pk("add", g0 + 4, g0, g0 + 4)
    pk("add", g0 + 6, g0 + 2, g0 + 6)
    A(f"s_cmp_ge_u32 s{sR}, {NF}")
    pair_from_quad(g0 + 4, g0)
    pk("add", g0, g0, vXR)
    A(f"v_cvt_pk_bf16_f32 v{vP}, v{g0}, v{g0+1}")
    A("s_cbranch_scc1 L_noffn")
    A(f"v_dot2_f32_bf16 v{s0}, v{vP}, v{vONE}, 0")
    A(f"v_dot2_f32_bf16 v{s1}, v{vP}, v{vP}, 0")

    operand()
    A(f"v_permlane32_swap_b32 v{s0}, v{s1}")
    A(f"v_add_f32 v{s0}, v{s0}, v{s1}")
    smfmac(vD0, vW1)
    A(f"ds_write_b32 v{vHW}, v{vP} offset:{L_HS}")
    dpp("v_add_f32", s0, s0, s0, X1)
    smfmac(vD2, vW1 + 16)
    A(f"s_cmp_ge_u32 s{sWV}, 4")
    dpp("v_add_f32", s0, s0, s0, X2)
    smfmac(vD1, vW1 + 8)
    smfmac(vD3, vW1 + 24)
    dpp("v_add_f32", s0, s0, s0, "row_ror:8")
    A(f"v_mov_b32 v{s1}, v{s0}")
    nop(2)
    A(f"v_permlane16_swap_b32 v{s0}, v{s1}")
    A(f"v_add_f32 v{s0}, v{s0}, v{s1}")
    A(f"ds_write_b32 v{vSA}, v{s0} offset:{L_ST}")
    merge_tiles(g0)
    A(f"ds_write_b64 v{vFW}, {vr(g0,2)} offset:{L_F1}")
    A("s_waitcnt lgkmcnt(0)")
    A("s_barrier")
    stamp("_f1b")
    A("s_cbranch_scc1 L_final")
    C("waves 0..3: hidden activations and the product with w2")
    for i in range(4):
        A(f"ds_read_b128 {vr(st+4*i)}, v{vSR} offset:{L_ST + 16*i}")
    for i in range(8):
        A(f"ds_read_b64 {vr(g0+2*i,2)}, v{vFR} offset:{L_F1 + 512*i}")
    A(f"s_cmp_eq_u32 s{sLOC}, 0")
    A(f"s_mov_b32 s{sTMP}, 0x3b000000")
    A("s_waitcnt lgkmcnt(10)")
    pk("add", st, st, st + 2)
    pk("add", st + 4, st + 4, st + 6)
    A("s_waitcnt lgkmcnt(8)")
    pk("add", st + 8, st + 8, st + 10)
    pk("add", st + 12, st + 12, st + 14)
    pk("add", st, st, st + 4)
    pk("add", st + 8, st + 8, st + 12)
    pk("add", s0, st, st + 8)
    A(f"v_fma_f32 v{s1}, v{s1}, s{sTMP}, v{vEPS}")
    A(f"v_fma_f32 v{s1}, -v{s0}, v{s0}, v{s1}")
    A(f"v_max_f32 v{s1}, v{vEPS}, v{s1}")
    A(f"v_rsq_f32 v{s1}, v{s1}")
    A("s_waitcnt lgkmcnt(0)")
    sum8(g0)
    pk("fma", g0, vCS, s0, g0, extra=" op_sel_hi:[1,0,1] neg_lo:[0,1,0] neg_hi:[0,1,0]")
    pk("fma", g0, g0, s0, vB1R, extra=hi3)
    A(f"v_max_f32 v{g0}, 0, v{g0}")
    A(f"v_max_f32 v{g0+1}, 0, v{g0+1}")
    pk("mul", g0, g0, g0)
    A(f"v_cvt_pk_bf16_f32 v{vP}, v{g0}, v{g0+1}")
    nop(2)
    operand(vVAL)
    nop(2)
    for tau in range(4):
        smfmac(vE + 4 * tau, vW2 + 8 * tau)
        smfmac(vE + 16 + 4 * tau, vW2b + 8 * tau)
    nop(2)
    for tau in range(4):
        A(f"v_permlane32_swap_b32 v{vE+4*tau}, v{vE+16+4*tau}")
        A(f"v_add_f32 v{vD0+tau}, v{vE+4*tau}, v{vE+16+4*tau}")
        A(f"v_bfi_b32 v{vD0+tau}, v{vFF}, s{Tk[tau]}, v{vD0+tau}")
    publish("z", f"buffer_store_dwordx4 {vr(vD0)}, v{vYS}, s[{rWS}:{rWS+3}], 0 offen")
    stamp("zpub")
    A("s_branch L_fin")
    A("L_noffn:")
    A(f"ds_write_b32 v{vHW}, v{vP} offset:{L_HS}")
    C("every y is in, so every wave of the launch has read the epoch word: advance it for the next launch")
    A(f"s_lshl3_add_u32 s{sTMP}, s{sR}, s{sWV}")
    A(f"s_cmp_lg_u32 s{sTMP}, {31*8}")
    A("s_cbranch_scc1 L_noe")
    A("s_mov_b64 exec, 1")
    A(f"v_mov_b32 v{vA1}, s{sT}")
    A(f"buffer_store_dword v{vA1}, v{vL8}, s[{rWS}:{rWS+3}], 0 offen offset:{WS_E} sc1")
    A("s_mov_b64 exec, -1")
    A("L_noe:")
    A("s_waitcnt lgkmcnt(0)")
    A("s_barrier")
    A("L_final:")
    C("---------------- one wave of each group-0 workgroup adds the partial sums of 32 outputs ----------------")
    assert fw >= 4
    A(f"s_cmp_lg_u32 s{sWV}, {fw}")
    A("s_cbranch_scc1 L_fin")
    A(f"ds_read_u16 v{vXR}, v{vHR} offset:{L_HS}")
    A(f"s_mul_i32 s{sTMP}, s{sR}, {ZSTR}")
    A(f"s_add_u32 s{sTMP}, s{sTMP}, {WS_ZP}")
    A(f"v_min_u32 v{vA0}, 47, v{vL}")
    A(f"v_and_b32 v{vA0}, 0x38, v{vA0}")
    A(f"v_lshl_add_u32 v{vA0}, v{vA0}, 4, v{vG16}")
    A(f"v_lshlrev_b32 v{vB2R}, 16, v{vB2R}")
    A("s_waitcnt lgkmcnt(0)")
    A(f"v_lshlrev_b32 v{vXR}, 16, v{vXR}")
    A(f"v_add_f32 v{vXR}, v{vXR}, v{vB2R}")

    def c_issue():
        for t in range(2):
            A(f"buffer_load_dwordx4 {vr(g0+4*t)}, v{vL16}, s[{rWS}:{rWS+3}], s{sTMP} offen offset:{1024*t} sc1")
        A(f"buffer_load_dwordx4 {vr(g0+8)}, v{vA0}, s[{rWS}:{rWS+3}], s{sTMP} offen offset:2048 sc1")
    poll("c", c_issue, 3)
    stamp("hopC")
    pk("add", g0, g0, g0 + 4)
    pk("add", g0 + 2, g0 + 2, g0 + 6)
    A("s_mov_b32 exec_hi, 0xffff")
    pk("add", g0, g0, g0 + 8)
    pk("add", g0 + 2, g0 + 2, g0 + 10)
    A("s_mov_b32 exec_hi, -1")
    nop(1)
    A(f"v_permlane32_swap_b32 v{g0}, v{g0+2}")
    A(f"v_permlane32_swap_b32 v{g0+1}, v{g0+3}")
    pk("add", g0, g0, g0 + 2)
    nop(2)
    A(f"v_permlane16_swap_b32 v{g0}, v{g0+1}")
    A(f"v_add_f32 v{g0}, v{g0}, v{g0+1}")
    nop(2)
    dpp("v_add_f32", g0, g0, g0, "row_ror:8")
    A(f"v_add_f32 v{g0}, v{g0}, v{vXR}")
    A(f"v_cvt_pk_bf16_f32 v{g0}, v{g0}, v{g0}")
    A(f"global_store_short v{vFC}, v{g0}, s[{sOUT}:{sOUT+1}]")
    A("L_fin:")
    if minT:
        A(f"s_cmp_lg_u32 s2, {minX}")
        A("s_cbranch_scc1 L_nospin")
        A("L_spin:")
        A("s_memrealtime s[98:99]")
        A("s_waitcnt lgkmcnt(0)")
        A("s_sub_u32 s98, s98, s100")
        A(f"s_cmp_lt_u32 s98, {minT*100}")
        A("s_cbranch_scc1 L_spin")
        A("L_nospin:")
    if diag:
        A("s_mov_b64 exec, -1")
        A("s_waitcnt vmcnt(0)")
        stamp("end")
        for _ in range(4):
            A("s_sleep 127")
        for i in range(12):
            A(f"v_mov_b32 v{vK+i}, s{dslot(i)}")
        A(f"v_mov_b32 v{vK+12}, s{sVOTE}")
        A(f"v_mov_b32 v{vK+13}, s{sXCC}")
        A(f"s_lshl_b32 s{sTMP}, s2, 3")
        A(f"s_add_u32 s{sTMP}, s{sTMP}, s{sWV}")
        A(f"s_lshl_b32 s{sTMP}, s{sTMP}, 6")
        A(f"s_add_u32 s{sTMP}, s{sTMP}, {WS_DIAG}")
        A(f"v_mov_b32 v{vA0}, 0")
        A("s_mov_b64 exec, 1")
        for i in range(4):
            A(f"buffer_store_dwordx4 {vr(vK+4*i)}, v{vA0}, s[{rWS}:{rWS+3}], s{sTMP} offen offset:{16*i}")
    A("s_endpgm")
    late()

    C("---------------- stream: stage-W workgroups ----------------")
    A("L_s_w:")
    A(f"s_cmp_eq_u32 s{sCB}, 3")
    A("s_cbranch_scc1 L_s_x")
    stream("w", rw)
    A("s_branch L_tail")
    C("column block 3 loads its wo lines at half the rate of the others: it runs further ahead")
    A("L_s_x:")
    stream("w", rx, "x")
    A("s_branch L_tail")
    C("---------------- stream: FFN workgroups ----------------")
    A("L_s_f:")
    stream("f", rf)
    A("s_branch L_tail")
    C("---------------- retry paths ----------------")
    for c in cold:
        c()
    A("L_end:")
    A("s_endpgm")
    C("never executed: keeps the code prefetch inside the section")
    L.append(f".if (. - L_pc) > {PFL*4096}")
    L.append('.error "code prefetch too short"')
    L.append(".endif")
    L.append(f".fill ({PFL*4096} - (. - L_pc)) / 4, 4, 0xbf810000")
    L.append('.section .rodata,"a"')
    L.append(".p2align 6")
    L.append(f".amdhsa_kernel {NAME}_kernel")
    L.append("  .amdhsa_next_free_vgpr 256")
    L.append("  .amdhsa_next_free_sgpr 102")
    L.append("  .amdhsa_accum_offset 256")
    L.append("  .amdhsa_group_segment_fixed_size 0")
    L.append("  .amdhsa_kernarg_size 104")
    L.append("  .amdhsa_user_sgpr_count 2")
    L.append("  .amdhsa_user_sgpr_kernarg_segment_ptr 1")
    L.append("  .amdhsa_system_sgpr_workgroup_id_x 1")
    L.append("  .amdhsa_float_denorm_mode_32 3")
    L.append(".end_amdhsa_kernel")
    return "\n".join(L) + "\n", stamps


if __name__ == "__main__":
    header = open("cdna_kernels/" + NAME + ".s.ref").read().split("; Override launch")[0]
    kw = eval("dict(" + (sys.argv[2] if len(sys.argv) > 2 else "") + ")")
    src, _ = gen(**kw)
    open(sys.argv[1], "w").write(header + src)
```

```python
import sys
NAME = "sequential_preLN__mha_block_cached__dense_activation_squared_relu__decode"

WS_E = 0
WS_XC = 0x1000
WS_YP = 0x10000
WS_RACE = 0x20000
WS_QP = 0x40000
WS_OP = 0x80000
WS_ML = 0xA0000
WS_ZP = 0xB0000
ZSTR = 3200
WS_DIAG = 0x100000
WS_SIZE = 0x200000
L_OW = 0
L_F1 = 4096
L_CS = 8192
L_HS = 12288
L_ML = L_HS + 2048
L_ST = L_ML + 64
L_Q = L_ST + 192
L_FL = L_Q + 256
L_WA = 16384
L_WB = L_WA + 65536
LDS_BYTES = L_WB + 65536
assert L_Q + 256 <= L_WA and L_Q % 16 == 0

LOG2E = 0x3fb8aa3b
SCALE = 0x3db504f3
EPS = 0x3727c5ac
NF = 22
NW0 = 22

DOC = """
; One launch, one workgroup of 8 waves per CU.  wg = 8 r + X; group X owns heads 4X..4X+3, id = 32 X + r = 8 head + s,
; s = 4 batch + quarter: the workgroup owns 1024 keys of one (batch, head).
;   q      wave 0 multiplies LN(x) (both batches) with 64 rows of the head's wq slice; wave QW adds the 8 partial sums.
;          The four workgroups of a (batch, head) trade (max, sum) half way, so each publishes a normalised partial o.
;   W      8 workgroups of every group multiply o (4 heads) with a 512 x 64 block of wo and publish y.  The products of
;          the tail use v_smfmac with the dense weights as B; two 2-of-4 rows of A hold one full activation row.
;   F      22 workgroups of group 0 add the 8 y and x, and run LN + w1 + relu^2 + w2 for 64 hidden columns each
;          (LN is applied after the product: (h w1 - mean colsum(w1)) * rstd); all 32 add the partial sums at the end.
; Hand-offs go through d_ws.  Every word carries one byte of T = E + 0x01010101 in its low byte, E being the epoch word
; group is stored through to memory unless all 32 workgroups of the group have reported the writer's own die.
"""


def gen(diag=False, only=None, local=True, minT=0, minX=None, now=(),
        rn="332" * 6 + "33", rw="3" * 18, rx="3" * 14 + "444", rf="33" + "4" * 14, f0=22,
        pq=21, p1=8, p2=19, qw=1, sw=3, fw=7, budget=110, PFL=8, mid=4, wmid=3):
    L = []

    def A(s):
        L.append("    " + s if not s.endswith(":") else s)

    def C(s):
        L.append("    ; " + s)

    def nop(n):
        if n > 0:
            A(f"s_nop {n-1}")

    def vr(a, n=4):
        return f"v[{a}:{a+n-1}]"

    sX, sK, sV, sWQ, sWO, sW1, sB1, sW2, sB2, sOUT, sWS = 8, 10, 12, 14, 16, 20, 22, 24, 26, 28, 32
    sPC = 34
    rK, rV, rWS, rT = 36, 40, 44, 48
    sGX, sR, sH, sS, sB, sWV = 52, 53, 54, 55, 56, 57
    sT, sT0, sT1, sT2, sT3 = 58, 59, 60, 61, 62
    sLOC, sCNT, sTMP, sTMP2, sXW = 63, 64, 65, 66, 67
    sBASE, sTILE = 68, 69
    sID, sXCC = 70, 71
    rB = 72
    sD1, sD3 = 76, 77
    sQO, sCB, sML = 78, 79, 80
    sVOTE, sR0, sR1 = 81, 82, 83
    sEX = 86
    Tk = [sT0, sT1, sT2, sT3]

    vDA = 0
    vL, vG, vC = 1, 2, 3
    vKV = 4
    vA0, vA1, vA2 = 5, 6, 7
    vQ = 8
    vMK = 12
    vACC = 16
    vS = 20
    vFF = 28
    vM = 29
    vT0, vT1 = 30, 31
    vTMP = 32
    vK = 48
    vV = 176
    NRING = 20
    vW1 = vK
    vW2 = vK + 32
    vF = vK + 64
    vIX = vK + 72
    vVAL = vK + 73
    vXO = vK + 74
    vHR = vK + 75
    vXR = vK + 76
    vB1R = vK + 78
    vCS = vK + 80
    vTa, vTb = vK + 82, vK + 83
    vB2R = vK + 84
    vL8 = vK + 85
    vAA = vK + 86
    vBA = vK + 87
    vYR = vK + 88
    vEPS = vK + 88
    vFW = vK + 89
    vSA = vK + 90
    vSR = vK + 91
    vFC = vK + 93
    vYS = vK + 94
    vRHO = vK + 95
    vONE = vK + 96
    vXC = vK + 97
    vOWA = vK + 98
    vDUM = vK + 99
    vMLG = vK + 100
    vMLW = vK + 104
    vG16 = vK + 106
    vHW = vK + 107
    vD0, vD1 = vK + 108, vK + 112
    vP = vK + 116
    vL16 = vK + 118
    vFR = vK + 119
    vD2, vD3 = vK + 120, vK + 124
    vOS = vK + 80
    vTG = vQ
    g0 = vTMP
    vBM = 12
    vW2b = vV
    vE = vV + 32
    st = vV + 64
    s0, s1 = vT0, vT1

    stamps = []

    def dslot(i):
        return ([88 + k for k in range(12)])[i]

    def stamp(name):
        if not diag:
            return
        if only is not None and name not in only and name not in ("strm", "end"):
            return
        if only is None and name.startswith("_"):
            return
        if name not in stamps:
            stamps.append(name)
        A(f"s_memrealtime s[{sEX}:{sEX+1}]")
        A("s_waitcnt lgkmcnt(0)")
        A(f"s_mov_b32 s{dslot(stamps.index(name))}, s{sEX}")

    def srd(r, p, size):
        A(f"s_mov_b32 s{r}, s{p}")
        A(f"s_mov_b32 s{r+1}, s{p+1}")
        A(f"s_mov_b32 s{r+2}, {size}")
        A(f"s_mov_b32 s{r+3}, 0x20000")

    def tag4(base):
        for k in range(4):
            A(f"v_bfi_b32 v{base+k}, v{vFF}, s{Tk[k]}, v{base+k}")

    def untag(base, n, acc, tags, wait=None):
        for i in range(n):
            if wait is not None:
                A(f"s_waitcnt vmcnt({n - 1 - i})")
            b = base + 4 * i
            for k in range(4):
                A(f"v_xor_b32 v{b+k}, {tags[k]}, v{b+k}")
            if i == 0:
                A(f"v_or3_b32 v{acc}, v{b}, v{b+1}, v{b+2}")
            else:
                A(f"v_or3_b32 v{acc}, v{acc}, v{b-1}, v{b}")
                A(f"v_or3_b32 v{acc}, v{acc}, v{b+1}, v{b+2}")
        A(f"v_or_b32 v{acc}, v{acc}, v{base+4*n-1}")
        A(f"v_cmp_ne_u32_sdwa vcc, v{acc}, 0 src0_sel:BYTE_0 src1_sel:DWORD")
    STAGS = [f"s{t}" for t in Tk]
    VTAGS = [f"v{vTG+k}" for k in range(4)]

    cold = []

    def poll_rare(name, issue, check):
        A(f"s_mov_b32 s{sCNT}, 0x20000")
        A(f"L_{name}_chk:")
        check()
        A(f"s_cbranch_vccnz L_{name}_again")
        A(f"L_{name}_ok:")

        def retry():
            A(f"L_{name}_again:")
            A(f"s_sub_u32 s{sCNT}, s{sCNT}, 1")
            A(f"s_cbranch_scc1 L_{name}_ok")
            issue()
            A("s_waitcnt vmcnt(0)")
            A(f"s_branch L_{name}_chk")
        cold.append(retry)

    def poll(name, issue, n, init=True):
        if init:
            A(f"s_mov_b32 s{sCNT}, 0x40000")
            A("s_mov_b64 vcc, -1")
        A(f"L_{name}_again:")
        A("s_mov_b64 exec, vcc")
        issue()
        A(f"s_sub_u32 s{sCNT}, s{sCNT}, 1")
        A(f"s_cbranch_scc1 L_{name}_ok")
        A(f"L_{name}_chk:")
        untag(g0, n, vT0, VTAGS, wait=True)
        A(f"s_cbranch_vccnz L_{name}_again")
        A(f"L_{name}_ok:")
        A("s_mov_b64 exec, -1")

    def publish(name, *lines, farfirst=False):
        A(f"s_cbranch_scc{0 if farfirst else 1} L_{name}_alt")
        for line in lines:
            A(line + (" sc1" if farfirst else ""))
        A(f"s_branch L_{name}_pub")
        A(f"L_{name}_alt:")
        for line in lines:
            A(line + ("" if farfirst else " sc1"))
        A(f"L_{name}_pub:")

    def dpp(op, d, a, b, ctl, bank=0xf):
        A(f"{op}_dpp v{d}, v{a}, v{b} {ctl} row_mask:0xf bank_mask:{hex(bank)}")

    X1, X2, HM = "quad_perm:[1,0,3,2]", "quad_perm:[2,3,0,1]", "row_half_mirror"

    def round_bf16(regs, tmp):
        for i in range(0, len(regs), 2):
            A(f"v_cvt_pk_bf16_f32 v{tmp+i//2}, v{regs[i]}, v{regs[i+1]}")
        for i in range(0, len(regs), 2):
            A(f"v_lshlrev_b32 v{regs[i]}, 16, v{tmp+i//2}")
            A(f"v_and_b32 v{regs[i+1]}, 0xffff0000, v{tmp+i//2}")

    def round1(r):
        A(f"v_cvt_pk_bf16_f32 v{r}, v{r}, v{r}")
        A(f"v_lshlrev_b32 v{r}, 16, v{r}")

    def unpack(dst, src, n):
        for i in range(n):
            A(f"v_lshlrev_b32 v{dst+2*i}, 16, v{src+i}")
            A(f"v_and_b32 v{dst+2*i+1}, 0xffff0000, v{src+i}")

    def widen(r):
        A(f"v_lshlrev_b32 v{r}, 16, v{r}")
        A(f"v_lshlrev_b32 v{r+1}, 16, v{r+1}")

    def pk(op, d, a, b, c=None, extra=""):
        if c is None:
            A(f"v_pk_{op}_f32 {vr(d,2)}, {vr(a,2)}, {vr(b,2)}{extra}")
        else:
            A(f"v_pk_{op}_f32 {vr(d,2)}, {vr(a,2)}, {vr(b,2)}, {vr(c,2)}{extra}")
    lo, lo3, hi3 = " op_sel_hi:[1,0]", " op_sel_hi:[1,0,1]", " op_sel:[0,1,0]"

    def sum8(g, out=None):
        for i in range(4):
            pk("add", g + 4 * i, g + 4 * i, g + 4 * i + 2)
        pk("add", g, g, g + 4)
        pk("add", g + 8, g + 8, g + 12)
        pk("add", g if out is None else out, g, g + 8)

    def mfma(d, a, b, c):
        A(f"v_mfma_f32_16x16x32_bf16 {vr(d)}, {vr(a)}, {vr(b)}, " + ("0" if c is None else vr(c)))

    DACC = [vD0, vD1, vD2, vD3]

    def smfmac(d, b):
        A(f"v_smfmac_f32_16x16x64_bf16 {vr(d)}, {vr(vBM)}, {vr(b, 8)}, v{vIX}")

    def operand(mask=None):
        for k in range(4):
            ctl = f"quad_perm:[{k},{k},{k},{k}] row_mask:0xf bank_mask:0xf"
            if mask is None:
                A(f"v_mov_b32_dpp v{vBM+k}, v{vP} {ctl}")
            else:
                A(f"v_and_b32_dpp v{vBM+k}, v{vP}, v{mask} {ctl}")

    def zero(regs):
        for r in regs:
            A(f"v_mov_b32 v{r}, 0")

    def merge_tiles(out):
        A(f"v_permlane32_swap_b32 v{vD0}, v{vD2}")
        A(f"v_permlane32_swap_b32 v{vD1}, v{vD3}")
        A(f"v_add_f32 v{out}, v{vD0}, v{vD2}")
        A(f"v_add_f32 v{out+1}, v{vD1}, v{vD3}")

    def vreg(i):
        return vV + 4 * (i % NRING)

    def kvload(kind, i):
        t, j = divmod(i, 4)
        if t and j == 0:
            A(f"s_xor_b32 s{sTILE}, s{sBASE}, {t << 15}")
        dst, r = (vK + 4 * i, rK) if kind == "K" else (vreg(i), rV)
        A(f"buffer_load_dwordx4 {vr(dst)}, v{vKV}, s[{r}:{r+3}], s{sTILE if t else sBASE} offen offset:{(0, 2048, 1024, 3072)[j]} nt")

    def make_masks():
        A(f"v_and_b32 v{vA0}, 1, v{vL}")
        A(f"v_lshlrev_b32 v{vA0}, 4, v{vA0}")
        A(f"v_mov_b32 v{vA1}, 0xffff")
        A(f"v_lshlrev_b32 v{vA1}, v{vA0}, v{vA1}")
        A(f"v_bfe_u32 v{vA0}, v{vL}, 1, 2")
        for j in range(4):
            A(f"v_cmp_eq_u32 vcc, {j}, v{vA0}")
            nop(2)
            A(f"v_cndmask_b32 v{vMK+j}, 0, v{vA1}, vcc")

    def epoch():
        A("s_waitcnt lgkmcnt(0)")
        if diag:
            for i in range(1, 12):
                A(f"s_mov_b32 s{dslot(i)}, 0")
            A(f"s_mov_b32 s{dslot(0)}, s{sEX}")
        srd(rV, sV, 0x4000000)
        A(f"s_add_u32 s{sT}, s{sT}, 0x01010101")
        A(f"s_and_b32 s{sT0}, s{sT}, 0xff")
        A(f"s_bfe_u32 s{sT1}, s{sT}, 0x80008")
        A(f"s_bfe_u32 s{sT2}, s{sT}, 0x80010")
        A(f"s_lshr_b32 s{sT3}, s{sT}, 24")
        A(f"s_lshl_b32 s{sXW}, s{sXCC}, 28")
        A(f"s_add_u32 s{sXW}, s{sXW}, s{sT}")

    def ypage(p):
        A(f"s_and_b32 s{sTMP}, s{p}, 6")
        A(f"s_add_u32 s{sTMP}, s{sTMP}, s{p}")
        A(f"s_lshl_b32 s{sTMP}, s{sTMP}, 12")
        A(f"s_add_u32 s{sTMP}, s{sTMP}, {WS_YP}")

    def xc_load():
        A(f"v_and_b32 v{vA0}, 31, v{vL}")
        A(f"v_lshlrev_b32 v{vA0}, 2, v{vA0}")
        A(f"s_lshl_b32 s{sTMP}, s{sGX}, 7")
        A(f"s_add_u32 s{sTMP}, s{sTMP}, {WS_XC}")
        A(f"buffer_load_dword v{vXC}, v{vA0}, s[{rWS}:{rWS+3}], s{sTMP} offen sc1")

    def xc_check():
        A(f"s_xor_b32 s{sTMP}, s{sXW}, {1 << 27}")
        A(f"v_cmp_eq_u32 vcc, s{sTMP}, v{vXC}")
        A(f"v_xor_b32 v{vXC}, s{sXW}, v{vXC}")
        A(f"v_and_b32 v{vXC}, {hex(0xffffffff ^ (1 << 27))}, v{vXC}")
        A(f"s_bcnt1_i32_b32 s{sTMP}, vcc_lo")
        A(f"v_cmp_ne_u32 vcc, 0, v{vXC}")
        A(f"s_cmp_ge_u32 s{sTMP}, 15")
        A(f"s_cselect_b32 s{sTMP}, 0, 0x2000")
        A("s_cmp_eq_u64 vcc, 0")
        A(f"s_cselect_b32 s{sLOC}, {1 if local else 0}, 0")
        A(f"s_or_b32 s{sTMP}, s{sTMP}, s{sLOC}")
        A(f"v_mov_b32 v{vA0}, {L_FL}")
        A(f"v_mov_b32 v{vA1}, s{sTMP}")
        A(f"ds_write_b32 v{vA0}, v{vA1}")

    L.append(f"; @launch grid=(256,1,1) block=(512,1,1) lds={LDS_BYTES}")
    L.extend(DOC.strip("\n").replace("QW", str(qw)).split("\n"))
    L.append('.amdgcn_target "amdgcn-amd-amdhsa--gfx950"')
    L.append(".text")
    L.append(f".globl {NAME}_kernel")
    L.append(".p2align 8")
    L.append(f".type {NAME}_kernel,@function")
    L.append(f"{NAME}_kernel:")
    C("the first 256 bytes arrive with the first instruction fetch: they hold everything up to the first loads")
    A(f"s_load_dwordx2 s[{rK}:{rK+1}], s[0:1], 8")
    A("s_load_dwordx2 s[32:33], s[0:1], 96")
    A("s_load_dwordx2 s[6:7], s[0:1], 0")
    A(f"s_lshr_b32 s{sR}, s2, 3")
    A(f"s_cmp_ge_u32 s{sR}, 32")
    A("s_cbranch_scc1 L_end")
    A(f"s_getpc_b64 s[{sPC}:{sPC+1}]")
    A("L_pc:")
    if minT:
        A("s_memrealtime s[100:101]")
    if diag:
        if only != ["vote"]:
            A(f"s_memrealtime s[{sEX}:{sEX+1}]")
        stamps.append("start")
    C("pull the kernel's code into this die's L2: line r + 32 lane, a few lanes of wave 0 (values unused)")
    A(f"v_lshl_add_u32 v{vT0}, v0, 5, s{sR}")
    A(f"v_cmp_gt_u32 vcc, {PFL}, v0")
    A(f"v_lshlrev_b32 v{vT0}, 7, v{vT0}")
    A("s_and_b64 exec, exec, vcc")
    A("s_cbranch_scc0 L_nopf")
    A(f"global_load_dword v{vT0}, v{vT0}, s[{sPC}:{sPC+1}]")
    A("L_nopf:")
    A("s_mov_b64 exec, -1")
    A(f"v_lshrrev_b32 v{vA0}, 6, v0")
    A(f"v_and_b32 v{vL}, 63, v0")
    A(f"v_lshlrev_b32 v{vKV}, 12, v{vA0}")
    A(f"v_lshl_add_u32 v{vKV}, v{vL}, 4, v{vKV}")
    A(f"s_and_b32 s{sGX}, s2, 7")
    A(f"s_lshl_b32 s{sID}, s{sGX}, 5")
    A(f"s_add_u32 s{sID}, s{sID}, s{sR}")
    A(f"s_lshr_b32 s{sH}, s{sID}, 3")
    A(f"s_and_b32 s{sB}, s{sR}, 4")
    A(f"s_and_b32 s{sTMP}, s{sR}, 3")
    A(f"s_and_b32 s{sS}, s{sR}, 7")
    A(f"s_lshl3_add_u32 s{sBASE}, s{sB}, s{sH}")
    A(f"s_lshl2_add_u32 s{sBASE}, s{sBASE}, s{sTMP}")
    A(f"s_lshl3_add_u32 s{sBASE}, s{sBASE}, s{sS}")
    A(f"s_lshl_b32 s{sBASE}, s{sBASE}, 15")
    A(f"s_brev_b32 s{rK+2}, 32")
    A(f"s_lshl_b32 s{rK+3}, 1, 17")
    A(f"v_readfirstlane_b32 s{sWV}, v{vA0}")
    A(f"s_lshl_b32 s{sTMP}, s{sR}, 6")
    A(f"s_lshl3_add_u32 s{sD1}, s{sGX}, s{sWV}")
    A(f"s_cmp_lg_u32 s{sWV}, 3")
    A("s_waitcnt lgkmcnt(0)")
    A("s_cbranch_scc1 L_nox")
    C("wave 3 pulls x into this die's L2 ahead of the K traffic (value unused)")
    A(f"s_load_dword s{sR0}, s[6:7], s{sTMP}")
    A("L_nox:")
    C("wave 2 of the group-0 workgroups reads one word under each value of address bit 13, which picks the memory half")
    C("(values unused): if the second is still under way when the first is back, the first half is the nearer one")
    assert WS_RACE == 1 << 17
    A(f"s_cmp_lg_u32 s{sD1}, 2")
    A("s_cbranch_scc1 L_norace")
    A(f"s_bitset1_b32 s{sTMP}, 17")
    A(f"s_load_dword s{sR0}, s[{sWS}:{sWS+1}], s{sTMP}")
    A(f"s_bitset1_b32 s{sTMP}, 13")
    A(f"s_load_dword s{sR1}, s[{sWS}:{sWS+1}], s{sTMP}")
    A("L_norace:")
    for i in range(4):
        kvload("K", i)
    A("s_waitcnt lgkmcnt(1)")
    A(f"s_cmp_lg_u32 s{sWV}, 0")
    A(f"s_getreg_b32 s{sVOTE}, hwreg(HW_REG_IB_STS, 8, 1)")
    A(f"v_lshrrev_b32 v{vG}, 4, v{vL}")
    A(f"v_and_b32 v{vC}, 15, v{vL}")
    A("s_cbranch_scc1 L_rest")

    def more_args(first):
        A(f"s_load_dword s{sT}, s[{sWS}:{sWS+1}], {WS_E}")
        if first:
            A("s_load_dwordx8 s[8:15], s[0:1], 0")
        A("s_load_dwordx16 s[16:31], s[0:1], 32")

    def common_setup():
        A(f"v_mov_b32 v{vFF}, 0xff")
        A(f"s_getreg_b32 s{sXCC}, hwreg(HW_REG_XCC_ID, 0, 4)")
        srd(rWS, sWS, WS_SIZE)

    K0 = 10
    C("---------------- wave 0: partial q ----------------")
    A("s_load_dwordx8 s[8:15], s[0:1], 0")
    vXS, vXA, vW = vTMP, vTMP + 8, vV
    vY, vAB = vV + 64, vK + 64
    A(f"v_lshrrev_b32 v{vA0}, 3, v{vC}")
    A(f"v_lshlrev_b32 v{vA0}, 10, v{vA0}")
    A(f"v_and_b32 v{vA1}, 7, v{vC}")
    A(f"v_lshl_add_u32 v{vA1}, v{vG}, 3, v{vA1}")
    A(f"v_lshl_add_u32 v{vA1}, v{vA1}, 5, v{vA0}")
    A(f"v_lshl_add_u32 v{vA0}, v{vG}, 5, v{vA0}")
    A(f"s_lshl_b32 s{sTMP}, s{sS}, 7")
    A(f"v_add_u32 v{vA0}, s{sTMP}, v{vA0}")
    A("s_waitcnt lgkmcnt(0)")
    A(f"global_load_dwordx4 {vr(vXS)}, v{vA1}, s[{sX}:{sX+1}]")
    A(f"global_load_dwordx4 {vr(vXS+4)}, v{vA1}, s[{sX}:{sX+1}] offset:16")
    A(f"global_load_dwordx4 {vr(vXA)}, v{vA0}, s[{sX}:{sX+1}]")
    A(f"global_load_dwordx4 {vr(vXA+4)}, v{vA0}, s[{sX}:{sX+1}] offset:16")
    srd(rT, sWQ, 0 if "wq" in now else 0x400000)
    A(f"s_lshl_b32 s{sTMP}, s{sS}, 19")
    A(f"s_lshl_b32 s{sTMP2}, s{sH}, 8")
    A(f"s_add_u32 s{sTMP}, s{sTMP}, s{sTMP2}")
    A(f"v_lshlrev_b32 v{vA2}, 17, v{vG}")
    A(f"v_lshl_add_u32 v{vA2}, v{vC}, 4, v{vA2}")
    for j in range(16):
        A(f"buffer_load_dwordx4 {vr(vW+4*j)}, v{vA2}, s[{rT}:{rT+3}], s{sTMP} offen nt")
        if j < 15:
            A(f"s_add_u32 s{sTMP}, s{sTMP}, 8192")
    common_setup()
    for i in range(4, 7):
        kvload("K", i)
    more_args(False)
    A("s_barrier")
    make_masks()
    A(f"v_mov_b32 v{vA0}, 0x3f803f80")
    A("s_waitcnt vmcnt(21)")
    for i in range(8):
        A(f"v_dot2_f32_bf16 v{s0}, v{vXS+i}, v{vA0}, " + ("0" if i == 0 else f"v{s0}"))
        A(f"v_dot2_f32_bf16 v{s1}, v{vXS+i}, v{vXS+i}, " + ("0" if i == 0 else f"v{s1}"))
    nop(3)
    for ctl in (X1, X2, HM):
        dpp("v_add_f32", s0, s0, s0, ctl)
        dpp("v_add_f32", s1, s1, s1, ctl)
        nop(1)
    for sw_ in ("v_permlane16_swap_b32", "v_permlane32_swap_b32"):
        A(f"v_mov_b32 v{vA0}, v{s0}")
        A(f"v_mov_b32 v{vA1}, v{s1}")
        nop(2)
        A(f"{sw_} v{s0}, v{vA0}")
        A(f"{sw_} v{s1}, v{vA1}")
        A(f"v_add_f32 v{s0}, v{s0}, v{vA0}")
        A(f"v_add_f32 v{s1}, v{s1}, v{vA1}")
    C("mean and 1 / sqrt(var + eps), rounded to bf16 where the reference rounds")
    A(f"v_mul_f32 v{s0}, 0x3b000000, v{s0}")
    A(f"v_mul_f32 v{s1}, 0x3b000000, v{s1}")
    A(f"v_fma_f32 v{s1}, -v{s0}, v{s0}, v{s1}")
    A(f"v_max_f32 v{s1}, 0, v{s1}")
    A(f"v_cvt_pk_bf16_f32 v{s1}, v{s0}, v{s1}")
    A(f"v_lshlrev_b32 v{s0}, 16, v{s1}")
    A(f"v_and_b32 v{s1}, 0xffff0000, v{s1}")
    A(f"v_add_f32 v{s1}, {hex(EPS)}, v{s1}")
    round1(s1)
    A(f"v_sqrt_f32 v{s1}, v{s1}")
    nop(1)
    round1(s1)
    A(f"v_rcp_f32 v{s1}, v{s1}")
    A("s_waitcnt vmcnt(19)")
    unpack(vY, vXA, 8)
    for i in range(0, 16, 2):
        pk("add", vY + i, vY + i, s0, extra=" op_sel_hi:[1,0] neg_lo:[0,1] neg_hi:[0,1]")
    round_bf16([vY + i for i in range(16)], vXS)
    for i in range(0, 16, 2):
        pk("mul", vY + i, vY + i, s0, extra=" op_sel:[0,1]")
    for i in range(16):
        A(f"v_cvt_pk_bf16_f32 v{vY+i}, v{vY+i}, v{vY+i}")
    for j in range(16):
        for k in range(4):
            A(f"v_and_b32 v{vAB+4*j+k}, v{vMK+k}, v{vY+j}")
    epoch()
    for j in range(16):
        A(f"s_waitcnt vmcnt({18-j})")
        mfma(vACC, vAB + 4 * j, vW + 4 * j, None if j == 0 else vACC)
    for i in range(7, K0):
        kvload("K", i)
    A(f"v_lshrrev_b32 v{vA0}, 5, v{vL}")
    A(f"v_lshlrev_b32 v{vA0}, 12, v{vA0}")
    A(f"v_and_b32 v{vA1}, 31, v{vL}")
    A(f"v_lshl_add_u32 v{vA0}, v{vA1}, 4, v{vA0}")
    A(f"s_lshl_b32 s{sTMP}, s{sH}, 13")
    A(f"s_lshl_b32 s{sTMP2}, s{sS}, 9")
    A(f"s_add_u32 s{sTMP}, s{sTMP}, s{sTMP2}")
    A(f"s_add_u32 s{sTMP}, s{sTMP}, {WS_QP}")
    tag4(vACC)
    A(f"buffer_store_dwordx4 {vr(vACC)}, v{vA0}, s[{rWS}:{rWS+3}], s{sTMP} offen sc1")
    stamp("qpub")
    A("s_branch L_join")

    C("---------------- waves 1..7 ----------------")
    A("L_rest:")
    C("wave 2 resets the LDS tables that other waves of this workgroup fill later")
    A(f"s_cmp_lg_u32 s{sWV}, 2")
    A("s_cbranch_scc1 L_noreset")
    A(f"v_lshlrev_b32 v{vA0}, 2, v{vC}")
    A(f"v_mov_b32 v{vA1}, -1")
    A(f"ds_write_b32 v{vA0}, v{vA1} offset:{L_ML}")
    A(f"v_lshlrev_b32 v{vA0}, 2, v{vL}")
    A(f"ds_write_b32 v{vA0}, v{vA1} offset:{L_Q}")
    A("s_waitcnt lgkmcnt(0)")
    A("L_noreset:")
    more_args(True)
    common_setup()
    make_masks()
    for i in range(4, 7):
        A("s_waitcnt vmcnt(3)")
        kvload("K", i)
    A("s_barrier")
    for i in range(7, K0):
        A("s_waitcnt vmcnt(2)")
        kvload("K", i)
    epoch()
    C("wave 2 reports this workgroup's die")
    A(f"s_cmp_lg_u32 s{sWV}, 2")
    A("s_cbranch_scc1 L_join")
    A(f"s_lshl_b32 s{sTMP}, s{sVOTE}, 27")
    A(f"s_xor_b32 s{sTMP}, s{sTMP}, s{sXW}")
    A(f"s_lshl_b32 s{sTMP2}, s{sID}, 2")
    A(f"s_add_u32 s{sTMP2}, s{sTMP2}, {WS_XC}")
    A(f"v_mov_b32 v{vA1}, s{sTMP}")
    A("s_mov_b64 exec, 1")
    A(f"buffer_store_dword v{vA1}, v{vL}, s[{rWS}:{rWS+3}], s{sTMP2} offen sc1")
    A("s_mov_b64 exec, -1")
    A("L_join:")
    stamp("_join")
    A(f"v_cmp_gt_u32 vcc, 8, v{vC}")
    A(f"s_mov_b32 s{sLOC}, 0")
    C("touch this workgroup's o and (max, sum) slots (values unused): the lines are then valid in this die's L2")
    C("when the stores and the polls reach them")
    A(f"s_lshl3_add_u32 s{sTMP}, s{sID}, s{sWV}")
    A(f"s_lshl_b32 s{sTMP2}, s{sTMP}, 6")
    A(f"s_add_u32 s{sTMP2}, s{sTMP2}, {WS_OP}")
    A(f"s_load_dword s{sR0}, s[{sWS}:{sWS+1}], s{sTMP2}")
    A(f"s_lshl_b32 s{sTMP}, s{sTMP}, 4")
    A(f"s_add_u32 s{sTMP}, s{sTMP}, {WS_ML}")
    A(f"s_load_dword s{sR1}, s[{sWS}:{sWS+1}], s{sTMP}")
    A(f"s_sub_u32 s{sCB}, s{sR}, {NW0}")
    A(f"s_lshl_b32 s{sD3}, s{sWV}, 13")
    for j in range(4):
        A(f"v_cndmask_b32 v{vMK+j}, 0, v{vMK+j}, vcc")
    A(f"v_lshlrev_b32 v{vA2}, 4, v{vL}")
    A(f"s_cmp_lt_u32 s{sID}, {NF}")
    A("s_cbranch_scc1 L_s_f")
    A(f"s_cmp_lt_u32 s{sCB}, 8")
    A("s_cbranch_scc1 L_s_w")

    def w_dma(which, j):
        pitch = 2752 if which == "w1" else 1024
        base = L_WB if which == "w2" else L_WA
        if j == 0:
            w_srd(which)
            A(f"v_lshrrev_b32 v{vDA}, 3, v{vL}")
            A(f"v_mul_u32_u24 v{vDA}, {pitch}, v{vDA}")
            A(f"v_and_b32 v{vA0}, 7, v{vL}")
            A(f"v_lshl_add_u32 v{vDA}, v{vA0}, 4, v{vDA}")
            if which == "wo":
                A(f"s_lshl_b32 s{sD1}, s{sGX}, 19")
                A(f"s_lshl_b32 s{sTMP2}, s{sWV}, 16")
                A(f"s_add_u32 s{sD1}, s{sD1}, s{sTMP2}")
                A(f"s_lshl_b32 s{sTMP2}, s{sCB}, 7")
            elif which == "w1":
                A(f"s_mul_i32 s{sD1}, s{sWV}, {64*2752}")
                A(f"s_lshl_b32 s{sTMP2}, s{sR}, 7")
            else:
                A(f"s_lshl_b32 s{sD1}, s{sR}, 16")
                A(f"s_lshl_b32 s{sTMP2}, s{sWV}, 7")
            A(f"s_add_u32 m0, s{sD3}, {base}")
            A(f"s_add_u32 s{sD1}, s{sD1}, s{sTMP2}")
        else:
            A(f"s_add_u32 m0, s{sD3}, {base + j*1024}")
            A(f"s_add_u32 s{sD1}, s{sD1}, {8*pitch}")
        A(f"buffer_load_dwordx4 v{vDA}, s[{rT}:{rT+3}], s{sD1} offen nt lds")

    def w_srd(which):
        ptr, size = {"wo": (sWO, 0x400000), "w1": (sW1, 512 * 2752), "w2": (sW2, 1376 * 1024)}[which]
        srd(rT, ptr, 0 if which in now else size)

    def tr_block(dst, addr, offs, between="s_waitcnt lgkmcnt(0)"):
        for u in range(2):
            for tau in range(4):
                for e in range(2):
                    A(f"ds_read_b64_tr_b16 {vr(dst+8*tau+4*u+2*e,2)}, v{addr} offset:{offs(u, e) + tau*32}")
            if u == 0:
                A(between)

    def tr_addr(natural, base):
        A(f"v_and_b32 v{vA1}, 3, v{vL}")
        A(f"v_lshlrev_b32 v{vA1}, 3, v{vA1}")
        A(f"s_add_u32 s{sTMP}, s{sD3}, {base}")
        if natural:
            A(f"v_lshrrev_b32 v{vA0}, 2, v{vC}")
            A(f"v_lshl_add_u32 v{vA0}, v{vG}, 3, v{vA0}")
        else:
            A(f"v_lshl_add_u32 v{vA0}, v{vG}, 2, v{vRHO}")
        A(f"v_lshl_add_u32 v{vA2}, v{vA0}, 7, v{vA1}")
        A(f"v_add_u32 v{vA2}, s{sTMP}, v{vA2}")

    def stream(role, rounds, lab=None):
        lab = lab or role
        ops = [("K", i) for i in range(K0)]
        landed = [0]

        def wait_n(n):
            if len(ops) - n > landed[0]:
                A(f"s_waitcnt vmcnt({n})")
                landed[0] = len(ops) - n

        def wait_for(key):
            wait_n(len(ops) - 1 - ops.index(key))

        def has(key):
            return key in ops and ops.index(key) < landed[0]

        mark = {}

        def only_wave(name, wave, body):
            A(f"s_cmp_lg_u32 s{sWV}, {wave}")
            A(f"s_cbranch_scc1 L_{name}{lab}_skip")
            body()
            A(f"L_{name}{lab}_skip:")
            mark[name] = len(ops)

        def later(name):
            return name in mark and len(ops) > mark[name]

        def wait_own(name):
            A(f"s_waitcnt vmcnt({len(ops) - mark[name]})")

        def q_loads():
            for i in range(4):
                A(f"buffer_load_dwordx4 {vr(vTMP+4*i)}, v{vA2}, s[{rWS}:{rWS+3}], s{sQO} offen offset:{1024*i} sc1")

        def q_issue():
            def body():
                A(f"s_lshl_b32 s{sQO}, s{sH}, 13")
                A(f"s_lshl_b32 s{sTMP2}, s{sB}, 10")
                A(f"s_add_u32 s{sQO}, s{sQO}, s{sTMP2}")
                A(f"s_add_u32 s{sQO}, s{sQO}, {WS_QP}")
                q_loads()
            only_wave("qi", qw, body)

        def q_finish():
            def body():
                wait_own("qi")
                poll_rare("q" + lab, q_loads, lambda: untag(vTMP, 4, vT0, STAGS))
                a = vTMP
                for i in range(0, 8, 2):
                    pk("add", a + i, a + i, a + 8 + i)
                pk("add", a, a, a + 4)
                pk("add", a + 2, a + 2, a + 6)
                A(f"v_and_b32 v{vA0}, 1, v{vG}")
                A(f"v_lshlrev_b32 v{vA0}, 3, v{vA0}")
                A(f"v_permlane32_swap_b32 v{a}, v{a+2}")
                A(f"v_permlane32_swap_b32 v{a+1}, v{a+3}")
                A(f"v_lshl_add_u32 v{vA0}, v{vC}, 4, v{vA0}")
                A(f"v_lshrrev_b32 v{vA1}, 1, v{vG}")
                pk("add", a, a, a + 2)
                A(f"v_lshl_add_u32 v{vA0}, v{vA1}, 2, v{vA0}")
                A(f"v_cvt_pk_bf16_f32 v{a}, v{a}, v{a+1}")
                A(f"ds_write_b32 v{vA0}, v{a} offset:{L_Q}")
            only_wave("qf", qw, body)

        def q_read():
            n = "qr" + lab
            A(f"v_lshlrev_b32 v{vA0}, 4, v{vC}")
            A(f"s_mov_b32 s{sCNT}, 0x200000")
            A(f"L_{n}_spin:")
            A(f"ds_read_b128 {vr(vQ)}, v{vA0} offset:{L_Q}")
            A(f"s_sub_u32 s{sCNT}, s{sCNT}, 1")
            A(f"s_cbranch_scc1 L_{n}_go")
            A("s_waitcnt lgkmcnt(0)")
            A(f"v_max3_u32 v{vA1}, v{vQ}, v{vQ+1}, v{vQ+2}")
            A(f"v_max_u32 v{vA1}, v{vA1}, v{vQ+3}")
            A(f"v_cmp_eq_u32 vcc, -1, v{vA1}")
            A(f"s_cbranch_vccnz L_{n}_spin")
            A(f"L_{n}_go:")
            A("s_waitcnt lgkmcnt(0)")
            stamp("qgot")

        def qk(t):
            tt, uu = vTMP, vTMP + 4
            for k in range(4):
                for r in range(4):
                    A(f"v_dot2_f32_bf16 v{tt+r}, v{vK+16*t+4*r+k}, v{vQ+k}, " + ("0" if k == 0 else f"v{tt+r}"))
            dpp("v_add_f32", uu, tt, tt, "row_ror:8", 0x3)
            dpp("v_add_f32", uu, tt + 1, tt + 1, "row_ror:8", 0xc)
            dpp("v_add_f32", uu + 1, tt + 2, tt + 2, "row_ror:8", 0x3)
            dpp("v_add_f32", uu + 1, tt + 3, tt + 3, "row_ror:8", 0xc)
            dpp("v_add_f32", vS + t, uu, uu, "row_shl:4", 0x5)
            nop(1)
            dpp("v_add_f32", vS + t, uu + 1, uu + 1, "row_shr:4", 0xa)

        def allred(op, r, t):
            nop(2)
            dpp(op, r, r, r, "row_ror:8")
            nop(2)
            dpp(op, r, r, r, "row_ror:4")
            for sw_ in ("v_permlane16_swap_b32", "v_permlane32_swap_b32"):
                A(f"v_mov_b32 v{t}, v{r}")
                nop(2)
                A(f"{sw_} v{r}, v{t}")
                A(f"{op} v{r}, v{r}, v{t}")

        S = [vS + i for i in range(8)]

        def soft_a():
            for r in S:
                dpp("v_add_f32", r, r, r, X1)
            for r in S:
                dpp("v_add_f32", r, r, r, X2)
            round_bf16(S, vTMP)
            for r in S:
                A(f"v_mul_f32 v{r}, {hex(SCALE)}, v{r}")
            round_bf16(S, vTMP)

        def soft_b():
            m = vT0
            A(f"v_max3_f32 v{m}, v{S[0]}, v{S[1]}, v{S[2]}")
            A(f"v_max3_f32 v{m}, v{m}, v{S[3]}, v{S[4]}")
            A(f"v_max3_f32 v{m}, v{m}, v{S[5]}, v{S[6]}")
            A(f"v_max_f32 v{m}, v{m}, v{S[7]}")
            allred("v_max_f32", m, vTMP)
            for r in S:
                A(f"v_sub_f32 v{r}, v{r}, v{m}")
            for r in S:
                A(f"v_mul_f32 v{r}, {hex(LOG2E)}, v{r}")
            for r in S:
                A(f"v_exp_f32 v{r}, v{r}")

        def soft_c():
            m, l = vT0, vT1
            A(f"s_lshl_b32 s{sTMP}, s{sWV}, 3")
            A(f"v_add_f32 v{l}, v{S[0]}, v{S[1]}")
            for r in S[2:]:
                A(f"v_add_f32 v{l}, v{l}, v{r}")
            for r in S:
                A(f"v_cvt_pk_bf16_f32 v{r}, v{r}, v{r}")
            allred("v_add_f32", l, vTMP)
            A(f"v_mov_b32 v{vA0}, s{sTMP}")
            A(f"ds_write_b64 v{vA0}, {vr(m,2)} offset:{L_ML}")
            only_wave("xc", sw, xc_load)
            stamp("soft")

        bank = [0, 2, 1, 3]

        def pv_a(t):
            for r in range(4):
                for k in range(4):
                    dpp("v_and_b32", vTMP + 4 * r + k, vS + t, vMK + k, f"row_newbcast:{4*bank[r]}")

        def pv_m(i):
            mfma(vACC, vTMP + 4 * (i % 4), vreg(i), None if i == 0 else vACC)

        pvdone = [0]

        def pv_tile(t):
            pv_a(t)
            for r in range(4):
                pv_m(4 * t + r)
            pvdone[0] = 4 * t + 4

        def tail_setup():
            vB3, vXX, vB2 = vA1, vA2, vDUM
            for k in range(4):
                A(f"v_mov_b32 v{vTG+k}, s{Tk[k]}")
            A(f"v_bfe_u32 v{vB3}, v{vL}, 3, 1")
            A(f"v_bfe_u32 v{vB2}, v{vL}, 2, 1")
            A(f"v_and_b32 v{vXX}, 3, v{vL}")
            A(f"v_lshlrev_b32 v{vL8}, 3, v{vL}")
            A(f"v_lshlrev_b32 v{vL16}, 4, v{vL}")
            A(f"v_and_b32 v{vG16}, 0x70, v{vL16}")
            A(f"v_lshl_add_u32 v{vM}, v{vXX}, 1, v{vB3}")
            A(f"v_and_b32 v{vA0}, 1, v{vG}")
            A(f"v_lshl_add_u32 v{vM}, v{vA0}, 3, v{vM}")
            A(f"v_lshrrev_b32 v{vA0}, 1, v{vG}")
            A(f"v_lshl_add_u32 v{vM}, v{vA0}, 5, v{vM}")
            A(f"v_lshlrev_b32 v{vAA}, 1, v{vM}")
            A(f"v_lshl_add_u32 v{vXO}, v{vB2}, 10, v{vAA}")
            A(f"s_lshl_b32 s{sTMP}, s{sWV}, 7")
            A(f"v_add_u32 v{vXO}, s{sTMP}, v{vXO}")
            A(f"v_lshl_add_u32 v{vM}, v{vB2}, 4, v{vM}")
            A(f"v_lshlrev_b32 v{vFR}, 3, v{vM}")
            A(f"s_lshl_b32 s{sTMP}, s{sWV}, 8")
            A(f"v_lshl_add_u32 v{vHW}, v{vM}, 2, s{sTMP}")
            A(f"s_lshr_b32 s{sTMP}, s{sR}, 3")
            A(f"s_and_b32 s{sTMP2}, s{sR}, 4")
            A(f"s_add_u32 s{sTMP}, s{sTMP}, s{sTMP2}")
            A(f"s_and_b32 s{sTMP2}, s{sR}, 3")
            A(f"s_lshl3_add_u32 s{sTMP2}, s{sTMP}, s{sTMP2}")
            A(f"s_lshl_b32 s{sTMP2}, s{sTMP2}, 5")
            A(f"v_and_b32 v{vM}, 7, v{vL}")
            A(f"v_lshl_add_u32 v{vHR}, v{vA0}, 5, v{vM}")
            A(f"v_lshl_add_u32 v{vHR}, v{vHR}, 2, s{sTMP2}")
            A(f"v_and_b32 v{vA0}, 1, v{vG}")
            A(f"v_lshl_add_u32 v{vHR}, v{vA0}, 1, v{vHR}")
            A(f"s_and_b32 s{sTMP2}, s{sR}, 1")
            A(f"s_lshl3_add_u32 s{sTMP}, s{sTMP}, s{sTMP2}")
            A(f"s_lshl_b32 s{sTMP}, s{sTMP}, 4")
            A(f"s_and_b32 s{sTMP2}, s{sR}, 2")
            A(f"s_lshl_b32 s{sTMP2}, s{sTMP2}, 9")
            A(f"s_add_u32 s{sTMP}, s{sTMP}, s{sTMP2}")
            A(f"v_lshl_add_u32 v{vFC}, v{vG}, 4, v{vM}")
            A(f"v_lshl_add_u32 v{vFC}, v{vFC}, 1, s{sTMP}")
            A(f"v_lshlrev_b32 v{vBA}, 4, v{vC}")
            A(f"v_lshl_add_u32 v{vBA}, v{vG}, 10, v{vBA}")
            ypage(sWV)
            A(f"v_add_u32 v{vBA}, s{sTMP}, v{vBA}")
            A(f"s_lshl_b32 s{sTMP}, s{sWV}, 9")
            A(f"v_lshlrev_b32 v{vOWA}, 5, v{vC}")
            A(f"v_lshl_add_u32 v{vOWA}, v{vG}, 4, v{vOWA}")
            A(f"v_add_u32 v{vOWA}, s{sTMP}, v{vOWA}")
            A(f"s_lshl_b32 s{sTMP2}, s{sID}, 9")
            A(f"s_add_u32 s{sTMP2}, s{sTMP2}, {WS_OP}")
            A(f"v_add_u32 v{vOS}, s{sTMP2}, v{vL8}")
            A(f"v_and_b32 v{vM}, 1, v{vL}")
            A(f"v_lshlrev_b32 v{vM}, 4, v{vM}")
            A(f"v_lshrrev_b32 v{vTb}, v{vM}, s{sT}")
            A(f"v_and_b32 v{vTa}, v{vFF}, v{vTb}")
            A(f"v_bfe_u32 v{vTb}, v{vTb}, 8, 8")
            if role == "n":
                return
            A(f"v_add_u32 v{vFW}, s{sTMP}, v{vL8}")
            A(f"v_mul_u32_u24 v{vIX}, 0xaaaa, v{vB3}")
            A(f"v_add_u32 v{vIX}, 0x4444, v{vIX}")
            if role == "f":
                A(f"v_lshlrev_b32 v{vSR}, 6, v{vB2}")
                A(f"v_lshl_add_u32 v{vRHO}, v{vB2}, 4, v{vB3}")
                A(f"v_lshrrev_b32 v{vM}, 3, v{vL}")
                A(f"v_mul_u32_u24 v{vYS}, {ZSTR}, v{vM}")
                A(f"s_lshl_b32 s{sTMP2}, s{sR}, 7")
                A(f"s_and_b32 s{sTMP}, s{sWV}, 3")
                A(f"s_mul_i32 s{sTMP}, s{sTMP}, {8*ZSTR}")
                A(f"s_add_u32 s{sTMP2}, s{sTMP2}, s{sTMP}")
                A(f"s_add_u32 s{sTMP2}, s{sTMP2}, {WS_ZP}")
                A(f"v_add3_u32 v{vYS}, v{vYS}, v{vG16}, s{sTMP2}")
                A(f"v_lshrrev_b32 v{vM}, 1, v{vG}")
                A(f"v_lshl_add_u32 v{vSA}, v{vM}, 2, v{vSR}")
                A(f"s_lshl_b32 s{sTMP}, s{sWV}, 3")
                A(f"v_add_u32 v{vSA}, s{sTMP}, v{vSA}")
                A(f"v_mov_b32 v{vEPS}, {hex(EPS)}")
                A(f"v_mov_b32 v{vONE}, 0x3b003b00")
            else:
                A(f"v_lshl_add_u32 v{vAA}, v{vB2}, 2, v{vB3}")
                A(f"v_lshlrev_b32 v{vAA}, 9, v{vAA}")
                A(f"v_lshl_add_u32 v{vAA}, v{vG}, 6, v{vAA}")
                A(f"v_lshl_add_u32 v{vAA}, v{vXX}, 4, v{vAA}")
                A(f"s_and_b32 s{sTMP2}, s{sWV}, 1")
                A(f"s_lshl_b32 s{sTMP2}, s{sTMP2}, 8")
                A(f"s_lshr_b32 s{sTMP}, s{sWV}, 1")
                A(f"s_lshl_b32 s{sTMP}, s{sTMP}, 12")
                A(f"s_add_u32 s{sTMP2}, s{sTMP2}, s{sTMP}")
                A(f"s_lshl_b32 s{sTMP}, s{sGX}, 14")
                A(f"s_add_u32 s{sTMP2}, s{sTMP2}, s{sTMP}")
                A(f"s_add_u32 s{sTMP2}, s{sTMP2}, {WS_OP}")
                A(f"v_add_u32 v{vAA}, s{sTMP2}, v{vAA}")
                A(f"v_and_b32 v{vYR}, 0x1f0, v{vFR}")
                A(f"v_lshl_add_u32 v{vYR}, v{vB3}, 11, v{vYR}")
                ypage(sCB)
                A(f"s_lshl_b32 s{sTMP2}, s{sGX}, 7")
                A(f"s_add_u32 s{sTMP}, s{sTMP}, s{sTMP2}")
                A(f"v_lshl_add_u32 v{vYS}, v{vG}, 10, v{vG16}")
                A(f"v_lshl_add_u32 v{vYS}, v{vB3}, 13, v{vYS}")
                A(f"v_add_u32 v{vYS}, s{sTMP}, v{vYS}")

        def w1_regs():
            tr_addr(False, L_WA)
            tr_block(vW1, vA2, lambda u, e: (32 * u + 2 * e) * 128)
            zero([d + k for d in DACC for k in range(4)])
            for k in range(4):
                A(f"v_mov_b32 v{vTMP+k}, 0x3f803f80")
            A("s_waitcnt lgkmcnt(0)")
            nop(1)
            for tau in range(4):
                A(f"v_smfmac_f32_16x16x64_bf16 {vr(DACC[tau])}, {vr(vTMP)}, {vr(vW1 + 8*tau, 8)}, v{vIX}")
            nop(8)
            merge_tiles(vP)
            A(f"ds_write_b64 v{vFW}, {vr(vP,2)} offset:{L_CS}")

        def ml_publish():
            def body():
                n = "ml" + lab
                o, m, l = vMLG, vMLW, vMLW + 1
                wait_own("xc")
                xc_check()
                A(f"v_and_b32 v{vA0}, 56, v{vL8}")
                A(f"s_mov_b32 s{sCNT}, 0x200000")
                A(f"L_{n}_spin:")
                A(f"ds_read_b64 {vr(m,2)}, v{vA0} offset:{L_ML}")
                A(f"s_sub_u32 s{sCNT}, s{sCNT}, 1")
                A(f"s_cbranch_scc1 L_{n}_go")
                A("s_waitcnt lgkmcnt(0)")
                A(f"v_cmp_eq_u32 vcc, -1, v{l}")
                A(f"s_cbranch_vccnz L_{n}_spin")
                A(f"L_{n}_go:")
                A("s_waitcnt lgkmcnt(0)")
                nop(2)
                dpp("v_max_f32", o, m, m, X1)
                nop(2)
                dpp("v_max_f32", o, o, o, X2)
                nop(2)
                dpp("v_max_f32", o, o, o, HM)
                A(f"v_sub_f32 v{o+1}, v{m}, v{o}")
                A(f"v_mul_f32 v{o+1}, {hex(LOG2E)}, v{o+1}")
                A(f"v_exp_f32 v{o+1}, v{o+1}")
                A(f"v_mov_b32 v{o+2}, 0")
                A(f"v_mul_f32 v{o+1}, v{o+1}, v{l}")
                A(f"v_mov_b32 v{o+3}, 0")
                A(f"s_lshl_b32 s{sTMP}, s{sID}, 7")
                for ctl in (X1, X2, HM):
                    dpp("v_add_f32", o + 1, o + 1, o + 1, ctl)
                    nop(2)
                A(f"s_add_u32 s{sTMP}, s{sTMP}, {WS_ML}")
                tag4(o)
                A("s_mov_b64 exec, 0xff")
                A(f"s_cmp_eq_u32 s{sLOC}, 0")
                publish(n, f"buffer_store_dwordx4 {vr(o)}, v{vL16}, s[{rWS}:{rWS+3}], s{sTMP} offen")
                A("s_mov_b64 exec, -1")
            only_wave("mp", sw, body)

        def ml_load():
            A("s_mov_b64 exec, 0xff")
            A(f"buffer_load_dwordx4 {vr(vMLG)}, v{vXC}, s[{rWS}:{rWS+3}], s{sML} offen sc1")
            A("s_mov_b64 exec, -1")

        def ml_gather():
            def body():
                A(f"v_and_b32 v{vXC}, 3, v{vL}")
                A(f"v_lshlrev_b32 v{vXC}, 7, v{vXC}")
                A(f"s_lshr_b32 s{sML}, s{sID}, 2")
                A(f"s_lshl_b32 s{sML}, s{sML}, 9")
                A(f"s_add_u32 s{sML}, s{sML}, {WS_ML}")
                ml_load()
            only_wave("mg", sw, body)

        def ml_finish():
            def body():
                def chk():
                    A("s_mov_b64 exec, 0xff")
                    untag(vMLG, 1, vA0, STAGS)
                    A("s_mov_b64 exec, -1")
                wait_own("mg")
                poll_rare("m" + lab, ml_load, chk)
                o = vMLG
                dpp("v_max_f32", o + 2, o, o, X1)
                nop(2)
                dpp("v_max_f32", o + 2, o + 2, o + 2, X2)
                A(f"v_sub_f32 v{o}, v{o}, v{o+2}")
                A(f"v_sub_f32 v{o+3}, v{vMLW}, v{o+2}")
                A(f"v_mul_f32 v{o}, {hex(LOG2E)}, v{o}")
                A(f"v_mul_f32 v{o+3}, {hex(LOG2E)}, v{o+3}")
                A(f"v_exp_f32 v{o}, v{o}")
                A(f"v_exp_f32 v{o+3}, v{o+3}")
                A(f"v_mul_f32 v{o+1}, v{o+1}, v{o}")
                nop(2)
                dpp("v_add_f32", o + 1, o + 1, o + 1, X1)
                nop(2)
                dpp("v_add_f32", o + 1, o + 1, o + 1, X2)
                A(f"v_rcp_f32 v{o+1}, v{o+1}")
                nop(1)
                A(f"v_mul_f32 v{o+3}, v{o+3}, v{o+1}")
                nop(1)
                for j in range(8):
                    A(f"v_readlane_b32 s{sTMP}, v{o+3}, {j}")
                    nop(2)
                    A(f"v_mov_b32 v{vF+j}, s{sTMP}")
            only_wave("mf", sw, body)

        todo = [(lambda: ("K", pq) in ops, q_issue), (lambda: later("qi"), q_finish), (lambda: later("qf"), q_read)]
        for t in range(8):
            todo.append((lambda t=t: has(("K", 4 * t + 3)), lambda t=t: qk(t)))
        todo += [(lambda: True, f) for f in (soft_a, soft_b, soft_c, tail_setup)]
        for t in range(7):
            todo.append((lambda t=t: has(("V", 4 * t + 3)), lambda t=t: pv_tile(t)))
        done = set()
        side = [(lambda: tail_setup in done and later("xc") and ("V", p1) in ops, ml_publish),
                (lambda: later("mp") and ("V", p2) in ops, ml_gather),
                (lambda: later("mg"), ml_finish)]
        side2 = [(lambda: tail_setup in done and has(("w1", 7)), w1_regs)] if role == "f" else []
        seq = [("K", i) for i in range(K0, 32)] + [("V", i) for i in range(32)]
        if role == "f":
            for j in range(8):
                seq.insert(f0 + j, ("w1", j))
        rounds = [int(c) for c in rounds]
        assert sum(rounds) == len(seq), (role, sum(rounds), len(seq))
        prev = 3
        for size in rounds:
            first = len(ops)
            for j in range(size):
                kind, i = seq.pop(0)
                assert kind != "V" or i < NRING or pvdone[0] > i - NRING, "ring too small"
                wait_for(ops[first - prev + min(j + max(0, prev - size), prev - 1)])
                if kind == "w1":
                    w_dma(kind, i)
                else:
                    kvload(kind, i)
                ops.append((kind, i))
            prev = size
            n0 = len(L)
            for lst in (side, todo, side2):
                while lst and lst[0][0]() and len(L) - n0 < budget:
                    f = lst.pop(0)[1]
                    f()
                    done.add(f)
        assert not side and not side2, role
        while todo:
            pred, emit = todo.pop(0)
            while not pred():
                wait_n(len(ops) - landed[0] - 1)
            emit()
        pv_a(7)
        for i in range(28, 32):
            wait_for(("V", i))
            pv_m(i)
            m = {"n": 0, "w": wmid, "f": mid}[role]
            if i - 28 < m:
                w_dma("wo" if role == "w" else "w2", i - 28)
                ops.append(("late", i))

    C("---------------- stream: plain workgroups ----------------")
    stream("n", rn)
    A("L_tail:")
    C("---------------- sum the eight waves' partial outputs and publish them ----------------")
    A("s_mov_b32 exec_hi, 0")
    A(f"s_cmp_lg_u32 s{sWV}, {sw}")
    nop(6)
    A(f"ds_write_b128 v{vOWA}, {vr(vACC)} offset:{L_OW}")
    A("s_mov_b32 exec_hi, -1")
    A("s_waitcnt lgkmcnt(0)")
    stamp("_wend")
    A("s_barrier")
    stamp("strm")
    A("s_cbranch_scc1 L_nos0")
    for i in range(8):
        A(f"ds_read_b64 {vr(g0+2*i,2)}, v{vL8} offset:{L_OW + 512*i}")
    A(f"s_cmp_eq_u32 s{sLOC}, 0")
    A("s_waitcnt lgkmcnt(6)")
    pk("mul", vP, g0, vF, extra=lo)
    pk("fma", vP, g0 + 2, vF, vP, extra=hi3)
    for i in range(1, 4):
        if i != 2:
            A(f"s_waitcnt lgkmcnt({(2, 0, 0)[i-1]})")
        pk("fma", vP, g0 + 4 * i, vF + 2 * i, vP, extra=lo3)
        pk("fma", vP, g0 + 4 * i + 2, vF + 2 * i, vP, extra=hi3)
    A(f"v_bfi_b32 v{vP}, v{vFF}, v{vTa}, v{vP}")
    A(f"v_bfi_b32 v{vP+1}, v{vFF}, v{vTb}, v{vP+1}")
    publish("o", f"buffer_store_dwordx2 {vr(vP,2)}, v{vOS}, s[{rWS}:{rWS+3}], 0 offen")
    stamp("_opub")
    A("L_nos0:")
    A(f"s_cmp_ge_u32 s{sCB}, 8")
    A("s_cbranch_scc1 L_noy")

    C("---------------- stage W ----------------")
    A("s_barrier")

    def a_issue():
        for i in range(2):
            A(f"buffer_load_dwordx4 {vr(g0+4*i)}, v{vAA}, s[{rWS}:{rWS+3}], 0 offen offset:{1024*i} sc1")

    def pair_from_quad(src, dst):
        dpp("v_add_f32", dst, src, src, "row_ror:8", 0x3)
        dpp("v_add_f32", dst + 1, src + 1, src + 1, "row_ror:8", 0x3)
        dpp("v_add_f32", dst, src + 2, src + 2, "row_ror:8", 0xc)
        dpp("v_add_f32", dst + 1, src + 3, src + 3, "row_ror:8", 0xc)
    w_srd("wo")
    for j in range(wmid, 8):
        w_dma("wo", j)
    a_issue()
    A(f"s_mov_b32 s{sCNT}, 0x40000")
    A(f"s_cmp_eq_u32 s{sGX}, 0")
    A(f"s_cselect_b32 s{sML}, s{sLOC}, 0")
    tr_addr(True, L_WA)
    zero([d + k for d in DACC for k in range(4)])
    assert wmid <= 4
    A("s_waitcnt vmcnt(6)")
    tr_block(vW1, vA2, lambda u, e: (32 * u + 4 * e) * 128, between="s_waitcnt vmcnt(2) lgkmcnt(0)")
    A("s_branch L_a_chk")
    poll("a", a_issue, 2, init=False)
    stamp("hopA")
    pk("add", g0, g0, g0 + 4)
    pk("add", g0 + 2, g0 + 2, g0 + 6)
    A(f"s_cmp_lg_u32 s{sWV}, {sw}")
    pair_from_quad(g0, g0 + 4)
    A(f"v_cvt_pk_bf16_f32 v{vP}, v{g0+4}, v{g0+5}")
    A("s_waitcnt lgkmcnt(0)")
    nop(1)
    operand()
    nop(2)
    for tau in (0, 2, 1, 3):
        smfmac(DACC[tau], vW1 + 8 * tau)
    nop(7)
    merge_tiles(g0)
    A(f"ds_write_b64 v{vFW}, {vr(g0,2)} offset:{L_F1}")
    A("s_waitcnt lgkmcnt(0)")
    A("s_barrier")
    A("s_cbranch_scc1 L_noy")
    for i in range(4):
        A(f"ds_read_b128 {vr(g0+4*i)}, v{vYR} offset:{L_F1 + i*512}")
    A(f"s_cmp_eq_u32 s{sML}, 0")
    for i in range(1, 4):
        A(f"s_waitcnt lgkmcnt({3-i})")
        pk("add", g0, g0, g0 + 4 * i)
        pk("add", g0 + 2, g0 + 2, g0 + 4 * i + 2)
    nop(1)
    for k in range(4):
        dpp("v_add_f32", vD0 + k, g0 + k, g0 + k, "row_ror:8")
    tag4(vD0)
    publish("y", f"buffer_store_dwordx4 {vr(vD0)}, v{vYS}, s[{rWS}:{rWS+3}], 0 offen", farfirst=True)
    stamp("ypub")
    A("L_noy:")
    A(f"s_cmp_lg_u32 s{sGX}, 0")
    A("s_cbranch_scc1 L_fin")

    C("---------------- stage F (group 0) ----------------")
    A(f"v_mov_b32 v{vA0}, {L_FL}")
    A(f"ds_read_b32 v{vA0}, v{vA0}")
    A("s_waitcnt lgkmcnt(0)")
    A(f"v_readfirstlane_b32 s{sLOC}, v{vA0}")
    A(f"v_and_b32 v{vA0}, 0x2000, v{vA0}")
    A(f"v_add_u32 v{vBA}, v{vA0}, v{vBA}")
    A(f"s_and_b32 s{sLOC}, s{sLOC}, 1")
    A(f"s_cmp_lt_u32 s{sR}, {NF}")
    A("s_barrier")
    A("s_cbranch_scc1 L_late")

    def small_loads(name):
        A(f"global_load_ushort v{vXR}, v{vXO}, s[{sX}:{sX+1}]")
        A(f"global_load_ushort v{vXR+1}, v{vXO}, s[{sX}:{sX+1}] offset:32")
        A(f"s_cmp_lg_u32 s{sWV}, {fw}")
        A(f"s_cbranch_scc1 L_{name}")
        A(f"v_and_b32 v{vA1}, 0x3ff, v{vFC}")
        A(f"global_load_ushort v{vB2R}, v{vA1}, s[{sB2}:{sB2+1}]")
        A(f"L_{name}:")
    small_loads("nob2")
    A("s_waitcnt vmcnt(0)")
    widen(vXR)

    def b_issue():
        for i, off in enumerate((0, 256, 512, 768)):
            A(f"buffer_load_dwordx4 {vr(g0+4*i)}, v{vBA}, s[{rWS}:{rWS+3}], 0 offen offset:{off} sc1")

    def late():
        A("L_late:")
        C("FFN workgroups: the rest of w2 and the small operands")
        w_srd("w2")
        for j in range(mid, 8):
            w_dma("w2", j)
        small_loads("nob2f")
        zero([d + k for d in DACC for k in range(4)])
        A(f"s_cmp_ge_u32 s{sWV}, 4")
        A("s_cbranch_scc1 L_late2")
        srd(rB, sB1, 2752)
        A(f"s_lshl_b32 s{sTMP2}, s{sR}, 7")
        A(f"buffer_load_ushort v{vB1R}, v{vAA}, s[{rB}:{rB+3}], s{sTMP2} offen")
        A(f"buffer_load_ushort v{vB1R+1}, v{vAA}, s[{rB}:{rB+3}], s{sTMP2} offen offset:32")
        C("touch the lines of this workgroup's Z slots (values unused)")
        A(f"buffer_load_dword v{vDUM}, v{vYS}, s[{rWS}:{rWS+3}], 0 offen")
        for i in range(8):
            A(f"ds_read_b64 {vr(st+2*i,2)}, v{vFR} offset:{L_CS + 512*i}")
        A(f"s_lshl_b32 s{sTMP}, s{sR}, 2")
        A(f"s_sub_u32 s{sTMP}, 86, s{sTMP}")
        A(f"v_cmp_gt_u32 vcc, s{sTMP}, v{vG}")
        zero([vE + k for k in range(32)])
        A(f"v_cndmask_b32 v{vVAL}, 0, -1, vcc")
        tr_addr(False, L_WB)
        A("s_waitcnt lgkmcnt(0)")
        sum8(st, vCS)
        A("L_late2:")
        A("s_waitcnt vmcnt(0)")
        A("s_barrier")
        stamp("_late")
        b_issue()
        widen(vXR)
        widen(vB1R)
        A(f"s_mov_b32 s{sCNT}, 0x40000")
        A(f"s_cmp_ge_u32 s{sWV}, 4")
        A("s_cbranch_scc1 L_b_chk")
        tr_block(vW2, vA2, lambda u, e: (32 * u + 2 * e) * 128)
        A("s_waitcnt lgkmcnt(0)")
        tr_block(vW2b, vA2, lambda u, e: 32768 + (32 * u + 2 * e) * 128)
        A("s_branch L_b_chk")
    poll("b", b_issue, 4)
    stamp("hopB")
    for e in (0, 2, 4, 6):
        pk("add", g0 + e, g0 + e, g0 + 8 + e)
    pk("add", g0 + 4, g0, g0 + 4)
    pk("add", g0 + 6, g0 + 2, g0 + 6)
    A(f"s_cmp_ge_u32 s{sR}, {NF}")
    pair_from_quad(g0 + 4, g0)
    pk("add", g0, g0, vXR)
    A(f"v_cvt_pk_bf16_f32 v{vP}, v{g0}, v{g0+1}")
    A("s_cbranch_scc1 L_noffn")
    A(f"v_dot2_f32_bf16 v{s0}, v{vP}, v{vONE}, 0")
    A(f"v_dot2_f32_bf16 v{s1}, v{vP}, v{vP}, 0")

    operand()
    A(f"v_permlane32_swap_b32 v{s0}, v{s1}")
    A(f"v_add_f32 v{s0}, v{s0}, v{s1}")
    smfmac(vD0, vW1)
    A(f"ds_write_b32 v{vHW}, v{vP} offset:{L_HS}")
    dpp("v_add_f32", s0, s0, s0, X1)
    smfmac(vD2, vW1 + 16)
    A(f"s_cmp_ge_u32 s{sWV}, 4")
    dpp("v_add_f32", s0, s0, s0, X2)
    smfmac(vD1, vW1 + 8)
    smfmac(vD3, vW1 + 24)
    dpp("v_add_f32", s0, s0, s0, "row_ror:8")
    A(f"v_mov_b32 v{s1}, v{s0}")
    nop(2)
    A(f"v_permlane16_swap_b32 v{s0}, v{s1}")
    A(f"v_add_f32 v{s0}, v{s0}, v{s1}")
    A(f"ds_write_b32 v{vSA}, v{s0} offset:{L_ST}")
    merge_tiles(g0)
    A(f"ds_write_b64 v{vFW}, {vr(g0,2)} offset:{L_F1}")
    A("s_waitcnt lgkmcnt(0)")
    A("s_barrier")
    stamp("_f1b")
    A("s_cbranch_scc1 L_final")
    C("waves 0..3: hidden activations and the product with w2")
    for i in range(4):
        A(f"ds_read_b128 {vr(st+4*i)}, v{vSR} offset:{L_ST + 16*i}")
    for i in range(8):
        A(f"ds_read_b64 {vr(g0+2*i,2)}, v{vFR} offset:{L_F1 + 512*i}")
    A(f"s_cmp_eq_u32 s{sLOC}, 0")
    A(f"s_mov_b32 s{sTMP}, 0x3b000000")
    A("s_waitcnt lgkmcnt(10)")
    pk("add", st, st, st + 2)
    pk("add", st + 4, st + 4, st + 6)
    A("s_waitcnt lgkmcnt(8)")
    pk("add", st + 8, st + 8, st + 10)
    pk("add", st + 12, st + 12, st + 14)
    pk("add", st, st, st + 4)
    pk("add", st + 8, st + 8, st + 12)
    pk("add", s0, st, st + 8)
    A(f"v_fma_f32 v{s1}, v{s1}, s{sTMP}, v{vEPS}")
    A(f"v_fma_f32 v{s1}, -v{s0}, v{s0}, v{s1}")
    A(f"v_max_f32 v{s1}, v{vEPS}, v{s1}")
    A(f"v_rsq_f32 v{s1}, v{s1}")
    A("s_waitcnt lgkmcnt(0)")
    sum8(g0)
    pk("fma", g0, vCS, s0, g0, extra=" op_sel_hi:[1,0,1] neg_lo:[0,1,0] neg_hi:[0,1,0]")
    pk("fma", g0, g0, s0, vB1R, extra=hi3)
    A(f"v_max_f32 v{g0}, 0, v{g0}")
    A(f"v_max_f32 v{g0+1}, 0, v{g0+1}")
    pk("mul", g0, g0, g0)
    A(f"v_cvt_pk_bf16_f32 v{vP}, v{g0}, v{g0+1}")
    nop(2)
    operand(vVAL)
    nop(2)

    def z_swap(tau):
        A(f"v_permlane32_swap_b32 v{vE+4*tau}, v{vE+16+4*tau}")
        A(f"v_add_f32 v{vD0+tau}, v{vE+4*tau}, v{vE+16+4*tau}")

    def z_tag(tau):
        A(f"v_bfi_b32 v{vD0+tau}, v{vFF}, s{Tk[tau]}, v{vD0+tau}")
    smfmac(vE, vW2)
    smfmac(vE + 16, vW2b)
    smfmac(vE + 4, vW2 + 8)
    smfmac(vE + 20, vW2b + 8)
    nop(2)
    smfmac(vE + 8, vW2 + 16)
    nop(2)
    smfmac(vE + 24, vW2b + 16)
    z_swap(0)
    smfmac(vE + 12, vW2 + 24)
    z_swap(1)
    smfmac(vE + 28, vW2b + 24)
    z_tag(0)
    z_tag(1)
    z_swap(2)
    z_tag(2)
    nop(3)
    z_swap(3)
    z_tag(3)
    publish("z", f"buffer_store_dwordx4 {vr(vD0)}, v{vYS}, s[{rWS}:{rWS+3}], 0 offen")
    stamp("zpub")
    A("s_branch L_fin")
    A("L_noffn:")
    A(f"ds_write_b32 v{vHW}, v{vP} offset:{L_HS}")
    C("every y is in, so every wave of the launch has read the epoch word: advance it for the next launch")
    A(f"s_lshl3_add_u32 s{sTMP}, s{sR}, s{sWV}")
    A(f"s_cmp_lg_u32 s{sTMP}, {31*8}")
    A("s_cbranch_scc1 L_noe")
    A("s_mov_b64 exec, 1")
    A(f"v_mov_b32 v{vA1}, s{sT}")
    A(f"buffer_store_dword v{vA1}, v{vL8}, s[{rWS}:{rWS+3}], 0 offen offset:{WS_E} sc1")
    A("s_mov_b64 exec, -1")
    A("L_noe:")
    A("s_waitcnt lgkmcnt(0)")
    A("s_barrier")
    A("L_final:")
    C("---------------- one wave of each group-0 workgroup adds the partial sums of 32 outputs ----------------")
    assert fw >= 4
    A(f"s_cmp_lg_u32 s{sWV}, {fw}")
    A("s_cbranch_scc1 L_fin")
    A(f"ds_read_u16 v{vXR}, v{vHR} offset:{L_HS}")
    A(f"s_mul_i32 s{sTMP}, s{sR}, {ZSTR}")
    A(f"s_add_u32 s{sTMP}, s{sTMP}, {WS_ZP}")
    A(f"v_min_u32 v{vA0}, 47, v{vL}")
    A(f"v_and_b32 v{vA0}, 0x38, v{vA0}")
    A(f"v_lshl_add_u32 v{vA0}, v{vA0}, 4, v{vG16}")
    A(f"v_lshlrev_b32 v{vB2R}, 16, v{vB2R}")
    A("s_waitcnt lgkmcnt(0)")
    A(f"v_lshlrev_b32 v{vXR}, 16, v{vXR}")
    A(f"v_add_f32 v{vXR}, v{vXR}, v{vB2R}")

    def c_issue():
        for t in range(2):
            A(f"buffer_load_dwordx4 {vr(g0+4*t)}, v{vL16}, s[{rWS}:{rWS+3}], s{sTMP} offen offset:{1024*t} sc1")
        A(f"buffer_load_dwordx4 {vr(g0+8)}, v{vA0}, s[{rWS}:{rWS+3}], s{sTMP} offen offset:2048 sc1")
    poll("c", c_issue, 3)
    stamp("hopC")
    pk("add", g0, g0, g0 + 4)
    pk("add", g0 + 2, g0 + 2, g0 + 6)
    A("s_mov_b32 exec_hi, 0xffff")
    pk("add", g0, g0, g0 + 8)
    pk("add", g0 + 2, g0 + 2, g0 + 10)
    A("s_mov_b32 exec_hi, -1")
    nop(1)
    A(f"v_permlane32_swap_b32 v{g0}, v{g0+2}")
    A(f"v_permlane32_swap_b32 v{g0+1}, v{g0+3}")
    pk("add", g0, g0, g0 + 2)
    nop(2)
    A(f"v_permlane16_swap_b32 v{g0}, v{g0+1}")
    A(f"v_add_f32 v{g0}, v{g0}, v{g0+1}")
    nop(2)
    dpp("v_add_f32", g0, g0, g0, "row_ror:8")
    A(f"v_add_f32 v{g0}, v{g0}, v{vXR}")
    A(f"v_cvt_pk_bf16_f32 v{g0}, v{g0}, v{g0}")
    A(f"global_store_short v{vFC}, v{g0}, s[{sOUT}:{sOUT+1}]")
    A("L_fin:")
    if minT:
        A(f"s_cmp_lg_u32 s2, {minX}")
        A("s_cbranch_scc1 L_nospin")
        A("L_spin:")
        A("s_memrealtime s[98:99]")
        A("s_waitcnt lgkmcnt(0)")
        A("s_sub_u32 s98, s98, s100")
        A(f"s_cmp_lt_u32 s98, {minT*100}")
        A("s_cbranch_scc1 L_spin")
        A("L_nospin:")
    if diag:
        A("s_mov_b64 exec, -1")
        A("s_waitcnt vmcnt(0)")
        stamp("end")
        for _ in range(4):
            A("s_sleep 127")
        for i in range(12):
            A(f"v_mov_b32 v{vK+i}, s{dslot(i)}")
        A(f"v_mov_b32 v{vK+12}, s{sVOTE}")
        A(f"v_mov_b32 v{vK+13}, s{sXCC}")
        A(f"s_lshl_b32 s{sTMP}, s2, 3")
        A(f"s_add_u32 s{sTMP}, s{sTMP}, s{sWV}")
        A(f"s_lshl_b32 s{sTMP}, s{sTMP}, 6")
        A(f"s_add_u32 s{sTMP}, s{sTMP}, {WS_DIAG}")
        A(f"v_mov_b32 v{vA0}, 0")
        A("s_mov_b64 exec, 1")
        for i in range(4):
            A(f"buffer_store_dwordx4 {vr(vK+4*i)}, v{vA0}, s[{rWS}:{rWS+3}], s{sTMP} offen offset:{16*i}")
    A("s_endpgm")
    late()

    C("---------------- stream: stage-W workgroups ----------------")
    A("L_s_w:")
    A(f"s_cmp_eq_u32 s{sCB}, 3")
    A("s_cbranch_scc1 L_s_x")
    stream("w", rw)
    A("s_branch L_tail")
    C("column block 3 loads its wo lines at half the rate of the others: it runs further ahead")
    A("L_s_x:")
    stream("w", rx, "x")
    A("s_branch L_tail")
    C("---------------- stream: FFN workgroups ----------------")
    A("L_s_f:")
    stream("f", rf)
    A("s_branch L_tail")
    C("---------------- retry paths ----------------")
    for c in cold:
        c()
    A("L_end:")
    A("s_endpgm")
    C("never executed: keeps the code prefetch inside the section")
    L.append(f".if (. - L_pc) > {PFL*4096}")
    L.append('.error "code prefetch too short"')
    L.append(".endif")
    L.append(f".fill ({PFL*4096} - (. - L_pc)) / 4, 4, 0xbf810000")
    L.append('.section .rodata,"a"')
    L.append(".p2align 6")
    L.append(f".amdhsa_kernel {NAME}_kernel")
    L.append("  .amdhsa_next_free_vgpr 256")
    L.append("  .amdhsa_next_free_sgpr 102")
    L.append("  .amdhsa_accum_offset 256")
    L.append("  .amdhsa_group_segment_fixed_size 0")
    L.append("  .amdhsa_kernarg_size 104")
    L.append("  .amdhsa_user_sgpr_count 2")
    L.append("  .amdhsa_user_sgpr_kernarg_segment_ptr 1")
    L.append("  .amdhsa_system_sgpr_workgroup_id_x 1")
    L.append("  .amdhsa_float_denorm_mode_32 3")
    L.append(".end_amdhsa_kernel")
    return "\n".join(L) + "\n", stamps


if __name__ == "__main__":
    header = open("cdna_kernels/" + NAME + ".s.ref").read().split("; Override launch")[0]
    kw = eval("dict(" + (sys.argv[2] if len(sys.argv) > 2 else "") + ")")
    src, _ = gen(**kw)
    open(sys.argv[1], "w").write(header + src)
```

```python
import sys
NAME = "sequential_preLN__mha_block_cached__dense_activation_squared_relu__decode"

WS_E = 0
WS_XC = 0x1000
WS_YP = 0x10000
WS_RACE = 0x20000
WS_QP = 0x40000
WS_OP = 0x80000
WS_ML = 0xA0000
WS_ZP = 0xB0000
ZSTR = 3200
WS_DIAG = 0x100000
WS_SIZE = 0x200000
L_OW = 0
L_F1 = 4096
L_CS = 8192
L_HS = 12288
L_ML = L_HS + 2048
L_ST = L_ML + 64
L_Q = L_ST + 192
L_FL = L_Q + 256
L_WA = 16384
L_WB = L_WA + 65536
LDS_BYTES = L_WB + 65536
assert L_Q + 256 <= L_WA and L_Q % 16 == 0

LOG2E = 0x3fb8aa3b
SCALE = 0x3db504f3
EPS = 0x3727c5ac
NF = 22
NW0 = 22

DOC = """
; One launch, one workgroup of 8 waves per CU.  wg = 8 r + X; group X owns heads 4X..4X+3, id = 32 X + r = 8 head + s,
; s = 4 batch + quarter: the workgroup owns 1024 keys of one (batch, head).
;   q      wave 0 multiplies LN(x) (both batches) with 64 rows of the head's wq slice; wave QW adds the 8 partial sums.
;          The four workgroups of a (batch, head) trade (max, sum) half way, so each publishes a normalised partial o.
;   W      8 workgroups of every group multiply o (4 heads) with a 512 x 64 block of wo and publish y.  The products of
;          the tail use v_smfmac with the dense weights as B; two 2-of-4 rows of A hold one full activation row.
;   F      22 workgroups of group 0 add the 8 y and x, and run LN + w1 + relu^2 + w2 for 64 hidden columns each
;          (LN is applied after the product: (h w1 - mean colsum(w1)) * rstd); all 32 add the partial sums at the end.
; Hand-offs go through d_ws.  Every word carries one byte of T = E + 0x01010101 in its low byte, E being the epoch word
; group is stored through to memory unless all 32 workgroups of the group have reported the writer's own die.
"""


def gen(diag=False, only=None, local=True, minT=0, minX=None, now=(),
        rn="332" * 6 + "33", rw="3332" * 3 + "3" * 7, rx="3" * 14 + "444", rf="33" + "4" * 14, f0=22,
        pq=21, p1=8, p2=19, qw=1, sw=3, fw=7, budget=110, PFL=8, mid=4, wmid=3):
    L = []

    def A(s):
        L.append("    " + s if not s.endswith(":") else s)

    def C(s):
        L.append("    ; " + s)

    def nop(n):
        if n > 0:
            A(f"s_nop {n-1}")

    def vr(a, n=4):
        return f"v[{a}:{a+n-1}]"

    sX, sK, sV, sWQ, sWO, sW1, sB1, sW2, sB2, sOUT, sWS = 8, 10, 12, 14, 16, 20, 22, 24, 26, 28, 32
    sPC = 34
    rK, rV, rWS, rT = 36, 40, 44, 48
    sGX, sR, sH, sS, sB, sWV = 52, 53, 54, 55, 56, 57
    sT, sT0, sT1, sT2, sT3 = 58, 59, 60, 61, 62
    sLOC, sCNT, sTMP, sTMP2, sXW = 63, 64, 65, 66, 67
    sBASE, sTILE = 68, 69
    sID, sXCC = 70, 71
    rB = 72
    sD1, sD3 = 76, 77
    sQO, sCB, sML = 78, 79, 80
    sVOTE, sR0, sR1 = 81, 82, 83
    sEX = 86
    Tk = [sT0, sT1, sT2, sT3]

    vDA = 0
    vL, vG, vC = 1, 2, 3
    vKV = 4
    vA0, vA1, vA2 = 5, 6, 7
    vQ = 8
    vMK = 12
    vACC = 16
    vS = 20
    vFF = 28
    vM = 29
    vT0, vT1 = 30, 31
    vTMP = 32
    vK = 48
    vV = 176
    NRING = 20
    vW1 = vK
    vW2 = vK + 32
    vF = vK + 64
    vIX = vK + 72
    vVAL = vK + 73
    vXO = vK + 74
    vHR = vK + 75
    vXR = vK + 76
    vB1R = vK + 78
    vCS = vK + 80
    vTa, vTb = vK + 82, vK + 83
    vB2R = vK + 84
    vL8 = vK + 85
    vAA = vK + 86
    vBA = vK + 87
    vYR = vK + 88
    vEPS = vK + 88
    vFW = vK + 89
    vSA = vK + 90
    vSR = vK + 91
    vFC = vK + 93
    vYS = vK + 94
    vONE = vK + 96
    vXC = vK + 97
    vOWA = vK + 98
    vDUM = vK + 99
    vMLG = vK + 100
    vMLW = vK + 104
    vG16 = vK + 106
    vHW = vK + 107
    vD0, vD1 = vK + 108, vK + 112
    vP = vK + 116
    vL16 = vK + 118
    vFR = vK + 119
    vD2, vD3 = vK + 120, vK + 124
    vOS = vK + 80
    vTG = vQ
    g0 = vTMP
    vBM = 12
    vW2b = vV
    vE = vV + 32
    st = vV + 64
    s0, s1 = vT0, vT1

    stamps = []

    def dslot(i):
        return ([88 + k for k in range(12)])[i]

    def stamp(name):
        if not diag:
            return
        if only is not None and name not in only and name not in ("strm", "end"):
            return
        if only is None and name.startswith("_"):
            return
        if name not in stamps:
            stamps.append(name)
        A(f"s_memrealtime s[{sEX}:{sEX+1}]")
        A("s_waitcnt lgkmcnt(0)")
        A(f"s_mov_b32 s{dslot(stamps.index(name))}, s{sEX}")

    def srd(r, p, size):
        A(f"s_mov_b32 s{r}, s{p}")
        A(f"s_mov_b32 s{r+1}, s{p+1}")
        A(f"s_mov_b32 s{r+2}, {size}")
        A(f"s_mov_b32 s{r+3}, 0x20000")

    def tag4(base):
        for k in range(4):
            A(f"v_bfi_b32 v{base+k}, v{vFF}, s{Tk[k]}, v{base+k}")

    def untag(base, n, acc, tags, wait=None):
        for i in range(n):
            if wait is not None:
                A(f"s_waitcnt vmcnt({n - 1 - i})")
            b = base + 4 * i
            for k in range(4):
                A(f"v_xor_b32 v{b+k}, {tags[k]}, v{b+k}")
            if i == 0:
                A(f"v_or3_b32 v{acc}, v{b}, v{b+1}, v{b+2}")
            else:
                A(f"v_or3_b32 v{acc}, v{acc}, v{b-1}, v{b}")
                A(f"v_or3_b32 v{acc}, v{acc}, v{b+1}, v{b+2}")
        A(f"v_or_b32 v{acc}, v{acc}, v{base+4*n-1}")
        A(f"v_cmp_ne_u32_sdwa vcc, v{acc}, 0 src0_sel:BYTE_0 src1_sel:DWORD")
    STAGS = [f"s{t}" for t in Tk]
    VTAGS = [f"v{vTG+k}" for k in range(4)]

    cold = []

    def poll_rare(name, issue, check):
        A(f"s_mov_b32 s{sCNT}, 0x20000")
        A(f"L_{name}_chk:")
        check()
        A(f"s_cbranch_vccnz L_{name}_again")
        A(f"L_{name}_ok:")

        def retry():
            A(f"L_{name}_again:")
            A(f"s_sub_u32 s{sCNT}, s{sCNT}, 1")
            A(f"s_cbranch_scc1 L_{name}_ok")
            issue()
            A("s_waitcnt vmcnt(0)")
            A(f"s_branch L_{name}_chk")
        cold.append(retry)

    def poll(name, issue, n, init=True):
        if init:
            A(f"s_mov_b32 s{sCNT}, 0x40000")
            A("s_mov_b64 vcc, -1")
        A(f"L_{name}_again:")
        A("s_mov_b64 exec, vcc")
        issue()
        A(f"s_sub_u32 s{sCNT}, s{sCNT}, 1")
        A(f"s_cbranch_scc1 L_{name}_ok")
        A(f"L_{name}_chk:")
        untag(g0, n, vT0, VTAGS, wait=True)
        A(f"s_cbranch_vccnz L_{name}_again")
        A(f"L_{name}_ok:")
        A("s_mov_b64 exec, -1")

    def publish(name, *lines, farfirst=False):
        A(f"s_cbranch_scc{0 if farfirst else 1} L_{name}_alt")
        for line in lines:
            A(line + (" sc1" if farfirst else ""))
        A(f"s_branch L_{name}_pub")
        A(f"L_{name}_alt:")
        for line in lines:
            A(line + ("" if farfirst else " sc1"))
        A(f"L_{name}_pub:")

    def dpp(op, d, a, b, ctl, bank=0xf):
        A(f"{op}_dpp v{d}, v{a}, v{b} {ctl} row_mask:0xf bank_mask:{hex(bank)}")

    X1, X2, HM = "quad_perm:[1,0,3,2]", "quad_perm:[2,3,0,1]", "row_half_mirror"

    def round_bf16(regs, tmp):
        for i in range(0, len(regs), 2):
            A(f"v_cvt_pk_bf16_f32 v{tmp+i//2}, v{regs[i]}, v{regs[i+1]}")
        for i in range(0, len(regs), 2):
            A(f"v_lshlrev_b32 v{regs[i]}, 16, v{tmp+i//2}")
            A(f"v_and_b32 v{regs[i+1]}, 0xffff0000, v{tmp+i//2}")

    def round1(r):
        A(f"v_cvt_pk_bf16_f32 v{r}, v{r}, v{r}")
        A(f"v_lshlrev_b32 v{r}, 16, v{r}")

    def unpack(dst, src, n):
        for i in range(n):
            A(f"v_lshlrev_b32 v{dst+2*i}, 16, v{src+i}")
            A(f"v_and_b32 v{dst+2*i+1}, 0xffff0000, v{src+i}")

    def widen(r):
        A(f"v_lshlrev_b32 v{r}, 16, v{r}")
        A(f"v_lshlrev_b32 v{r+1}, 16, v{r+1}")

    def pk(op, d, a, b, c=None, extra=""):
        if c is None:
            A(f"v_pk_{op}_f32 {vr(d,2)}, {vr(a,2)}, {vr(b,2)}{extra}")
        else:
            A(f"v_pk_{op}_f32 {vr(d,2)}, {vr(a,2)}, {vr(b,2)}, {vr(c,2)}{extra}")
    lo, lo3, hi3 = " op_sel_hi:[1,0]", " op_sel_hi:[1,0,1]", " op_sel:[0,1,0]"

    def sum8(g, out=None):
        for i in range(4):
            pk("add", g + 4 * i, g + 4 * i, g + 4 * i + 2)
        pk("add", g, g, g + 4)
        pk("add", g + 8, g + 8, g + 12)
        pk("add", g if out is None else out, g, g + 8)

    def mfma(d, a, b, c):
        A(f"v_mfma_f32_16x16x32_bf16 {vr(d)}, {vr(a)}, {vr(b)}, " + ("0" if c is None else vr(c)))

    DACC = [vD0, vD1, vD2, vD3]

    def smfmac(d, b):
        A(f"v_smfmac_f32_16x16x64_bf16 {vr(d)}, {vr(vBM)}, {vr(b, 8)}, v{vIX}")

    def operand(mask=None):
        for k in range(4):
            ctl = f"quad_perm:[{k},{k},{k},{k}] row_mask:0xf bank_mask:0xf"
            if mask is None:
                A(f"v_mov_b32_dpp v{vBM+k}, v{vP} {ctl}")
            else:
                A(f"v_and_b32_dpp v{vBM+k}, v{vP}, v{mask} {ctl}")

    def zero(regs):
        for r in regs:
            A(f"v_mov_b32 v{r}, 0")

    def merge_tiles(out):
        A(f"v_permlane32_swap_b32 v{vD0}, v{vD2}")
        A(f"v_permlane32_swap_b32 v{vD1}, v{vD3}")
        A(f"v_add_f32 v{out}, v{vD0}, v{vD2}")
        A(f"v_add_f32 v{out+1}, v{vD1}, v{vD3}")

    def vreg(i):
        return vV + 4 * (i % NRING)

    def kvload(kind, i):
        t, j = divmod(i, 4)
        if t and j == 0:
            A(f"s_xor_b32 s{sTILE}, s{sBASE}, {t << 15}")
        dst, r = (vK + 4 * i, rK) if kind == "K" else (vreg(i), rV)
        A(f"buffer_load_dwordx4 {vr(dst)}, v{vKV}, s[{r}:{r+3}], s{sTILE if t else sBASE} offen offset:{(0, 2048, 1024, 3072)[j]} nt")

    def make_masks():
        A(f"v_and_b32 v{vA0}, 1, v{vL}")
        A(f"v_lshlrev_b32 v{vA0}, 4, v{vA0}")
        A(f"v_mov_b32 v{vA1}, 0xffff")
        A(f"v_lshlrev_b32 v{vA1}, v{vA0}, v{vA1}")
        A(f"v_bfe_u32 v{vA0}, v{vL}, 1, 2")
        for j in range(4):
            A(f"v_cmp_eq_u32 vcc, {j}, v{vA0}")
            nop(2)
            A(f"v_cndmask_b32 v{vMK+j}, 0, v{vA1}, vcc")

    def epoch():
        A("s_waitcnt lgkmcnt(0)")
        if diag:
            for i in range(1, 12):
                A(f"s_mov_b32 s{dslot(i)}, 0")
            A(f"s_mov_b32 s{dslot(0)}, s{sEX}")
        srd(rV, sV, 0x4000000)
        A(f"s_add_u32 s{sT}, s{sT}, 0x01010101")
        A(f"s_and_b32 s{sT0}, s{sT}, 0xff")
        A(f"s_bfe_u32 s{sT1}, s{sT}, 0x80008")
        A(f"s_bfe_u32 s{sT2}, s{sT}, 0x80010")
        A(f"s_lshr_b32 s{sT3}, s{sT}, 24")
        A(f"s_lshl_b32 s{sXW}, s{sXCC}, 28")
        A(f"s_add_u32 s{sXW}, s{sXW}, s{sT}")

    def ypage(p):
        A(f"s_and_b32 s{sTMP}, s{p}, 6")
        A(f"s_add_u32 s{sTMP}, s{sTMP}, s{p}")
        A(f"s_lshl_b32 s{sTMP}, s{sTMP}, 12")
        A(f"s_add_u32 s{sTMP}, s{sTMP}, {WS_YP}")

    def xc_load():
        A(f"v_and_b32 v{vA0}, 31, v{vL}")
        A(f"v_lshlrev_b32 v{vA0}, 2, v{vA0}")
        A(f"s_lshl_b32 s{sTMP}, s{sGX}, 7")
        A(f"s_add_u32 s{sTMP}, s{sTMP}, {WS_XC}")
        A(f"buffer_load_dword v{vXC}, v{vA0}, s[{rWS}:{rWS+3}], s{sTMP} offen sc1")

    def xc_check():
        A(f"s_xor_b32 s{sTMP}, s{sXW}, {1 << 27}")
        A(f"v_cmp_eq_u32 vcc, s{sTMP}, v{vXC}")
        A(f"v_xor_b32 v{vXC}, s{sXW}, v{vXC}")
        A(f"v_and_b32 v{vXC}, {hex(0xffffffff ^ (1 << 27))}, v{vXC}")
        A(f"s_bcnt1_i32_b32 s{sTMP}, vcc_lo")
        A(f"v_cmp_ne_u32 vcc, 0, v{vXC}")
        A(f"s_cmp_ge_u32 s{sTMP}, 15")
        A(f"s_cselect_b32 s{sTMP}, 0, 0x2000")
        A("s_cmp_eq_u64 vcc, 0")
        A(f"s_cselect_b32 s{sLOC}, {1 if local else 0}, 0")
        A(f"s_or_b32 s{sTMP}, s{sTMP}, s{sLOC}")
        A(f"v_mov_b32 v{vA0}, {L_FL}")
        A(f"v_mov_b32 v{vA1}, s{sTMP}")
        A(f"ds_write_b32 v{vA0}, v{vA1}")

    L.append(f"; @launch grid=(256,1,1) block=(512,1,1) lds={LDS_BYTES}")
    L.extend(DOC.strip("\n").replace("QW", str(qw)).split("\n"))
    L.append('.amdgcn_target "amdgcn-amd-amdhsa--gfx950"')
    L.append(".text")
    L.append(f".globl {NAME}_kernel")
    L.append(".p2align 8")
    L.append(f".type {NAME}_kernel,@function")
    L.append(f"{NAME}_kernel:")
    C("the first 256 bytes arrive with the first instruction fetch: they hold everything up to the first loads")
    A(f"s_load_dwordx2 s[{rK}:{rK+1}], s[0:1], 8")
    A("s_load_dwordx2 s[32:33], s[0:1], 96")
    A("s_load_dwordx2 s[6:7], s[0:1], 0")
    A(f"s_lshr_b32 s{sR}, s2, 3")
    A(f"s_cmp_ge_u32 s{sR}, 32")
    A("s_cbranch_scc1 L_end")
    A(f"s_getpc_b64 s[{sPC}:{sPC+1}]")
    A("L_pc:")
    if minT:
        A("s_memrealtime s[100:101]")
    if diag:
        if only != ["vote"]:
            A(f"s_memrealtime s[{sEX}:{sEX+1}]")
        stamps.append("start")
    C("pull the kernel's code into this die's L2: line r + 32 lane, a few lanes of wave 0 (values unused)")
    A(f"v_lshl_add_u32 v{vT0}, v0, 5, s{sR}")
    A(f"v_cmp_gt_u32 vcc, {PFL}, v0")
    A(f"v_lshlrev_b32 v{vT0}, 7, v{vT0}")
    A("s_and_b64 exec, exec, vcc")
    A("s_cbranch_scc0 L_nopf")
    A(f"global_load_dword v{vT0}, v{vT0}, s[{sPC}:{sPC+1}]")
    A("L_nopf:")
    A("s_mov_b64 exec, -1")
    A(f"v_lshrrev_b32 v{vA0}, 6, v0")
    A(f"v_and_b32 v{vL}, 63, v0")
    A(f"v_lshlrev_b32 v{vKV}, 12, v{vA0}")
    A(f"v_lshl_add_u32 v{vKV}, v{vL}, 4, v{vKV}")
    A(f"s_and_b32 s{sGX}, s2, 7")
    A(f"s_lshl_b32 s{sID}, s{sGX}, 5")
    A(f"s_add_u32 s{sID}, s{sID}, s{sR}")
    A(f"s_lshr_b32 s{sH}, s{sID}, 3")
    A(f"s_and_b32 s{sB}, s{sR}, 4")
    A(f"s_and_b32 s{sTMP}, s{sR}, 3")
    A(f"s_and_b32 s{sS}, s{sR}, 7")
    A(f"s_lshl3_add_u32 s{sBASE}, s{sB}, s{sH}")
    A(f"s_lshl2_add_u32 s{sBASE}, s{sBASE}, s{sTMP}")
    A(f"s_lshl3_add_u32 s{sBASE}, s{sBASE}, s{sS}")
    A(f"s_lshl_b32 s{sBASE}, s{sBASE}, 15")
    A(f"s_brev_b32 s{rK+2}, 32")
    A(f"s_lshl_b32 s{rK+3}, 1, 17")
    A(f"v_readfirstlane_b32 s{sWV}, v{vA0}")
    A(f"s_lshl_b32 s{sTMP}, s{sR}, 6")
    A(f"s_lshl3_add_u32 s{sD1}, s{sGX}, s{sWV}")
    A(f"s_cmp_lg_u32 s{sWV}, 3")
    A("s_waitcnt lgkmcnt(0)")
    A("s_cbranch_scc1 L_nox")
    C("wave 3 pulls x into this die's L2 ahead of the K traffic (value unused)")
    A(f"s_load_dword s{sR0}, s[6:7], s{sTMP}")
    A("L_nox:")
    C("wave 2 of the group-0 workgroups reads one word under each value of address bit 13, which picks the memory half")
    C("(values unused): if the second is still under way when the first is back, the first half is the nearer one")
    assert WS_RACE == 1 << 17
    A(f"s_cmp_lg_u32 s{sD1}, 2")
    A("s_cbranch_scc1 L_norace")
    A(f"s_bitset1_b32 s{sTMP}, 17")
    A(f"s_load_dword s{sR0}, s[{sWS}:{sWS+1}], s{sTMP}")
    A(f"s_bitset1_b32 s{sTMP}, 13")
    A(f"s_load_dword s{sR1}, s[{sWS}:{sWS+1}], s{sTMP}")
    A("L_norace:")
    for i in range(4):
        kvload("K", i)
    A("s_waitcnt lgkmcnt(1)")
    A(f"s_cmp_lg_u32 s{sWV}, 0")
    A(f"s_getreg_b32 s{sVOTE}, hwreg(HW_REG_IB_STS, 8, 1)")
    A(f"v_lshrrev_b32 v{vG}, 4, v{vL}")
    A(f"v_and_b32 v{vC}, 15, v{vL}")
    A("s_cbranch_scc1 L_rest")

    def more_args(first):
        A(f"s_load_dword s{sT}, s[{sWS}:{sWS+1}], {WS_E}")
        if first:
            A("s_load_dwordx8 s[8:15], s[0:1], 0")
        A("s_load_dwordx16 s[16:31], s[0:1], 32")

    def common_setup():
        A(f"v_mov_b32 v{vFF}, 0xff")
        A(f"s_getreg_b32 s{sXCC}, hwreg(HW_REG_XCC_ID, 0, 4)")
        srd(rWS, sWS, WS_SIZE)

    K0 = 10
    C("---------------- wave 0: partial q ----------------")
    A("s_load_dwordx8 s[8:15], s[0:1], 0")
    vXS, vXA, vW = vTMP, vTMP + 8, vV
    vY, vAB = vV + 64, vK + 64
    A(f"v_lshrrev_b32 v{vA0}, 3, v{vC}")
    A(f"v_lshlrev_b32 v{vA0}, 10, v{vA0}")
    A(f"v_and_b32 v{vA1}, 7, v{vC}")
    A(f"v_lshl_add_u32 v{vA1}, v{vG}, 3, v{vA1}")
    A(f"v_lshl_add_u32 v{vA1}, v{vA1}, 5, v{vA0}")
    A(f"v_lshl_add_u32 v{vA0}, v{vG}, 5, v{vA0}")
    A(f"s_lshl_b32 s{sTMP}, s{sS}, 7")
    A(f"v_add_u32 v{vA0}, s{sTMP}, v{vA0}")
    A("s_waitcnt lgkmcnt(0)")
    A(f"global_load_dwordx4 {vr(vXS)}, v{vA1}, s[{sX}:{sX+1}]")
    A(f"global_load_dwordx4 {vr(vXS+4)}, v{vA1}, s[{sX}:{sX+1}] offset:16")
    A(f"global_load_dwordx4 {vr(vXA)}, v{vA0}, s[{sX}:{sX+1}]")
    A(f"global_load_dwordx4 {vr(vXA+4)}, v{vA0}, s[{sX}:{sX+1}] offset:16")
    srd(rT, sWQ, 0 if "wq" in now else 0x400000)
    A(f"s_lshl_b32 s{sTMP}, s{sS}, 19")
    A(f"s_lshl_b32 s{sTMP2}, s{sH}, 8")
    A(f"s_add_u32 s{sTMP}, s{sTMP}, s{sTMP2}")
    A(f"v_lshlrev_b32 v{vA2}, 17, v{vG}")
    A(f"v_lshl_add_u32 v{vA2}, v{vC}, 4, v{vA2}")
    for j in range(16):
        A(f"buffer_load_dwordx4 {vr(vW+4*j)}, v{vA2}, s[{rT}:{rT+3}], s{sTMP} offen nt")
        if j < 15:
            A(f"s_add_u32 s{sTMP}, s{sTMP}, 8192")
    common_setup()
    for i in range(4, 7):
        kvload("K", i)
    more_args(False)
    A("s_barrier")
    make_masks()
    A(f"v_mov_b32 v{vA0}, 0x3f803f80")
    A("s_waitcnt vmcnt(21)")
    for i in range(8):
        A(f"v_dot2_f32_bf16 v{s0}, v{vXS+i}, v{vA0}, " + ("0" if i == 0 else f"v{s0}"))
        A(f"v_dot2_f32_bf16 v{s1}, v{vXS+i}, v{vXS+i}, " + ("0" if i == 0 else f"v{s1}"))
    nop(3)
    for ctl in (X1, X2, HM):
        dpp("v_add_f32", s0, s0, s0, ctl)
        dpp("v_add_f32", s1, s1, s1, ctl)
        nop(1)
    for sw_ in ("v_permlane16_swap_b32", "v_permlane32_swap_b32"):
        A(f"v_mov_b32 v{vA0}, v{s0}")
        A(f"v_mov_b32 v{vA1}, v{s1}")
        nop(2)
        A(f"{sw_} v{s0}, v{vA0}")
        A(f"{sw_} v{s1}, v{vA1}")
        A(f"v_add_f32 v{s0}, v{s0}, v{vA0}")
        A(f"v_add_f32 v{s1}, v{s1}, v{vA1}")
    C("mean and 1 / sqrt(var + eps), rounded to bf16 where the reference rounds")
    A(f"v_mul_f32 v{s0}, 0x3b000000, v{s0}")
    A(f"v_mul_f32 v{s1}, 0x3b000000, v{s1}")
    A(f"v_fma_f32 v{s1}, -v{s0}, v{s0}, v{s1}")
    A(f"v_max_f32 v{s1}, 0, v{s1}")
    A(f"v_cvt_pk_bf16_f32 v{s1}, v{s0}, v{s1}")
    A(f"v_lshlrev_b32 v{s0}, 16, v{s1}")
    A(f"v_and_b32 v{s1}, 0xffff0000, v{s1}")
    A(f"v_add_f32 v{s1}, {hex(EPS)}, v{s1}")
    round1(s1)
    A(f"v_sqrt_f32 v{s1}, v{s1}")
    nop(1)
    round1(s1)
    A(f"v_rcp_f32 v{s1}, v{s1}")
    A("s_waitcnt vmcnt(19)")
    unpack(vY, vXA, 8)
    for i in range(0, 16, 2):
        pk("add", vY + i, vY + i, s0, extra=" op_sel_hi:[1,0] neg_lo:[0,1] neg_hi:[0,1]")
    round_bf16([vY + i for i in range(16)], vXS)
    for i in range(0, 16, 2):
        pk("mul", vY + i, vY + i, s0, extra=" op_sel:[0,1]")
    for i in range(16):
        A(f"v_cvt_pk_bf16_f32 v{vY+i}, v{vY+i}, v{vY+i}")
    for j in range(16):
        for k in range(4):
            A(f"v_and_b32 v{vAB+4*j+k}, v{vMK+k}, v{vY+j}")
    epoch()
    for j in range(16):
        A(f"s_waitcnt vmcnt({18-j})")
        mfma(vACC, vAB + 4 * j, vW + 4 * j, None if j == 0 else vACC)
    for i in range(7, K0):
        kvload("K", i)
    A(f"v_lshrrev_b32 v{vA0}, 5, v{vL}")
    A(f"v_lshlrev_b32 v{vA0}, 12, v{vA0}")
    A(f"v_and_b32 v{vA1}, 31, v{vL}")
    A(f"v_lshl_add_u32 v{vA0}, v{vA1}, 4, v{vA0}")
    A(f"s_lshl_b32 s{sTMP}, s{sH}, 13")
    A(f"s_lshl_b32 s{sTMP2}, s{sS}, 9")
    A(f"s_add_u32 s{sTMP}, s{sTMP}, s{sTMP2}")
    A(f"s_add_u32 s{sTMP}, s{sTMP}, {WS_QP}")
    tag4(vACC)
    A(f"buffer_store_dwordx4 {vr(vACC)}, v{vA0}, s[{rWS}:{rWS+3}], s{sTMP} offen sc1")
    stamp("qpub")
    A("s_branch L_join")

    C("---------------- waves 1..7 ----------------")
    A("L_rest:")
    C("wave 2 resets the LDS tables that other waves of this workgroup fill later")
    A(f"s_cmp_lg_u32 s{sWV}, 2")
    A("s_cbranch_scc1 L_noreset")
    A(f"v_lshlrev_b32 v{vA0}, 2, v{vC}")
    A(f"v_mov_b32 v{vA1}, -1")
    A(f"ds_write_b32 v{vA0}, v{vA1} offset:{L_ML}")
    A(f"v_lshlrev_b32 v{vA0}, 2, v{vL}")
    A(f"ds_write_b32 v{vA0}, v{vA1} offset:{L_Q}")
    A("s_waitcnt lgkmcnt(0)")
    A("L_noreset:")
    more_args(True)
    common_setup()
    make_masks()
    for i in range(4, 7):
        A("s_waitcnt vmcnt(3)")
        kvload("K", i)
    A("s_barrier")
    for i in range(7, K0):
        A("s_waitcnt vmcnt(2)")
        kvload("K", i)
    epoch()
    C("wave 2 reports this workgroup's die")
    A(f"s_cmp_lg_u32 s{sWV}, 2")
    A("s_cbranch_scc1 L_join")
    A(f"s_lshl_b32 s{sTMP}, s{sVOTE}, 27")
    A(f"s_xor_b32 s{sTMP}, s{sTMP}, s{sXW}")
    A(f"s_lshl_b32 s{sTMP2}, s{sID}, 2")
    A(f"s_add_u32 s{sTMP2}, s{sTMP2}, {WS_XC}")
    A(f"v_mov_b32 v{vA1}, s{sTMP}")
    A("s_mov_b64 exec, 1")
    A(f"buffer_store_dword v{vA1}, v{vL}, s[{rWS}:{rWS+3}], s{sTMP2} offen sc1")
    A("s_mov_b64 exec, -1")
    A("L_join:")
    stamp("_join")
    A(f"v_cmp_gt_u32 vcc, 8, v{vC}")
    A(f"s_mov_b32 s{sLOC}, 0")
    C("touch this workgroup's o and (max, sum) slots (values unused): the lines are then valid in this die's L2")
    C("when the stores and the polls reach them")
    A(f"s_lshl3_add_u32 s{sTMP}, s{sID}, s{sWV}")
    A(f"s_lshl_b32 s{sTMP2}, s{sTMP}, 6")
    A(f"s_add_u32 s{sTMP2}, s{sTMP2}, {WS_OP}")
    A(f"s_load_dword s{sR0}, s[{sWS}:{sWS+1}], s{sTMP2}")
    A(f"s_lshl_b32 s{sTMP}, s{sTMP}, 4")
    A(f"s_add_u32 s{sTMP}, s{sTMP}, {WS_ML}")
    A(f"s_load_dword s{sR1}, s[{sWS}:{sWS+1}], s{sTMP}")
    A(f"s_sub_u32 s{sCB}, s{sR}, {NW0}")
    A(f"s_lshl_b32 s{sD3}, s{sWV}, 13")
    for j in range(4):
        A(f"v_cndmask_b32 v{vMK+j}, 0, v{vMK+j}, vcc")
    A(f"v_lshlrev_b32 v{vA2}, 4, v{vL}")
    A(f"s_cmp_lt_u32 s{sID}, {NF}")
    A("s_cbranch_scc1 L_s_f")
    A(f"s_cmp_lt_u32 s{sCB}, 8")
    A("s_cbranch_scc1 L_s_w")

    def w_dma(which, j):
        def row0(p):
            u, gh, e = p >> 2, (p >> 1) & 1, p & 1
            return 32 * u + (16 * gh + 4 * e if which == "wo" else 8 * gh + 2 * e)
        pitch = 2752 if which == "w1" else 1024
        base = L_WB if which == "w2" else L_WA
        if j == 0:
            w_srd(which)
            if which == "wo":
                A(f"v_lshrrev_b32 v{vDA}, 3, v{vL}")
                A(f"v_and_b32 v{vA0}, 4, v{vDA}")
                A(f"v_add_u32 v{vDA}, v{vA0}, v{vDA}")
            else:
                A(f"v_and_b32 v{vDA}, 2, v{vG}")
                A(f"v_and_b32 v{vA0}, 8, v{vL}")
                A(f"v_add_u32 v{vDA}, v{vA0}, v{vDA}")
                A(f"v_and_b32 v{vA0}, 1, v{vG}")
                A(f"v_lshl_add_u32 v{vDA}, v{vDA}, 1, v{vA0}")
            A(f"v_mul_u32_u24 v{vDA}, {pitch}, v{vDA}")
            A(f"v_lshlrev_b32 v{vA0}, 1, v{vG}")
            A(f"v_xor_b32 v{vA0}, v{vL}, v{vA0}")
            A(f"v_and_b32 v{vA0}, 7, v{vA0}")
            A(f"v_lshl_add_u32 v{vDA}, v{vA0}, 4, v{vDA}")
            if which == "wo":
                A(f"s_lshl_b32 s{sD1}, s{sGX}, 19")
                A(f"s_lshl_b32 s{sTMP2}, s{sWV}, 16")
                A(f"s_add_u32 s{sD1}, s{sD1}, s{sTMP2}")
                A(f"s_lshl_b32 s{sTMP2}, s{sCB}, 7")
            elif which == "w1":
                A(f"s_mul_i32 s{sD1}, s{sWV}, {64*2752}")
                A(f"s_lshl_b32 s{sTMP2}, s{sR}, 7")
            else:
                A(f"s_lshl_b32 s{sD1}, s{sR}, 16")
                A(f"s_lshl_b32 s{sTMP2}, s{sWV}, 7")
            A(f"s_add_u32 m0, s{sD3}, {base}")
            A(f"s_add_u32 s{sD1}, s{sD1}, s{sTMP2}")
        else:
            A(f"s_add_u32 m0, s{sD3}, {base + j*1024}")
            A(f"s_add_u32 s{sD1}, s{sD1}, {(row0(j) - row0(j-1))*pitch}")
        A(f"buffer_load_dwordx4 v{vDA}, s[{rT}:{rT+3}], s{sD1} offen nt lds")

    def w_srd(which):
        ptr, size = {"wo": (sWO, 0x400000), "w1": (sW1, 512 * 2752), "w2": (sW2, 1376 * 1024)}[which]
        srd(rT, ptr, 0 if which in now else size)

    TRA = [vA0, vA1, vA2, vM]

    def tr_addr(base):
        A(f"v_bfe_u32 v{vA1}, v{vL}, 2, 3")
        A(f"v_lshrrev_b32 v{vA2}, 1, v{vA1}")
        A(f"v_lshl_add_u32 v{vA1}, v{vA1}, 2, v{vA2}")
        A(f"v_and_b32 v{vA2}, 3, v{vL}")
        A(f"v_lshl_add_u32 v{vA1}, v{vA1}, 2, v{vA2}")
        A(f"v_lshrrev_b32 v{vA2}, 5, v{vL}")
        A(f"v_lshl_add_u32 v{vA1}, v{vA2}, 8, v{vA1}")
        A(f"s_add_u32 s{sTMP}, s{sD3}, {base}")
        A(f"v_lshl_add_u32 v{vA0}, v{vA1}, 3, s{sTMP}")
        for tau in range(1, 4):
            A(f"v_xor_b32 v{TRA[tau]}, {32*tau}, v{vA0}")

    def tr_block(dst, off=0, between="s_waitcnt lgkmcnt(0)"):
        for u in range(2):
            for tau in range(4):
                for e in range(2):
                    A(f"ds_read_b64_tr_b16 {vr(dst+8*tau+4*u+2*e,2)}, v{TRA[tau]} offset:{off + (4*u + e)*1024}")
            if u == 0:
                A(between)

    def stream(role, rounds, lab=None):
        lab = lab or role
        ops = [("K", i) for i in range(K0)]
        landed = [0]

        def wait_n(n):
            if len(ops) - n > landed[0]:
                A(f"s_waitcnt vmcnt({n})")
                landed[0] = len(ops) - n

        def wait_for(key):
            wait_n(len(ops) - 1 - ops.index(key))

        def has(key):
            return key in ops and ops.index(key) < landed[0]

        mark = {}

        def only_wave(name, wave, body):
            A(f"s_cmp_lg_u32 s{sWV}, {wave}")
            A(f"s_cbranch_scc1 L_{name}{lab}_skip")
            body()
            A(f"L_{name}{lab}_skip:")
            mark[name] = len(ops)

        def later(name):
            return name in mark and len(ops) > mark[name]

        def wait_own(name):
            A(f"s_waitcnt vmcnt({len(ops) - mark[name]})")

        def q_loads():
            for i in range(4):
                A(f"buffer_load_dwordx4 {vr(vTMP+4*i)}, v{vA2}, s[{rWS}:{rWS+3}], s{sQO} offen offset:{1024*i} sc1")

        def q_issue():
            def body():
                A(f"s_lshl_b32 s{sQO}, s{sH}, 13")
                A(f"s_lshl_b32 s{sTMP2}, s{sB}, 10")
                A(f"s_add_u32 s{sQO}, s{sQO}, s{sTMP2}")
                A(f"s_add_u32 s{sQO}, s{sQO}, {WS_QP}")
                q_loads()
            only_wave("qi", qw, body)

        def q_finish():
            def body():
                wait_own("qi")
                poll_rare("q" + lab, q_loads, lambda: untag(vTMP, 4, vT0, STAGS))
                a = vTMP
                for i in range(0, 8, 2):
                    pk("add", a + i, a + i, a + 8 + i)
                pk("add", a, a, a + 4)
                pk("add", a + 2, a + 2, a + 6)
                A(f"v_and_b32 v{vA0}, 1, v{vG}")
                A(f"v_lshlrev_b32 v{vA0}, 3, v{vA0}")
                A(f"v_permlane32_swap_b32 v{a}, v{a+2}")
                A(f"v_permlane32_swap_b32 v{a+1}, v{a+3}")
                A(f"v_lshl_add_u32 v{vA0}, v{vC}, 4, v{vA0}")
                A(f"v_lshrrev_b32 v{vA1}, 1, v{vG}")
                pk("add", a, a, a + 2)
                A(f"v_lshl_add_u32 v{vA0}, v{vA1}, 2, v{vA0}")
                A(f"v_cvt_pk_bf16_f32 v{a}, v{a}, v{a+1}")
                A(f"ds_write_b32 v{vA0}, v{a} offset:{L_Q}")
            only_wave("qf", qw, body)

        def q_read():
            n = "qr" + lab
            A(f"v_lshlrev_b32 v{vA0}, 4, v{vC}")
            A(f"s_mov_b32 s{sCNT}, 0x200000")
            A(f"L_{n}_spin:")
            A(f"ds_read_b128 {vr(vQ)}, v{vA0} offset:{L_Q}")
            A(f"s_sub_u32 s{sCNT}, s{sCNT}, 1")
            A(f"s_cbranch_scc1 L_{n}_go")
            A("s_waitcnt lgkmcnt(0)")
            A(f"v_max3_u32 v{vA1}, v{vQ}, v{vQ+1}, v{vQ+2}")
            A(f"v_max_u32 v{vA1}, v{vA1}, v{vQ+3}")
            A(f"v_cmp_eq_u32 vcc, -1, v{vA1}")
            A(f"s_cbranch_vccnz L_{n}_spin")
            A(f"L_{n}_go:")
            A("s_waitcnt lgkmcnt(0)")
            stamp("qgot")

        def qk(t):
            tt, uu = vTMP, vTMP + 4
            for k in range(4):
                for r in range(4):
                    A(f"v_dot2_f32_bf16 v{tt+r}, v{vK+16*t+4*r+k}, v{vQ+k}, " + ("0" if k == 0 else f"v{tt+r}"))
            dpp("v_add_f32", uu, tt, tt, "row_ror:8", 0x3)
            dpp("v_add_f32", uu, tt + 1, tt + 1, "row_ror:8", 0xc)
            dpp("v_add_f32", uu + 1, tt + 2, tt + 2, "row_ror:8", 0x3)
            dpp("v_add_f32", uu + 1, tt + 3, tt + 3, "row_ror:8", 0xc)
            dpp("v_add_f32", vS + t, uu, uu, "row_shl:4", 0x5)
            nop(1)
            dpp("v_add_f32", vS + t, uu + 1, uu + 1, "row_shr:4", 0xa)

        def allred(op, r, t):
            nop(2)
            dpp(op, r, r, r, "row_ror:8")
            nop(2)
            dpp(op, r, r, r, "row_ror:4")
            for sw_ in ("v_permlane16_swap_b32", "v_permlane32_swap_b32"):
                A(f"v_mov_b32 v{t}, v{r}")
                nop(2)
                A(f"{sw_} v{r}, v{t}")
                A(f"{op} v{r}, v{r}, v{t}")

        S = [vS + i for i in range(8)]

        def soft_a():
            for r in S:
                dpp("v_add_f32", r, r, r, X1)
            for r in S:
                dpp("v_add_f32", r, r, r, X2)
            round_bf16(S, vTMP)
            for r in S:
                A(f"v_mul_f32 v{r}, {hex(SCALE)}, v{r}")
            round_bf16(S, vTMP)

        def soft_b():
            m = vT0
            A(f"v_max3_f32 v{m}, v{S[0]}, v{S[1]}, v{S[2]}")
            A(f"v_max3_f32 v{m}, v{m}, v{S[3]}, v{S[4]}")
            A(f"v_max3_f32 v{m}, v{m}, v{S[5]}, v{S[6]}")
            A(f"v_max_f32 v{m}, v{m}, v{S[7]}")
            allred("v_max_f32", m, vTMP)
            for r in S:
                A(f"v_sub_f32 v{r}, v{r}, v{m}")
            for r in S:
                A(f"v_mul_f32 v{r}, {hex(LOG2E)}, v{r}")
            for r in S:
                A(f"v_exp_f32 v{r}, v{r}")

        def soft_c():
            m, l = vT0, vT1
            A(f"s_lshl_b32 s{sTMP}, s{sWV}, 3")
            A(f"v_add_f32 v{l}, v{S[0]}, v{S[1]}")
            for r in S[2:]:
                A(f"v_add_f32 v{l}, v{l}, v{r}")
            for r in S:
                A(f"v_cvt_pk_bf16_f32 v{r}, v{r}, v{r}")
            allred("v_add_f32", l, vTMP)
            A(f"v_mov_b32 v{vA0}, s{sTMP}")
            A(f"ds_write_b64 v{vA0}, {vr(m,2)} offset:{L_ML}")
            only_wave("xc", sw, xc_load)
            stamp("soft")

        bank = [0, 2, 1, 3]

        def pv_a(t):
            for r in range(4):
                for k in range(4):
                    dpp("v_and_b32", vTMP + 4 * r + k, vS + t, vMK + k, f"row_newbcast:{4*bank[r]}")

        def pv_m(i):
            mfma(vACC, vTMP + 4 * (i % 4), vreg(i), None if i == 0 else vACC)

        pvdone = [0]

        def pv_tile(t):
            pv_a(t)
            for r in range(4):
                pv_m(4 * t + r)
            pvdone[0] = 4 * t + 4

        def tail_setup():
            vB3, vXX, vB2 = vA1, vA2, vDUM
            for k in range(4):
                A(f"v_mov_b32 v{vTG+k}, s{Tk[k]}")
            A(f"v_bfe_u32 v{vB3}, v{vL}, 3, 1")
            A(f"v_bfe_u32 v{vB2}, v{vL}, 2, 1")
            A(f"v_and_b32 v{vXX}, 3, v{vL}")
            A(f"v_lshlrev_b32 v{vL8}, 3, v{vL}")
            A(f"v_lshlrev_b32 v{vL16}, 4, v{vL}")
            A(f"v_and_b32 v{vG16}, 0x70, v{vL16}")
            A(f"v_lshl_add_u32 v{vM}, v{vXX}, 1, v{vB3}")
            A(f"v_and_b32 v{vA0}, 1, v{vG}")
            A(f"v_lshl_add_u32 v{vM}, v{vA0}, 3, v{vM}")
            A(f"v_lshrrev_b32 v{vA0}, 1, v{vG}")
            A(f"v_lshl_add_u32 v{vM}, v{vA0}, 5, v{vM}")
            A(f"v_lshlrev_b32 v{vAA}, 1, v{vM}")
            A(f"v_lshl_add_u32 v{vXO}, v{vB2}, 10, v{vAA}")
            A(f"s_lshl_b32 s{sTMP}, s{sWV}, 7")
            A(f"v_add_u32 v{vXO}, s{sTMP}, v{vXO}")
            A(f"v_lshl_add_u32 v{vM}, v{vB2}, 4, v{vM}")
            A(f"v_lshlrev_b32 v{vFR}, 3, v{vM}")
            A(f"s_lshl_b32 s{sTMP}, s{sWV}, 8")
            A(f"v_lshl_add_u32 v{vHW}, v{vM}, 2, s{sTMP}")
            A(f"s_lshr_b32 s{sTMP}, s{sR}, 3")
            A(f"s_and_b32 s{sTMP2}, s{sR}, 4")
            A(f"s_add_u32 s{sTMP}, s{sTMP}, s{sTMP2}")
            A(f"s_and_b32 s{sTMP2}, s{sR}, 3")
            A(f"s_lshl3_add_u32 s{sTMP2}, s{sTMP}, s{sTMP2}")
            A(f"s_lshl_b32 s{sTMP2}, s{sTMP2}, 5")
            A(f"v_and_b32 v{vM}, 7, v{vL}")
            A(f"v_lshl_add_u32 v{vHR}, v{vA0}, 5, v{vM}")
            A(f"v_lshl_add_u32 v{vHR}, v{vHR}, 2, s{sTMP2}")
            A(f"v_and_b32 v{vA0}, 1, v{vG}")
            A(f"v_lshl_add_u32 v{vHR}, v{vA0}, 1, v{vHR}")
            A(f"s_and_b32 s{sTMP2}, s{sR}, 1")
            A(f"s_lshl3_add_u32 s{sTMP}, s{sTMP}, s{sTMP2}")
            A(f"s_lshl_b32 s{sTMP}, s{sTMP}, 4")
            A(f"s_and_b32 s{sTMP2}, s{sR}, 2")
            A(f"s_lshl_b32 s{sTMP2}, s{sTMP2}, 9")
            A(f"s_add_u32 s{sTMP}, s{sTMP}, s{sTMP2}")
            A(f"v_lshl_add_u32 v{vFC}, v{vG}, 4, v{vM}")
            A(f"v_lshl_add_u32 v{vFC}, v{vFC}, 1, s{sTMP}")
            A(f"v_lshlrev_b32 v{vBA}, 4, v{vC}")
            A(f"v_lshl_add_u32 v{vBA}, v{vG}, 10, v{vBA}")
            ypage(sWV)
            A(f"v_add_u32 v{vBA}, s{sTMP}, v{vBA}")
            A(f"s_lshl_b32 s{sTMP}, s{sWV}, 9")
            A(f"v_lshlrev_b32 v{vOWA}, 5, v{vC}")
            A(f"v_lshl_add_u32 v{vOWA}, v{vG}, 4, v{vOWA}")
            A(f"v_add_u32 v{vOWA}, s{sTMP}, v{vOWA}")
            A(f"s_lshl_b32 s{sTMP2}, s{sID}, 9")
            A(f"s_add_u32 s{sTMP2}, s{sTMP2}, {WS_OP}")
            A(f"v_add_u32 v{vOS}, s{sTMP2}, v{vL8}")
            A(f"v_and_b32 v{vM}, 1, v{vL}")
            A(f"v_lshlrev_b32 v{vM}, 4, v{vM}")
            A(f"v_lshrrev_b32 v{vTb}, v{vM}, s{sT}")
            A(f"v_and_b32 v{vTa}, v{vFF}, v{vTb}")
            A(f"v_bfe_u32 v{vTb}, v{vTb}, 8, 8")
            if role == "n":
                return
            A(f"v_add_u32 v{vFW}, s{sTMP}, v{vL8}")
            A(f"v_mul_u32_u24 v{vIX}, 0xaaaa, v{vB3}")
            A(f"v_add_u32 v{vIX}, 0x4444, v{vIX}")
            if role == "f":
                A(f"v_lshlrev_b32 v{vSR}, 6, v{vB2}")
                A(f"v_lshrrev_b32 v{vM}, 3, v{vL}")
                A(f"v_mul_u32_u24 v{vYS}, {ZSTR}, v{vM}")
                A(f"s_lshl_b32 s{sTMP2}, s{sR}, 7")
                A(f"s_and_b32 s{sTMP}, s{sWV}, 3")
                A(f"s_mul_i32 s{sTMP}, s{sTMP}, {8*ZSTR}")
                A(f"s_add_u32 s{sTMP2}, s{sTMP2}, s{sTMP}")
                A(f"s_add_u32 s{sTMP2}, s{sTMP2}, {WS_ZP}")
                A(f"v_add3_u32 v{vYS}, v{vYS}, v{vG16}, s{sTMP2}")
                A(f"v_lshrrev_b32 v{vM}, 1, v{vG}")
                A(f"v_lshl_add_u32 v{vSA}, v{vM}, 2, v{vSR}")
                A(f"s_lshl_b32 s{sTMP}, s{sWV}, 3")
                A(f"v_add_u32 v{vSA}, s{sTMP}, v{vSA}")
                A(f"v_mov_b32 v{vEPS}, {hex(EPS)}")
                A(f"v_mov_b32 v{vONE}, 0x3b003b00")
            else:
                A(f"v_lshl_add_u32 v{vAA}, v{vB2}, 2, v{vB3}")
                A(f"v_lshlrev_b32 v{vAA}, 9, v{vAA}")
                A(f"v_lshl_add_u32 v{vAA}, v{vG}, 6, v{vAA}")
                A(f"v_lshl_add_u32 v{vAA}, v{vXX}, 4, v{vAA}")
                A(f"s_and_b32 s{sTMP2}, s{sWV}, 1")
                A(f"s_lshl_b32 s{sTMP2}, s{sTMP2}, 8")
                A(f"s_lshr_b32 s{sTMP}, s{sWV}, 1")
                A(f"s_lshl_b32 s{sTMP}, s{sTMP}, 12")
                A(f"s_add_u32 s{sTMP2}, s{sTMP2}, s{sTMP}")
                A(f"s_lshl_b32 s{sTMP}, s{sGX}, 14")
                A(f"s_add_u32 s{sTMP2}, s{sTMP2}, s{sTMP}")
                A(f"s_add_u32 s{sTMP2}, s{sTMP2}, {WS_OP}")
                A(f"v_add_u32 v{vAA}, s{sTMP2}, v{vAA}")
                A(f"v_and_b32 v{vYR}, 0x1f0, v{vFR}")
                A(f"v_lshl_add_u32 v{vYR}, v{vB3}, 11, v{vYR}")
                ypage(sCB)
                A(f"s_lshl_b32 s{sTMP2}, s{sGX}, 7")
                A(f"s_add_u32 s{sTMP}, s{sTMP}, s{sTMP2}")
                A(f"v_lshl_add_u32 v{vYS}, v{vG}, 10, v{vG16}")
                A(f"v_lshl_add_u32 v{vYS}, v{vB3}, 13, v{vYS}")
                A(f"v_add_u32 v{vYS}, s{sTMP}, v{vYS}")

        def w1_regs():
            tr_addr(L_WA)
            tr_block(vW1)
            zero([d + k for d in DACC for k in range(4)])
            for k in range(4):
                A(f"v_mov_b32 v{vTMP+k}, 0x3f803f80")
            A("s_waitcnt lgkmcnt(0)")
            nop(1)
            for tau in range(4):
                A(f"v_smfmac_f32_16x16x64_bf16 {vr(DACC[tau])}, {vr(vTMP)}, {vr(vW1 + 8*tau, 8)}, v{vIX}")
            nop(8)
            merge_tiles(vP)
            A(f"ds_write_b64 v{vFW}, {vr(vP,2)} offset:{L_CS}")

        def ml_publish():
            def body():
                n = "ml" + lab
                o, m, l = vMLG, vMLW, vMLW + 1
                wait_own("xc")
                xc_check()
                A(f"v_and_b32 v{vA0}, 56, v{vL8}")
                A(f"s_mov_b32 s{sCNT}, 0x200000")
                A(f"L_{n}_spin:")
                A(f"ds_read_b64 {vr(m,2)}, v{vA0} offset:{L_ML}")
                A(f"s_sub_u32 s{sCNT}, s{sCNT}, 1")
                A(f"s_cbranch_scc1 L_{n}_go")
                A("s_waitcnt lgkmcnt(0)")
                A(f"v_cmp_eq_u32 vcc, -1, v{l}")
                A(f"s_cbranch_vccnz L_{n}_spin")
                A(f"L_{n}_go:")
                A("s_waitcnt lgkmcnt(0)")
                nop(2)
                dpp("v_max_f32", o, m, m, X1)
                nop(2)
                dpp("v_max_f32", o, o, o, X2)
                nop(2)
                dpp("v_max_f32", o, o, o, HM)
                A(f"v_sub_f32 v{o+1}, v{m}, v{o}")
                A(f"v_mul_f32 v{o+1}, {hex(LOG2E)}, v{o+1}")
                A(f"v_exp_f32 v{o+1}, v{o+1}")
                A(f"v_mov_b32 v{o+2}, 0")
                A(f"v_mul_f32 v{o+1}, v{o+1}, v{l}")
                A(f"v_mov_b32 v{o+3}, 0")
                A(f"s_lshl_b32 s{sTMP}, s{sID}, 7")
                for ctl in (X1, X2, HM):
                    dpp("v_add_f32", o + 1, o + 1, o + 1, ctl)
                    nop(2)
                A(f"s_add_u32 s{sTMP}, s{sTMP}, {WS_ML}")
                tag4(o)
                A("s_mov_b64 exec, 0xff")
                A(f"s_cmp_eq_u32 s{sLOC}, 0")
                publish(n, f"buffer_store_dwordx4 {vr(o)}, v{vL16}, s[{rWS}:{rWS+3}], s{sTMP} offen")
                A("s_mov_b64 exec, -1")
            only_wave("mp", sw, body)

        def ml_load():
            A("s_mov_b64 exec, 0xff")
            A(f"buffer_load_dwordx4 {vr(vMLG)}, v{vXC}, s[{rWS}:{rWS+3}], s{sML} offen sc1")
            A("s_mov_b64 exec, -1")

        def ml_gather():
            def body():
                A(f"v_and_b32 v{vXC}, 3, v{vL}")
                A(f"v_lshlrev_b32 v{vXC}, 7, v{vXC}")
                A(f"s_lshr_b32 s{sML}, s{sID}, 2")
                A(f"s_lshl_b32 s{sML}, s{sML}, 9")
                A(f"s_add_u32 s{sML}, s{sML}, {WS_ML}")
                ml_load()
            only_wave("mg", sw, body)

        def ml_finish():
            def body():
                def chk():
                    A("s_mov_b64 exec, 0xff")
                    untag(vMLG, 1, vA0, STAGS)
                    A("s_mov_b64 exec, -1")
                wait_own("mg")
                poll_rare("m" + lab, ml_load, chk)
                o = vMLG
                dpp("v_max_f32", o + 2, o, o, X1)
                nop(2)
                dpp("v_max_f32", o + 2, o + 2, o + 2, X2)
                A(f"v_sub_f32 v{o}, v{o}, v{o+2}")
                A(f"v_sub_f32 v{o+3}, v{vMLW}, v{o+2}")
                A(f"v_mul_f32 v{o}, {hex(LOG2E)}, v{o}")
                A(f"v_mul_f32 v{o+3}, {hex(LOG2E)}, v{o+3}")
                A(f"v_exp_f32 v{o}, v{o}")
                A(f"v_exp_f32 v{o+3}, v{o+3}")
                A(f"v_mul_f32 v{o+1}, v{o+1}, v{o}")
                nop(2)
                dpp("v_add_f32", o + 1, o + 1, o + 1, X1)
                nop(2)
                dpp("v_add_f32", o + 1, o + 1, o + 1, X2)
                A(f"v_rcp_f32 v{o+1}, v{o+1}")
                nop(1)
                A(f"v_mul_f32 v{o+3}, v{o+3}, v{o+1}")
                nop(1)
                for j in range(8):
                    A(f"v_readlane_b32 s{sTMP}, v{o+3}, {j}")
                    nop(2)
                    A(f"v_mov_b32 v{vF+j}, s{sTMP}")
            only_wave("mf", sw, body)

        todo = [(lambda: ("K", pq) in ops, q_issue), (lambda: later("qi"), q_finish), (lambda: later("qf"), q_read)]
        for t in range(8):
            todo.append((lambda t=t: has(("K", 4 * t + 3)), lambda t=t: qk(t)))
        todo += [(lambda: True, f) for f in (soft_a, soft_b, soft_c, tail_setup)]
        for t in range(7):
            todo.append((lambda t=t: has(("V", 4 * t + 3)), lambda t=t: pv_tile(t)))
        done = set()
        side = [(lambda: tail_setup in done and later("xc") and ("V", p1) in ops, ml_publish),
                (lambda: later("mp") and ("V", p2) in ops, ml_gather),
                (lambda: later("mg"), ml_finish)]
        side2 = [(lambda: tail_setup in done and has(("w1", 7)), w1_regs)] if role == "f" else []
        seq = [("K", i) for i in range(K0, 32)] + [("V", i) for i in range(32)]
        if role == "f":
            for j in range(8):
                seq.insert(f0 + j, ("w1", j))
        rounds = [int(c) for c in rounds]
        assert sum(rounds) == len(seq), (role, sum(rounds), len(seq))
        prev = 3
        for size in rounds:
            first = len(ops)
            for j in range(size):
                kind, i = seq.pop(0)
                assert kind != "V" or i < NRING or pvdone[0] > i - NRING, "ring too small"
                wait_for(ops[first - prev + min(j + max(0, prev - size), prev - 1)])
                if kind == "w1":
                    w_dma(kind, i)
                else:
                    kvload(kind, i)
                ops.append((kind, i))
            prev = size
            n0 = len(L)
            for lst in (side, todo, side2):
                while lst and lst[0][0]() and len(L) - n0 < budget:
                    f = lst.pop(0)[1]
                    f()
                    done.add(f)
        assert not side and not side2, role
        while todo:
            pred, emit = todo.pop(0)
            while not pred():
                wait_n(len(ops) - landed[0] - 1)
            emit()
        pv_a(7)
        for i in range(28, 32):
            wait_for(("V", i))
            pv_m(i)
            m = {"n": 0, "w": wmid, "f": mid}[role]
            if i - 28 < m:
                w_dma("wo" if role == "w" else "w2", i - 28)
                ops.append(("late", i))
        if role == "w":
            for j in range(wmid, 8):
                w_dma("wo", j)

    C("---------------- stream: plain workgroups ----------------")
    stream("n", rn)
    A("L_tail:")
    C("---------------- sum the eight waves' partial outputs and publish them ----------------")
    A("s_mov_b32 exec_hi, 0")
    A(f"s_cmp_lg_u32 s{sWV}, {sw}")
    nop(6)
    A(f"ds_write_b128 v{vOWA}, {vr(vACC)} offset:{L_OW}")
    A("s_mov_b32 exec_hi, -1")
    A("s_waitcnt lgkmcnt(0)")
    stamp("_wend")
    A("s_barrier")
    stamp("strm")
    A("s_cbranch_scc1 L_nos0")
    for i in range(8):
        A(f"ds_read_b64 {vr(g0+2*i,2)}, v{vL8} offset:{L_OW + 512*i}")
    A(f"s_cmp_eq_u32 s{sLOC}, 0")
    A("s_waitcnt lgkmcnt(6)")
    pk("mul", vP, g0, vF, extra=lo)
    pk("fma", vP, g0 + 2, vF, vP, extra=hi3)
    for i in range(1, 4):
        if i != 2:
            A(f"s_waitcnt lgkmcnt({(2, 0, 0)[i-1]})")
        pk("fma", vP, g0 + 4 * i, vF + 2 * i, vP, extra=lo3)
        pk("fma", vP, g0 + 4 * i + 2, vF + 2 * i, vP, extra=hi3)
    A(f"v_bfi_b32 v{vP}, v{vFF}, v{vTa}, v{vP}")
    A(f"v_bfi_b32 v{vP+1}, v{vFF}, v{vTb}, v{vP+1}")
    publish("o", f"buffer_store_dwordx2 {vr(vP,2)}, v{vOS}, s[{rWS}:{rWS+3}], 0 offen")
    stamp("_opub")
    A("L_nos0:")
    A(f"s_cmp_ge_u32 s{sCB}, 8")
    A("s_cbranch_scc1 L_noy")

    C("---------------- stage W ----------------")
    A("s_barrier")

    def a_issue():
        for i in range(2):
            A(f"buffer_load_dwordx4 {vr(g0+4*i)}, v{vAA}, s[{rWS}:{rWS+3}], 0 offen offset:{1024*i} sc1")

    def pair_from_quad(src, dst):
        dpp("v_add_f32", dst, src, src, "row_ror:8", 0x3)
        dpp("v_add_f32", dst + 1, src + 1, src + 1, "row_ror:8", 0x3)
        dpp("v_add_f32", dst, src + 2, src + 2, "row_ror:8", 0xc)
        dpp("v_add_f32", dst + 1, src + 3, src + 3, "row_ror:8", 0xc)
    a_issue()
    A(f"s_mov_b32 s{sCNT}, 0x40000")
    A(f"s_cmp_eq_u32 s{sGX}, 0")
    A(f"s_cselect_b32 s{sML}, s{sLOC}, 0")
    tr_addr(L_WA)
    zero([d + k for d in DACC for k in range(4)])
    A("s_waitcnt vmcnt(6)")
    tr_block(vW1, between="s_waitcnt vmcnt(2) lgkmcnt(0)")
    A("s_branch L_a_chk")
    poll("a", a_issue, 2, init=False)
    stamp("hopA")
    pk("add", g0, g0, g0 + 4)
    pk("add", g0 + 2, g0 + 2, g0 + 6)
    A(f"s_cmp_lg_u32 s{sWV}, {sw}")
    pair_from_quad(g0, g0 + 4)
    A(f"v_cvt_pk_bf16_f32 v{vP}, v{g0+4}, v{g0+5}")
    A("s_waitcnt lgkmcnt(0)")
    nop(1)
    operand()
    nop(2)
    for tau in (0, 2, 1, 3):
        smfmac(DACC[tau], vW1 + 8 * tau)
    nop(7)
    merge_tiles(g0)
    A(f"ds_write_b64 v{vFW}, {vr(g0,2)} offset:{L_F1}")
    A("s_waitcnt lgkmcnt(0)")
    A("s_barrier")
    A("s_cbranch_scc1 L_noy")
    for i in range(4):
        A(f"ds_read_b128 {vr(g0+4*i)}, v{vYR} offset:{L_F1 + i*512}")
    A(f"s_cmp_eq_u32 s{sML}, 0")
    for i in range(1, 4):
        A(f"s_waitcnt lgkmcnt({3-i})")
        pk("add", g0, g0, g0 + 4 * i)
        pk("add", g0 + 2, g0 + 2, g0 + 4 * i + 2)
    nop(1)
    for k in range(4):
        dpp("v_add_f32", vD0 + k, g0 + k, g0 + k, "row_ror:8")
    tag4(vD0)
    publish("y", f"buffer_store_dwordx4 {vr(vD0)}, v{vYS}, s[{rWS}:{rWS+3}], 0 offen", farfirst=True)
    stamp("ypub")
    A("L_noy:")
    A(f"s_cmp_lg_u32 s{sGX}, 0")
    A("s_cbranch_scc1 L_fin")

    C("---------------- stage F (group 0) ----------------")
    A(f"v_mov_b32 v{vA0}, {L_FL}")
    A(f"ds_read_b32 v{vA0}, v{vA0}")
    A("s_waitcnt lgkmcnt(0)")
    A(f"v_readfirstlane_b32 s{sLOC}, v{vA0}")
    A(f"v_and_b32 v{vA0}, 0x2000, v{vA0}")
    A(f"v_add_u32 v{vBA}, v{vA0}, v{vBA}")
    A(f"s_and_b32 s{sLOC}, s{sLOC}, 1")
    A(f"s_cmp_lt_u32 s{sR}, {NF}")
    A("s_barrier")
    A("s_cbranch_scc1 L_late")

    def small_loads(name):
        A(f"global_load_ushort v{vXR}, v{vXO}, s[{sX}:{sX+1}]")
        A(f"global_load_ushort v{vXR+1}, v{vXO}, s[{sX}:{sX+1}] offset:32")
        A(f"s_cmp_lg_u32 s{sWV}, {fw}")
        A(f"s_cbranch_scc1 L_{name}")
        A(f"v_and_b32 v{vA1}, 0x3ff, v{vFC}")
        A(f"global_load_ushort v{vB2R}, v{vA1}, s[{sB2}:{sB2+1}]")
        A(f"L_{name}:")
    small_loads("nob2")
    A("s_waitcnt vmcnt(0)")
    widen(vXR)

    def b_issue():
        for i, off in enumerate((0, 256, 512, 768)):
            A(f"buffer_load_dwordx4 {vr(g0+4*i)}, v{vBA}, s[{rWS}:{rWS+3}], 0 offen offset:{off} sc1")

    def late():
        A("L_late:")
        C("FFN workgroups: the rest of w2 and the small operands")
        w_srd("w2")
        for j in range(mid, 8):
            w_dma("w2", j)
        small_loads("nob2f")
        zero([d + k for d in DACC for k in range(4)])
        A(f"s_cmp_ge_u32 s{sWV}, 4")
        A("s_cbranch_scc1 L_late2")
        srd(rB, sB1, 2752)
        A(f"s_lshl_b32 s{sTMP2}, s{sR}, 7")
        A(f"buffer_load_ushort v{vB1R}, v{vAA}, s[{rB}:{rB+3}], s{sTMP2} offen")
        A(f"buffer_load_ushort v{vB1R+1}, v{vAA}, s[{rB}:{rB+3}], s{sTMP2} offen offset:32")
        C("touch the lines of this workgroup's Z slots (values unused)")
        A(f"buffer_load_dword v{vDUM}, v{vYS}, s[{rWS}:{rWS+3}], 0 offen")
        for i in range(8):
            A(f"ds_read_b64 {vr(st+2*i,2)}, v{vFR} offset:{L_CS + 512*i}")
        A(f"s_lshl_b32 s{sTMP}, s{sR}, 2")
        A(f"s_sub_u32 s{sTMP}, 86, s{sTMP}")
        A(f"v_cmp_gt_u32 vcc, s{sTMP}, v{vG}")
        zero([vE + k for k in range(32)])
        A(f"v_cndmask_b32 v{vVAL}, 0, -1, vcc")
        tr_addr(L_WB)
        A("s_waitcnt lgkmcnt(0)")
        sum8(st, vCS)
        A("L_late2:")
        A("s_waitcnt vmcnt(0)")
        A("s_barrier")
        stamp("_late")
        b_issue()
        widen(vXR)
        widen(vB1R)
        A(f"s_mov_b32 s{sCNT}, 0x40000")
        A(f"s_cmp_ge_u32 s{sWV}, 4")
        A("s_cbranch_scc1 L_b_chk")
        tr_block(vW2, between="s_waitcnt lgkmcnt(4)")
        A("s_waitcnt lgkmcnt(4)")
        tr_block(vW2b, 32768, between="s_waitcnt lgkmcnt(4)")
        A("s_branch L_b_chk")
    poll("b", b_issue, 4)
    stamp("hopB")
    for e in (0, 2, 4, 6):
        pk("add", g0 + e, g0 + e, g0 + 8 + e)
    pk("add", g0 + 4, g0, g0 + 4)
    pk("add", g0 + 6, g0 + 2, g0 + 6)
    A(f"s_cmp_ge_u32 s{sR}, {NF}")
    pair_from_quad(g0 + 4, g0)
    pk("add", g0, g0, vXR)
    A(f"v_cvt_pk_bf16_f32 v{vP}, v{g0}, v{g0+1}")
    A("s_cbranch_scc1 L_noffn")
    A(f"v_dot2_f32_bf16 v{s0}, v{vP}, v{vONE}, 0")
    A(f"v_dot2_f32_bf16 v{s1}, v{vP}, v{vP}, 0")

    operand()
    A(f"v_permlane32_swap_b32 v{s0}, v{s1}")
    A(f"v_add_f32 v{s0}, v{s0}, v{s1}")
    smfmac(vD0, vW1)
    A(f"ds_write_b32 v{vHW}, v{vP} offset:{L_HS}")
    dpp("v_add_f32", s0, s0, s0, X1)
    smfmac(vD2, vW1 + 16)
    A(f"s_cmp_ge_u32 s{sWV}, 4")
    dpp("v_add_f32", s0, s0, s0, X2)
    smfmac(vD1, vW1 + 8)
    smfmac(vD3, vW1 + 24)
    dpp("v_add_f32", s0, s0, s0, "row_ror:8")
    A(f"v_mov_b32 v{s1}, v{s0}")
    nop(2)
    A(f"v_permlane16_swap_b32 v{s0}, v{s1}")
    A(f"v_add_f32 v{s0}, v{s0}, v{s1}")
    A(f"ds_write_b32 v{vSA}, v{s0} offset:{L_ST}")
    merge_tiles(g0)
    A(f"ds_write_b64 v{vFW}, {vr(g0,2)} offset:{L_F1}")
    A("s_waitcnt lgkmcnt(0)")
    A("s_barrier")
    stamp("_f1b")
    A("s_cbranch_scc1 L_final")
    C("waves 0..3: hidden activations and the product with w2")
    for i in range(4):
        A(f"ds_read_b128 {vr(st+4*i)}, v{vSR} offset:{L_ST + 16*i}")
    for i in range(8):
        A(f"ds_read_b64 {vr(g0+2*i,2)}, v{vFR} offset:{L_F1 + 512*i}")
    A(f"s_cmp_eq_u32 s{sLOC}, 0")
    A(f"s_mov_b32 s{sTMP}, 0x3b000000")
    A("s_waitcnt lgkmcnt(10)")
    pk("add", st, st, st + 2)
    pk("add", st + 4, st + 4, st + 6)
    A("s_waitcnt lgkmcnt(8)")
    pk("add", st + 8, st + 8, st + 10)
    pk("add", st + 12, st + 12, st + 14)
    pk("add", st, st, st + 4)
    pk("add", st + 8, st + 8, st + 12)
    pk("add", s0, st, st + 8)
    A(f"v_fma_f32 v{s1}, v{s1}, s{sTMP}, v{vEPS}")
    A(f"v_fma_f32 v{s1}, -v{s0}, v{s0}, v{s1}")
    A(f"v_max_f32 v{s1}, v{vEPS}, v{s1}")
    A(f"v_rsq_f32 v{s1}, v{s1}")
    A("s_waitcnt lgkmcnt(0)")
    sum8(g0)
    pk("fma", g0, vCS, s0, g0, extra=" op_sel_hi:[1,0,1] neg_lo:[0,1,0] neg_hi:[0,1,0]")
    pk("fma", g0, g0, s0, vB1R, extra=hi3)
    A(f"v_max_f32 v{g0}, 0, v{g0}")
    A(f"v_max_f32 v{g0+1}, 0, v{g0+1}")
    pk("mul", g0, g0, g0)
    A(f"v_cvt_pk_bf16_f32 v{vP}, v{g0}, v{g0+1}")
    nop(2)
    operand(vVAL)
    nop(2)

    def z_swap(tau):
        A(f"v_permlane32_swap_b32 v{vE+4*tau}, v{vE+16+4*tau}")
        A(f"v_add_f32 v{vD0+tau}, v{vE+4*tau}, v{vE+16+4*tau}")

    def z_tag(tau):
        A(f"v_bfi_b32 v{vD0+tau}, v{vFF}, s{Tk[tau]}, v{vD0+tau}")
    smfmac(vE, vW2)
    smfmac(vE + 16, vW2b)
    smfmac(vE + 4, vW2 + 8)
    smfmac(vE + 20, vW2b + 8)
    nop(2)
    smfmac(vE + 8, vW2 + 16)
    nop(2)
    smfmac(vE + 24, vW2b + 16)
    z_swap(0)
    smfmac(vE + 12, vW2 + 24)
    z_swap(1)
    smfmac(vE + 28, vW2b + 24)
    z_tag(0)
    z_tag(1)
    z_swap(2)
    z_tag(2)
    nop(3)
    z_swap(3)
    z_tag(3)
    publish("z", f"buffer_store_dwordx4 {vr(vD0)}, v{vYS}, s[{rWS}:{rWS+3}], 0 offen")
    stamp("zpub")
    A("s_branch L_fin")
    A("L_noffn:")
    A(f"ds_write_b32 v{vHW}, v{vP} offset:{L_HS}")
    C("every y is in, so every wave of the launch has read the epoch word: advance it for the next launch")
    A(f"s_lshl3_add_u32 s{sTMP}, s{sR}, s{sWV}")
    A(f"s_cmp_lg_u32 s{sTMP}, {31*8}")
    A("s_cbranch_scc1 L_noe")
    A("s_mov_b64 exec, 1")
    A(f"v_mov_b32 v{vA1}, s{sT}")
    A(f"buffer_store_dword v{vA1}, v{vL8}, s[{rWS}:{rWS+3}], 0 offen offset:{WS_E} sc1")
    A("s_mov_b64 exec, -1")
    A("L_noe:")
    A("s_waitcnt lgkmcnt(0)")
    A("s_barrier")
    A("L_final:")
    C("---------------- one wave of each group-0 workgroup adds the partial sums of 32 outputs ----------------")
    assert fw >= 4
    A(f"s_cmp_lg_u32 s{sWV}, {fw}")
    A("s_cbranch_scc1 L_fin")
    A(f"ds_read_u16 v{vXR}, v{vHR} offset:{L_HS}")
    A(f"s_mul_i32 s{sTMP}, s{sR}, {ZSTR}")
    A(f"s_add_u32 s{sTMP}, s{sTMP}, {WS_ZP}")
    A(f"v_min_u32 v{vA0}, 47, v{vL}")
    A(f"v_and_b32 v{vA0}, 0x38, v{vA0}")
    A(f"v_lshl_add_u32 v{vA0}, v{vA0}, 4, v{vG16}")
    A(f"v_lshlrev_b32 v{vB2R}, 16, v{vB2R}")
    A("s_waitcnt lgkmcnt(0)")
    A(f"v_lshlrev_b32 v{vXR}, 16, v{vXR}")
    A(f"v_add_f32 v{vXR}, v{vXR}, v{vB2R}")

    def c_issue():
        for t in range(2):
            A(f"buffer_load_dwordx4 {vr(g0+4*t)}, v{vL16}, s[{rWS}:{rWS+3}], s{sTMP} offen offset:{1024*t} sc1")
        A(f"buffer_load_dwordx4 {vr(g0+8)}, v{vA0}, s[{rWS}:{rWS+3}], s{sTMP} offen offset:2048 sc1")
    poll("c", c_issue, 3)
    stamp("hopC")
    pk("add", g0, g0, g0 + 4)
    pk("add", g0 + 2, g0 + 2, g0 + 6)
    A("s_mov_b32 exec_hi, 0xffff")
    pk("add", g0, g0, g0 + 8)
    pk("add", g0 + 2, g0 + 2, g0 + 10)
    A("s_mov_b32 exec_hi, -1")
    nop(1)
    A(f"v_permlane32_swap_b32 v{g0}, v{g0+2}")
    A(f"v_permlane32_swap_b32 v{g0+1}, v{g0+3}")
    pk("add", g0, g0, g0 + 2)
    nop(2)
    A(f"v_permlane16_swap_b32 v{g0}, v{g0+1}")
    A(f"v_add_f32 v{g0}, v{g0}, v{g0+1}")
    nop(2)
    dpp("v_add_f32", g0, g0, g0, "row_ror:8")
    A(f"v_add_f32 v{g0}, v{g0}, v{vXR}")
    A(f"v_cvt_pk_bf16_f32 v{g0}, v{g0}, v{g0}")
    A(f"global_store_short v{vFC}, v{g0}, s[{sOUT}:{sOUT+1}]")
    A("L_fin:")
    if minT:
        A(f"s_cmp_lg_u32 s2, {minX}")
        A("s_cbranch_scc1 L_nospin")
        A("L_spin:")
        A("s_memrealtime s[98:99]")
        A("s_waitcnt lgkmcnt(0)")
        A("s_sub_u32 s98, s98, s100")
        A(f"s_cmp_lt_u32 s98, {minT*100}")
        A("s_cbranch_scc1 L_spin")
        A("L_nospin:")
    if diag:
        A("s_mov_b64 exec, -1")
        A("s_waitcnt vmcnt(0)")
        stamp("end")
        for _ in range(4):
            A("s_sleep 127")
        for i in range(12):
            A(f"v_mov_b32 v{vK+i}, s{dslot(i)}")
        A(f"v_mov_b32 v{vK+12}, s{sVOTE}")
        A(f"v_mov_b32 v{vK+13}, s{sXCC}")
        A(f"s_lshl_b32 s{sTMP}, s2, 3")
        A(f"s_add_u32 s{sTMP}, s{sTMP}, s{sWV}")
        A(f"s_lshl_b32 s{sTMP}, s{sTMP}, 6")
        A(f"s_add_u32 s{sTMP}, s{sTMP}, {WS_DIAG}")
        A(f"v_mov_b32 v{vA0}, 0")
        A("s_mov_b64 exec, 1")
        for i in range(4):
            A(f"buffer_store_dwordx4 {vr(vK+4*i)}, v{vA0}, s[{rWS}:{rWS+3}], s{sTMP} offen offset:{16*i}")
    A("s_endpgm")
    late()

    C("---------------- stream: stage-W workgroups ----------------")
    A("L_s_w:")
    A(f"s_cmp_eq_u32 s{sCB}, 3")
    A("s_cbranch_scc1 L_s_x")
    stream("w", rw)
    A("s_branch L_tail")
    C("column block 3 loads its wo lines at half the rate of the others: it runs further ahead")
    A("L_s_x:")
    stream("w", rx, "x")
    A("s_branch L_tail")
    C("---------------- stream: FFN workgroups ----------------")
    A("L_s_f:")
    stream("f", rf)
    A("s_branch L_tail")
    C("---------------- retry paths ----------------")
    for c in cold:
        c()
    A("L_end:")
    A("s_endpgm")
    C("never executed: keeps the code prefetch inside the section")
    L.append(f".if (. - L_pc) > {PFL*4096}")
    L.append('.error "code prefetch too short"')
    L.append(".endif")
    L.append(f".fill ({PFL*4096} - (. - L_pc)) / 4, 4, 0xbf810000")
    L.append('.section .rodata,"a"')
    L.append(".p2align 6")
    L.append(f".amdhsa_kernel {NAME}_kernel")
    L.append("  .amdhsa_next_free_vgpr 256")
    L.append("  .amdhsa_next_free_sgpr 102")
    L.append("  .amdhsa_accum_offset 256")
    L.append("  .amdhsa_group_segment_fixed_size 0")
    L.append("  .amdhsa_kernarg_size 104")
    L.append("  .amdhsa_user_sgpr_count 2")
    L.append("  .amdhsa_user_sgpr_kernarg_segment_ptr 1")
    L.append("  .amdhsa_system_sgpr_workgroup_id_x 1")
    L.append("  .amdhsa_float_denorm_mode_32 3")
    L.append(".end_amdhsa_kernel")
    return "\n".join(L) + "\n", stamps


if __name__ == "__main__":
    header = open("cdna_kernels/" + NAME + ".s.ref").read().split("; Override launch")[0]
    kw = eval("dict(" + (sys.argv[2] if len(sys.argv) > 2 else "") + ")")
    src, _ = gen(**kw)
    open(sys.argv[1], "w").write(header + src)
```

```python
import sys
NAME = "sequential_preLN__mha_block_cached__dense_activation_squared_relu__decode"

WS_E = 0
WS_XC = 0x1000
WS_YP = 0x10000
WS_RACE = 0x20000
WS_QP = 0x40000
WS_ML = 0xA0000
WS_ZP = 0xB0000
ZSTR = 3200
WS_DIAG = 0x100000
WS_SIZE = 0x200000
L_OW = 0
L_F1 = 4096
L_CS = 8192
L_HS = 12288
L_ML = L_HS + 2048
L_ST = L_ML + 64
L_Q = L_ST + 192
L_FL = L_Q + 256
L_WA = 16384
L_WB = L_WA + 65536
LDS_BYTES = L_WB + 65536
assert L_Q + 256 <= L_WA and L_Q % 16 == 0

LOG2E = 0x3fb8aa3b
SCALE = 0x3db504f3
EPS = 0x3727c5ac
NF = 22
NW0 = 22

DOC = """
; One launch, one workgroup of 8 waves per CU.  wg = 8 r + X; group X owns heads 4X..4X+3, id = 32 X + r = 8 head + s,
; s = 4 batch + quarter: the workgroup owns 1024 keys of one (batch, head).
;   q      wave 0 multiplies LN(x) (both batches) with 64 rows of the head's wq slice; wave QW adds the 8 partial sums.
;          The four workgroups of a (batch, head) trade (max, sum) half way, so each publishes a normalised partial o.
;   W      8 workgroups of every group multiply o (4 heads) with a 512 x 64 block of wo and publish y.  The products of
;          the tail use v_smfmac with the dense weights as B; two 2-of-4 rows of A hold one full activation row.
;   F      22 workgroups of group 0 add the 8 y and x, and run LN + w1 + relu^2 + w2 for 64 hidden columns each
;          (LN is applied after the product: (h w1 - mean colsum(w1)) * rstd); all 32 add the partial sums at the end.
; Hand-offs go through d_ws.  Every word carries one byte of T = E + 0x01010101 in its low byte, E being the epoch word
; group is stored through to memory unless all 32 workgroups of the group have reported the writer's own die.
"""


def gen(diag=False, only=None, local=True, minT=0, minX=None, now=(),
        rn="3" * 14 + "2" * 6, rw="3" * 13 + "222333", rx="3" * 14 + "444", rf="33" + "4" * 14, f0=22,
        pq=21, p1=8, p2=19, qw=1, sw=0, px=14, fw=7, budget=110, PFL=8, mid=4, wmid=3):
    L = []

    def A(s):
        L.append("    " + s if not s.endswith(":") else s)

    def C(s):
        L.append("    ; " + s)

    def nop(n):
        if n > 0:
            A(f"s_nop {n-1}")

    def vr(a, n=4):
        return f"v[{a}:{a+n-1}]"

    sX, sK, sV, sWQ, sWO, sW1, sB1, sW2, sB2, sOUT, sWS = 8, 10, 12, 14, 16, 20, 22, 24, 26, 28, 32
    sPC = 34
    rK, rV, rWS, rT = 36, 40, 44, 48
    sGX, sR, sH, sS, sB, sWV = 52, 53, 54, 55, 56, 57
    sT, sT0, sT1, sT2, sT3 = 58, 59, 60, 61, 62
    sLOC, sCNT, sTMP, sTMP2, sXW = 63, 64, 65, 66, 67
    sBASE, sTILE = 68, 69
    sID, sXCC = 70, 71
    rB = 72
    sD1, sD3 = 76, 77
    sQO, sCB, sML = 78, 79, 80
    sVOTE, sR0, sR1 = 81, 82, 83
    sEX = 86
    Tk = [sT0, sT1, sT2, sT3]

    vDA = 0
    vL, vG, vC = 1, 2, 3
    vKV = 4
    vA0, vA1, vA2 = 5, 6, 7
    vQ = 8
    vMK = 12
    vACC = 16
    vS = 20
    vFF = 28
    vM = 29
    vT0, vT1 = 30, 31
    vTMP = 32
    vK = 48
    vV = 176
    NRING = 20
    vW1 = vK
    vW2 = vK + 32
    vF = vK + 64
    vIX = vK + 72
    vVAL = vK + 73
    vXO = vK + 74
    vHR = vK + 75
    vXR = vK + 76
    vB1R = vK + 78
    vCS = vK + 80
    vTa, vTb = vK + 82, vK + 83
    vB2R = vK + 84
    vL8 = vK + 85
    vAA = vK + 86
    vBA = vK + 87
    vYR = vK + 88
    vEPS = vK + 88
    vFW = vK + 89
    vSA = vK + 90
    vSR = vK + 91
    vFC = vK + 93
    vYS = vK + 94
    vONE = vK + 96
    vXC = vK + 97
    vOWA = vK + 98
    vDUM = vK + 99
    vMLG = vK + 100
    vMLW = vK + 104
    vG16 = vK + 106
    vHW = vK + 107
    vD0, vD1 = vK + 108, vK + 112
    vP = vK + 116
    vL16 = vK + 118
    vFR = vK + 119
    vD2, vD3 = vK + 120, vK + 124
    vOS = vK + 80
    vTG = vQ
    g0 = vTMP
    vBM = 12
    vW2b = vV
    vE = vV + 32
    st = vV + 64
    s0, s1 = vT0, vT1

    stamps = []

    def dslot(i):
        return ([88 + k for k in range(12)])[i]

    def stamp(name):
        if not diag:
            return
        if only is not None and name not in only and name not in ("strm", "end"):
            return
        if only is None and name.startswith("_"):
            return
        if name not in stamps:
            stamps.append(name)
        A(f"s_memrealtime s[{sEX}:{sEX+1}]")
        A("s_waitcnt lgkmcnt(0)")
        A(f"s_mov_b32 s{dslot(stamps.index(name))}, s{sEX}")

    def srd(r, p, size):
        A(f"s_mov_b32 s{r}, s{p}")
        A(f"s_mov_b32 s{r+1}, s{p+1}")
        A(f"s_mov_b32 s{r+2}, {size}")
        A(f"s_mov_b32 s{r+3}, 0x20000")

    def tag4(base):
        for k in range(4):
            A(f"v_bfi_b32 v{base+k}, v{vFF}, s{Tk[k]}, v{base+k}")

    def untag(base, n, acc, tags, wait=None):
        for i in range(n):
            if wait is not None:
                A(f"s_waitcnt vmcnt({n - 1 - i})")
            b = base + 4 * i
            for k in range(4):
                A(f"v_xor_b32 v{b+k}, {tags[k]}, v{b+k}")
            if i == 0:
                A(f"v_or3_b32 v{acc}, v{b}, v{b+1}, v{b+2}")
            else:
                A(f"v_or3_b32 v{acc}, v{acc}, v{b-1}, v{b}")
                A(f"v_or3_b32 v{acc}, v{acc}, v{b+1}, v{b+2}")
        A(f"v_or_b32 v{acc}, v{acc}, v{base+4*n-1}")
        A(f"v_cmp_ne_u32_sdwa vcc, v{acc}, 0 src0_sel:BYTE_0 src1_sel:DWORD")
    STAGS = [f"s{t}" for t in Tk]
    VTAGS = [f"v{vTG+k}" for k in range(4)]

    cold = []

    def poll_rare(name, issue, check):
        A(f"s_mov_b32 s{sCNT}, 0x20000")
        A(f"L_{name}_chk:")
        check()
        A(f"s_cbranch_vccnz L_{name}_again")
        A(f"L_{name}_ok:")

        def retry():
            A(f"L_{name}_again:")
            A(f"s_sub_u32 s{sCNT}, s{sCNT}, 1")
            A(f"s_cbranch_scc1 L_{name}_ok")
            issue()
            A("s_waitcnt vmcnt(0)")
            A(f"s_branch L_{name}_chk")
        cold.append(retry)

    def poll(name, issue, n, init=True):
        if init:
            A(f"s_mov_b32 s{sCNT}, 0x40000")
            A("s_mov_b64 vcc, -1")
        A(f"L_{name}_again:")
        A("s_mov_b64 exec, vcc")
        issue()
        A(f"s_sub_u32 s{sCNT}, s{sCNT}, 1")
        A(f"s_cbranch_scc1 L_{name}_ok")
        A(f"L_{name}_chk:")
        untag(g0, n, vT0, VTAGS, wait=True)
        A(f"s_cbranch_vccnz L_{name}_again")
        A(f"L_{name}_ok:")
        A("s_mov_b64 exec, -1")

    def publish(name, *lines, farfirst=False):
        A(f"s_cbranch_scc{0 if farfirst else 1} L_{name}_alt")
        for line in lines:
            A(line + (" sc1" if farfirst else ""))
        A(f"s_branch L_{name}_pub")
        A(f"L_{name}_alt:")
        for line in lines:
            A(line + ("" if farfirst else " sc1"))
        A(f"L_{name}_pub:")

    def dpp(op, d, a, b, ctl, bank=0xf):
        A(f"{op}_dpp v{d}, v{a}, v{b} {ctl} row_mask:0xf bank_mask:{hex(bank)}")

    X1, X2, HM = "quad_perm:[1,0,3,2]", "quad_perm:[2,3,0,1]", "row_half_mirror"

    def round_bf16(regs, tmp):
        for i in range(0, len(regs), 2):
            A(f"v_cvt_pk_bf16_f32 v{tmp+i//2}, v{regs[i]}, v{regs[i+1]}")
        for i in range(0, len(regs), 2):
            A(f"v_lshlrev_b32 v{regs[i]}, 16, v{tmp+i//2}")
            A(f"v_and_b32 v{regs[i+1]}, 0xffff0000, v{tmp+i//2}")

    def round1(r):
        A(f"v_cvt_pk_bf16_f32 v{r}, v{r}, v{r}")
        A(f"v_lshlrev_b32 v{r}, 16, v{r}")

    def unpack(dst, src, n):
        for i in range(n):
            A(f"v_lshlrev_b32 v{dst+2*i}, 16, v{src+i}")
            A(f"v_and_b32 v{dst+2*i+1}, 0xffff0000, v{src+i}")

    def widen(r):
        A(f"v_lshlrev_b32 v{r}, 16, v{r}")
        A(f"v_lshlrev_b32 v{r+1}, 16, v{r+1}")

    def pk(op, d, a, b, c=None, extra=""):
        if c is None:
            A(f"v_pk_{op}_f32 {vr(d,2)}, {vr(a,2)}, {vr(b,2)}{extra}")
        else:
            A(f"v_pk_{op}_f32 {vr(d,2)}, {vr(a,2)}, {vr(b,2)}, {vr(c,2)}{extra}")
    lo, lo3, hi3 = " op_sel_hi:[1,0]", " op_sel_hi:[1,0,1]", " op_sel:[0,1,0]"

    def sum8(g, out=None):
        for i in range(4):
            pk("add", g + 4 * i, g + 4 * i, g + 4 * i + 2)
        pk("add", g, g, g + 4)
        pk("add", g + 8, g + 8, g + 12)
        pk("add", g if out is None else out, g, g + 8)

    def mfma(d, a, b, c):
        A(f"v_mfma_f32_16x16x32_bf16 {vr(d)}, {vr(a)}, {vr(b)}, " + ("0" if c is None else vr(c)))

    DACC = [vD0, vD1, vD2, vD3]

    def smfmac(d, b):
        A(f"v_smfmac_f32_16x16x64_bf16 {vr(d)}, {vr(vBM)}, {vr(b, 8)}, v{vIX}")

    def operand(mask=None):
        for k in range(4):
            ctl = f"quad_perm:[{k},{k},{k},{k}] row_mask:0xf bank_mask:0xf"
            if mask is None:
                A(f"v_mov_b32_dpp v{vBM+k}, v{vP} {ctl}")
            else:
                A(f"v_and_b32_dpp v{vBM+k}, v{vP}, v{mask} {ctl}")

    def zero(regs):
        for r in regs:
            A(f"v_mov_b32 v{r}, 0")

    def merge_tiles(out):
        A(f"v_permlane32_swap_b32 v{vD0}, v{vD2}")
        A(f"v_permlane32_swap_b32 v{vD1}, v{vD3}")
        A(f"v_add_f32 v{out}, v{vD0}, v{vD2}")
        A(f"v_add_f32 v{out+1}, v{vD1}, v{vD3}")

    def vreg(i):
        return vV + 4 * (i % NRING)

    def kvload(kind, i):
        t, j = divmod(i, 4)
        if t and j == 0:
            A(f"s_xor_b32 s{sTILE}, s{sBASE}, {t << 15}")
        dst, r = (vK + 4 * i, rK) if kind == "K" else (vreg(i), rV)
        A(f"buffer_load_dwordx4 {vr(dst)}, v{vKV}, s[{r}:{r+3}], s{sTILE if t else sBASE} offen offset:{(0, 2048, 1024, 3072)[j]} nt")

    def make_masks():
        A(f"v_and_b32 v{vA0}, 1, v{vL}")
        A(f"v_lshlrev_b32 v{vA0}, 4, v{vA0}")
        A(f"v_mov_b32 v{vA1}, 0xffff")
        A(f"v_lshlrev_b32 v{vA1}, v{vA0}, v{vA1}")
        A(f"v_bfe_u32 v{vA0}, v{vL}, 1, 2")
        for j in range(4):
            A(f"v_cmp_eq_u32 vcc, {j}, v{vA0}")
            nop(2)
            A(f"v_cndmask_b32 v{vMK+j}, 0, v{vA1}, vcc")

    def epoch():
        A("s_waitcnt lgkmcnt(0)")
        if diag:
            for i in range(1, 12):
                A(f"s_mov_b32 s{dslot(i)}, 0")
            A(f"s_mov_b32 s{dslot(0)}, s{sEX}")
        srd(rV, sV, 0x4000000)
        A(f"s_add_u32 s{sT}, s{sT}, 0x01010101")
        A(f"s_and_b32 s{sT0}, s{sT}, 0xff")
        A(f"s_bfe_u32 s{sT1}, s{sT}, 0x80008")
        A(f"s_bfe_u32 s{sT2}, s{sT}, 0x80010")
        A(f"s_lshr_b32 s{sT3}, s{sT}, 24")
        A(f"s_lshl_b32 s{sXW}, s{sXCC}, 28")
        A(f"s_add_u32 s{sXW}, s{sXW}, s{sT}")

    def ypage(p):
        A(f"s_and_b32 s{sTMP}, s{p}, 6")
        A(f"s_add_u32 s{sTMP}, s{sTMP}, s{p}")
        A(f"s_lshl_b32 s{sTMP}, s{sTMP}, 12")
        A(f"s_add_u32 s{sTMP}, s{sTMP}, {WS_YP}")

    def xc_load():
        A(f"v_and_b32 v{vA0}, 31, v{vL}")
        A(f"v_lshlrev_b32 v{vA0}, 2, v{vA0}")
        A(f"s_lshl_b32 s{sTMP}, s{sGX}, 7")
        A(f"s_add_u32 s{sTMP}, s{sTMP}, {WS_XC}")
        A(f"buffer_load_dword v{vM}, v{vA0}, s[{rWS}:{rWS+3}], s{sTMP} offen sc1")

    def xc_check():
        A(f"s_xor_b32 s{sTMP}, s{sXW}, {1 << 27}")
        A(f"v_cmp_eq_u32 vcc, s{sTMP}, v{vM}")
        A(f"v_xor_b32 v{vM}, s{sXW}, v{vM}")
        A(f"v_and_b32 v{vM}, {hex(0xffffffff ^ (1 << 27))}, v{vM}")
        A(f"s_bcnt1_i32_b32 s{sTMP}, vcc_lo")
        A(f"v_cmp_ne_u32 vcc, 0, v{vM}")
        A(f"s_cmp_ge_u32 s{sTMP}, 15")
        A(f"s_cselect_b32 s{sTMP}, 0, 0x2000")
        A("s_cmp_eq_u64 vcc, 0")
        A(f"s_cselect_b32 s{sLOC}, {1 if local else 0}, 0")
        A(f"s_or_b32 s{sTMP}, s{sTMP}, s{sLOC}")
        A(f"v_mov_b32 v{vA0}, {L_FL}")
        A(f"v_mov_b32 v{vA1}, s{sTMP}")
        A(f"ds_write_b32 v{vA0}, v{vA1}")

    L.append(f"; @launch grid=(256,1,1) block=(512,1,1) lds={LDS_BYTES}")
    L.extend(DOC.strip("\n").replace("QW", str(qw)).split("\n"))
    L.append('.amdgcn_target "amdgcn-amd-amdhsa--gfx950"')
    L.append(".text")
    L.append(f".globl {NAME}_kernel")
    L.append(".p2align 8")
    L.append(f".type {NAME}_kernel,@function")
    L.append(f"{NAME}_kernel:")
    C("the first 256 bytes arrive with the first instruction fetch: they hold everything up to the first loads")
    A(f"s_load_dwordx2 s[{rK}:{rK+1}], s[0:1], 8")
    A("s_load_dwordx2 s[32:33], s[0:1], 96")
    A("s_load_dwordx2 s[6:7], s[0:1], 0")
    A(f"s_lshr_b32 s{sR}, s2, 3")
    A(f"s_cmp_ge_u32 s{sR}, 32")
    A("s_cbranch_scc1 L_end")
    A(f"s_getpc_b64 s[{sPC}:{sPC+1}]")
    A("L_pc:")
    if minT:
        A("s_memrealtime s[100:101]")
    if diag:
        if only != ["vote"]:
            A(f"s_memrealtime s[{sEX}:{sEX+1}]")
        stamps.append("start")
    C("pull the kernel's code into this die's L2: line r + 32 lane, a few lanes of wave 0 (values unused)")
    A(f"v_lshl_add_u32 v{vT0}, v0, 5, s{sR}")
    A(f"v_cmp_gt_u32 vcc, {PFL}, v0")
    A(f"v_lshlrev_b32 v{vT0}, 7, v{vT0}")
    A("s_and_b64 exec, exec, vcc")
    A("s_cbranch_scc0 L_nopf")
    A(f"global_load_dword v{vT0}, v{vT0}, s[{sPC}:{sPC+1}]")
    A("L_nopf:")
    A("s_mov_b64 exec, -1")
    A(f"v_lshrrev_b32 v{vA0}, 6, v0")
    A(f"v_and_b32 v{vL}, 63, v0")
    A(f"v_lshlrev_b32 v{vKV}, 12, v{vA0}")
    A(f"v_lshl_add_u32 v{vKV}, v{vL}, 4, v{vKV}")
    A(f"s_and_b32 s{sGX}, s2, 7")
    A(f"s_lshl_b32 s{sID}, s{sGX}, 5")
    A(f"s_add_u32 s{sID}, s{sID}, s{sR}")
    A(f"s_lshr_b32 s{sH}, s{sID}, 3")
    A(f"s_and_b32 s{sB}, s{sR}, 4")
    A(f"s_and_b32 s{sTMP}, s{sR}, 3")
    A(f"s_and_b32 s{sS}, s{sR}, 7")
    A(f"s_lshl3_add_u32 s{sBASE}, s{sB}, s{sH}")
    A(f"s_lshl2_add_u32 s{sBASE}, s{sBASE}, s{sTMP}")
    A(f"s_lshl3_add_u32 s{sBASE}, s{sBASE}, s{sS}")
    A(f"s_lshl_b32 s{sBASE}, s{sBASE}, 15")
    A(f"s_brev_b32 s{rK+2}, 32")
    A(f"s_lshl_b32 s{rK+3}, 1, 17")
    A(f"v_readfirstlane_b32 s{sWV}, v{vA0}")
    A(f"s_lshl_b32 s{sTMP}, s{sR}, 6")
    A(f"s_lshl3_add_u32 s{sD1}, s{sGX}, s{sWV}")
    A(f"s_cmp_lg_u32 s{sWV}, 3")
    A("s_waitcnt lgkmcnt(0)")
    A("s_cbranch_scc1 L_nox")
    C("wave 3 pulls x into this die's L2 ahead of the K traffic (value unused)")
    A(f"s_load_dword s{sR0}, s[6:7], s{sTMP}")
    A("L_nox:")
    C("wave 2 of the group-0 workgroups reads one word under each value of address bit 13, which picks the memory half")
    C("(values unused): if the second is still under way when the first is back, the first half is the nearer one")
    assert WS_RACE == 1 << 17
    A(f"s_cmp_lg_u32 s{sD1}, 2")
    A("s_cbranch_scc1 L_norace")
    A(f"s_bitset1_b32 s{sTMP}, 17")
    A(f"s_load_dword s{sR0}, s[{sWS}:{sWS+1}], s{sTMP}")
    A(f"s_bitset1_b32 s{sTMP}, 13")
    A(f"s_load_dword s{sR1}, s[{sWS}:{sWS+1}], s{sTMP}")
    A("L_norace:")
    for i in range(4):
        kvload("K", i)
    A("s_waitcnt lgkmcnt(1)")
    A(f"s_cmp_lg_u32 s{sWV}, 0")
    A(f"s_getreg_b32 s{sVOTE}, hwreg(HW_REG_IB_STS, 8, 1)")
    A(f"v_lshrrev_b32 v{vG}, 4, v{vL}")
    A(f"v_and_b32 v{vC}, 15, v{vL}")
    A("s_cbranch_scc1 L_rest")

    def more_args(first):
        A(f"s_load_dword s{sT}, s[{sWS}:{sWS+1}], {WS_E}")
        if first:
            A("s_load_dwordx8 s[8:15], s[0:1], 0")
        A("s_load_dwordx16 s[16:31], s[0:1], 32")

    def common_setup():
        A(f"v_mov_b32 v{vFF}, 0xff")
        A(f"s_getreg_b32 s{sXCC}, hwreg(HW_REG_XCC_ID, 0, 4)")
        srd(rWS, sWS, WS_SIZE)

    K0 = 10
    C("---------------- wave 0: partial q ----------------")
    A("s_load_dwordx8 s[8:15], s[0:1], 0")
    vXS, vXA, vW = vTMP, vTMP + 8, vV
    vY, vAB = vV + 64, vK + 64
    A(f"v_lshrrev_b32 v{vA0}, 3, v{vC}")
    A(f"v_lshlrev_b32 v{vA0}, 10, v{vA0}")
    A(f"v_and_b32 v{vA1}, 7, v{vC}")
    A(f"v_lshl_add_u32 v{vA1}, v{vG}, 3, v{vA1}")
    A(f"v_lshl_add_u32 v{vA1}, v{vA1}, 5, v{vA0}")
    A(f"v_lshl_add_u32 v{vA0}, v{vG}, 5, v{vA0}")
    A(f"s_lshl_b32 s{sTMP}, s{sS}, 7")
    A(f"v_add_u32 v{vA0}, s{sTMP}, v{vA0}")
    A("s_waitcnt lgkmcnt(0)")
    A(f"global_load_dwordx4 {vr(vXS)}, v{vA1}, s[{sX}:{sX+1}]")
    A(f"global_load_dwordx4 {vr(vXS+4)}, v{vA1}, s[{sX}:{sX+1}] offset:16")
    A(f"global_load_dwordx4 {vr(vXA)}, v{vA0}, s[{sX}:{sX+1}]")
    A(f"global_load_dwordx4 {vr(vXA+4)}, v{vA0}, s[{sX}:{sX+1}] offset:16")
    srd(rT, sWQ, 0 if "wq" in now else 0x400000)
    A(f"s_lshl_b32 s{sTMP}, s{sS}, 19")
    A(f"s_lshl_b32 s{sTMP2}, s{sH}, 8")
    A(f"s_add_u32 s{sTMP}, s{sTMP}, s{sTMP2}")
    A(f"v_lshlrev_b32 v{vA2}, 17, v{vG}")
    A(f"v_lshl_add_u32 v{vA2}, v{vC}, 4, v{vA2}")
    for j in range(16):
        A(f"buffer_load_dwordx4 {vr(vW+4*j)}, v{vA2}, s[{rT}:{rT+3}], s{sTMP} offen nt")
        if j < 15:
            A(f"s_add_u32 s{sTMP}, s{sTMP}, 8192")
    common_setup()
    for i in range(4, 7):
        kvload("K", i)
    more_args(False)
    A("s_barrier")
    make_masks()
    A(f"v_mov_b32 v{vA0}, 0x3f803f80")
    A("s_waitcnt vmcnt(21)")
    for i in range(8):
        A(f"v_dot2_f32_bf16 v{s0}, v{vXS+i}, v{vA0}, " + ("0" if i == 0 else f"v{s0}"))
        A(f"v_dot2_f32_bf16 v{s1}, v{vXS+i}, v{vXS+i}, " + ("0" if i == 0 else f"v{s1}"))
    nop(3)
    for ctl in (X1, X2, HM):
        dpp("v_add_f32", s0, s0, s0, ctl)
        dpp("v_add_f32", s1, s1, s1, ctl)
        nop(1)
    for sw_ in ("v_permlane16_swap_b32", "v_permlane32_swap_b32"):
        A(f"v_mov_b32 v{vA0}, v{s0}")
        A(f"v_mov_b32 v{vA1}, v{s1}")
        nop(2)
        A(f"{sw_} v{s0}, v{vA0}")
        A(f"{sw_} v{s1}, v{vA1}")
        A(f"v_add_f32 v{s0}, v{s0}, v{vA0}")
        A(f"v_add_f32 v{s1}, v{s1}, v{vA1}")
    C("mean and 1 / sqrt(var + eps), rounded to bf16 where the reference rounds")
    A(f"v_mul_f32 v{s0}, 0x3b000000, v{s0}")
    A(f"v_mul_f32 v{s1}, 0x3b000000, v{s1}")
    A(f"v_fma_f32 v{s1}, -v{s0}, v{s0}, v{s1}")
    A(f"v_max_f32 v{s1}, 0, v{s1}")
    A(f"v_cvt_pk_bf16_f32 v{s1}, v{s0}, v{s1}")
    A(f"v_lshlrev_b32 v{s0}, 16, v{s1}")
    A(f"v_and_b32 v{s1}, 0xffff0000, v{s1}")
    A(f"v_add_f32 v{s1}, {hex(EPS)}, v{s1}")
    round1(s1)
    A(f"v_sqrt_f32 v{s1}, v{s1}")
    nop(1)
    round1(s1)
    A(f"v_rcp_f32 v{s1}, v{s1}")
    A("s_waitcnt vmcnt(19)")
    unpack(vY, vXA, 8)
    for i in range(0, 16, 2):
        pk("add", vY + i, vY + i, s0, extra=" op_sel_hi:[1,0] neg_lo:[0,1] neg_hi:[0,1]")
    round_bf16([vY + i for i in range(16)], vXS)
    for i in range(0, 16, 2):
        pk("mul", vY + i, vY + i, s0, extra=" op_sel:[0,1]")
    for i in range(16):
        A(f"v_cvt_pk_bf16_f32 v{vY+i}, v{vY+i}, v{vY+i}")
    for j in range(16):
        for k in range(4):
            A(f"v_and_b32 v{vAB+4*j+k}, v{vMK+k}, v{vY+j}")
    epoch()
    for j in range(16):
        A(f"s_waitcnt vmcnt({18-j})")
        mfma(vACC, vAB + 4 * j, vW + 4 * j, None if j == 0 else vACC)
    for i in range(7, K0):
        kvload("K", i)
    def q_addr():
        A(f"v_lshrrev_b32 v{vA0}, 5, v{vL}")
        A(f"v_lshlrev_b32 v{vA0}, 12, v{vA0}")
        A(f"v_and_b32 v{vA1}, 31, v{vL}")
        A(f"v_lshl_add_u32 v{vA0}, v{vA1}, 4, v{vA0}")
        A(f"s_lshl_b32 s{sTMP}, s{sH}, 13")
        A(f"s_lshl_b32 s{sTMP2}, s{sS}, 9")
        A(f"s_add_u32 s{sTMP}, s{sTMP}, s{sTMP2}")
        A(f"s_add_u32 s{sTMP}, s{sTMP}, {WS_QP}")
    q_addr()
    tag4(vACC)
    C("stays on this die for now; written through below unless the whole group turns out to share the die")
    A(f"buffer_store_dwordx4 {vr(vACC)}, v{vA0}, s[{rWS}:{rWS+3}], s{sTMP} offen")
    stamp("qpub")
    A("s_branch L_join")

    C("---------------- waves 1..7 ----------------")
    A("L_rest:")
    C("wave 2 resets the LDS tables that other waves of this workgroup fill later")
    A(f"s_cmp_lg_u32 s{sWV}, 2")
    A("s_cbranch_scc1 L_noreset")
    A(f"v_lshlrev_b32 v{vA0}, 2, v{vC}")
    A(f"v_mov_b32 v{vA1}, -1")
    A(f"ds_write_b32 v{vA0}, v{vA1} offset:{L_ML}")
    A(f"v_lshlrev_b32 v{vA0}, 2, v{vL}")
    A(f"ds_write_b32 v{vA0}, v{vA1} offset:{L_Q}")
    A("s_waitcnt lgkmcnt(0)")
    A("L_noreset:")
    more_args(True)
    common_setup()
    make_masks()
    for i in range(4, 7):
        A("s_waitcnt vmcnt(3)")
        kvload("K", i)
    A("s_barrier")
    epoch()
    C("wave 2 reports this workgroup's die; a reader on another die just does not see the word")
    A(f"s_cmp_lg_u32 s{sWV}, 2")
    A("s_cbranch_scc1 L_noxc")
    A(f"s_lshl_b32 s{sTMP}, s{sVOTE}, 27")
    A(f"s_xor_b32 s{sTMP}, s{sTMP}, s{sXW}")
    A(f"s_lshl_b32 s{sTMP2}, s{sID}, 2")
    A(f"s_add_u32 s{sTMP2}, s{sTMP2}, {WS_XC}")
    A(f"v_mov_b32 v{vA1}, s{sTMP}")
    A("s_mov_b64 exec, 1")
    A(f"buffer_store_dword v{vA1}, v{vL}, s[{rWS}:{rWS+3}], s{sTMP2} offen")
    A("s_mov_b64 exec, -1")
    A("L_noxc:")
    for i in range(7, K0):
        A("s_waitcnt vmcnt(2)")
        kvload("K", i)
    A("L_join:")
    stamp("_join")
    A(f"v_cmp_gt_u32 vcc, 8, v{vC}")
    A(f"s_mov_b32 s{sLOC}, 0")
    C("touch the group's hand-off slots (values unused): the lines are then valid in this die's L2 when they are read")
    A(f"s_lshl3_add_u32 s{sTMP}, s{sID}, s{sWV}")
    A(f"s_lshl_b32 s{sTMP2}, s{sTMP}, 7")
    A(f"s_add_u32 s{sTMP2}, s{sTMP2}, {WS_QP + 60}")
    A(f"s_load_dwordx2 s[84:85], s[{sWS}:{sWS+1}], s{sTMP2}")
    A(f"s_lshl_b32 s{sTMP2}, s{sID}, 2")
    A(f"s_add_u32 s{sTMP2}, s{sTMP2}, {WS_XC}")
    A(f"s_load_dword s{sR0}, s[{sWS}:{sWS+1}], s{sTMP2}")
    A(f"s_lshl_b32 s{sTMP}, s{sTMP}, 4")
    A(f"s_add_u32 s{sTMP}, s{sTMP}, {WS_ML}")
    A(f"s_load_dword s{sR1}, s[{sWS}:{sWS+1}], s{sTMP}")
    A(f"s_sub_u32 s{sCB}, s{sR}, {NW0}")
    A(f"s_lshl_b32 s{sD3}, s{sWV}, 13")
    for j in range(4):
        A(f"v_cndmask_b32 v{vMK+j}, 0, v{vMK+j}, vcc")
    A(f"v_lshlrev_b32 v{vA2}, 4, v{vL}")
    A(f"s_cmp_lt_u32 s{sID}, {NF}")
    A("s_cbranch_scc1 L_s_f")
    A(f"s_cmp_lt_u32 s{sCB}, 8")
    A("s_cbranch_scc1 L_s_w")

    def w_dma(which, j):
        def row0(p):
            u, gh, e = p >> 2, (p >> 1) & 1, p & 1
            return 32 * u + (16 * gh + 4 * e if which == "wo" else 8 * gh + 2 * e)
        pitch = 2752 if which == "w1" else 1024
        base = L_WB if which == "w2" else L_WA
        if j == 0:
            w_srd(which)
            if which == "wo":
                A(f"v_lshrrev_b32 v{vDA}, 3, v{vL}")
                A(f"v_and_b32 v{vA0}, 4, v{vDA}")
                A(f"v_add_u32 v{vDA}, v{vA0}, v{vDA}")
            else:
                A(f"v_and_b32 v{vDA}, 2, v{vG}")
                A(f"v_and_b32 v{vA0}, 8, v{vL}")
                A(f"v_add_u32 v{vDA}, v{vA0}, v{vDA}")
                A(f"v_and_b32 v{vA0}, 1, v{vG}")
                A(f"v_lshl_add_u32 v{vDA}, v{vDA}, 1, v{vA0}")
            A(f"v_mul_u32_u24 v{vDA}, {pitch}, v{vDA}")
            A(f"v_lshlrev_b32 v{vA0}, 1, v{vG}")
            A(f"v_xor_b32 v{vA0}, v{vL}, v{vA0}")
            A(f"v_and_b32 v{vA0}, 7, v{vA0}")
            A(f"v_lshl_add_u32 v{vDA}, v{vA0}, 4, v{vDA}")
            if which == "wo":
                A(f"s_lshl_b32 s{sD1}, s{sGX}, 19")
                A(f"s_lshl_b32 s{sTMP2}, s{sWV}, 16")
                A(f"s_add_u32 s{sD1}, s{sD1}, s{sTMP2}")
                A(f"s_lshl_b32 s{sTMP2}, s{sCB}, 7")
            elif which == "w1":
                A(f"s_mul_i32 s{sD1}, s{sWV}, {64*2752}")
                A(f"s_lshl_b32 s{sTMP2}, s{sR}, 7")
            else:
                A(f"s_lshl_b32 s{sD1}, s{sR}, 16")
                A(f"s_lshl_b32 s{sTMP2}, s{sWV}, 7")
            A(f"s_add_u32 m0, s{sD3}, {base}")
            A(f"s_add_u32 s{sD1}, s{sD1}, s{sTMP2}")
        else:
            A(f"s_add_u32 m0, s{sD3}, {base + j*1024}")
            A(f"s_add_u32 s{sD1}, s{sD1}, {(row0(j) - row0(j-1))*pitch}")
        A(f"buffer_load_dwordx4 v{vDA}, s[{rT}:{rT+3}], s{sD1} offen nt lds")

    def w_srd(which):
        ptr, size = {"wo": (sWO, 0x400000), "w1": (sW1, 512 * 2752), "w2": (sW2, 1376 * 1024)}[which]
        srd(rT, ptr, 0 if which in now else size)

    TRA = [vA0, vA1, vA2, vM]

    def tr_addr(base):
        A(f"v_bfe_u32 v{vA1}, v{vL}, 2, 3")
        A(f"v_lshrrev_b32 v{vA2}, 1, v{vA1}")
        A(f"v_lshl_add_u32 v{vA1}, v{vA1}, 2, v{vA2}")
        A(f"v_and_b32 v{vA2}, 3, v{vL}")
        A(f"v_lshl_add_u32 v{vA1}, v{vA1}, 2, v{vA2}")
        A(f"v_lshrrev_b32 v{vA2}, 5, v{vL}")
        A(f"v_lshl_add_u32 v{vA1}, v{vA2}, 8, v{vA1}")
        A(f"s_add_u32 s{sTMP}, s{sD3}, {base}")
        A(f"v_lshl_add_u32 v{vA0}, v{vA1}, 3, s{sTMP}")
        for tau in range(1, 4):
            A(f"v_xor_b32 v{TRA[tau]}, {32*tau}, v{vA0}")

    def tr_block(dst, off=0, between="s_waitcnt lgkmcnt(0)"):
        for u in range(2):
            for tau in range(4):
                for e in range(2):
                    A(f"ds_read_b64_tr_b16 {vr(dst+8*tau+4*u+2*e,2)}, v{TRA[tau]} offset:{off + (4*u + e)*1024}")
            if u == 0:
                A(between)

    def stream(role, rounds, lab=None):
        lab = lab or role
        ops = [("K", i) for i in range(K0)]
        landed = [0]

        def wait_n(n):
            if len(ops) - n > landed[0]:
                A(f"s_waitcnt vmcnt({n})")
                landed[0] = len(ops) - n

        def wait_for(key):
            wait_n(len(ops) - 1 - ops.index(key))

        def has(key):
            return key in ops and ops.index(key) < landed[0]

        mark = {}

        def only_wave(name, wave, body):
            A(f"s_cmp_lg_u32 s{sWV}, {wave}")
            A(f"s_cbranch_scc1 L_{name}{lab}_skip")
            body()
            A(f"L_{name}{lab}_skip:")
            mark[name] = len(ops)

        def later(name):
            return name in mark and len(ops) > mark[name]

        def wait_own(name):
            A(f"s_waitcnt vmcnt({len(ops) - mark[name]})")

        def xc_issue():
            only_wave("xi", 0, xc_load)

        def xc_finish():
            def body():
                wait_own("xi")
                xc_check()
                A(f"s_cmp_eq_u32 s{sLOC}, 0")
                A(f"s_cbranch_scc1 L_qfar{lab}")

                def far():
                    A(f"L_qfar{lab}:")
                    q_addr()
                    A(f"buffer_store_dwordx4 {vr(vACC)}, v{vA0}, s[{rWS}:{rWS+3}], s{sTMP} offen sc1")
                    A(f"s_branch L_xf{lab}_skip")
                cold.append(far)
            only_wave("xf", 0, body)

        def q_loads():
            for i in range(4):
                A(f"buffer_load_dwordx4 {vr(vTMP+4*i)}, v{vA2}, s[{rWS}:{rWS+3}], s{sQO} offen offset:{1024*i} sc1")

        def q_issue():
            def body():
                A(f"s_lshl_b32 s{sQO}, s{sH}, 13")
                A(f"s_lshl_b32 s{sTMP2}, s{sB}, 10")
                A(f"s_add_u32 s{sQO}, s{sQO}, s{sTMP2}")
                A(f"s_add_u32 s{sQO}, s{sQO}, {WS_QP}")
                q_loads()
            only_wave("qi", qw, body)

        def q_finish():
            def body():
                wait_own("qi")
                poll_rare("q" + lab, q_loads, lambda: untag(vTMP, 4, vT0, STAGS))
                a = vTMP
                for i in range(0, 8, 2):
                    pk("add", a + i, a + i, a + 8 + i)
                pk("add", a, a, a + 4)
                pk("add", a + 2, a + 2, a + 6)
                A(f"v_and_b32 v{vA0}, 1, v{vG}")
                A(f"v_lshlrev_b32 v{vA0}, 3, v{vA0}")
                A(f"v_permlane32_swap_b32 v{a}, v{a+2}")
                A(f"v_permlane32_swap_b32 v{a+1}, v{a+3}")
                A(f"v_lshl_add_u32 v{vA0}, v{vC}, 4, v{vA0}")
                A(f"v_lshrrev_b32 v{vA1}, 1, v{vG}")
                pk("add", a, a, a + 2)
                A(f"v_lshl_add_u32 v{vA0}, v{vA1}, 2, v{vA0}")
                A(f"v_cvt_pk_bf16_f32 v{a}, v{a}, v{a+1}")
                A(f"ds_write_b32 v{vA0}, v{a} offset:{L_Q}")
            only_wave("qf", qw, body)

        def q_read():
            n = "qr" + lab
            A(f"v_lshlrev_b32 v{vA0}, 4, v{vC}")
            A(f"s_mov_b32 s{sCNT}, 0x200000")
            A(f"L_{n}_spin:")
            A(f"ds_read_b128 {vr(vQ)}, v{vA0} offset:{L_Q}")
            A(f"s_sub_u32 s{sCNT}, s{sCNT}, 1")
            A(f"s_cbranch_scc1 L_{n}_go")
            A("s_waitcnt lgkmcnt(0)")
            A(f"v_max3_u32 v{vA1}, v{vQ}, v{vQ+1}, v{vQ+2}")
            A(f"v_max_u32 v{vA1}, v{vA1}, v{vQ+3}")
            A(f"v_cmp_eq_u32 vcc, -1, v{vA1}")
            A(f"s_cbranch_vccnz L_{n}_spin")
            A(f"L_{n}_go:")
            A("s_waitcnt lgkmcnt(0)")
            stamp("qgot")

        def qk(t):
            tt, uu = vTMP, vTMP + 4
            for k in range(4):
                for r in range(4):
                    A(f"v_dot2_f32_bf16 v{tt+r}, v{vK+16*t+4*r+k}, v{vQ+k}, " + ("0" if k == 0 else f"v{tt+r}"))
            dpp("v_add_f32", uu, tt, tt, "row_ror:8", 0x3)
            dpp("v_add_f32", uu, tt + 1, tt + 1, "row_ror:8", 0xc)
            dpp("v_add_f32", uu + 1, tt + 2, tt + 2, "row_ror:8", 0x3)
            dpp("v_add_f32", uu + 1, tt + 3, tt + 3, "row_ror:8", 0xc)
            dpp("v_add_f32", vS + t, uu, uu, "row_shl:4", 0x5)
            nop(1)
            dpp("v_add_f32", vS + t, uu + 1, uu + 1, "row_shr:4", 0xa)

        def allred(op, r, t):
            nop(2)
            dpp(op, r, r, r, "row_ror:8")
            nop(2)
            dpp(op, r, r, r, "row_ror:4")
            for sw_ in ("v_permlane16_swap_b32", "v_permlane32_swap_b32"):
                A(f"v_mov_b32 v{t}, v{r}")
                nop(2)
                A(f"{sw_} v{r}, v{t}")
                A(f"{op} v{r}, v{r}, v{t}")

        S = [vS + i for i in range(8)]

        def soft_a():
            for r in S:
                dpp("v_add_f32", r, r, r, X1)
            for r in S:
                dpp("v_add_f32", r, r, r, X2)
            round_bf16(S, vTMP)
            for r in S:
                A(f"v_mul_f32 v{r}, {hex(SCALE)}, v{r}")
            round_bf16(S, vTMP)

        def soft_b():
            m = vT0
            A(f"v_max3_f32 v{m}, v{S[0]}, v{S[1]}, v{S[2]}")
            A(f"v_max3_f32 v{m}, v{m}, v{S[3]}, v{S[4]}")
            A(f"v_max3_f32 v{m}, v{m}, v{S[5]}, v{S[6]}")
            A(f"v_max_f32 v{m}, v{m}, v{S[7]}")
            allred("v_max_f32", m, vTMP)
            for r in S:
                A(f"v_sub_f32 v{r}, v{r}, v{m}")
            for r in S:
                A(f"v_mul_f32 v{r}, {hex(LOG2E)}, v{r}")
            for r in S:
                A(f"v_exp_f32 v{r}, v{r}")

        def soft_c():
            m, l = vT0, vT1
            A(f"s_lshl_b32 s{sTMP}, s{sWV}, 3")
            A(f"v_add_f32 v{l}, v{S[0]}, v{S[1]}")
            for r in S[2:]:
                A(f"v_add_f32 v{l}, v{l}, v{r}")
            for r in S:
                A(f"v_cvt_pk_bf16_f32 v{r}, v{r}, v{r}")
            allred("v_add_f32", l, vTMP)
            A(f"v_mov_b32 v{vA0}, s{sTMP}")
            A(f"ds_write_b64 v{vA0}, {vr(m,2)} offset:{L_ML}")
            mark["soft"] = len(ops)
            stamp("soft")

        bank = [0, 2, 1, 3]

        def pv_a(t):
            for r in range(4):
                for k in range(4):
                    dpp("v_and_b32", vTMP + 4 * r + k, vS + t, vMK + k, f"row_newbcast:{4*bank[r]}")

        def pv_m(i):
            mfma(vACC, vTMP + 4 * (i % 4), vreg(i), None if i == 0 else vACC)

        pvdone = [0]

        def pv_tile(t):
            pv_a(t)
            for r in range(4):
                pv_m(4 * t + r)
            pvdone[0] = 4 * t + 4

        def tail_setup():
            vB3, vXX, vB2 = vA1, vA2, vDUM
            for k in range(4):
                if role == "w":
                    A(f"v_mov_b32 v{vTG+k}, 0x80")
                    A(f"v_xor_b32 v{vTG+k}, s{Tk[k]}, v{vTG+k}")
            A(f"v_bfe_u32 v{vB3}, v{vL}, 3, 1")
            A(f"v_bfe_u32 v{vB2}, v{vL}, 2, 1")
            A(f"v_and_b32 v{vXX}, 3, v{vL}")
            A(f"v_lshlrev_b32 v{vL8}, 3, v{vL}")
            A(f"v_lshlrev_b32 v{vL16}, 4, v{vL}")
            A(f"v_and_b32 v{vG16}, 0x70, v{vL16}")
            A(f"v_lshl_add_u32 v{vM}, v{vXX}, 1, v{vB3}")
            A(f"v_and_b32 v{vA0}, 1, v{vG}")
            A(f"v_lshl_add_u32 v{vM}, v{vA0}, 3, v{vM}")
            A(f"v_lshrrev_b32 v{vA0}, 1, v{vG}")
            A(f"v_lshl_add_u32 v{vM}, v{vA0}, 5, v{vM}")
            A(f"v_lshlrev_b32 v{vAA}, 1, v{vM}")
            A(f"v_lshl_add_u32 v{vXO}, v{vB2}, 10, v{vAA}")
            A(f"s_lshl_b32 s{sTMP}, s{sWV}, 7")
            A(f"v_add_u32 v{vXO}, s{sTMP}, v{vXO}")
            A(f"v_lshl_add_u32 v{vM}, v{vB2}, 4, v{vM}")
            A(f"v_lshlrev_b32 v{vFR}, 3, v{vM}")
            A(f"s_lshl_b32 s{sTMP}, s{sWV}, 8")
            A(f"v_lshl_add_u32 v{vHW}, v{vM}, 2, s{sTMP}")
            A(f"s_lshr_b32 s{sTMP}, s{sR}, 3")
            A(f"s_and_b32 s{sTMP2}, s{sR}, 4")
            A(f"s_add_u32 s{sTMP}, s{sTMP}, s{sTMP2}")
            A(f"s_and_b32 s{sTMP2}, s{sR}, 3")
            A(f"s_lshl3_add_u32 s{sTMP2}, s{sTMP}, s{sTMP2}")
            A(f"s_lshl_b32 s{sTMP2}, s{sTMP2}, 5")
            A(f"v_and_b32 v{vM}, 7, v{vL}")
            A(f"v_lshl_add_u32 v{vHR}, v{vA0}, 5, v{vM}")
            A(f"v_lshl_add_u32 v{vHR}, v{vHR}, 2, s{sTMP2}")
            A(f"v_and_b32 v{vA0}, 1, v{vG}")
            A(f"v_lshl_add_u32 v{vHR}, v{vA0}, 1, v{vHR}")
            A(f"s_and_b32 s{sTMP2}, s{sR}, 1")
            A(f"s_lshl3_add_u32 s{sTMP}, s{sTMP}, s{sTMP2}")
            A(f"s_lshl_b32 s{sTMP}, s{sTMP}, 4")
            A(f"s_and_b32 s{sTMP2}, s{sR}, 2")
            A(f"s_lshl_b32 s{sTMP2}, s{sTMP2}, 9")
            A(f"s_add_u32 s{sTMP}, s{sTMP}, s{sTMP2}")
            A(f"v_lshl_add_u32 v{vFC}, v{vG}, 4, v{vM}")
            A(f"v_lshl_add_u32 v{vFC}, v{vFC}, 1, s{sTMP}")
            A(f"v_lshlrev_b32 v{vBA}, 4, v{vC}")
            A(f"v_lshl_add_u32 v{vBA}, v{vG}, 10, v{vBA}")
            ypage(sWV)
            A(f"v_add_u32 v{vBA}, s{sTMP}, v{vBA}")
            A(f"s_lshl_b32 s{sTMP}, s{sWV}, 9")
            A(f"v_lshlrev_b32 v{vOWA}, 5, v{vC}")
            A(f"v_lshl_add_u32 v{vOWA}, v{vG}, 4, v{vOWA}")
            A(f"v_add_u32 v{vOWA}, s{sTMP}, v{vOWA}")
            A(f"s_lshl2_add_u32 s{sTMP2}, s{sH}, 0")
            A(f"s_lshl1_add_u32 s{sTMP2}, s{sTMP2}, s{sB}")
            A(f"s_lshl1_add_u32 s{sTMP2}, s{sTMP2}, s{sS}")
            A(f"s_lshl_b32 s{sTMP2}, s{sTMP2}, 9")
            A(f"s_add_u32 s{sTMP2}, s{sTMP2}, {WS_QP}")
            A(f"v_add_u32 v{vOS}, s{sTMP2}, v{vL8}")
            A(f"s_xor_b32 s{sTMP2}, s{sT}, 0x80808080")
            A(f"v_and_b32 v{vM}, 1, v{vL}")
            A(f"v_lshlrev_b32 v{vM}, 4, v{vM}")
            A(f"v_lshrrev_b32 v{vTb}, v{vM}, s{sTMP2}")
            A(f"v_and_b32 v{vTa}, v{vFF}, v{vTb}")
            A(f"v_bfe_u32 v{vTb}, v{vTb}, 8, 8")
            if role == "n":
                return
            A(f"v_add_u32 v{vFW}, s{sTMP}, v{vL8}")
            A(f"v_mul_u32_u24 v{vIX}, 0xaaaa, v{vB3}")
            A(f"v_add_u32 v{vIX}, 0x4444, v{vIX}")
            if role == "f":
                A(f"v_lshlrev_b32 v{vSR}, 6, v{vB2}")
                A(f"v_lshrrev_b32 v{vM}, 3, v{vL}")
                A(f"v_mul_u32_u24 v{vYS}, {ZSTR}, v{vM}")
                A(f"s_lshl_b32 s{sTMP2}, s{sR}, 7")
                A(f"s_and_b32 s{sTMP}, s{sWV}, 3")
                A(f"s_mul_i32 s{sTMP}, s{sTMP}, {8*ZSTR}")
                A(f"s_add_u32 s{sTMP2}, s{sTMP2}, s{sTMP}")
                A(f"s_add_u32 s{sTMP2}, s{sTMP2}, {WS_ZP}")
                A(f"v_add3_u32 v{vYS}, v{vYS}, v{vG16}, s{sTMP2}")
                A(f"v_lshrrev_b32 v{vM}, 1, v{vG}")
                A(f"v_lshl_add_u32 v{vSA}, v{vM}, 2, v{vSR}")
                A(f"s_lshl_b32 s{sTMP}, s{sWV}, 3")
                A(f"v_add_u32 v{vSA}, s{sTMP}, v{vSA}")
                A(f"v_mov_b32 v{vEPS}, {hex(EPS)}")
                A(f"v_mov_b32 v{vONE}, 0x3b003b00")
            else:
                A(f"v_mad_u32_u24 v{vAA}, v{vB2}, 12, v{vB3}")
                A(f"v_lshlrev_b32 v{vAA}, 9, v{vAA}")
                A(f"v_lshl_add_u32 v{vAA}, v{vG}, 6, v{vAA}")
                A(f"v_lshl_add_u32 v{vAA}, v{vXX}, 4, v{vAA}")
                A(f"s_and_b32 s{sTMP2}, s{sWV}, 1")
                A(f"s_lshl_b32 s{sTMP2}, s{sTMP2}, 8")
                A(f"s_lshr_b32 s{sTMP}, s{sWV}, 1")
                A(f"s_lshl_b32 s{sTMP}, s{sTMP}, 13")
                A(f"s_add_u32 s{sTMP2}, s{sTMP2}, s{sTMP}")
                A(f"s_lshl_b32 s{sTMP}, s{sGX}, 15")
                A(f"s_add_u32 s{sTMP2}, s{sTMP2}, s{sTMP}")
                A(f"s_add_u32 s{sTMP2}, s{sTMP2}, {WS_QP}")
                A(f"v_add_u32 v{vAA}, s{sTMP2}, v{vAA}")
                A(f"v_and_b32 v{vYR}, 0x1f0, v{vFR}")
                A(f"v_lshl_add_u32 v{vYR}, v{vB3}, 11, v{vYR}")
                ypage(sCB)
                A(f"s_lshl_b32 s{sTMP2}, s{sGX}, 7")
                A(f"s_add_u32 s{sTMP}, s{sTMP}, s{sTMP2}")
                A(f"v_lshl_add_u32 v{vYS}, v{vG}, 10, v{vG16}")
                A(f"v_lshl_add_u32 v{vYS}, v{vB3}, 13, v{vYS}")
                A(f"v_add_u32 v{vYS}, s{sTMP}, v{vYS}")

        def w1_regs():
            tr_addr(L_WA)
            tr_block(vW1)
            zero([d + k for d in DACC for k in range(4)])
            for k in range(4):
                A(f"v_mov_b32 v{vTMP+k}, 0x3f803f80")
            A("s_waitcnt lgkmcnt(0)")
            nop(1)
            for tau in range(4):
                A(f"v_smfmac_f32_16x16x64_bf16 {vr(DACC[tau])}, {vr(vTMP)}, {vr(vW1 + 8*tau, 8)}, v{vIX}")
            nop(8)
            merge_tiles(vP)
            A(f"ds_write_b64 v{vFW}, {vr(vP,2)} offset:{L_CS}")

        def ml_publish():
            def body():
                n = "ml" + lab
                o, m, l = vMLG, vMLW, vMLW + 1
                A(f"v_and_b32 v{vA0}, 56, v{vL8}")
                A(f"s_mov_b32 s{sCNT}, 0x200000")
                A(f"L_{n}_spin:")
                A(f"ds_read_b64 {vr(m,2)}, v{vA0} offset:{L_ML}")
                A(f"s_sub_u32 s{sCNT}, s{sCNT}, 1")
                A(f"s_cbranch_scc1 L_{n}_go")
                A("s_waitcnt lgkmcnt(0)")
                A(f"v_cmp_eq_u32 vcc, -1, v{l}")
                A(f"s_cbranch_vccnz L_{n}_spin")
                A(f"L_{n}_go:")
                A("s_waitcnt lgkmcnt(0)")
                nop(2)
                dpp("v_max_f32", o, m, m, X1)
                nop(2)
                dpp("v_max_f32", o, o, o, X2)
                nop(2)
                dpp("v_max_f32", o, o, o, HM)
                A(f"v_sub_f32 v{o+1}, v{m}, v{o}")
                A(f"v_mul_f32 v{o+1}, {hex(LOG2E)}, v{o+1}")
                A(f"v_exp_f32 v{o+1}, v{o+1}")
                A(f"v_mov_b32 v{o+2}, 0")
                A(f"v_mul_f32 v{o+1}, v{o+1}, v{l}")
                A(f"v_mov_b32 v{o+3}, 0")
                A(f"s_lshl_b32 s{sTMP}, s{sID}, 7")
                for ctl in (X1, X2, HM):
                    dpp("v_add_f32", o + 1, o + 1, o + 1, ctl)
                    nop(2)
                A(f"s_add_u32 s{sTMP}, s{sTMP}, {WS_ML}")
                tag4(o)
                A("s_mov_b64 exec, 0xff")
                A(f"s_cmp_eq_u32 s{sLOC}, 0")
                publish(n, f"buffer_store_dwordx4 {vr(o)}, v{vL16}, s[{rWS}:{rWS+3}], s{sTMP} offen")
                A("s_mov_b64 exec, -1")
            only_wave("mp", sw, body)

        def ml_load():
            A("s_mov_b64 exec, 0xff")
            A(f"buffer_load_dwordx4 {vr(vMLG)}, v{vXC}, s[{rWS}:{rWS+3}], s{sML} offen sc1")
            A("s_mov_b64 exec, -1")

        def ml_gather():
            def body():
                A(f"v_and_b32 v{vXC}, 3, v{vL}")
                A(f"v_lshlrev_b32 v{vXC}, 7, v{vXC}")
                A(f"s_lshr_b32 s{sML}, s{sID}, 2")
                A(f"s_lshl_b32 s{sML}, s{sML}, 9")
                A(f"s_add_u32 s{sML}, s{sML}, {WS_ML}")
                ml_load()
            only_wave("mg", sw, body)

        def ml_finish():
            def body():
                def chk():
                    A("s_mov_b64 exec, 0xff")
                    untag(vMLG, 1, vA0, STAGS)
                    A("s_mov_b64 exec, -1")
                wait_own("mg")
                poll_rare("m" + lab, ml_load, chk)
                o = vMLG
                dpp("v_max_f32", o + 2, o, o, X1)
                nop(2)
                dpp("v_max_f32", o + 2, o + 2, o + 2, X2)
                A(f"v_sub_f32 v{o}, v{o}, v{o+2}")
                A(f"v_sub_f32 v{o+3}, v{vMLW}, v{o+2}")
                A(f"v_mul_f32 v{o}, {hex(LOG2E)}, v{o}")
                A(f"v_mul_f32 v{o+3}, {hex(LOG2E)}, v{o+3}")
                A(f"v_exp_f32 v{o}, v{o}")
                A(f"v_exp_f32 v{o+3}, v{o+3}")
                A(f"v_mul_f32 v{o+1}, v{o+1}, v{o}")
                nop(2)
                dpp("v_add_f32", o + 1, o + 1, o + 1, X1)
                nop(2)
                dpp("v_add_f32", o + 1, o + 1, o + 1, X2)
                A(f"v_rcp_f32 v{o+1}, v{o+1}")
                nop(1)
                A(f"v_mul_f32 v{o+3}, v{o+3}, v{o+1}")
                nop(1)
                for j in range(8):
                    A(f"v_readlane_b32 s{sTMP}, v{o+3}, {j}")
                    nop(2)
                    A(f"v_mov_b32 v{vF+j}, s{sTMP}")
            only_wave("mf", sw, body)

        assert sw == 0
        todo = [(lambda: ("K", px) in ops, xc_issue), (lambda: later("xi"), xc_finish), (lambda: ("K", pq) in ops, q_issue), (lambda: later("qi"), q_finish), (lambda: later("qf"), q_read)]
        for t in range(8):
            todo.append((lambda t=t: has(("K", 4 * t + 3)), lambda t=t: qk(t)))
        todo += [(lambda: True, f) for f in (soft_a, soft_b, soft_c, tail_setup)]
        for t in range(7):
            todo.append((lambda t=t: has(("V", 4 * t + 3)), lambda t=t: pv_tile(t)))
        done = set()
        side = [(lambda: tail_setup in done and later("soft") and ("V", p1) in ops, ml_publish),
                (lambda: later("mp") and ("V", p2) in ops, ml_gather),
                (lambda: later("mg"), ml_finish)]
        side2 = [(lambda: tail_setup in done and has(("w1", 7)), w1_regs)] if role == "f" else []
        seq = [("K", i) for i in range(K0, 32)] + [("V", i) for i in range(32)]
        if role == "f":
            for j in range(8):
                seq.insert(f0 + j, ("w1", j))
        rounds = [int(c) for c in rounds]
        assert sum(rounds) == len(seq), (role, sum(rounds), len(seq))
        prev = 3
        for size in rounds:
            first = len(ops)
            for j in range(size):
                kind, i = seq.pop(0)
                assert kind != "V" or i < NRING or pvdone[0] > i - NRING, "ring too small"
                wait_for(ops[first - prev + min(j + max(0, prev - size), prev - 1)])
                if kind == "w1":
                    w_dma(kind, i)
                else:
                    kvload(kind, i)
                ops.append((kind, i))
            prev = size
            n0 = len(L)
            for lst in (side, todo, side2):
                while lst and lst[0][0]() and len(L) - n0 < budget:
                    f = lst.pop(0)[1]
                    f()
                    done.add(f)
        assert not side and not side2, role
        while todo:
            pred, emit = todo.pop(0)
            while not pred():
                wait_n(len(ops) - landed[0] - 1)
            emit()
        pv_a(7)
        for i in range(28, 32):
            wait_for(("V", i))
            pv_m(i)
            m = {"n": 0, "w": wmid, "f": mid}[role]
            if i - 28 < m:
                w_dma("wo" if role == "w" else "w2", i - 28)
                ops.append(("late", i))
        if role == "w":
            for j in range(wmid, 8):
                w_dma("wo", j)

    C("---------------- stream: plain workgroups ----------------")
    stream("n", rn)
    A("L_tail:")
    C("---------------- sum the eight waves' partial outputs and publish them ----------------")
    A("s_mov_b32 exec_hi, 0")
    A(f"s_cmp_lg_u32 s{sWV}, {sw}")
    nop(6)
    A(f"ds_write_b128 v{vOWA}, {vr(vACC)} offset:{L_OW}")
    A("s_mov_b32 exec_hi, -1")
    A("s_waitcnt lgkmcnt(0)")
    stamp("_wend")
    A("s_barrier")
    stamp("strm")
    A("s_cbranch_scc1 L_nos0")
    for i in range(8):
        A(f"ds_read_b64 {vr(g0+2*i,2)}, v{vL8} offset:{L_OW + 512*i}")
    A(f"s_cmp_eq_u32 s{sLOC}, 0")
    A("s_waitcnt lgkmcnt(6)")
    pk("mul", vP, g0, vF, extra=lo)
    pk("fma", vP, g0 + 2, vF, vP, extra=hi3)
    for i in range(1, 4):
        if i != 2:
            A(f"s_waitcnt lgkmcnt({(2, 0, 0)[i-1]})")
        pk("fma", vP, g0 + 4 * i, vF + 2 * i, vP, extra=lo3)
        pk("fma", vP, g0 + 4 * i + 2, vF + 2 * i, vP, extra=hi3)
    A(f"v_bfi_b32 v{vP}, v{vFF}, v{vTa}, v{vP}")
    A(f"v_bfi_b32 v{vP+1}, v{vFF}, v{vTb}, v{vP+1}")
    publish("o", f"buffer_store_dwordx2 {vr(vP,2)}, v{vOS}, s[{rWS}:{rWS+3}], 0 offen")
    stamp("_opub")
    A("L_nos0:")
    A(f"s_cmp_ge_u32 s{sCB}, 8")
    A("s_cbranch_scc1 L_noy")

    C("---------------- stage W ----------------")
    A("s_barrier")

    def a_issue():
        for i in range(2):
            A(f"buffer_load_dwordx4 {vr(g0+4*i)}, v{vAA}, s[{rWS}:{rWS+3}], 0 offen offset:{1024*i} sc1")

    def pair_from_quad(src, dst):
        dpp("v_add_f32", dst, src, src, "row_ror:8", 0x3)
        dpp("v_add_f32", dst + 1, src + 1, src + 1, "row_ror:8", 0x3)
        dpp("v_add_f32", dst, src + 2, src + 2, "row_ror:8", 0xc)
        dpp("v_add_f32", dst + 1, src + 3, src + 3, "row_ror:8", 0xc)
    a_issue()
    A(f"s_mov_b32 s{sCNT}, 0x40000")
    A(f"s_cmp_eq_u32 s{sGX}, 0")
    A(f"s_cselect_b32 s{sML}, s{sLOC}, 0")
    tr_addr(L_WA)
    zero([d + k for d in DACC for k in range(4)])
    A("s_waitcnt vmcnt(6)")
    tr_block(vW1, between="s_waitcnt vmcnt(2) lgkmcnt(0)")
    A("s_branch L_a_chk")
    poll("a", a_issue, 2, init=False)
    stamp("hopA")
    pk("add", g0, g0, g0 + 4)
    pk("add", g0 + 2, g0 + 2, g0 + 6)
    A(f"s_cmp_lg_u32 s{sWV}, {sw}")
    pair_from_quad(g0, g0 + 4)
    A(f"v_cvt_pk_bf16_f32 v{vP}, v{g0+4}, v{g0+5}")
    A("s_waitcnt lgkmcnt(0)")
    nop(1)
    operand()
    nop(2)
    for tau in (0, 2, 1, 3):
        smfmac(DACC[tau], vW1 + 8 * tau)
    nop(7)
    merge_tiles(g0)
    A(f"ds_write_b64 v{vFW}, {vr(g0,2)} offset:{L_F1}")
    A("s_waitcnt lgkmcnt(0)")
    A("s_barrier")
    A("s_cbranch_scc1 L_noy")
    for i in range(4):
        A(f"ds_read_b128 {vr(g0+4*i)}, v{vYR} offset:{L_F1 + i*512}")
    A(f"s_cmp_eq_u32 s{sML}, 0")
    for i in range(1, 4):
        A(f"s_waitcnt lgkmcnt({3-i})")
        pk("add", g0, g0, g0 + 4 * i)
        pk("add", g0 + 2, g0 + 2, g0 + 4 * i + 2)
    nop(1)
    for k in range(4):
        dpp("v_add_f32", vD0 + k, g0 + k, g0 + k, "row_ror:8")
    tag4(vD0)
    publish("y", f"buffer_store_dwordx4 {vr(vD0)}, v{vYS}, s[{rWS}:{rWS+3}], 0 offen", farfirst=True)
    stamp("ypub")
    A("L_noy:")
    A(f"s_cmp_lg_u32 s{sGX}, 0")
    A("s_cbranch_scc1 L_fin")

    C("---------------- stage F (group 0) ----------------")
    A(f"v_mov_b32 v{vA0}, {L_FL}")
    A(f"ds_read_b32 v{vA0}, v{vA0}")
    for k in range(4):
        A(f"v_mov_b32 v{vTG+k}, s{Tk[k]}")
    A("s_waitcnt lgkmcnt(0)")
    A(f"v_readfirstlane_b32 s{sLOC}, v{vA0}")
    A(f"v_and_b32 v{vA0}, 0x2000, v{vA0}")
    A(f"v_add_u32 v{vBA}, v{vA0}, v{vBA}")
    A(f"s_and_b32 s{sLOC}, s{sLOC}, 1")
    A(f"s_cmp_lt_u32 s{sR}, {NF}")
    A("s_barrier")
    A("s_cbranch_scc1 L_late")

    def small_loads(name):
        A(f"global_load_ushort v{vXR}, v{vXO}, s[{sX}:{sX+1}]")
        A(f"global_load_ushort v{vXR+1}, v{vXO}, s[{sX}:{sX+1}] offset:32")
        A(f"s_cmp_lg_u32 s{sWV}, {fw}")
        A(f"s_cbranch_scc1 L_{name}")
        A(f"v_and_b32 v{vA1}, 0x3ff, v{vFC}")
        A(f"global_load_ushort v{vB2R}, v{vA1}, s[{sB2}:{sB2+1}]")
        A(f"L_{name}:")
    small_loads("nob2")
    A("s_waitcnt vmcnt(0)")
    widen(vXR)

    def b_issue():
        for i, off in enumerate((0, 256, 512, 768)):
            A(f"buffer_load_dwordx4 {vr(g0+4*i)}, v{vBA}, s[{rWS}:{rWS+3}], 0 offen offset:{off} sc1")

    def late():
        A("L_late:")
        C("FFN workgroups: the rest of w2 and the small operands")
        w_srd("w2")
        for j in range(mid, 8):
            w_dma("w2", j)
        small_loads("nob2f")
        zero([d + k for d in DACC for k in range(4)])
        A(f"s_cmp_ge_u32 s{sWV}, 4")
        A("s_cbranch_scc1 L_late2")
        srd(rB, sB1, 2752)
        A(f"s_lshl_b32 s{sTMP2}, s{sR}, 7")
        A(f"buffer_load_ushort v{vB1R}, v{vAA}, s[{rB}:{rB+3}], s{sTMP2} offen")
        A(f"buffer_load_ushort v{vB1R+1}, v{vAA}, s[{rB}:{rB+3}], s{sTMP2} offen offset:32")
        C("touch the lines of this workgroup's Z slots (values unused)")
        A(f"buffer_load_dword v{vDUM}, v{vYS}, s[{rWS}:{rWS+3}], 0 offen")
        for i in range(8):
            A(f"ds_read_b64 {vr(st+2*i,2)}, v{vFR} offset:{L_CS + 512*i}")
        A(f"s_lshl_b32 s{sTMP}, s{sR}, 2")
        A(f"s_sub_u32 s{sTMP}, 86, s{sTMP}")
        A(f"v_cmp_gt_u32 vcc, s{sTMP}, v{vG}")
        zero([vE + k for k in range(32)])
        A(f"v_cndmask_b32 v{vVAL}, 0, -1, vcc")
        tr_addr(L_WB)
        A("s_waitcnt lgkmcnt(0)")
        sum8(st, vCS)
        A("L_late2:")
        A("s_waitcnt vmcnt(0)")
        A("s_barrier")
        stamp("_late")
        b_issue()
        widen(vXR)
        widen(vB1R)
        A(f"s_mov_b32 s{sCNT}, 0x40000")
        A(f"s_cmp_ge_u32 s{sWV}, 4")
        A("s_cbranch_scc1 L_b_chk")
        tr_block(vW2, between="s_waitcnt lgkmcnt(4)")
        A("s_waitcnt lgkmcnt(4)")
        tr_block(vW2b, 32768, between="s_waitcnt lgkmcnt(4)")
        A("s_branch L_b_chk")
    poll("b", b_issue, 4)
    stamp("hopB")
    for e in (0, 2, 4, 6):
        pk("add", g0 + e, g0 + e, g0 + 8 + e)
    pk("add", g0 + 4, g0, g0 + 4)
    pk("add", g0 + 6, g0 + 2, g0 + 6)
    A(f"s_cmp_ge_u32 s{sR}, {NF}")
    pair_from_quad(g0 + 4, g0)
    pk("add", g0, g0, vXR)
    A(f"v_cvt_pk_bf16_f32 v{vP}, v{g0}, v{g0+1}")
    A("s_cbranch_scc1 L_noffn")
    A(f"v_dot2_f32_bf16 v{s0}, v{vP}, v{vONE}, 0")
    A(f"v_dot2_f32_bf16 v{s1}, v{vP}, v{vP}, 0")

    operand()
    A(f"v_permlane32_swap_b32 v{s0}, v{s1}")
    A(f"v_add_f32 v{s0}, v{s0}, v{s1}")
    smfmac(vD0, vW1)
    A(f"ds_write_b32 v{vHW}, v{vP} offset:{L_HS}")
    dpp("v_add_f32", s0, s0, s0, X1)
    smfmac(vD2, vW1 + 16)
    A(f"s_cmp_ge_u32 s{sWV}, 4")
    dpp("v_add_f32", s0, s0, s0, X2)
    smfmac(vD1, vW1 + 8)
    smfmac(vD3, vW1 + 24)
    dpp("v_add_f32", s0, s0, s0, "row_ror:8")
    A(f"v_mov_b32 v{s1}, v{s0}")
    nop(2)
    A(f"v_permlane16_swap_b32 v{s0}, v{s1}")
    A(f"v_add_f32 v{s0}, v{s0}, v{s1}")
    A(f"ds_write_b32 v{vSA}, v{s0} offset:{L_ST}")
    merge_tiles(g0)
    A(f"ds_write_b64 v{vFW}, {vr(g0,2)} offset:{L_F1}")
    A("s_waitcnt lgkmcnt(0)")
    A("s_barrier")
    stamp("_f1b")
    A("s_cbranch_scc1 L_final")
    C("waves 0..3: hidden activations and the product with w2")
    for i in range(4):
        A(f"ds_read_b128 {vr(st+4*i)}, v{vSR} offset:{L_ST + 16*i}")
    for i in range(8):
        A(f"ds_read_b64 {vr(g0+2*i,2)}, v{vFR} offset:{L_F1 + 512*i}")
    A(f"s_cmp_eq_u32 s{sLOC}, 0")
    A(f"s_mov_b32 s{sTMP}, 0x3b000000")
    A("s_waitcnt lgkmcnt(10)")
    pk("add", st, st, st + 2)
    pk("add", st + 4, st + 4, st + 6)
    A("s_waitcnt lgkmcnt(8)")
    pk("add", st + 8, st + 8, st + 10)
    pk("add", st + 12, st + 12, st + 14)
    pk("add", st, st, st + 4)
    pk("add", st + 8, st + 8, st + 12)
    pk("add", s0, st, st + 8)
    A(f"v_fma_f32 v{s1}, v{s1}, s{sTMP}, v{vEPS}")
    A(f"v_fma_f32 v{s1}, -v{s0}, v{s0}, v{s1}")
    A(f"v_max_f32 v{s1}, v{vEPS}, v{s1}")
    A(f"v_rsq_f32 v{s1}, v{s1}")
    A("s_waitcnt lgkmcnt(0)")
    sum8(g0)
    pk("fma", g0, vCS, s0, g0, extra=" op_sel_hi:[1,0,1] neg_lo:[0,1,0] neg_hi:[0,1,0]")
    pk("fma", g0, g0, s0, vB1R, extra=hi3)
    A(f"v_max_f32 v{g0}, 0, v{g0}")
    A(f"v_max_f32 v{g0+1}, 0, v{g0+1}")
    pk("mul", g0, g0, g0)
    A(f"v_cvt_pk_bf16_f32 v{vP}, v{g0}, v{g0+1}")
    nop(2)
    operand(vVAL)
    nop(2)

    def z_swap(tau):
        A(f"v_permlane32_swap_b32 v{vE+4*tau}, v{vE+16+4*tau}")
        A(f"v_add_f32 v{vD0+tau}, v{vE+4*tau}, v{vE+16+4*tau}")

    def z_tag(tau):
        A(f"v_bfi_b32 v{vD0+tau}, v{vFF}, s{Tk[tau]}, v{vD0+tau}")
    smfmac(vE, vW2)
    smfmac(vE + 16, vW2b)
    smfmac(vE + 4, vW2 + 8)
    smfmac(vE + 20, vW2b + 8)
    nop(2)
    smfmac(vE + 8, vW2 + 16)
    nop(2)
    smfmac(vE + 24, vW2b + 16)
    z_swap(0)
    smfmac(vE + 12, vW2 + 24)
    z_swap(1)
    smfmac(vE + 28, vW2b + 24)
    z_tag(0)
    z_tag(1)
    z_swap(2)
    z_tag(2)
    nop(3)
    z_swap(3)
    z_tag(3)
    publish("z", f"buffer_store_dwordx4 {vr(vD0)}, v{vYS}, s[{rWS}:{rWS+3}], 0 offen")
    stamp("zpub")
    A("s_branch L_fin")
    A("L_noffn:")
    A(f"ds_write_b32 v{vHW}, v{vP} offset:{L_HS}")
    C("every y is in, so every wave of the launch has read the epoch word: advance it for the next launch")
    A(f"s_lshl3_add_u32 s{sTMP}, s{sR}, s{sWV}")
    A(f"s_cmp_lg_u32 s{sTMP}, {31*8}")
    A("s_cbranch_scc1 L_noe")
    A("s_mov_b64 exec, 1")
    A(f"v_mov_b32 v{vA1}, s{sT}")
    A(f"buffer_store_dword v{vA1}, v{vL8}, s[{rWS}:{rWS+3}], 0 offen offset:{WS_E} sc1")
    A("s_mov_b64 exec, -1")
    A("L_noe:")
    A("s_waitcnt lgkmcnt(0)")
    A("s_barrier")
    A("L_final:")
    C("---------------- one wave of each group-0 workgroup adds the partial sums of 32 outputs ----------------")
    assert fw >= 4
    A(f"s_cmp_lg_u32 s{sWV}, {fw}")
    A("s_cbranch_scc1 L_fin")
    A(f"ds_read_u16 v{vXR}, v{vHR} offset:{L_HS}")
    A(f"s_mul_i32 s{sTMP}, s{sR}, {ZSTR}")
    A(f"s_add_u32 s{sTMP}, s{sTMP}, {WS_ZP}")
    A(f"v_min_u32 v{vA0}, 47, v{vL}")
    A(f"v_and_b32 v{vA0}, 0x38, v{vA0}")
    A(f"v_lshl_add_u32 v{vA0}, v{vA0}, 4, v{vG16}")
    A(f"v_lshlrev_b32 v{vB2R}, 16, v{vB2R}")
    A("s_waitcnt lgkmcnt(0)")
    A(f"v_lshlrev_b32 v{vXR}, 16, v{vXR}")
    A(f"v_add_f32 v{vXR}, v{vXR}, v{vB2R}")

    def c_issue():
        for t in range(2):
            A(f"buffer_load_dwordx4 {vr(g0+4*t)}, v{vL16}, s[{rWS}:{rWS+3}], s{sTMP} offen offset:{1024*t} sc1")
        A(f"buffer_load_dwordx4 {vr(g0+8)}, v{vA0}, s[{rWS}:{rWS+3}], s{sTMP} offen offset:2048 sc1")
    poll("c", c_issue, 3)
    stamp("hopC")
    pk("add", g0, g0, g0 + 4)
    pk("add", g0 + 2, g0 + 2, g0 + 6)
    A("s_mov_b32 exec_hi, 0xffff")
    pk("add", g0, g0, g0 + 8)
    pk("add", g0 + 2, g0 + 2, g0 + 10)
    A("s_mov_b32 exec_hi, -1")
    nop(1)
    A(f"v_permlane32_swap_b32 v{g0}, v{g0+2}")
    A(f"v_permlane32_swap_b32 v{g0+1}, v{g0+3}")
    pk("add", g0, g0, g0 + 2)
    nop(2)
    A(f"v_permlane16_swap_b32 v{g0}, v{g0+1}")
    A(f"v_add_f32 v{g0}, v{g0}, v{g0+1}")
    nop(2)
    dpp("v_add_f32", g0, g0, g0, "row_ror:8")
    A(f"v_add_f32 v{g0}, v{g0}, v{vXR}")
    A(f"v_cvt_pk_bf16_f32 v{g0}, v{g0}, v{g0}")
    A(f"global_store_short v{vFC}, v{g0}, s[{sOUT}:{sOUT+1}]")
    A("L_fin:")
    if minT:
        A(f"s_cmp_lg_u32 s2, {minX}")
        A("s_cbranch_scc1 L_nospin")
        A("L_spin:")
        A("s_memrealtime s[98:99]")
        A("s_waitcnt lgkmcnt(0)")
        A("s_sub_u32 s98, s98, s100")
        A(f"s_cmp_lt_u32 s98, {minT*100}")
        A("s_cbranch_scc1 L_spin")
        A("L_nospin:")
    if diag:
        A("s_mov_b64 exec, -1")
        A("s_waitcnt vmcnt(0)")
        stamp("end")
        for _ in range(4):
            A("s_sleep 127")
        for i in range(12):
            A(f"v_mov_b32 v{vK+i}, s{dslot(i)}")
        A(f"v_mov_b32 v{vK+12}, s{sVOTE}")
        A(f"v_mov_b32 v{vK+13}, s{sXCC}")
        A(f"s_lshl_b32 s{sTMP}, s2, 3")
        A(f"s_add_u32 s{sTMP}, s{sTMP}, s{sWV}")
        A(f"s_lshl_b32 s{sTMP}, s{sTMP}, 6")
        A(f"s_add_u32 s{sTMP}, s{sTMP}, {WS_DIAG}")
        A(f"v_mov_b32 v{vA0}, 0")
        A("s_mov_b64 exec, 1")
        for i in range(4):
            A(f"buffer_store_dwordx4 {vr(vK+4*i)}, v{vA0}, s[{rWS}:{rWS+3}], s{sTMP} offen offset:{16*i}")
    A("s_endpgm")
    late()

    C("---------------- stream: stage-W workgroups ----------------")
    A("L_s_w:")
    A(f"s_cmp_eq_u32 s{sCB}, 3")
    A("s_cbranch_scc1 L_s_x")
    stream("w", rw)
    A("s_branch L_tail")
    C("column block 3 loads its wo lines at half the rate of the others: it runs further ahead")
    A("L_s_x:")
    stream("w", rx, "x")
    A("s_branch L_tail")
    C("---------------- stream: FFN workgroups ----------------")
    A("L_s_f:")
    stream("f", rf)
    A("s_branch L_tail")
    C("---------------- retry paths ----------------")
    for c in cold:
        c()
    A("L_end:")
    A("s_endpgm")
    C("never executed: keeps the code prefetch inside the section")
    L.append(f".if (. - L_pc) > {PFL*4096}")
    L.append('.error "code prefetch too short"')
    L.append(".endif")
    L.append(f".fill ({PFL*4096} - (. - L_pc)) / 4, 4, 0xbf810000")
    L.append('.section .rodata,"a"')
    L.append(".p2align 6")
    L.append(f".amdhsa_kernel {NAME}_kernel")
    L.append("  .amdhsa_next_free_vgpr 256")
    L.append("  .amdhsa_next_free_sgpr 102")
    L.append("  .amdhsa_accum_offset 256")
    L.append("  .amdhsa_group_segment_fixed_size 0")
    L.append("  .amdhsa_kernarg_size 104")
    L.append("  .amdhsa_user_sgpr_count 2")
    L.append("  .amdhsa_user_sgpr_kernarg_segment_ptr 1")
    L.append("  .amdhsa_system_sgpr_workgroup_id_x 1")
    L.append("  .amdhsa_float_denorm_mode_32 3")
    L.append(".end_amdhsa_kernel")
    return "\n".join(L) + "\n", stamps


if __name__ == "__main__":
    header = open("cdna_kernels/" + NAME + ".s.ref").read().split("; Override launch")[0]
    kw = eval("dict(" + (sys.argv[2] if len(sys.argv) > 2 else "") + ")")
    src, _ = gen(**kw)
    open(sys.argv[1], "w").write(header + src)
```

```python
import gen17, sys
def mk(wg, wave, marker, after=True, pre="", amp=10, **kw):
    src,_ = gen17.gen(minT=40, minX=wg, **kw)
    a = f"    s_cmp_lg_u32 s2, {wg}\n    s_cbranch_scc1 L_nospin\n"
    src = src.replace(a, a + f"    s_cmp_lg_u32 s57, {wave}\n    s_cbranch_scc1 L_nospin\n    s_sub_u32 s96, s96, s100\n    s_mul_i32 s96, s96, {amp}\n    s_add_u32 s96, s96, 4000\n")
    src = src.replace("s_cmp_lt_u32 s98, 4000", "s_cmp_lt_u32 s98, s96")
    assert src.count(marker) >= 1, marker
    st = pre + "    s_memrealtime s[96:97]\n"
    i = src.index(marker, src.index("L_rest:") if not marker.startswith("L_no") else 0)
    if after: i += len(marker)
    return src[:i] + st + src[i:]
if __name__ == "__main__":
    wg = int(sys.argv[1])
    open("e1.s","w").write(mk(wg, 5, "L_norace:\n"))
    open("e2.s","w").write(mk(wg, 1, "    s_waitcnt vmcnt(3)\n"))
    open("e3.s","w").write(mk(wg, 1, "    s_barrier\n"))
    open("e4.s","w").write(mk(wg, 1, "    s_barrier\n    s_waitcnt lgkmcnt(0)\n"))
    open("e5.s","w").write(mk(wg, 1, "L_join:\n"))
    open("e6.s","w").write(mk(wg, 1, "L_tail:\n", amp=2))
```
